```python
import torch

def _softmax(x, axis=-1):
    return torch.softmax(x, dim=axis)
def _gelu(x):
    return torch.nn.functional.gelu(x, approximate="tanh")
def _silu(x):
    return torch.nn.functional.silu(x)
def _sigmoid(x):
    return torch.sigmoid(x)
def _layernorm(x, axis=-1, eps=1e-5):
    m = x.mean(dim=axis, keepdim=True)
    v = x.var(dim=axis, keepdim=True, unbiased=False)
    return (x - m) / torch.sqrt(v + eps)
def _scatter_add(tgt, idx, src, axis=0):
    return tgt.clone().index_add_(axis, idx, src)
def _segment_sum(src, seg, n):
    out = torch.zeros((n,) + src.shape[1:], dtype=src.dtype)
    return out.index_add_(0, seg, src)
def _pad(x, pw):
    flat = tuple(v for pair in reversed(pw) for v in pair)
    return torch.nn.functional.pad(x, flat)

kernel_name = 'standalone__cross_network_dcn_v2__recsys'

def setup_inputs():

    _w = (lambda a: (lambda t: t.to(torch.bfloat16) if t.is_floating_point() else t)(torch.as_tensor(a)))
    B, F, D, L = 4096, 100, 16, 6
    Din = min(F * D, 512)
    R = max(Din // 4, 2)
    sc = Din ** -0.5
    return {
        "x0": _w((lambda *s: torch.randn(*s, dtype=torch.bfloat16) * 0.05)(B, Din)),
        "U":  _w((lambda *s: torch.randn(*s, dtype=torch.bfloat16) * 1.6)(L, Din, R) * sc),
        "V":  _w((lambda *s: torch.randn(*s, dtype=torch.bfloat16) * 1.6)(L, R, Din) * sc),
        "bs": _w((lambda *s: torch.randn(*s, dtype=torch.bfloat16) * 0.05)(L, Din)),
    }

def reference(x0, U, V, bs):
    x = x0
    for l in range(U.shape[0]):
        h = torch.einsum('rd,bd->br', V[l], x)
        h = torch.einsum('dr,br->bd', U[l], h)
        x = x0 * (h + bs[l]) + x
    return x
```

```python
import re, subprocess, os, tempfile

def _regs(tok):
    tok = tok.strip()
    m = re.fullmatch(r"([vas])(\d+)", tok)
    if m: return {(m.group(1), int(m.group(2)))}
    m = re.fullmatch(r"([vas])\[(\d+):(\d+)\]", tok)
    if m: return {(m.group(1), i) for i in range(int(m.group(2)), int(m.group(3)) + 1)}
    if tok in ("vcc", "m0", "exec"): return {(tok, 0)}
    if tok in ("exec_lo", "exec_hi"): return {("exec", 0)}
    return set()

def parse(line):
    s = line.split(";")[0].strip()
    if not s or s.endswith(":") or s.startswith("."): return None
    parts = s.split(None, 1)
    mn = parts[0]; ops = []
    if len(parts) > 1:
        ops = [o.strip() for o in re.split(r",(?![^\[]*\])", parts[1])]
        if ops: ops[-1:] = ops[-1].split()
    d = dict(mn=mn, ops=ops, wr=set(), rd=set(), kind="other", slots=1, C=set(), AB=set(), data=set())
    R = lambda i: _regs(ops[i]) if i < len(ops) else set()
    if mn == "s_nop": d["slots"] = int(ops[0]) + 1; d["kind"] = "nop"
    elif mn.startswith("v_mfma"):
        d["kind"] = "mfma"; d["wr"] = R(0); d["AB"] = R(1) | R(2); d["C"] = R(3); d["rd"] = d["AB"] | d["C"]
        d["passes"] = 8 if "32x32" in mn else 4
    elif mn.startswith("v_cmp"):
        d["kind"] = "valu"; d["wr"] = R(0); d["rd"] = R(1) | R(2)
    elif mn.startswith("v_readfirstlane") or mn.startswith("v_readlane"):
        d["kind"] = "valu"; d["sub"] = "rl"; d["wr"] = R(0); d["rd"] = R(1)
    elif mn.startswith("v_"):
        d["kind"] = "valu"; d["wr"] = R(0)
        for i in range(1, len(ops)): d["rd"] |= R(i)
        if mn.startswith("v_writelane") or mn.startswith("v_fmac"): d["rd"] |= R(0)
    elif mn.startswith("ds_read"):
        d["kind"] = "ds"; d["wr"] = R(0); d["rd"] = R(1)
    elif mn.startswith("ds_write"):
        d["kind"] = "ds"; d["rd"] = R(0) | R(1)
    elif mn.startswith("buffer_load") or mn.startswith("global_load"):
        d["kind"] = "vmem"
        if "lds" in ops:
            d["lds"] = True
            for i in range(len(ops)): d["rd"] |= R(i)
        else:
            d["wr"] = R(0)
            for i in range(1, len(ops)): d["rd"] |= R(i)
    elif mn.startswith("buffer_store") or mn.startswith("global_store"):
        d["kind"] = "vmem"
        for i in range(len(ops)): d["rd"] |= R(i)
        if "x4" in mn or "x3" in mn: d["data"] = R(0) if mn.startswith("buffer") else R(1)
    elif mn.startswith("s_"):
        d["kind"] = "salu"
        if not (mn.startswith("s_cmp") or mn.startswith("s_cbranch") or mn in ("s_branch", "s_waitcnt", "s_barrier", "s_endpgm", "s_sleep", "s_setprio")):
            d["wr"] = R(0)
            for i in range(1, len(ops)): d["rd"] |= R(i)
        else:
            for i in range(len(ops)): d["rd"] |= R(i)
    return d

def need(p, c):
    n = 0
    vec = lambda S: {r for r in S if r[0] in "va"}
    sc = lambda S: {r for r in S if r[0] == "s" or r[0] == "vcc"}
    if p["kind"] == "valu":
        if c["kind"] == "mfma" and vec(p["wr"]) & c["rd"]: n = max(n, 2)
        if c.get("sub") == "rl" and vec(p["wr"]) & c["rd"]: n = max(n, 1)
        if c["kind"] == "vmem" and sc(p["wr"]) & c["rd"]: n = max(n, 5)
        if c["kind"] == "valu" and sc(p["wr"]) & c["rd"]: n = max(n, 2)
        if c["mn"].startswith("v_permlane") and vec(p["wr"]) & (c["rd"] | c["wr"]): n = max(n, 2)
    if p["kind"] == "mfma":
        big = p["passes"] == 8
        if c["kind"] == "mfma":
            if p["wr"] & c["AB"]: n = max(n, 12 if big else 8)
            if p["wr"] & c["C"] and not (p["wr"] == c["C"] and p["passes"] == c["passes"]): n = max(n, 10 if big else 6)
            if p["wr"] & c["wr"] and not (p["wr"] == c["C"]): n = max(n, 12 if big else 8)
        elif c["kind"] in ("valu", "ds", "vmem"):
            if p["wr"] & (c["rd"] | c["wr"]): n = max(n, 12 if big else 8)
            if c["kind"] == "valu" and p["C"] & c["wr"]: n = max(n, 7 if big else 3)
    if p["data"] and c["kind"] == "valu" and p["data"] & c["wr"]: n = max(n, 2)
    if p["data"] and c["kind"] in ("ds", "vmem") and p["data"] & c["wr"]: n = max(n, 1)
    if p["kind"] == "salu" and ("m0", 0) in p["wr"] and c.get("lds"): n = max(n, 1)
    return n

def fix_hazards(lines, log=None):
    out = []; hist = []
    added = 0
    for ln in lines:
        d = parse(ln)
        if d is None:
            out.append(ln); continue
        dist = 0; pad = 0
        for p in reversed(hist[-16:]):
            r = need(p, d)
            if r > dist: pad = max(pad, r - dist)
            dist += p["slots"]
            if dist >= 12: break
        if pad:
            out.append(f"    s_nop {pad-1}"); hist.append(parse(f"s_nop {pad-1}")); added += pad
            if log is not None: log.append((ln.strip(), pad))
        out.append(ln); hist.append(d)
    return out, added

def sizes(text):
    with tempfile.TemporaryDirectory() as td:
        s = os.path.join(td, "a.s"); o = os.path.join(td, "a.o")
        open(s, "w").write(text)
        r = subprocess.run(["clang", "-x", "assembler", "-target", "amdgcn-amd-amdhsa", "-mcpu=gfx950", "-c", s, "-o", o], capture_output=True, text=True)
        assert r.returncode == 0, r.stderr
        dis = subprocess.run(["llvm-objdump", "-d", "--mcpu=gfx950", o], capture_output=True, text=True).stdout
    res = []
    for l in dis.splitlines():
        m = re.search(r"//\s*([0-9A-F]{12}):((?: [0-9A-F]{8})+)", l)
        if m: res.append(4 * len(m.group(2).split()))
    return res

WIDEN = ("v_lshlrev_b32", "v_lshrrev_b32", "v_and_b32", "v_or_b32", "v_xor_b32", "v_mov_b32", "v_add_u32", "v_cmp_eq_u32", "v_cmp_ne_u32", "v_add_f32")
def align(lines, wrap, minrun=2):
    idx = [i for i, l in enumerate(lines) if parse(l) is not None]
    sz = sizes(wrap(lines))
    assert len(sz) >= len(idx), (len(sz), len(idx))
    out = list(lines); ins = {}
    off = 0; last4 = None; nw = nn = 0
    for k, i in enumerate(idx):
        s = sz[k]
        if s == 8 and off % 8 == 4:
            run = 0
            while k + run < len(idx) and sz[k + run] == 8: run += 1
            if last4 is not None and parse(out[last4])["mn"] in WIDEN:
                t = out[last4]; mn = parse(t)["mn"]
                out[last4] = t.replace(mn, mn + "_e64", 1); off += 4; nw += 1
            elif run >= minrun:
                ins[i] = "    s_nop 0"; off += 4; nn += 1
        if s == 4: last4 = i
        elif off % 8 == 0: last4 = None
        off += s
        if s == 4 and off % 8 == 0: last4 = None
    res = []
    for i, l in enumerate(out):
        if i in ins: res.append(ins[i])
        res.append(l)
    return res, nw, nn
```

```python
import sys, copy
from asmlib import fix_hazards, align
KN = "standalone__cross_network_dcn_v2__recsys_kernel"
L = 6
XB = 131072; HB = 147456; BIASB = 155648; LDS_BYTES = 161792
TAGS = [1, 1, 0, 0, 1, 1]

vLANE = 1; vA = 2; vE = 3; vV = [4, 5, 6, 7]; vU = [8, 9, 10, 11]
vXW = 12; vXR = [None, 13, 14, 15]; vHW = 16; vHR = [None, 17, 18, 19]
vBI = 20; vLIN = 21; vT = [22, 23, 24, 25]; vJ = 0
ACC1 = 26; ACC2 = 34; XF = 50; X0F = 66; PK = 82; HP = 90; RX = 94; TM = ACC2; SP = HP; T4 = 98
NV = 104
aV = 0; aU = 64; aX = 128; aH = 128; aS = 128; NS = 6; NA = 152
sX0 = 4; sV = 8; sU = 12; sO = 16; sE = 20; sD = 24; sB = 28; sW = 32
sKA = 36
sWV = 50; sHF = 51; sRB = 52; sXCC = 53; sMODE = 54
sVG = [55, 56, 57, 58]; sUG = [59, 60, 61, 62]; sSO = [63, 64]; sLB = 65
sMY = [66, 67]; sWS = 68; sXH = 69
sCNT = 70; sT = [71, 72, 73, 74, 75, 76, 77, 78]; sPTMP = 79
sSTAMP = 80

def vr(b, n): return f"v[{b}:{b+n-1}]"
def ar(b, n): return f"a[{b}:{b+n-1}]"
def sr(b, n): return f"s[{b}:{b+n-1}]"

class Gen:
    def __init__(self, prof=None, opts=None):
        self.o = []; self.ool = []; self.vm = []; self.lg = []; self.vmdone = 0; self.lgdone = 0
        self.prof = prof; self.opts = opts or {}; self.names = []
        self.pw = []; self.nso = 0; self.nst = 0; self.X = 0
        self.pat = self.opts.get("pat", "BBBB/BBBB/DBDB/DBDB"); self.lag = self.opts.get("lag", 4)
    def fork(self, X):
        g = copy.copy(self); g.o = []; g.vm = list(self.vm); g.lg = list(self.lg); g.pw = list(self.pw); g.X = X
        return g
    def a(self, s): self.o.append("    " + s)
    def x(self, s): self.ool.append("    " + s)
    def xl(self, s): self.ool.append(s + ":")
    def lab(self, s): self.o.append(s + ":")
    def c(self, s): self.o.append("    ; " + s)
    def vmop(self, s, tag): self.vm.append(tag); self.a(s)
    def lgop(self, s, tag): self.lg.append(tag); self.a(s)
    def _last(self, lst, tag):
        idx = [i for i, t in enumerate(lst) if t == tag]
        return idx[-1] if idx else None
    def wvm(self, tag):
        i = self._last(self.vm, tag)
        if i is not None: self.wvmi(i)
    def wvmi(self, i):
        if i < self.vmdone: return
        n = min(len(self.vm) - 1 - i, 63); self.vmdone = len(self.vm) - n
        self.a(f"s_waitcnt vmcnt({n})")
    def wlg(self, tag):
        i = self._last(self.lg, tag)
        if i is None or i < self.lgdone: return
        n = min(len(self.lg) - 1 - i, 15); self.lgdone = len(self.lg) - n
        self.a(f"s_waitcnt lgkmcnt({n})")
    def wlg0(self):
        if self.lgdone < len(self.lg): self.lgdone = len(self.lg); self.a("s_waitcnt lgkmcnt(0)")
    def bar(self, name=None):
        self.wlg0()
        if name: self.stamp(name + "a")
        self.a("s_barrier")
        if name: self.stamp(name + "b")
    def stamp(self, name):
        nm = name + "AB"[self.X] if False else name
        if self.prof and nm in self.prof:
            r = sSTAMP + 2 * self.prof.index(nm)
            assert r + 1 <= 101
            self.a(f"s_memrealtime s[{r}:{r+1}]" if nm.startswith("rt") else f"s_memtime s[{r}:{r+1}]")
    def rec(self, name, src):
        if self.prof and name in self.prof:
            self.a(f"s_mov_b32 s{sSTAMP + 2*self.prof.index(name)}, {src}")
    def prio(self, p):
        m = self.opts.get("prio", 1)
        if m == 1: self.a(f"s_setprio {p}")
        if m == 2: self.a(f"s_setprio {2-p}")
    def dma(self, kind, l, g, pat=None):
        if l >= L: return []
        if self.opts.get("dma") == "off" and l >= 2: return []
        pat = pat or self.pat.split("/")[g]
        so = sSO[self.nso & 1]; self.nso += 1
        base, sg, vv, srd = (0, sVG, vV, sV) if kind == "V" else (16384, sUG, vU, sU)
        tag = f"{kind}{l}" + "ab"[g >> 1]
        items = []
        for j in range(4):
            def emit(j=j):
                while self.pw and len(self.vm) - self.pw[0][0] > self.lag: self.pw.pop(0)[1]()
                if j == 0:
                    self.a(f"s_add_u32 m0, s{sLB}, {base+g*4096}"); self.a(f"s_add_u32 s{so}, s{sg[g]}, {l*131072}")
                if pat[j % len(pat)] in "DBC":
                    self.vmop(f"buffer_load_dwordx4 v{vv[j]}, {sr(srd,4)}, s{so} offen offset:{1024*j} lds", tag)
                    for q in range({"D": 0, "B": 1, "C": 2}[pat[j % len(pat)]]): self.vmop(f"buffer_load_dword v{vJ}, off, {sr(sB,4)}, 0", "gap")
                else:
                    nv = pat[:j].count("V")
                    st = aS + 4 * ((g if g < 3 else 3 + nv) if pat.count("V") == 1 or g == 3 else (self.nst % 3)); self.nst += 1
                    assert st + 4 <= aS + 4*NS
                    self.vmop(f"buffer_load_dwordx4 {ar(st,4)}, v{vv[j]}, {sr(srd,4)}, s{so} offen offset:{1024*j}", tag)
                    vi = len(self.vm) - 1
                    def wr():
                        self.wvmi(vi)
                        self.lgop(f"ds_write_b128 v{vLIN}, {ar(st,4)} offset:{base+g*4096+j*1024}", "sw")
                    self.pw.append((vi, wr, g))
            items.append(emit)
        return items
    def flush(self, keep3=False):
        while self.pw and not (keep3 and self.pw[0][2] == 3): self.pw.pop(0)[1]()
    def rdV(self, g):
        return [lambda j=j: self.lgop(f"ds_read_b128 {ar(aV+4*(4*g+j),4)}, v{vA} offset:{g*4096+j*1024}", f"rV{g}_{j>>1}") for j in range(4)]
    def rdU(self, g):
        return [lambda j=j: self.lgop(f"ds_read_b128 {ar(aU+4*(4*g+j),4)}, v{vA} offset:{16384+g*4096+j*1024}", f"rU{g}") for j in range(4)]
    def mf1(self, ks, fill=None):
        for ta in range(2):
            b = vr(PK + 4*ks, 4) if ks < 2 else ar(aX + 4*(ks-2), 4)
            d = vr(ACC1 + 4*ta, 4)
            self.a(f"v_mfma_f32_16x16x32_bf16 {d}, {ar(aV+4*(2*ks+ta),4)}, {b}, {'0' if ks == 0 else d}")
            if fill: self.run(fill[ta])
    def mf2(self, P, kr, fill=None):
        for ta in range(2):
            b = vr(HP, 4) if kr == 0 else ar(aH + 4*(kr-1), 4)
            d = vr(ACC2 + 8*P + 4*ta, 4)
            idx = ((kr >> 1)*2 + P)*4 + (kr & 1)*2 + ta
            self.a(f"v_mfma_f32_16x16x32_bf16 {d}, {ar(aU+4*idx,4)}, {b}, {d}")
            if fill: self.run(fill[ta])
    def epi(self, P, l, pk=False):
        r = []
        if pk:
            for e in range(4):
                q = 8*P + 2*e
                r.append(lambda q=q: self.a(f"v_pk_fma_f32 {vr(ACC2+q,2)}, {vr(X0F+q,2)}, {vr(ACC2+q,2)}, {vr(XF+q,2)}"))
        else:
            for e in range(8):
                q = 8*P + e
                r.append(lambda q=q: self.a(f"v_fma_f32 v{ACC2+q}, v{X0F+q}, v{ACC2+q}, v{XF+q}"))
        for e in range(4):
            q = 8*P + 2*e
            r.append(lambda q=q: self.a(f"v_cvt_pk_bf16_f32 v{PK+q//2}, v{ACC2+q}, v{ACC2+q+1}"))
        if l < L-1: r.append(lambda: self.lgop(f"ds_write_b128 v{vXW}, {vr(PK+4*P,4)} offset:{P*1024}", "xw"))
        else: r.append(lambda: self.lgop(f"ds_write_b128 v{vT[P]}, {vr(PK+4*P,4)}", "xw"))
        return r
    def unpack(self, dst, src, n):
        r = []
        for i in range(n):
            r.append(lambda i=i: self.a(f"v_lshlrev_b32 v{dst+2*i}, 16, v{src+i}"))
            r.append(lambda i=i: self.a(f"v_and_b32 v{dst+2*i+1}, 0xffff0000, v{src+i}"))
        return r
    def bias_rd(self, l):
        for k in range(4):
            self.lgop(f"ds_read_b128 {vr(ACC2+4*k,4)}, v{vBI} offset:{l*256 + (k>>1)*128 + (k&1)*16}", "bias")
    def run(self, lst):
        for f in lst: f()
    def mix(self, *lists):
        lists = [list(x) for x in lists]
        while any(lists):
            for x in lists:
                if x: x.pop(0)()
    def srd(self, r, p, n, bias=0):
        if bias:
            self.a(f"s_sub_u32 s{r}, s{p}, {bias}"); self.a(f"s_subb_u32 s{r+1}, s{p+1}, 0")
        else:
            self.a(f"s_mov_b32 s{r}, s{p}"); self.a(f"s_mov_b32 s{r+1}, s{p+1}")
        self.a(f"s_mov_b32 s{r+2}, {n+bias}"); self.a(f"s_mov_b32 s{r+3}, 0x20000")
    def poll(self, l):
        self.vmop(f"buffer_load_dwordx4 {vr(RX,4)}, v{vE}, {sr(sE,4)}, s{sMY[l&1]} offen sc1", f"poll{l}")
    def send(self, l, u=None):
        a = self.a; u = u if u is not None else f"{self.X}{l}"
        a(f"s_xor_b32 s{sPTMP}, s{sMY[l&1]}, 512")
        for k in range(4): a(f"v_cvt_pk_bf16_f32 v{SP+k}, v{ACC1+2*k}, v{ACC1+2*k+1}")
        for k in range(4): a(f"v_or_b32 v{SP+k}, 1, v{SP+k}" if TAGS[l] else f"v_and_b32 v{SP+k}, -2, v{SP+k}")
        if l == 0: self.handshake()
        self.stamp(f"snd{u}")
        a(f"s_cmp_eq_u32 s{sMODE}, 0"); a(f"s_cbranch_scc1 L_ss{u}")
        self.vmop(f"buffer_store_dwordx4 {vr(SP,4)}, v{vE}, {sr(sE,4)}, s{sPTMP} offen", "st")
        self.lab(f"L_sd{u}")
        self.xl(f"L_ss{u}")
        self.x(f"buffer_store_dwordx4 {vr(SP,4)}, v{vE}, {sr(sE,4)}, s{sPTMP} offen sc1")
        self.x("s_nop 1"); self.x(f"s_branch L_sd{u}")
    def chk_ops(self, l):
        R = RX; t0 = vT[3]
        if TAGS[l]:
            return [f"v_bitop3_b32 v{t0}, v{R}, v{R+1}, v{R+2} bitop3:0x80", f"v_bitop3_b32 v{t0}, v{t0}, v{R+3}, 1 bitop3:0x80", f"v_cmp_eq_u32 vcc, 0, v{t0}"]
        return [f"v_or3_b32 v{t0}, v{R}, v{R+1}, v{R+2}", f"v_bitop3_b32 v{t0}, v{t0}, 1, v{R+3} bitop3:0xc8", f"v_cmp_ne_u32 vcc, 0, v{t0}"]
    def check_post(self, l, d=None):
        u = f"{self.X}{l}"; x = self.x; a = self.a
        self.wvm(f"poll{l}")
        self.stamp(f"chk{u}")
        if self.opts.get("dbgcnt"): a(f"s_mov_b32 s{sCNT}, 0")
        for s in self.chk_ops(l): a(s)
        a(f"s_cbranch_vccnz L_rt{u}")
        self.lab(f"L_got{u}")
        self.stamp(f"got{u}")
        if self.opts.get("dbgcnt"): self.rec(f"cnt{l}", f"s{sCNT}")
        self.xl(f"L_rt{u}")
        x(f"s_mov_b32 s{sCNT}, 0")
        self.xl(f"L_rl{u}")
        x(f"buffer_load_dwordx4 {vr(RX,4)}, v{vE}, {sr(sE,4)}, s{sMY[l&1]} offen sc1")
        x(f"s_add_u32 s{sCNT}, s{sCNT}, 1"); x(f"s_cmp_gt_u32 s{sCNT}, 0x200000")
        x("s_waitcnt vmcnt(0)")
        x(f"s_cbranch_scc1 L_got{u}")
        for s in self.chk_ops(l): x(s)
        x(f"s_cbranch_vccnz L_rl{u}")
        x(f"s_branch L_got{u}")
        ops = []
        for h in range(2):
            ops += self.unpack(T4, RX+2*h, 2)
            if self.opts.get("pkadd", 0):
                for k in range(2): ops.append(lambda k=k, h=h: a(f"v_pk_add_f32 {vr(T4+2*k,2)}, {vr(T4+2*k,2)}, {vr(ACC1+4*h+2*k,2)}"))
            else:
                for k in range(4): ops.append(lambda k=k, h=h: a(f"v_add_f32 v{T4+k}, v{T4+k}, v{ACC1+4*h+k}"))
            for k in range(2): ops.append(lambda k=k, h=h: a(f"v_cvt_pk_bf16_f32 v{HP+2*h+k}, v{T4+2*k}, v{T4+2*k+1}"))
        ops.append(lambda: self.lgop(f"ds_write_b128 v{vHW}, {vr(HP,4)}", "hw"))
        if d is None:
            self.run(ops); self.bias_rd(l); return
        d = list(d); st = self.opts.get("vper", 10)
        while ops:
            self.run(ops[:st]); ops = ops[st:]
            if ops and d: d.pop(0)()
        self.run(d)
    def x_reads(self):
        return [lambda ks=ks: self.lgop(f"ds_read_b128 {ar(aX+4*(ks-2),4)}, v{vXR[ks>>1]} offset:{(ks&1)*1024}", f"x{ks}") for ks in range(2, 8)]
    def h_reads(self):
        for kr in range(1, 4):
            self.lgop(f"ds_read_b128 {ar(aH+4*(kr-1),4)}, v{vHR[kr]}", f"h{kr}")

    def g2_phase(self, l, early=None, mid=None, late=None):
        early = list(early or []); mid = list(mid or []); late = list(late or [])
        def take(q): return [q[0:1], q[1:2]]
        self.h_reads()
        self.mf2(0, 0, take(early)); self.mf2(1, 0, take(early[2:]))
        self.wlg("h1"); self.mf2(0, 1, take(early[4:]))
        self.wlg("h2"); self.mf2(0, 2, take(early[6:] + mid))
        self.wlg("h3"); self.mf2(0, 3, take(mid[2:]))
        self.flush()
        e0 = self.epi(0, l); e1 = self.epi(1, l, pk=self.opts.get("pkfma", 1))
        u = f"{self.X}{l}"
        self.stamp(f"g2a{u}")
        self.mf2(1, 1); self.mf2(1, 2, [late[0:2], late[2:4]])
        self.stamp(f"g2b{u}")
        self.mf2(1, 3, [e0[0:2], e0[2:-1]])
        self.stamp(f"g2c{u}")
        e0[-1]()
        self.stamp(f"g2d{u}")
        self.run(e1[:-1])
        self.stamp(f"g2e{u}")
        e1[-1]()
        self.stamp(f"g2f{u}")
    def g1_phase(self, l, jitV=False, extra=None):
        xr = self.x_reads(); extra = list(extra or [])
        if jitV:
            rv = self.rdV(2) + self.rdV(3)
            self.run(xr[0:2])
            q = [xr[2], rv[0], rv[1], xr[3], rv[2], rv[3], xr[4], rv[4], rv[5], xr[5], rv[6], rv[7]]
            for ks in range(8):
                self.wlg(f"rV{ks>>1}_{ks&1}")
                if ks >= 2: self.wlg(f"x{ks}")
                self.mf1(ks, [q[0:2], q[2:3]]); q = q[3:]
        else:
            self.run(xr)
            for ks in range(8):
                if ks >= 2: self.wlg(f"x{ks}")
                self.mf1(ks, [extra[0:1], extra[1:2]]); extra = extra[2:]
            self.run(extra)
        self.send(l)

    def prologue(self):
        a = self.a; T = [X0F + i for i in range(10)]
        a(f"s_load_dwordx8 {sr(sKA,8)}, s[0:1], 0")
        a(f"s_load_dwordx4 {sr(sKA+8,4)}, s[0:1], 32")
        a(f"s_load_dwordx2 {sr(sKA+12,2)}, s[0:1], 48")
        a("s_cmp_ge_u32 s2, 256"); a("s_cbranch_scc1 L_end")
        self.stamp("start"); self.stamp("rt0")
        a(f"v_lshrrev_b32 v{T[0]}, 6, v0"); a(f"v_and_b32 v{vLANE}, 63, v0")
        a(f"s_lshr_b32 s{sT[0]}, s2, 3")
        a(f"v_readfirstlane_b32 s{sWV}, v{T[0]}")
        a(f"s_lshl_b32 s{sT[0]}, s{sT[0]}, 3"); a(f"s_add_u32 s{sT[6]}, s{sT[0]}, s{sWV}")
        if self.opts.get("codepf", 1):
            a(f"s_getpc_b64 {sr(sX0,2)}")
            a(f"s_and_b32 s{sX0}, s{sX0}, 0xffffff00")
            a(f"s_lshl_b32 s{sT[1]}, s{sT[6]}, 7"); a(f"v_mov_b32 v{T[1]}, s{sT[1]}")
            a(f"s_cmp_ge_u32 s{sT[1]}, CODE_BYTES"); a("s_cbranch_scc1 L_nocpf")
            a("s_mov_b64 exec, 1")
            a(f"global_load_dword v{vJ}, v{T[1]}, {sr(sX0,2)}")
            a("s_mov_b64 exec, -1")
            self.lab("L_nocpf")
        a(f"s_and_b32 s{sWS}, s{sWV}, 3"); a(f"s_lshr_b32 s{sXH}, s{sWV}, 2")
        a(f"v_lshrrev_b32 v{T[6]}, 2, v{vLANE}"); a(f"v_and_b32 v{T[7]}, 3, v{vLANE}")
        a(f"v_lshlrev_b32 v{T[9]}, 7, v{T[7]}"); a(f"v_lshl_add_u32 v{T[9]}, v{T[6]}, 17, v{T[9]}")
        a(f"s_lshl_b32 s{sT[6]}, s{sT[6]}, 9"); a(f"s_add_u32 s{sT[6]}, s{sT[6]}, 3072")
        a(f"s_bfe_u32 s{sHF}, s2, 0x10003")
        a(f"s_lshr_b32 s{sT[0]}, s2, 4"); a(f"s_lshl_b32 s{sT[0]}, s{sT[0]}, 3"); a(f"s_and_b32 s{sRB}, s2, 7"); a(f"s_or_b32 s{sRB}, s{sRB}, s{sT[0]}")
        a(f"s_lshl_b32 s{sLB}, s{sWS}, 15")
        a(f"v_lshrrev_b32 v{T[0]}, 4, v{vLANE}")
        a(f"s_movk_i32 s{sPTMP}, 0x78"); a(f"v_lshlrev_b32 v{T[1]}, 1, v{T[0]}"); a(f"v_lshrrev_b32 v{T[2]}, v{T[1]}, s{sPTMP}")
        a(f"v_xor_b32 v{T[2]}, v{T[2]}, v{vLANE}"); a(f"v_and_b32 v{T[2]}, 3, v{T[2]}"); a(f"v_lshlrev_b32 v{T[2]}, 4, v{T[2]}")
        a(f"v_bfe_u32 v{T[1]}, v{vLANE}, 2, 2"); a(f"v_lshl_add_u32 v{T[1]}, v{T[0]}, 3, v{T[1]}")
        a(f"v_lshl_add_u32 v{T[3]}, v{T[1]}, 10, v{T[2]}"); a(f"v_lshl_add_u32 v{T[4]}, v{T[1]}, 8, v{T[2]}")
        for j in range(4):
            a(f"v_add_u32 v{vV[j]}, {(j&1)*4096 + (j>>1)*64 - 1024*j + 3072}, v{T[3]}")
        a(f"v_add_u32 v{T[5]}, {64 - 1024 + 3072}, v{T[3]}")
        a(f"s_lshl_b32 s{sT[2]}, s{sHF}, 9"); a(f"s_add_u32 s{sT[3]}, s{sLB}, s{sT[2]}")
        a(f"s_lshl_b32 s{sT[4]}, s{sRB}, 15"); a(f"s_add_u32 s{sT[4]}, s{sT[4]}, s{sT[2]}")
        a(f"s_lshl_b32 s{sT[5]}, s{sXH}, 12"); a(f"s_add_u32 s{sT[4]}, s{sT[4]}, s{sT[5]}")
        a(f"s_lshl_b32 s{sT[5]}, s{sWS}, 7"); a(f"s_add_u32 s{sT[7]}, s{sT[4]}, s{sT[5]}")
        a(f"s_lshr_b32 s{sT[5]}, s{sWS}, 1"); a(f"s_lshl_b32 s{sT[5]}, s{sT[5]}, 13"); a(f"s_add_u32 s{sT[4]}, s{sT[4]}, s{sT[5]}")
        a(f"s_and_b32 s{sT[5]}, s{sWS}, 1"); a(f"s_lshl_b32 s{sT[5]}, s{sT[5]}, 11"); a(f"s_add_u32 s{sMY[0]}, s{sT[4]}, s{sT[5]}")
        a(f"s_add_u32 s{sMY[1]}, s{sMY[0]}, 16384")
        for g in range(4):
            a(f"s_xor_b32 s{sT[4]}, s{sWS}, {g}"); a(f"s_lshl_b32 s{sT[4]}, s{sT[4]}, 7"); a(f"s_add_u32 s{sVG[g]}, s{sT[3]}, s{sT[4]}")
        a(f"v_lshrrev_b32 v{T[8]}, 5, v{vLANE}"); a(f"v_and_b32 v{vE}, 31, v{vLANE}"); a(f"v_lshlrev_b32 v{vE}, 4, v{vE}")
        a(f"v_lshl_add_u32 v{vE}, v{T[8]}, 10, v{vE}")
        for r in range(4): a(f"v_mov_b32 v{TM+r}, 0")
        a(f"v_mov_b32 v{vT[2]}, s2"); a(f"v_xor_b32 v{vT[2]}, 8, v{vT[2]}")
        a(f"s_lshl_b32 s{sT[5]}, s{sWS}, 12"); a(f"s_lshl_b32 s{sT[4]}, s{sXH}, 11"); a(f"s_add_u32 s{sT[5]}, s{sT[5]}, s{sT[4]}")
        a(f"s_add_u32 m0, s{sT[5]}, {XB}")
        a("s_waitcnt lgkmcnt(0)")
        self.stamp("karg")
        pf = self.opts.get("pf", 2)
        def pfl(lo):
            a(f"s_mov_b64 exec, {lo}")
            self.vmop(f"buffer_load_dword v{vJ}, v{T[9]}, {sr(sV,4)}, s{sT[6]} offen", "pf")
            self.vmop(f"buffer_load_dword v{vJ}, v{T[9]}, {sr(sU,4)}, s{sT[6]} offen", "pf")
            if self.opts.get("pf64"):
                self.vmop(f"buffer_load_dword v{vJ}, v{T[9]}, {sr(sV,4)}, s{sT[6]} offen offset:64", "pf")
                self.vmop(f"buffer_load_dword v{vJ}, v{T[9]}, {sr(sU,4)}, s{sT[6]} offen offset:64", "pf")
            a("s_mov_b64 exec, -1")
        self.srd(sV, sKA+4, 6*131072, 3072)
        self.srd(sU, sKA+2, 6*131072, 3072)
        if pf in (1, 2): pfl("0xf")
        if pf == 3: pfl("0xffffff")
        self.srd(sX0, sKA+0, 4096*1024, 3072)
        self.vmop(f"buffer_load_dwordx4 v{vV[0]}, {sr(sX0,4)}, s{sT[7]} offen lds", "x0")
        self.vmop(f"buffer_load_dwordx4 v{T[5]}, {sr(sX0,4)}, s{sT[7]} offen offset:1024 lds", "x0")
        if pf == 1: pfl("0xfffff0")
        a(f"s_lshl_b32 s{sT[4]}, s{sXH}, 13"); a(f"s_add_u32 s{sT[4]}, s{sT[4]}, s{sLB}")
        a(f"s_cmp_eq_u32 s{sXH}, 0")
        a(f"s_cselect_b32 s{sT[0]}, s{sVG[0]}, s{sVG[2]}"); a(f"s_cselect_b32 s{sT[1]}, s{sVG[1]}, s{sVG[3]}")
        def v0grp(k):
            a(f"s_add_u32 m0, s{sT[4]}, {k*4096}"); a("s_nop 0")
            for j in range(4):
                self.vmop(f"buffer_load_dwordx4 v{vV[j]}, {sr(sV,4)}, s{sT[k]} offen offset:{1024*j} lds", "V0")
                if (j & 1) and self.opts.get("pgap", 1): self.vmop(f"buffer_load_dword v{vJ}, off, {sr(sV,4)}, 0 offset:3072", "gap")
        v0grp(0)
        self.srd(sO, sKA+8, 4096*1024)
        self.srd(sB, sKA+6, 6*1024)
        self.srd(sD, sKA+10, 256)
        a(f"v_lshrrev_b32 v{T[6]}, 3, v{vLANE}"); a(f"v_and_b32 v{T[7]}, 7, v{vLANE}")
        a(f"v_lshlrev_b32 v{T[8]}, 4, v{T[7]}"); a(f"v_lshl_add_u32 v{T[8]}, v{T[6]}, 10, v{T[8]}")
        a(f"s_lshl_b32 s{sT[5]}, s{sWS}, 7"); a(f"s_add_u32 s{sT[5]}, s{sT[5]}, s{sT[2]}"); a(f"s_mul_i32 s{sT[3]}, s{sXH}, 3072"); a(f"s_add_u32 s{sT[5]}, s{sT[5]}, s{sT[3]}")
        a("s_mov_b64 exec, 0xffffff")
        self.vmop(f"buffer_load_dwordx4 {vr(TM+4,4)}, v{T[8]}, {sr(sB,4)}, s{sT[5]} offen", "bias")
        a("s_mov_b64 exec, 1")
        self.vmop(f"buffer_load_ubyte v{vJ}, v{vT[2]}, {sr(sD,4)}, 0 offen", "touch")
        a("s_mov_b64 exec, -1")
        v0grp(1)
        self.vmop(f"buffer_store_dwordx4 {vr(TM,4)}, v{vE}, {sr(sO,4)}, s{sMY[0]} offen", "clr")
        if pf == 2: pfl("0xfffff0")
        self.srd(sW, sKA+12, 8 << 20)
        self.srd(sE, sKA+8, 4096*1024)
        a(f"s_getreg_b32 s{sXCC}, hwreg(HW_REG_XCC_ID)"); a(f"s_and_b32 s{sXCC}, s{sXCC}, 15"); a(f"s_or_b32 s{sXCC}, s{sXCC}, 16")
        a(f"s_and_b32 s{sT[0]}, s{sWS}, 1"); a(f"s_lshl_b32 s{sT[0]}, s{sT[0]}, 6"); a(f"s_xor_b32 s{sT[1]}, s{sT[0]}, 64")
        for j in range(4):
            a(f"v_add_u32 v{vU[j]}, {(j&1)*1024 - 1024*j + 3072}, v{T[4]}")
            a(f"v_add_u32 v{vU[j]}, s{sT[j>>1]}, v{vU[j]}")
        a(f"s_lshl_b32 s{sT[0]}, s{sHF}, 16"); a(f"s_lshl_b32 s{sT[5]}, s{sWS}, 14"); a(f"s_add_u32 s{sT[0]}, s{sT[0]}, s{sT[5]}")
        for g in range(4):
            pp, P = g >> 1, g & 1
            a(f"s_xor_b32 s{sT[5]}, s{sWS}, {2*pp}"); a(f"s_and_b32 s{sT[5]}, s{sT[5]}, 2"); a(f"s_lshl_b32 s{sT[5]}, s{sT[5]}, 6")
            a(f"s_add_u32 s{sT[5]}, s{sT[5]}, {P*8192}"); a(f"s_add_u32 s{sUG[g]}, s{sT[0]}, s{sT[5]}")
        a(f"v_bfe_u32 v{T[1]}, v{vLANE}, 2, 2"); a(f"v_lshlrev_b32 v{T[1]}, 1, v{T[1]}"); a(f"v_lshrrev_b32 v{T[2]}, v{T[1]}, s{sPTMP}")
        a(f"v_xor_b32 v{T[2]}, v{T[2]}, v{T[0]}"); a(f"v_and_b32 v{T[2]}, 3, v{T[2]}"); a(f"v_lshlrev_b32 v{T[2]}, 4, v{T[2]}")
        a(f"v_and_b32 v{T[1]}, 15, v{vLANE}"); a(f"v_lshl_add_u32 v{T[2]}, v{T[1]}, 6, v{T[2]}")
        a(f"v_add_u32 v{vA}, s{sLB}, v{T[2]}")
        a(f"s_lshl_b32 s{sT[5]}, s{sWS}, 12"); a(f"s_lshl_b32 s{sT[0]}, s{sXH}, 11"); a(f"s_add_u32 s{sT[5]}, s{sT[5]}, s{sT[0]}"); a(f"s_add_u32 s{sT[5]}, s{sT[5]}, {XB}")
        a(f"v_add_u32 v{T[3]}, s{sT[5]}, v{T[2]}")
        a(f"v_lshlrev_b32 v{T[1]}, 4, v{vLANE}")
        a(f"v_add_u32 v{vXW}, s{sT[5]}, v{T[1]}"); a(f"v_add_u32 v{vLIN}, s{sLB}, v{T[1]}")
        for g in range(1, 4): a(f"v_xor_b32 v{vXR[g]}, {g*4096}, v{vXW}")
        a(f"s_lshl_b32 s{sT[5]}, s{sWV}, 10"); a(f"s_add_u32 s{sT[5]}, s{sT[5]}, {HB}")
        a(f"v_add_u32 v{vHW}, s{sT[5]}, v{T[1]}")
        for g in range(1, 4): a(f"v_xor_b32 v{vHR[g]}, {g*1024}, v{vHW}")
        a(f"s_mul_i32 s{sT[5]}, s{sWS}, 1536"); a(f"s_add_u32 s{sT[5]}, s{sT[5]}, {BIASB}")
        a(f"v_lshlrev_b32 v{vBI}, 5, v{T[0]}"); a(f"v_add_u32 v{vBI}, s{sT[5]}, v{vBI}")
        a(f"s_mul_i32 s{sT[0]}, s{sXH}, 768"); a(f"s_add_u32 s{sT[5]}, s{sT[5]}, s{sT[0]}")
        a(f"v_lshlrev_b32 v{T[7]}, 5, v{T[7]}"); a(f"v_lshl_add_u32 v{T[7]}, v{T[6]}, 8, v{T[7]}"); a(f"v_add_u32 v{vT[0]}, s{sT[5]}, v{T[7]}")
        a(f"s_cmp_eq_u32 s{sXH}, 0")
        a(f"s_cselect_b32 s{sT[0]}, s{sUG[0]}, s{sUG[2]}"); a(f"s_cselect_b32 s{sT[1]}, s{sUG[1]}, s{sUG[3]}")
        def u0grp(k):
            r = [lambda: a(f"s_add_u32 m0, s{sT[4]}, {16384+k*4096}")]
            return [lambda j=j: ((a(f"s_add_u32 m0, s{sT[4]}, {16384+k*4096}"), a("s_nop 0")) if j == 0 else None,
                                 self.vmop(f"buffer_load_dwordx4 v{vU[j]}, {sr(sU,4)}, s{sT[k]} offen offset:{1024*j} lds", "U0"),
                                 self.vmop(f"buffer_load_dword v{vJ}, off, {sr(sB,4)}, 0", "gap") if (j & 1) and self.opts.get("pgap", 1) else None) for j in range(4)]
        a("s_barrier")
        self.stamp("issued")
        self.run(u0grp(0))
        self.wvm("x0")
        self.stamp("x0")
        for P in range(2):
            self.lgop(f"ds_read_b128 {vr(PK+4*P,4)}, v{T[3]} offset:{P*1024}", "x0r")
        self.wvm("bias")
        self.run(self.unpack(TM+8, TM+4, 4))
        self.wlg("x0r")
        for P in range(2):
            self.lgop(f"ds_write_b128 v{vXW}, {vr(PK+4*P,4)} offset:{P*1024}", "xw")
        a("s_mov_b64 exec, 0xffffff")
        self.lgop(f"ds_write_b128 v{vT[0]}, {vr(TM+8,4)}", "bw")
        self.lgop(f"ds_write_b128 v{vT[0]}, {vr(TM+12,4)} offset:16", "bw")
        a("s_mov_b64 exec, -1")
        self.run(self.unpack(X0F, PK, 8))
        self.wvm("V0"); self.wvm("clr")
        self.bar("b0")
        a(f"s_cmp_lg_u32 s{sWV}, 0"); a("s_cbranch_scc0 L_flag")
        self.lab("L_noflag")
        self.xl("L_flag")
        self.x(f"v_mov_b32 v{vT[0]}, s2"); self.x(f"v_mov_b32 v{vT[1]}, s{sXCC}"); self.x("s_mov_b64 exec, 1")
        self.x(f"buffer_store_byte v{vT[1]}, v{vT[0]}, {sr(sD,4)}, 0 offen"); self.x("s_mov_b64 exec, -1"); self.x("s_branch L_noflag")
        self.vmop(f"buffer_store_dwordx4 {vr(TM,4)}, v{vE}, {sr(sO,4)}, s{sMY[1]} offen", "clr1")
        xr = self.x_reads(); rv = [f for g in range(4) for f in self.rdV(g)]
        u1 = u0grp(1)
        self.run(rv[0:4]); self.run(xr[0:2]); self.run(rv[4:8]); self.run(xr[2:4])
        q = rv[8:12] + xr[4:6] + rv[12:16]
        for ks in range(8):
            self.wlg(f"rV{ks>>1}_{ks&1}")
            if ks >= 2: self.wlg(f"x{ks}")
            self.mf1(ks, [q[0:1], q[1:2]]); q = q[2:]
            if ks == 2: self.vmop(f"buffer_load_ubyte v{vT[1]}, v{vT[2]}, {sr(sD,4)}, 0 offen sc1", "flag")
            if ks >= 4: u1[ks-4]()
        self.send(0, "p")
        self.bar("b1")
        a(f"s_cmp_lg_u32 s{sXH}, 0"); a("s_cbranch_scc1 L_progB")

    def bias_ops(self, l):
        return [lambda k=k: self.lgop(f"ds_read_b128 {vr(ACC2+4*k,4)}, v{vBI} offset:{l*256 + (k>>1)*128 + (k&1)*16}", "bias") for k in range(4)]
    def light1(self, kind, l, rd, lp):
        d = self.dma(kind, l, 0) + self.dma(kind, l, 1)
        pp = self.opts.get("pollat", 6); r0 = self.opts.get("rd1at", 0)
        rd = list(rd) + self.bias_ops(lp)
        per = self.opts.get("rd1per", 4)
        for k in range(8):
            if k == pp: self.poll(lp)
            if k < len(d): d[k]()
            if r0 <= k: self.run(rd[:per]); rd = rd[per:]
            self.stamp(f"l1{self.X}{lp}_{k}")
        if pp >= 8: self.poll(lp)
    def light2(self, kind, l, rd, lp):
        d = self.dma(kind, l, 2) + self.dma(kind, l, 3) + [lambda: None] * 8
        p2 = self.opts.get("pre2", 3); rd = list(rd)
        self.run(d[:p2])
        self.run(rd[:4]); d[p2](); self.run(rd[4:]); d[p2+1]()
        self.stamp(f"pd{self.X}{lp}")
        self.check_post(lp, d[p2+2:p2+3])
        self.stamp(f"po{self.X}{lp}")
        ux = self.unpack(XF, PK, 8)
        self.run(ux[:8]); self.run(d[p2+3:p2+4]); self.run(ux[8:])
        self.wvm(f"{kind}{l}a")
        self.run(d[p2+4:8])
        self.stamp(f"en{self.X}{lp}")
    def progA(self):
        self.prio(0)
        d = self.dma("V", 1, 0) + self.dma("V", 1, 1)
        self.run(d[:4]); self.run(self.unpack(XF, PK, 8)); self.poll(0)
        self.wvm("U0")
        self.bar("b1x")
        self.mix(d[4:], self.rdU(0))
        self.check_post(0)
        self.run(self.rdU(1) + self.rdU(2) + self.rdU(3))
        self.wvm("V1a")
        self.bar("b2")
        for l in range(L):
            last = l == L-1
            self.c(f"==== A round {l} phase 0: G2 ====")
            self.prio(2)
            if last: self.final_addr()
            self.g2_phase(l, early=(None if last else self.rdV(0) + self.rdV(1)))
            if last:
                self.a("s_barrier"); self.final_store(); return
            self.wvm(f"V{l+1}b")
            self.stamp(f"g2g0{l}")
            self.bar(f"A0{l}")
            self.c(f"==== A round {l} phase 1: G1 ====")
            self.g1_phase(l+1, jitV=True)
            self.prio(0)
            self.bar(f"A1{l}")
            self.c(f"==== A round {l} phase 2 ====")
            self.light1("V", l+2, self.rdU(0) + self.rdU(1), l+1)
            self.bar(f"A2{l}")
            self.c(f"==== A round {l} phase 3 ====")
            self.light2("V", l+2, self.rdU(2) + self.rdU(3), l+1)
            self.bar(f"A3{l}")

    def progB(self):
        self.lab("L_progB")
        self.prio(0)
        d = self.dma("V", 1, 2) + self.dma("V", 1, 3)
        self.run(d[:4])
        self.wvm("U0")
        self.bar("b1x")
        self.mix(d[4:], [f for g in range(4) for f in self.rdU(g)])
        self.bar("b2")
        for l in range(L):
            last = l == L-1
            self.c(f"==== B round {l} phase 0 ====")
            if not last:
                self.light1("U", l+1, self.rdV(0) + self.rdV(1), l)
                if l == 0: self.wvm("V1b")
                self.bar(f"B0{l}")
                self.c(f"==== B round {l} phase 1 ====")
                self.light2("U", l+1, self.rdV(2) + self.rdV(3), l)
            else:
                self.run(self.unpack(XF, PK, 8)); self.final_addr()
                self.poll(l); self.check_post(l)
            self.bar(f"B1{l}")
            self.c(f"==== B round {l} phase 2: G2 ====")
            self.prio(2)
            if last:
                self.g2_phase(l); self.final_store(); return
            self.g2_phase(l, mid=self.rdU(0), late=self.rdU(1))
            self.wvm(f"U{l+1}b")
            self.bar(f"B2{l}")
            self.c(f"==== B round {l} phase 3: G1 ====")
            self.g1_phase(l+1, extra=self.rdU(2) + self.rdU(3))
            self.prio(0)
            self.bar(f"B3{l}")

    def final_addr(self):
        a = self.a; t = [RX, RX+1, RX+2]
        a(f"v_and_b32 v{t[0]}, 15, v{vLANE}"); a(f"v_lshrrev_b32 v{t[1]}, 4, v{vLANE}")
        a(f"v_and_b32 v{t[2]}, 7, v{t[0]}"); a(f"v_xor_b32 v{t[2]}, v{t[2]}, v{t[1]}"); a(f"v_lshlrev_b32 v{t[2]}, 4, v{t[2]}")
        a(f"v_lshl_add_u32 v{t[2]}, v{t[0]}, 7, v{t[2]}")
        a(f"v_and_b32 v{vT[0]}, 0xfffff800, v{vXW}"); a(f"v_add_u32 v{vT[0]}, v{vT[0]}, v{t[2]}"); a(f"v_xor_b32 v{vT[1]}, 64, v{vT[0]}")
        a(f"v_lshrrev_b32 v{t[0]}, 3, v{vLANE}"); a(f"v_xor_b32 v{t[1]}, v{t[0]}, v{vLANE}"); a(f"v_and_b32 v{t[1]}, 7, v{t[1]}")
        a(f"v_lshlrev_b32 v{t[1]}, 4, v{t[1]}")
        a(f"v_and_b32 v{t[2]}, 4, v{t[0]}"); a(f"v_add_u32 v{t[0]}, v{t[0]}, v{t[2]}")
        a(f"v_lshl_add_u32 v{vT[2]}, v{t[0]}, 10, v{t[1]}")

    def final_store(self):
        a = self.a; D = XF
        for m in range(2):
            self.lgop(f"ds_read_b128 {vr(D+4*m,4)}, v{vXW} offset:{m*1024}", f"fo{m}")
        fl = self.opts.get("outflags", "")
        for m in range(2):
            a(f"s_add_u32 s{sT[m]}, s{sT[7]}, {m*16384}")
            self.wlg(f"fo{m}")
            self.vmop(f"buffer_store_dwordx4 {vr(D+4*m,4)}, v{vT[2]}, {sr(sO,4)}, s{sT[m]} offen {fl}", "out")
        if self.prof:
            a("s_waitcnt vmcnt(0)")
            self.stamp("fin"); self.stamp("rt1")
            a("s_waitcnt lgkmcnt(0)")
            a(f"v_mov_b32 v{RX}, 0")
            for i in range(len(self.prof)): a(f"v_writelane_b32 v{RX}, s{sSTAMP+2*i}, {i}")
            a(f"s_lshl_b32 s{sT[0]}, s2, 3"); a(f"s_add_u32 s{sT[0]}, s{sT[0]}, s{sWV}"); a(f"s_lshl_b32 s{sT[0]}, s{sT[0]}, 8")
            a(f"s_add_u32 s{sT[0]}, s{sT[0]}, {6<<20}")
            a(f"v_lshlrev_b32 v{vT[0]}, 2, v{vLANE}")
            a(f"buffer_store_dword v{RX}, v{vT[0]}, {sr(sW,4)}, s{sT[0]} offen")
        for i in range(self.opts.get("delay", 0)): a("s_sleep 125")
        a("s_endpgm")

    def handshake(self):
        a = self.a; x = self.x; P = XF
        self.c("handshake: the partner's inbox is cleared; does it share this XCD?")
        a(f"s_mov_b32 s{sCNT}, 0"); a(f"s_mov_b32 s{sMODE}, 1")
        self.wvm("flag")
        a(f"v_readfirstlane_b32 s{sT[0]}, v{vT[1]}")
        a(f"s_cmp_eq_u32 s{sT[0]}, s{sXCC}"); a("s_cbranch_scc0 L_hs_fast")
        self.lab("L_hs_done")
        self.rec("hscnt", f"s{sCNT}"); self.rec("mode", f"s{sMODE}")
        self.xl("L_hs_fast")
        x(f"buffer_load_ubyte v{vT[1]}, v{vT[2]}, {sr(sD,4)}, 0 offen sc1")
        x("s_waitcnt vmcnt(0)")
        x(f"v_readfirstlane_b32 s{sT[0]}, v{vT[1]}")
        x(f"s_cmp_eq_u32 s{sT[0]}, s{sXCC}"); x("s_cbranch_scc1 L_hs_done")
        x(f"s_add_u32 s{sCNT}, s{sCNT}, 1"); x(f"s_cmp_lt_u32 s{sCNT}, {self.opts.get('fastpolls', 8)}"); x("s_cbranch_scc1 L_hs_fast")
        for r in range(4): x(f"v_mov_b32 v{P+4+r}, 0")
        for sl in range(2):
            x(f"buffer_store_dwordx4 {vr(P+4,4)}, v{vE}, {sr(sW,4)}, s{sMY[sl]} offen sc1")
        x(f"s_lshl_b32 s{sT[1]}, s2, 3"); x(f"s_add_u32 s{sT[1]}, s{sT[1]}, s{sWV}"); x(f"s_lshl_b32 s{sT[1]}, s{sT[1]}, 7")
        x(f"s_add_u32 s{sT[1]}, s{sT[1]}, {4<<20}")
        x(f"s_xor_b32 s{sT[2]}, s{sT[1]}, {8*8*128}")
        x(f"v_mov_b32 v{P+2}, 0")
        x("s_mov_b64 exec, 1")
        x(f"buffer_load_dwordx4 {vr(P+8,4)}, v{P+2}, {sr(sW,4)}, s{sT[2]} offen sc1")
        x("s_waitcnt vmcnt(0)")
        x(f"v_readfirstlane_b32 s{sT[3]}, v{P+10}")
        x(f"s_add_u32 s{sT[3]}, s{sT[3]}, 1")
        x(f"v_mov_b32 v{P+3}, s{sT[3]}")
        x(f"buffer_store_dword v{P+3}, v{P+2}, {sr(sW,4)}, s{sT[1]} offen sc1")
        x("s_waitcnt vmcnt(0)")
        x(f"s_mov_b32 s{sCNT}, 0")
        self.xl("L_hs_slow")
        x(f"buffer_load_ubyte v{vT[1]}, v{vT[2]}, {sr(sD,4)}, 0 offen sc1")
        x(f"buffer_load_dwordx4 {vr(P+8,4)}, v{P+2}, {sr(sW,4)}, s{sT[2]} offen sc1")
        x("s_waitcnt vmcnt(0)")
        x(f"v_readfirstlane_b32 s{sT[0]}, v{vT[1]}")
        x(f"v_readfirstlane_b32 s{sT[5]}, v{P+8}")
        x(f"v_readfirstlane_b32 s{sT[4]}, v{P+10}")
        x(f"v_readfirstlane_b32 s{sMODE}, v{P+11}")
        x(f"s_cmp_eq_u32 s{sT[0]}, s{sXCC}"); x("s_cbranch_scc1 L_hs_same")
        x(f"v_mov_b32 v{P+12}, s{sT[5]}"); x(f"v_mov_b32 v{P+13}, s{sXCC}")
        x(f"buffer_store_dwordx2 {vr(P+12,2)}, v{P+2}, {sr(sW,4)}, s{sT[1]} offen offset:8 sc1")
        x(f"s_add_u32 s{sCNT}, s{sCNT}, 1"); x(f"s_cmp_gt_u32 s{sCNT}, 0x200000"); x("s_cbranch_scc1 L_hs_same")
        x(f"s_cmp_eq_u32 s{sT[4]}, s{sT[3]}"); x("s_cbranch_scc0 L_hs_slow")
        x(f"s_cmp_eq_u32 s{sMODE}, s{sXCC}"); x("s_cbranch_scc1 L_hs_same")
        x(f"s_mov_b32 s{sMODE}, 0")
        x(f"s_mov_b32 s{sE}, s{sKA+12}"); x(f"s_mov_b32 s{sE+1}, s{sKA+13}")
        x("s_mov_b64 exec, -1")
        x("s_branch L_hs_done")
        self.xl("L_hs_same")
        x(f"s_mov_b32 s{sMODE}, 1")
        x("s_mov_b64 exec, -1")
        x("s_branch L_hs_done")

    def build(self):
        hdr = [f"; @launch grid=(256,1,1) block=(512,1,1) lds={LDS_BYTES}",
               '.amdgcn_target "amdgcn-amd-amdhsa--gfx950"', ".text", f".globl {KN}", ".p2align 8",
               f".type {KN},@function", f"{KN}:"]
        self.prologue()
        A = self.fork(0); A.progA()
        B = self.fork(1); B.progB()
        nb = lambda g: sum(1 for s in g.o if s.strip() == "s_barrier")
        assert nb(A) == nb(B), (nb(A), nb(B))
        assert NV + NA <= 256
        ftr = [f".set CODE_BYTES, L_end - {KN}", '.section .rodata,"a"', ".p2align 6", f".amdhsa_kernel {KN}",
               f"  .amdhsa_next_free_vgpr {NV+NA}", "  .amdhsa_next_free_sgpr 102", f"  .amdhsa_accum_offset {NV}",
               "  .amdhsa_group_segment_fixed_size 0", "  .amdhsa_kernarg_size 56", "  .amdhsa_user_sgpr_count 2",
               "  .amdhsa_user_sgpr_kernarg_segment_ptr 1", "  .amdhsa_system_sgpr_workgroup_id_x 1",
               "  .amdhsa_float_denorm_mode_32 3", ".end_amdhsa_kernel"]
        log = []
        m1, n1 = fix_hazards(self.o + A.o, log)
        m2, n2 = fix_hazards(B.o, log)
        ool, n3 = fix_hazards(self.ool)
        main = m1 + m2 + ["L_end:", "    s_endpgm"]
        wrap = lambda ls: "\n".join(hdr + ls + ool + ftr) + "\n"
        if self.opts.get("align", 1):
            main, nw, nn = align(main, wrap, self.opts.get("minrun", 99))
            sys.stderr.write(f"hazard nops {n1}+{n2}+{n3}, widened {nw}, align nops {nn}\n")
        if self.opts.get("hlog"):
            for e in log: sys.stderr.write(str(e) + "\n")
        return wrap(main)

if __name__ == "__main__":
    prof = None; opts = {}
    for x in sys.argv[1:]:
        if x.startswith("--prof="): prof = x[7:].split(",")
        elif x.startswith("--"):
            k, v = x[2:].split("="); opts[k] = int(v) if v.lstrip("-").isdigit() else v
    out = [x for x in sys.argv[1:] if not x.startswith("--")][0]
    g = Gen(prof, opts); txt = g.build()
    if prof: txt = txt + "; stamps: " + ",".join(prof) + "\n"
    open(out, "w").write(txt)
```

```python
import sys, copy
from asmlib import fix_hazards, align
KN = "standalone__cross_network_dcn_v2__recsys_kernel"
L = 6
XB = 131072; HB = 147456; BIASB = 155648; LDS_BYTES = 161792
TAGS = [1, 1, 0, 0, 1, 1]

vLANE = 1; vA = 2; vE = 3; vV = [4, 5, 6, 7]; vU = [8, 9, 10, 11]
vXW = 12; vXR = [None, 13, 14, 15]; vHW = 16; vHR = [None, 17, 18, 19]
vBI = 20; vLIN = 21; vT = [22, 23, 24, 25]; vJ = 0
ACC1 = 26; ACC2 = 34; XF = 50; X0F = 66; PK = 82; HP = 90; RX = 94; TM = ACC2; SP = HP; T4 = 98
NV = 104
aV = 0; aU = 64; aX = 128; aH = 128; aS = 128; NS = 6; NA = 152
sX0 = 4; sV = 8; sU = 12; sO = 16; sE = 20; sD = 24; sB = 28; sW = 32
sKA = 36
sWV = 50; sHF = 51; sRB = 52; sXCC = 53; sMODE = 54
sVG = [55, 56, 57, 58]; sUG = [59, 60, 61, 62]; sSO = [63, 64]; sLB = 65
sMY = [66, 67]; sWS = 68; sXH = 69
sCNT = 70; sT = [71, 72, 73, 74, 75, 76, 77, 78]; sPTMP = 79
sSTAMP = 80

def vr(b, n): return f"v[{b}:{b+n-1}]"
def ar(b, n): return f"a[{b}:{b+n-1}]"
def sr(b, n): return f"s[{b}:{b+n-1}]"

class Gen:
    def __init__(self, prof=None, opts=None):
        self.o = []; self.ool = []; self.vm = []; self.lg = []; self.vmdone = 0; self.lgdone = 0
        self.prof = prof; self.opts = opts or {}; self.names = []
        self.pw = []; self.nso = 0; self.nst = 0; self.X = 0
        self.pat = self.opts.get("pat", "BBBB/BBBB/DBDB/DBDB"); self.lag = self.opts.get("lag", 4)
    def fork(self, X):
        g = copy.copy(self); g.o = []; g.vm = list(self.vm); g.lg = list(self.lg); g.pw = list(self.pw); g.X = X
        return g
    def a(self, s): self.o.append("    " + s)
    def x(self, s): self.ool.append("    " + s)
    def xl(self, s): self.ool.append(s + ":")
    def lab(self, s): self.o.append(s + ":")
    def c(self, s): self.o.append("    ; " + s)
    def vmop(self, s, tag): self.vm.append(tag); self.a(s)
    def lgop(self, s, tag): self.lg.append(tag); self.a(s)
    def _last(self, lst, tag):
        idx = [i for i, t in enumerate(lst) if t == tag]
        return idx[-1] if idx else None
    def wvm(self, tag):
        i = self._last(self.vm, tag)
        if i is not None: self.wvmi(i)
    def wvmi(self, i):
        if i < self.vmdone: return
        n = min(len(self.vm) - 1 - i, 63); self.vmdone = len(self.vm) - n
        self.a(f"s_waitcnt vmcnt({n})")
    def wlg(self, tag):
        i = self._last(self.lg, tag)
        if i is None or i < self.lgdone: return
        n = min(len(self.lg) - 1 - i, 15); self.lgdone = len(self.lg) - n
        self.a(f"s_waitcnt lgkmcnt({n})")
    def wlg0(self):
        if self.lgdone < len(self.lg): self.lgdone = len(self.lg); self.a("s_waitcnt lgkmcnt(0)")
    def bar(self, name=None):
        self.wlg0()
        if name: self.stamp(name + "a")
        self.a("s_barrier")
        if name: self.stamp(name + "b")
    def stamp(self, name):
        nm = name + "AB"[self.X] if False else name
        if self.prof and nm in self.prof:
            r = sSTAMP + 2 * self.prof.index(nm)
            assert r + 1 <= 101
            self.a(f"s_memrealtime s[{r}:{r+1}]" if nm.startswith("rt") else f"s_memtime s[{r}:{r+1}]")
    def rec(self, name, src):
        if self.prof and name in self.prof:
            self.a(f"s_mov_b32 s{sSTAMP + 2*self.prof.index(name)}, {src}")
    def prio(self, p):
        m = self.opts.get("prio", 1)
        if m == 1: self.a(f"s_setprio {p}")
        if m == 2: self.a(f"s_setprio {2-p}")
    def dma(self, kind, l, g, pat=None):
        if l >= L: return []
        if self.opts.get("dma") == "off" and l >= 2: return []
        pat = pat or self.pat.split("/")[g]
        so = sSO[self.nso & 1]; self.nso += 1
        base, sg, vv, srd = (0, sVG, vV, sV) if kind == "V" else (16384, sUG, vU, sU)
        tag = f"{kind}{l}" + "ab"[g >> 1]
        items = []
        for j in range(4):
            def emit(j=j):
                while self.pw and len(self.vm) - self.pw[0][0] > self.lag: self.pw.pop(0)[1]()
                if j == 0:
                    self.a(f"s_add_u32 m0, s{sLB}, {base+g*4096}"); self.a(f"s_add_u32 s{so}, s{sg[g]}, {l*131072}")
                if pat[j % len(pat)] in "DBC":
                    self.vmop(f"buffer_load_dwordx4 v{vv[j]}, {sr(srd,4)}, s{so} offen offset:{1024*j} lds", tag)
                    for q in range({"D": 0, "B": 1, "C": 2}[pat[j % len(pat)]]): self.vmop(f"buffer_load_dword v{vJ}, off, {sr(sB,4)}, 0", "gap")
                else:
                    nv = pat[:j].count("V")
                    st = aS + 4 * ((g if g < 3 else 3 + nv) if pat.count("V") == 1 or g == 3 else (self.nst % 3)); self.nst += 1
                    assert st + 4 <= aS + 4*NS
                    self.vmop(f"buffer_load_dwordx4 {ar(st,4)}, v{vv[j]}, {sr(srd,4)}, s{so} offen offset:{1024*j}", tag)
                    vi = len(self.vm) - 1
                    def wr():
                        self.wvmi(vi)
                        self.lgop(f"ds_write_b128 v{vLIN}, {ar(st,4)} offset:{base+g*4096+j*1024}", "sw")
                    self.pw.append((vi, wr, g))
            items.append(emit)
        return items
    def flush(self, keep3=False):
        while self.pw and not (keep3 and self.pw[0][2] == 3): self.pw.pop(0)[1]()
    def rdV(self, g):
        return [lambda j=j: self.lgop(f"ds_read_b128 {ar(aV+4*(4*g+j),4)}, v{vA} offset:{g*4096+j*1024}", f"rV{g}_{j>>1}") for j in range(4)]
    def rdU(self, g):
        return [lambda j=j: self.lgop(f"ds_read_b128 {ar(aU+4*(4*g+j),4)}, v{vA} offset:{16384+g*4096+j*1024}", f"rU{g}") for j in range(4)]
    def mf1(self, ks, fill=None):
        for ta in range(2):
            b = vr(PK + 4*ks, 4) if ks < 2 else ar(aX + 4*(ks-2), 4)
            d = vr(ACC1 + 4*ta, 4)
            self.a(f"v_mfma_f32_16x16x32_bf16 {d}, {ar(aV+4*(2*ks+ta),4)}, {b}, {'0' if ks == 0 else d}")
            if fill: self.run(fill[ta])
    def mf2(self, P, kr, fill=None):
        for ta in range(2):
            b = vr(HP, 4) if kr == 0 else ar(aH + 4*(kr-1), 4)
            d = vr(ACC2 + 8*P + 4*ta, 4)
            idx = ((kr >> 1)*2 + P)*4 + (kr & 1)*2 + ta
            self.a(f"v_mfma_f32_16x16x32_bf16 {d}, {ar(aU+4*idx,4)}, {b}, {d}")
            if fill: self.run(fill[ta])
    def epi(self, P, l, pk=False):
        r = []
        if pk:
            for e in range(4):
                q = 8*P + 2*e
                r.append(lambda q=q: self.a(f"v_pk_fma_f32 {vr(ACC2+q,2)}, {vr(X0F+q,2)}, {vr(ACC2+q,2)}, {vr(XF+q,2)}"))
        else:
            for e in range(8):
                q = 8*P + e
                r.append(lambda q=q: self.a(f"v_fma_f32 v{ACC2+q}, v{X0F+q}, v{ACC2+q}, v{XF+q}"))
        for e in range(4):
            q = 8*P + 2*e
            r.append(lambda q=q: self.a(f"v_cvt_pk_bf16_f32 v{PK+q//2}, v{ACC2+q}, v{ACC2+q+1}"))
        if l < L-1: r.append(lambda: self.lgop(f"ds_write_b128 v{vXW}, {vr(PK+4*P,4)} offset:{P*1024}", "xw"))
        else: r.append(lambda: self.lgop(f"ds_write_b128 v{vT[P]}, {vr(PK+4*P,4)}", "xw"))
        return r
    def unpack(self, dst, src, n):
        r = []
        for i in range(n):
            r.append(lambda i=i: self.a(f"v_lshlrev_b32 v{dst+2*i}, 16, v{src+i}"))
            r.append(lambda i=i: self.a(f"v_and_b32 v{dst+2*i+1}, 0xffff0000, v{src+i}"))
        return r
    def bias_rd(self, l):
        for k in range(4):
            self.lgop(f"ds_read_b128 {vr(ACC2+4*k,4)}, v{vBI} offset:{l*256 + (k>>1)*128 + (k&1)*16}", "bias")
    def run(self, lst):
        for f in lst: f()
    def mix(self, *lists):
        lists = [list(x) for x in lists]
        while any(lists):
            for x in lists:
                if x: x.pop(0)()
    def srd(self, r, p, n, bias=0):
        if bias:
            self.a(f"s_sub_u32 s{r}, s{p}, {bias}"); self.a(f"s_subb_u32 s{r+1}, s{p+1}, 0")
        else:
            self.a(f"s_mov_b32 s{r}, s{p}"); self.a(f"s_mov_b32 s{r+1}, s{p+1}")
        self.a(f"s_mov_b32 s{r+2}, {n+bias}"); self.a(f"s_mov_b32 s{r+3}, 0x20000")
    def poll(self, l):
        self.vmop(f"buffer_load_dwordx4 {vr(RX,4)}, v{vE}, {sr(sE,4)}, s{sMY[l&1]} offen sc1", f"poll{l}")
    def send(self, l, u=None):
        a = self.a; u = u if u is not None else f"{self.X}{l}"
        a(f"s_xor_b32 s{sPTMP}, s{sMY[l&1]}, 512")
        for k in range(4): a(f"v_cvt_pk_bf16_f32 v{SP+k}, v{ACC1+2*k}, v{ACC1+2*k+1}")
        for k in range(4): a(f"v_or_b32 v{SP+k}, 1, v{SP+k}" if TAGS[l] else f"v_and_b32 v{SP+k}, -2, v{SP+k}")
        if l == 0: self.handshake()
        self.stamp(f"snd{u}")
        a(f"s_cmp_eq_u32 s{sMODE}, 0"); a(f"s_cbranch_scc1 L_ss{u}")
        self.vmop(f"buffer_store_dwordx4 {vr(SP,4)}, v{vE}, {sr(sE,4)}, s{sPTMP} offen", "st")
        self.lab(f"L_sd{u}")
        self.xl(f"L_ss{u}")
        self.x(f"buffer_store_dwordx4 {vr(SP,4)}, v{vE}, {sr(sE,4)}, s{sPTMP} offen sc1")
        self.x("s_nop 1"); self.x(f"s_branch L_sd{u}")
    def chk_ops(self, l):
        R = RX; t0 = vT[3]
        if TAGS[l]:
            return [f"v_bitop3_b32 v{t0}, v{R}, v{R+1}, v{R+2} bitop3:0x80", f"v_bitop3_b32 v{t0}, v{t0}, v{R+3}, 1 bitop3:0x80", f"v_cmp_eq_u32 vcc, 0, v{t0}"]
        return [f"v_or3_b32 v{t0}, v{R}, v{R+1}, v{R+2}", f"v_bitop3_b32 v{t0}, v{t0}, 1, v{R+3} bitop3:0xc8", f"v_cmp_ne_u32 vcc, 0, v{t0}"]
    def check_post(self, l, d=None):
        u = f"{self.X}{l}"; x = self.x; a = self.a
        self.wvm(f"poll{l}")
        self.stamp(f"chk{u}")
        if self.opts.get("dbgcnt"): a(f"s_mov_b32 s{sCNT}, 0")
        for s in self.chk_ops(l): a(s)
        a(f"s_cbranch_vccnz L_rt{u}")
        self.lab(f"L_got{u}")
        self.stamp(f"got{u}")
        if self.opts.get("dbgcnt"): self.rec(f"cnt{l}", f"s{sCNT}")
        self.xl(f"L_rt{u}")
        x(f"s_mov_b32 s{sCNT}, 0")
        self.xl(f"L_rl{u}")
        x(f"buffer_load_dwordx4 {vr(RX,4)}, v{vE}, {sr(sE,4)}, s{sMY[l&1]} offen sc1")
        x(f"s_add_u32 s{sCNT}, s{sCNT}, 1"); x(f"s_cmp_gt_u32 s{sCNT}, 0x200000")
        x("s_waitcnt vmcnt(0)")
        x(f"s_cbranch_scc1 L_got{u}")
        for s in self.chk_ops(l): x(s)
        x(f"s_cbranch_vccnz L_rl{u}")
        x(f"s_branch L_got{u}")
        ops = []
        for h in range(2):
            ops += self.unpack(T4, RX+2*h, 2)
            if self.opts.get("pkadd", 0):
                for k in range(2): ops.append(lambda k=k, h=h: a(f"v_pk_add_f32 {vr(T4+2*k,2)}, {vr(T4+2*k,2)}, {vr(ACC1+4*h+2*k,2)}"))
            else:
                for k in range(4): ops.append(lambda k=k, h=h: a(f"v_add_f32 v{T4+k}, v{T4+k}, v{ACC1+4*h+k}"))
            for k in range(2): ops.append(lambda k=k, h=h: a(f"v_cvt_pk_bf16_f32 v{HP+2*h+k}, v{T4+2*k}, v{T4+2*k+1}"))
        ops.append(lambda: self.lgop(f"ds_write_b128 v{vHW}, {vr(HP,4)}", "hw"))
        if d is None:
            self.run(ops); self.bias_rd(l); return
        d = list(d); st = self.opts.get("vper", 10)
        while ops:
            self.run(ops[:st]); ops = ops[st:]
            if ops and d: d.pop(0)()
        self.run(d)
    def x_reads(self):
        return [lambda ks=ks: self.lgop(f"ds_read_b128 {ar(aX+4*(ks-2),4)}, v{vXR[ks>>1]} offset:{(ks&1)*1024}", f"x{ks}") for ks in range(2, 8)]
    def h_reads(self):
        for kr in range(1, 4):
            self.lgop(f"ds_read_b128 {ar(aH+4*(kr-1),4)}, v{vHR[kr]}", f"h{kr}")

    def g2_phase(self, l, early=None, mid=None, late=None):
        early = list(early or []); mid = list(mid or []); late = list(late or [])
        def take(q): return [q[0:1], q[1:2]]
        self.h_reads()
        self.mf2(0, 0, take(early)); self.mf2(1, 0, take(early[2:]))
        self.wlg("h1"); self.mf2(0, 1, take(early[4:]))
        self.wlg("h2"); self.mf2(0, 2, take(early[6:] + mid))
        self.wlg("h3"); self.mf2(0, 3, take(mid[2:]))
        self.flush()
        e0 = self.epi(0, l); e1 = self.epi(1, l, pk=self.opts.get("pkfma", 1))
        u = f"{self.X}{l}"
        self.stamp(f"g2a{u}")
        self.mf2(1, 1); self.mf2(1, 2, [late[0:2], late[2:4]])
        self.stamp(f"g2b{u}")
        self.mf2(1, 3, [e0[0:2], e0[2:-1]])
        self.stamp(f"g2c{u}")
        e0[-1]()
        self.stamp(f"g2d{u}")
        self.run(e1[:-1])
        self.stamp(f"g2e{u}")
        e1[-1]()
        self.stamp(f"g2f{u}")
    def g1_phase(self, l, jitV=False, extra=None):
        xr = self.x_reads(); extra = list(extra or [])
        if jitV:
            rv = self.rdV(2) + self.rdV(3)
            self.run(xr[0:2])
            q = [xr[2], rv[0], rv[1], xr[3], rv[2], rv[3], xr[4], rv[4], rv[5], xr[5], rv[6], rv[7]]
            for ks in range(8):
                self.wlg(f"rV{ks>>1}_{ks&1}")
                if ks >= 2: self.wlg(f"x{ks}")
                self.mf1(ks, [q[0:2], q[2:3]]); q = q[3:]
        else:
            self.run(xr)
            for ks in range(8):
                if ks >= 2: self.wlg(f"x{ks}")
                self.mf1(ks, [extra[0:1], extra[1:2]]); extra = extra[2:]
            self.run(extra)
        self.send(l)

    def prologue(self):
        a = self.a; T = [X0F + i for i in range(10)]
        a(f"s_load_dwordx8 {sr(sKA,8)}, s[0:1], 0")
        a(f"s_load_dwordx4 {sr(sKA+8,4)}, s[0:1], 32")
        a(f"s_load_dwordx2 {sr(sKA+12,2)}, s[0:1], 48")
        a("s_cmp_ge_u32 s2, 256"); a("s_cbranch_scc1 L_end")
        self.stamp("start"); self.stamp("rt0")
        a(f"v_lshrrev_b32 v{T[0]}, 6, v0"); a(f"v_and_b32 v{vLANE}, 63, v0")
        a(f"s_lshr_b32 s{sT[0]}, s2, 3")
        a(f"v_readfirstlane_b32 s{sWV}, v{T[0]}")
        a(f"s_lshl_b32 s{sT[0]}, s{sT[0]}, 3"); a(f"s_add_u32 s{sT[6]}, s{sT[0]}, s{sWV}")
        if self.opts.get("codepf", 1):
            a(f"s_getpc_b64 {sr(sX0,2)}")
            a(f"s_and_b32 s{sX0}, s{sX0}, 0xffffff00")
            a(f"s_lshl_b32 s{sT[1]}, s{sT[6]}, 7"); a(f"v_mov_b32 v{T[1]}, s{sT[1]}")
            a(f"s_cmp_ge_u32 s{sT[1]}, CODE_BYTES"); a("s_cbranch_scc1 L_nocpf")
            a("s_mov_b64 exec, 1")
            a(f"global_load_dword v{vJ}, v{T[1]}, {sr(sX0,2)}")
            a("s_mov_b64 exec, -1")
            self.lab("L_nocpf")
        a(f"s_and_b32 s{sWS}, s{sWV}, 3"); a(f"s_lshr_b32 s{sXH}, s{sWV}, 2")
        a(f"v_lshrrev_b32 v{T[6]}, 2, v{vLANE}"); a(f"v_and_b32 v{T[7]}, 3, v{vLANE}")
        a(f"v_lshlrev_b32 v{T[9]}, 7, v{T[7]}"); a(f"v_lshl_add_u32 v{vT[3]}, v{T[6]}, 17, v{T[9]}")
        a(f"s_lshl_b32 s{sT[6]}, s{sT[6]}, 9"); a(f"s_add_u32 s{sT[6]}, s{sT[6]}, 3072")
        a(f"s_bfe_u32 s{sHF}, s2, 0x10003")
        a(f"s_lshr_b32 s{sT[0]}, s2, 4"); a(f"s_lshl_b32 s{sT[0]}, s{sT[0]}, 3"); a(f"s_and_b32 s{sRB}, s2, 7"); a(f"s_or_b32 s{sRB}, s{sRB}, s{sT[0]}")
        a(f"s_lshl_b32 s{sLB}, s{sWS}, 15")
        a(f"v_lshrrev_b32 v{T[0]}, 4, v{vLANE}")
        a(f"s_movk_i32 s{sPTMP}, 0x78"); a(f"v_lshlrev_b32 v{T[1]}, 1, v{T[0]}"); a(f"v_lshrrev_b32 v{T[2]}, v{T[1]}, s{sPTMP}")
        a(f"v_xor_b32 v{T[2]}, v{T[2]}, v{vLANE}"); a(f"v_and_b32 v{T[2]}, 3, v{T[2]}"); a(f"v_lshlrev_b32 v{T[2]}, 4, v{T[2]}")
        a(f"v_bfe_u32 v{T[1]}, v{vLANE}, 2, 2"); a(f"v_lshl_add_u32 v{T[1]}, v{T[0]}, 3, v{T[1]}")
        a(f"v_lshl_add_u32 v{T[3]}, v{T[1]}, 10, v{T[2]}"); a(f"v_lshl_add_u32 v{T[4]}, v{T[1]}, 8, v{T[2]}")
        for j in range(4):
            a(f"v_add_u32 v{vV[j]}, {(j&1)*4096 + (j>>1)*64 - 1024*j + 3072}, v{T[3]}")
        a(f"v_add_u32 v{T[5]}, {64 - 1024 + 3072}, v{T[3]}")
        a(f"s_lshl_b32 s{sT[2]}, s{sHF}, 9"); a(f"s_add_u32 s{sT[3]}, s{sLB}, s{sT[2]}")
        a(f"s_lshl_b32 s{sT[4]}, s{sRB}, 15"); a(f"s_add_u32 s{sT[4]}, s{sT[4]}, s{sT[2]}")
        a(f"s_lshl_b32 s{sT[5]}, s{sXH}, 12"); a(f"s_add_u32 s{sT[4]}, s{sT[4]}, s{sT[5]}")
        a(f"s_lshl_b32 s{sT[5]}, s{sWS}, 7"); a(f"s_add_u32 s{sT[7]}, s{sT[4]}, s{sT[5]}")
        a(f"s_lshr_b32 s{sT[5]}, s{sWS}, 1"); a(f"s_lshl_b32 s{sT[5]}, s{sT[5]}, 13"); a(f"s_add_u32 s{sT[4]}, s{sT[4]}, s{sT[5]}")
        a(f"s_and_b32 s{sT[5]}, s{sWS}, 1"); a(f"s_lshl_b32 s{sT[5]}, s{sT[5]}, 11"); a(f"s_add_u32 s{sMY[0]}, s{sT[4]}, s{sT[5]}")
        a(f"s_add_u32 s{sMY[1]}, s{sMY[0]}, 16384")
        for g in range(4):
            a(f"s_xor_b32 s{sT[4]}, s{sWS}, {g}"); a(f"s_lshl_b32 s{sT[4]}, s{sT[4]}, 7"); a(f"s_add_u32 s{sVG[g]}, s{sT[3]}, s{sT[4]}")
        a(f"v_lshrrev_b32 v{T[8]}, 5, v{vLANE}"); a(f"v_and_b32 v{vE}, 31, v{vLANE}"); a(f"v_lshlrev_b32 v{vE}, 4, v{vE}")
        a(f"v_lshl_add_u32 v{vE}, v{T[8]}, 10, v{vE}")
        for r in range(4): a(f"v_mov_b32 v{TM+r}, 0")
        a(f"v_mov_b32 v{vT[2]}, s2"); a(f"v_xor_b32 v{vT[2]}, 8, v{vT[2]}")
        a(f"s_lshl_b32 s{sT[5]}, s{sWS}, 12"); a(f"s_lshl_b32 s{sT[4]}, s{sXH}, 11"); a(f"s_add_u32 s{sT[5]}, s{sT[5]}, s{sT[4]}")
        a(f"s_add_u32 m0, s{sT[5]}, {XB}")
        a(f"v_lshrrev_b32 v{T[6]}, 3, v{vLANE}"); a(f"v_and_b32 v{T[7]}, 7, v{vLANE}")
        a(f"v_lshlrev_b32 v{T[8]}, 4, v{T[7]}"); a(f"v_lshl_add_u32 v{T[8]}, v{T[6]}, 10, v{T[8]}")
        a(f"s_lshl_b32 s{sT[5]}, s{sWS}, 7"); a(f"s_add_u32 s{sT[5]}, s{sT[5]}, s{sT[2]}"); a(f"s_mul_i32 s{sT[3]}, s{sXH}, 3072"); a(f"s_add_u32 s{sT[5]}, s{sT[5]}, s{sT[3]}")
        a("s_waitcnt lgkmcnt(0)")
        self.stamp("karg")
        pf = self.opts.get("pf", 1)
        def pfl(lo):
            if not pf: return
            a(f"s_mov_b64 exec, {lo}")
            self.vmop(f"buffer_load_dword v{vJ}, v{vT[3]}, {sr(sV,4)}, s{sT[6]} offen", "pf")
            self.vmop(f"buffer_load_dword v{vJ}, v{vT[3]}, {sr(sU,4)}, s{sT[6]} offen", "pf")
            a("s_mov_b64 exec, -1")
        self.pfl = pfl
        masks = [int(m, 16) for m in str(self.opts.get("pfm", "f,ff0,fff000")).split(",")]
        self.pfmasks = masks
        self.srd(sX0, sKA+0, 4096*1024, 3072)
        self.vmop(f"buffer_load_dwordx4 v{vV[0]}, {sr(sX0,4)}, s{sT[7]} offen lds", "x0")
        self.vmop(f"buffer_load_dwordx4 v{T[5]}, {sr(sX0,4)}, s{sT[7]} offen offset:1024 lds", "x0")
        self.srd(sV, sKA+4, 6*131072, 3072)
        self.srd(sU, sKA+2, 6*131072, 3072)
        pfl(masks[0])
        self.srd(sB, sKA+6, 6*1024)
        self.srd(sD, sKA+10, 256)
        a("s_mov_b64 exec, 0xffffff")
        self.vmop(f"buffer_load_dwordx4 {vr(TM+4,4)}, v{T[8]}, {sr(sB,4)}, s{sT[5]} offen", "bias")
        a("s_mov_b64 exec, 1")
        self.vmop(f"buffer_load_ubyte v{vJ}, v{vT[2]}, {sr(sD,4)}, 0 offen", "touch")
        a("s_mov_b64 exec, -1")
        self.srd(sO, sKA+8, 4096*1024)
        if self.opts.get("clrearly", 1):
            self.vmop(f"buffer_store_dwordx4 {vr(TM,4)}, v{vE}, {sr(sO,4)}, s{sMY[0]} offen", "clr")
        self.stamp("i_x0")
        a("s_barrier")
        a(f"s_lshl_b32 s{sT[4]}, s{sXH}, 13"); a(f"s_add_u32 s{sT[4]}, s{sT[4]}, s{sLB}")
        a(f"s_cmp_eq_u32 s{sXH}, 0")
        a(f"s_cselect_b32 s{sT[0]}, s{sVG[0]}, s{sVG[2]}"); a(f"s_cselect_b32 s{sT[1]}, s{sVG[1]}, s{sVG[3]}")
        def v0grp(k):
            a(f"s_add_u32 m0, s{sT[4]}, {k*4096}"); a("s_nop 0")
            for j in range(4):
                self.vmop(f"buffer_load_dwordx4 v{vV[j]}, {sr(sV,4)}, s{sT[k]} offen offset:{1024*j} lds", "V0")
                if (j & 1) and self.opts.get("pgap", 1): self.vmop(f"buffer_load_dword v{vJ}, off, {sr(sB,4)}, 0", "gap")
        v0grp(0)
        self.stamp("i_v0a")
        self.srd(sW, sKA+12, 8 << 20)
        self.srd(sE, sKA+8, 4096*1024)
        a(f"s_getreg_b32 s{sXCC}, hwreg(HW_REG_XCC_ID)"); a(f"s_and_b32 s{sXCC}, s{sXCC}, 15"); a(f"s_or_b32 s{sXCC}, s{sXCC}, 16")
        a(f"s_and_b32 s{sT[0]}, s{sWS}, 1"); a(f"s_lshl_b32 s{sT[0]}, s{sT[0]}, 6"); a(f"s_xor_b32 s{sT[3]}, s{sT[0]}, 64")
        for j in range(4):
            a(f"v_add_u32 v{vU[j]}, {(j&1)*1024 - 1024*j + 3072}, v{T[4]}")
            a(f"v_add_u32 v{vU[j]}, s{sT[3] if j >> 1 else sT[0]}, v{vU[j]}")
        a(f"s_lshl_b32 s{sT[0]}, s{sHF}, 16"); a(f"s_lshl_b32 s{sT[5]}, s{sWS}, 14"); a(f"s_add_u32 s{sT[0]}, s{sT[0]}, s{sT[5]}")
        for g in range(4):
            pp, P = g >> 1, g & 1
            a(f"s_xor_b32 s{sT[5]}, s{sWS}, {2*pp}"); a(f"s_and_b32 s{sT[5]}, s{sT[5]}, 2"); a(f"s_lshl_b32 s{sT[5]}, s{sT[5]}, 6")
            a(f"s_add_u32 s{sT[5]}, s{sT[5]}, {P*8192}"); a(f"s_add_u32 s{sUG[g]}, s{sT[0]}, s{sT[5]}")
        a(f"v_bfe_u32 v{T[1]}, v{vLANE}, 2, 2"); a(f"v_lshlrev_b32 v{T[1]}, 1, v{T[1]}"); a(f"v_lshrrev_b32 v{T[2]}, v{T[1]}, s{sPTMP}")
        a(f"v_xor_b32 v{T[2]}, v{T[2]}, v{T[0]}"); a(f"v_and_b32 v{T[2]}, 3, v{T[2]}"); a(f"v_lshlrev_b32 v{T[2]}, 4, v{T[2]}")
        a(f"v_and_b32 v{T[1]}, 15, v{vLANE}"); a(f"v_lshl_add_u32 v{T[2]}, v{T[1]}, 6, v{T[2]}")
        a(f"v_add_u32 v{vA}, s{sLB}, v{T[2]}")
        a(f"s_lshl_b32 s{sT[5]}, s{sWS}, 12"); a(f"s_lshl_b32 s{sT[0]}, s{sXH}, 11"); a(f"s_add_u32 s{sT[5]}, s{sT[5]}, s{sT[0]}"); a(f"s_add_u32 s{sT[5]}, s{sT[5]}, {XB}")
        a(f"v_add_u32 v{T[3]}, s{sT[5]}, v{T[2]}")
        a(f"v_lshlrev_b32 v{T[1]}, 4, v{vLANE}")
        a(f"v_add_u32 v{vXW}, s{sT[5]}, v{T[1]}"); a(f"v_add_u32 v{vLIN}, s{sLB}, v{T[1]}")
        for g in range(1, 4): a(f"v_xor_b32 v{vXR[g]}, {g*4096}, v{vXW}")
        a(f"s_lshl_b32 s{sT[5]}, s{sWV}, 10"); a(f"s_add_u32 s{sT[5]}, s{sT[5]}, {HB}")
        a(f"v_add_u32 v{vHW}, s{sT[5]}, v{T[1]}")
        for g in range(1, 4): a(f"v_xor_b32 v{vHR[g]}, {g*1024}, v{vHW}")
        a(f"s_mul_i32 s{sT[5]}, s{sWS}, 1536"); a(f"s_add_u32 s{sT[5]}, s{sT[5]}, {BIASB}")
        a(f"v_lshlrev_b32 v{vBI}, 5, v{T[0]}"); a(f"v_add_u32 v{vBI}, s{sT[5]}, v{vBI}")
        a(f"s_mul_i32 s{sT[0]}, s{sXH}, 768"); a(f"s_add_u32 s{sT[5]}, s{sT[5]}, s{sT[0]}")
        a(f"v_lshlrev_b32 v{T[7]}, 5, v{T[7]}"); a(f"v_lshl_add_u32 v{T[7]}, v{T[6]}, 8, v{T[7]}"); a(f"v_add_u32 v{vT[0]}, s{sT[5]}, v{T[7]}")
        def xproc():
            self.wvm("x0")
            self.stamp("x0")
            for P in range(2):
                self.lgop(f"ds_read_b128 {vr(PK+4*P,4)}, v{T[3]} offset:{P*1024}", "x0r")
            self.wvm("bias")
            self.run(self.unpack(TM+8, TM+4, 4))
            self.wlg("x0r")
            for P in range(2):
                self.lgop(f"ds_write_b128 v{vXW}, {vr(PK+4*P,4)} offset:{P*1024}", "xw")
            a("s_mov_b64 exec, 0xffffff")
            self.lgop(f"ds_write_b128 v{vT[0]}, {vr(TM+8,4)}", "bw")
            self.lgop(f"ds_write_b128 v{vT[0]}, {vr(TM+12,4)} offset:16", "bw")
            a("s_mov_b64 exec, -1")
            self.run(self.unpack(X0F, PK, 8))
        xp = self.opts.get("xproc", 0)
        if xp == 0: xproc()
        v0grp(1)
        self.stamp("i_v0b")
        if not self.opts.get("clrearly", 1):
            self.vmop(f"buffer_store_dwordx4 {vr(TM,4)}, v{vE}, {sr(sO,4)}, s{sMY[0]} offen", "clr")
        pfl(masks[1])
        a(f"s_cmp_eq_u32 s{sXH}, 0")
        a(f"s_cselect_b32 s{sT[0]}, s{sUG[0]}, s{sUG[2]}"); a(f"s_cselect_b32 s{sT[1]}, s{sUG[1]}, s{sUG[3]}")
        def u0grp(k):
            return [lambda j=j: ((a(f"s_add_u32 m0, s{sT[4]}, {16384+k*4096}"), a("s_nop 0")) if j == 0 else None,
                                 self.vmop(f"buffer_load_dwordx4 v{vU[j]}, {sr(sU,4)}, s{sT[k]} offen offset:{1024*j} lds", "U0"),
                                 self.vmop(f"buffer_load_dword v{vJ}, off, {sr(sB,4)}, 0", "gap") if (j & 1) and self.opts.get("pgap", 1) else None) for j in range(4)]
        if xp == 1: xproc()
        a("s_barrier")
        self.stamp("issued")
        self.run(u0grp(0))
        self.stamp("xdone")
        self.wvm("V0"); self.stamp("v0l"); self.wvm("clr")
        self.bar("b0")
        a(f"s_cmp_lg_u32 s{sWV}, 0"); a("s_cbranch_scc0 L_flag")
        self.lab("L_noflag")
        self.xl("L_flag")
        self.x(f"v_mov_b32 v{vT[0]}, s2"); self.x(f"v_mov_b32 v{vT[1]}, s{sXCC}"); self.x("s_mov_b64 exec, 1")
        self.x(f"buffer_store_byte v{vT[1]}, v{vT[0]}, {sr(sD,4)}, 0 offen"); self.x("s_mov_b64 exec, -1"); self.x("s_branch L_noflag")
        self.vmop(f"buffer_store_dwordx4 {vr(TM,4)}, v{vE}, {sr(sO,4)}, s{sMY[1]} offen", "clr1")
        xr = self.x_reads(); rv = [f for g in range(4) for f in self.rdV(g)]
        u1 = u0grp(1)
        self.run(rv[0:4]); self.run(xr[0:2]); self.run(rv[4:8]); self.run(xr[2:4])
        q = rv[8:12] + xr[4:6] + rv[12:16]
        for ks in range(8):
            self.wlg(f"rV{ks>>1}_{ks&1}")
            if ks >= 2: self.wlg(f"x{ks}")
            self.mf1(ks, [q[0:1], q[1:2]]); q = q[2:]
            if ks == 2: self.vmop(f"buffer_load_ubyte v{vT[1]}, v{vT[2]}, {sr(sD,4)}, 0 offen sc1", "flag")
            if ks >= 4: u1[ks-4]()
        self.send(0, "p")
        if len(self.pfmasks) > 2: self.pfl(self.pfmasks[2])
        self.bar("b1")
        a(f"s_cmp_lg_u32 s{sXH}, 0"); a("s_cbranch_scc1 L_progB")

    def bias_ops(self, l):
        return [lambda k=k: self.lgop(f"ds_read_b128 {vr(ACC2+4*k,4)}, v{vBI} offset:{l*256 + (k>>1)*128 + (k&1)*16}", "bias") for k in range(4)]
    def light1(self, kind, l, rd, lp):
        d = self.dma(kind, l, 0) + self.dma(kind, l, 1)
        pp = self.opts.get("pollat", 6); r0 = self.opts.get("rd1at", 0)
        rd = list(rd) + self.bias_ops(lp)
        per = self.opts.get("rd1per", 4)
        for k in range(8):
            if k == pp: self.poll(lp)
            if k < len(d): d[k]()
            if r0 <= k: self.run(rd[:per]); rd = rd[per:]
            self.stamp(f"l1{self.X}{lp}_{k}")
        if pp >= 8: self.poll(lp)
    def light2(self, kind, l, rd, lp):
        d = self.dma(kind, l, 2) + self.dma(kind, l, 3) + [lambda: None] * 8
        p2 = self.opts.get("pre2", 3); rd = list(rd)
        self.run(d[:p2])
        self.run(rd[:4]); d[p2](); self.run(rd[4:]); d[p2+1]()
        self.stamp(f"pd{self.X}{lp}")
        self.check_post(lp, d[p2+2:p2+3])
        self.stamp(f"po{self.X}{lp}")
        ux = self.unpack(XF, PK, 8)
        self.run(ux[:8]); self.run(d[p2+3:p2+4]); self.run(ux[8:])
        self.wvm(f"{kind}{l}a")
        self.run(d[p2+4:8])
        self.stamp(f"en{self.X}{lp}")
    def progA(self):
        self.prio(0)
        d = self.dma("V", 1, 0) + self.dma("V", 1, 1)
        self.run(d[:4]); self.run(self.unpack(XF, PK, 8)); self.poll(0)
        self.wvm("U0")
        self.bar("b1x")
        self.mix(d[4:], self.rdU(0))
        self.check_post(0)
        self.run(self.rdU(1) + self.rdU(2) + self.rdU(3))
        self.wvm("V1a")
        self.bar("b2")
        for l in range(L):
            last = l == L-1
            self.c(f"==== A round {l} phase 0: G2 ====")
            self.prio(2)
            if last: self.final_addr()
            self.g2_phase(l, early=(None if last else self.rdV(0) + self.rdV(1)))
            if last:
                self.a("s_barrier"); self.final_store(); return
            self.wvm(f"V{l+1}b")
            self.stamp(f"g2g0{l}")
            self.bar(f"A0{l}")
            self.c(f"==== A round {l} phase 1: G1 ====")
            self.g1_phase(l+1, jitV=True)
            self.prio(0)
            self.bar(f"A1{l}")
            self.c(f"==== A round {l} phase 2 ====")
            self.light1("V", l+2, self.rdU(0) + self.rdU(1), l+1)
            self.bar(f"A2{l}")
            self.c(f"==== A round {l} phase 3 ====")
            self.light2("V", l+2, self.rdU(2) + self.rdU(3), l+1)
            self.bar(f"A3{l}")

    def progB(self):
        self.lab("L_progB")
        self.prio(0)
        d = self.dma("V", 1, 2) + self.dma("V", 1, 3)
        self.run(d[:4])
        self.wvm("U0")
        self.bar("b1x")
        self.mix(d[4:], [f for g in range(4) for f in self.rdU(g)])
        self.bar("b2")
        for l in range(L):
            last = l == L-1
            self.c(f"==== B round {l} phase 0 ====")
            if not last:
                self.light1("U", l+1, self.rdV(0) + self.rdV(1), l)
                if l == 0: self.wvm("V1b")
                self.bar(f"B0{l}")
                self.c(f"==== B round {l} phase 1 ====")
                self.light2("U", l+1, self.rdV(2) + self.rdV(3), l)
            else:
                self.run(self.unpack(XF, PK, 8)); self.final_addr()
                self.poll(l); self.check_post(l)
            self.bar(f"B1{l}")
            self.c(f"==== B round {l} phase 2: G2 ====")
            self.prio(2)
            if last:
                self.g2_phase(l); self.final_store(); return
            self.g2_phase(l, mid=self.rdU(0), late=self.rdU(1))
            self.wvm(f"U{l+1}b")
            self.bar(f"B2{l}")
            self.c(f"==== B round {l} phase 3: G1 ====")
            self.g1_phase(l+1, extra=self.rdU(2) + self.rdU(3))
            self.prio(0)
            self.bar(f"B3{l}")

    def final_addr(self):
        a = self.a; t = [RX, RX+1, RX+2]
        a(f"v_and_b32 v{t[0]}, 15, v{vLANE}"); a(f"v_lshrrev_b32 v{t[1]}, 4, v{vLANE}")
        a(f"v_and_b32 v{t[2]}, 7, v{t[0]}"); a(f"v_xor_b32 v{t[2]}, v{t[2]}, v{t[1]}"); a(f"v_lshlrev_b32 v{t[2]}, 4, v{t[2]}")
        a(f"v_lshl_add_u32 v{t[2]}, v{t[0]}, 7, v{t[2]}")
        a(f"v_and_b32 v{vT[0]}, 0xfffff800, v{vXW}"); a(f"v_add_u32 v{vT[0]}, v{vT[0]}, v{t[2]}"); a(f"v_xor_b32 v{vT[1]}, 64, v{vT[0]}")
        a(f"v_lshrrev_b32 v{t[0]}, 3, v{vLANE}"); a(f"v_xor_b32 v{t[1]}, v{t[0]}, v{vLANE}"); a(f"v_and_b32 v{t[1]}, 7, v{t[1]}")
        a(f"v_lshlrev_b32 v{t[1]}, 4, v{t[1]}")
        a(f"v_and_b32 v{t[2]}, 4, v{t[0]}"); a(f"v_add_u32 v{t[0]}, v{t[0]}, v{t[2]}")
        a(f"v_lshl_add_u32 v{vT[2]}, v{t[0]}, 10, v{t[1]}")

    def final_store(self):
        a = self.a; D = XF
        for m in range(2):
            self.lgop(f"ds_read_b128 {vr(D+4*m,4)}, v{vXW} offset:{m*1024}", f"fo{m}")
        fl = self.opts.get("outflags", "")
        for m in range(2):
            a(f"s_add_u32 s{sT[m]}, s{sT[7]}, {m*16384}")
            self.wlg(f"fo{m}")
            self.vmop(f"buffer_store_dwordx4 {vr(D+4*m,4)}, v{vT[2]}, {sr(sO,4)}, s{sT[m]} offen {fl}", "out")
        if self.prof:
            a("s_waitcnt vmcnt(0)")
            self.stamp("fin"); self.stamp("rt1")
            a("s_waitcnt lgkmcnt(0)")
            a(f"v_mov_b32 v{RX}, 0")
            for i in range(len(self.prof)): a(f"v_writelane_b32 v{RX}, s{sSTAMP+2*i}, {i}")
            a(f"s_lshl_b32 s{sT[0]}, s2, 3"); a(f"s_add_u32 s{sT[0]}, s{sT[0]}, s{sWV}"); a(f"s_lshl_b32 s{sT[0]}, s{sT[0]}, 8")
            a(f"s_add_u32 s{sT[0]}, s{sT[0]}, {6<<20}")
            a(f"v_lshlrev_b32 v{vT[0]}, 2, v{vLANE}")
            a(f"buffer_store_dword v{RX}, v{vT[0]}, {sr(sW,4)}, s{sT[0]} offen")
        for i in range(self.opts.get("delay", 0)): a("s_sleep 125")
        a("s_endpgm")

    def handshake(self):
        a = self.a; x = self.x; P = XF
        self.c("handshake: the partner's inbox is cleared; does it share this XCD?")
        a(f"s_mov_b32 s{sCNT}, 0"); a(f"s_mov_b32 s{sMODE}, 1")
        self.wvm("flag")
        a(f"v_readfirstlane_b32 s{sT[0]}, v{vT[1]}")
        a(f"s_cmp_eq_u32 s{sT[0]}, s{sXCC}"); a("s_cbranch_scc0 L_hs_fast")
        self.lab("L_hs_done")
        self.rec("hscnt", f"s{sCNT}"); self.rec("mode", f"s{sMODE}")
        self.xl("L_hs_fast")
        x(f"buffer_load_ubyte v{vT[1]}, v{vT[2]}, {sr(sD,4)}, 0 offen sc1")
        x("s_waitcnt vmcnt(0)")
        x(f"v_readfirstlane_b32 s{sT[0]}, v{vT[1]}")
        x(f"s_cmp_eq_u32 s{sT[0]}, s{sXCC}"); x("s_cbranch_scc1 L_hs_done")
        x(f"s_add_u32 s{sCNT}, s{sCNT}, 1"); x(f"s_cmp_lt_u32 s{sCNT}, {self.opts.get('fastpolls', 8)}"); x("s_cbranch_scc1 L_hs_fast")
        for r in range(4): x(f"v_mov_b32 v{P+4+r}, 0")
        for sl in range(2):
            x(f"buffer_store_dwordx4 {vr(P+4,4)}, v{vE}, {sr(sW,4)}, s{sMY[sl]} offen sc1")
        x(f"s_lshl_b32 s{sT[1]}, s2, 3"); x(f"s_add_u32 s{sT[1]}, s{sT[1]}, s{sWV}"); x(f"s_lshl_b32 s{sT[1]}, s{sT[1]}, 7")
        x(f"s_add_u32 s{sT[1]}, s{sT[1]}, {4<<20}")
        x(f"s_xor_b32 s{sT[2]}, s{sT[1]}, {8*8*128}")
        x(f"v_mov_b32 v{P+2}, 0")
        x("s_mov_b64 exec, 1")
        x(f"buffer_load_dwordx4 {vr(P+8,4)}, v{P+2}, {sr(sW,4)}, s{sT[2]} offen sc1")
        x("s_waitcnt vmcnt(0)")
        x(f"v_readfirstlane_b32 s{sT[3]}, v{P+10}")
        x(f"s_add_u32 s{sT[3]}, s{sT[3]}, 1")
        x(f"v_mov_b32 v{P+3}, s{sT[3]}")
        x(f"buffer_store_dword v{P+3}, v{P+2}, {sr(sW,4)}, s{sT[1]} offen sc1")
        x("s_waitcnt vmcnt(0)")
        x(f"s_mov_b32 s{sCNT}, 0")
        self.xl("L_hs_slow")
        x(f"buffer_load_ubyte v{vT[1]}, v{vT[2]}, {sr(sD,4)}, 0 offen sc1")
        x(f"buffer_load_dwordx4 {vr(P+8,4)}, v{P+2}, {sr(sW,4)}, s{sT[2]} offen sc1")
        x("s_waitcnt vmcnt(0)")
        x(f"v_readfirstlane_b32 s{sT[0]}, v{vT[1]}")
        x(f"v_readfirstlane_b32 s{sT[5]}, v{P+8}")
        x(f"v_readfirstlane_b32 s{sT[4]}, v{P+10}")
        x(f"v_readfirstlane_b32 s{sMODE}, v{P+11}")
        x(f"s_cmp_eq_u32 s{sT[0]}, s{sXCC}"); x("s_cbranch_scc1 L_hs_same")
        x(f"v_mov_b32 v{P+12}, s{sT[5]}"); x(f"v_mov_b32 v{P+13}, s{sXCC}")
        x(f"buffer_store_dwordx2 {vr(P+12,2)}, v{P+2}, {sr(sW,4)}, s{sT[1]} offen offset:8 sc1")
        x(f"s_add_u32 s{sCNT}, s{sCNT}, 1"); x(f"s_cmp_gt_u32 s{sCNT}, 0x200000"); x("s_cbranch_scc1 L_hs_same")
        x(f"s_cmp_eq_u32 s{sT[4]}, s{sT[3]}"); x("s_cbranch_scc0 L_hs_slow")
        x(f"s_cmp_eq_u32 s{sMODE}, s{sXCC}"); x("s_cbranch_scc1 L_hs_same")
        x(f"s_mov_b32 s{sMODE}, 0")
        x(f"s_mov_b32 s{sE}, s{sKA+12}"); x(f"s_mov_b32 s{sE+1}, s{sKA+13}")
        x("s_mov_b64 exec, -1")
        x("s_branch L_hs_done")
        self.xl("L_hs_same")
        x(f"s_mov_b32 s{sMODE}, 1")
        x("s_mov_b64 exec, -1")
        x("s_branch L_hs_done")

    def build(self):
        hdr = [f"; @launch grid=(256,1,1) block=(512,1,1) lds={LDS_BYTES}",
               '.amdgcn_target "amdgcn-amd-amdhsa--gfx950"', ".text", f".globl {KN}", ".p2align 8",
               f".type {KN},@function", f"{KN}:"]
        self.prologue()
        A = self.fork(0); A.progA()
        B = self.fork(1); B.progB()
        nb = lambda g: sum(1 for s in g.o if s.strip() == "s_barrier")
        assert nb(A) == nb(B), (nb(A), nb(B))
        assert NV + NA <= 256
        ftr = [f".set CODE_BYTES, L_end - {KN}", '.section .rodata,"a"', ".p2align 6", f".amdhsa_kernel {KN}",
               f"  .amdhsa_next_free_vgpr {NV+NA}", "  .amdhsa_next_free_sgpr 102", f"  .amdhsa_accum_offset {NV}",
               "  .amdhsa_group_segment_fixed_size 0", "  .amdhsa_kernarg_size 56", "  .amdhsa_user_sgpr_count 2",
               "  .amdhsa_user_sgpr_kernarg_segment_ptr 1", "  .amdhsa_system_sgpr_workgroup_id_x 1",
               "  .amdhsa_float_denorm_mode_32 3", ".end_amdhsa_kernel"]
        log = []
        m1, n1 = fix_hazards(self.o + A.o, log)
        m2, n2 = fix_hazards(B.o, log)
        ool, n3 = fix_hazards(self.ool)
        main = m1 + m2 + ["L_end:", "    s_endpgm"]
        wrap = lambda ls: "\n".join(hdr + ls + ool + ftr) + "\n"
        if self.opts.get("align", 1):
            main, nw, nn = align(main, wrap, self.opts.get("minrun", 99))
            sys.stderr.write(f"hazard nops {n1}+{n2}+{n3}, widened {nw}, align nops {nn}\n")
        if self.opts.get("hlog"):
            for e in log: sys.stderr.write(str(e) + "\n")
        return wrap(main)

if __name__ == "__main__":
    prof = None; opts = {}
    for x in sys.argv[1:]:
        if x.startswith("--prof="): prof = x[7:].split(",")
        elif x.startswith("--"):
            k, v = x[2:].split("="); opts[k] = int(v) if v.lstrip("-").isdigit() else v
    out = [x for x in sys.argv[1:] if not x.startswith("--")][0]
    g = Gen(prof, opts); txt = g.build()
    if prof: txt = txt + "; stamps: " + ",".join(prof) + "\n"
    open(out, "w").write(txt)
```

```python
import sys, copy
from asmlib import fix_hazards, align
KN = "standalone__cross_network_dcn_v2__recsys_kernel"
L = 6
XB = 131072; HB = 147456; BIASB = 155648; LDS_BYTES = 161792
TAGS = [1, 1, 0, 0, 1, 1]

vLANE = 1; vA = 2; vE = 3; vV = [4, 5, 6, 7]; vU = [8, 9, 10, 11]
vXW = 12; vXR = [None, 13, 14, 15]; vHW = 16; vHR = [None, 17, 18, 19]
vBI = 20; vLIN = 21; vT = [22, 23, 24, 25]; vJ = 0
ACC1 = 26; ACC2 = 34; XF = 50; X0F = 66; PK = 82; HP = 90; RX = 94; TM = ACC2; SP = HP; T4 = 98
NV = 104
aV = 0; aU = 64; aX = 128; aH = 128; aS = 128; NS = 6; NA = 152
sX0 = 4; sV = 8; sU = 12; sO = 16; sE = 20; sD = 24; sB = 28; sW = 32
sKA = 36
sWV = 50; sHF = 51; sRB = 52; sXCC = 53; sMODE = 54
sVG = [55, 56, 57, 58]; sUG = [59, 60, 61, 62]; sSO = [63, 64]; sLB = 65
sMY = [66, 67]; sWS = 68; sXH = 69
sCNT = 70; sT = [71, 72, 73, 74, 75, 76, 77, 78]; sPTMP = 79
sSTAMP = 80

def vr(b, n): return f"v[{b}:{b+n-1}]"
def ar(b, n): return f"a[{b}:{b+n-1}]"
def sr(b, n): return f"s[{b}:{b+n-1}]"

class Gen:
    def __init__(self, prof=None, opts=None):
        self.o = []; self.ool = []; self.vm = []; self.lg = []; self.vmdone = 0; self.lgdone = 0
        self.prof = prof; self.opts = opts or {}; self.names = []
        self.pw = []; self.nso = 0; self.nst = 0; self.X = 0
        self.pat = self.opts.get("pat", "BBBB/BBBB/DBDB/DBDB"); self.lag = self.opts.get("lag", 4)
    def fork(self, X):
        g = copy.copy(self); g.o = []; g.vm = list(self.vm); g.lg = list(self.lg); g.pw = list(self.pw); g.X = X
        return g
    def a(self, s): self.o.append("    " + s)
    def x(self, s): self.ool.append("    " + s)
    def xl(self, s): self.ool.append(s + ":")
    def lab(self, s): self.o.append(s + ":")
    def c(self, s): self.o.append("    ; " + s)
    def vmop(self, s, tag): self.vm.append(tag); self.a(s)
    def lgop(self, s, tag): self.lg.append(tag); self.a(s)
    def _last(self, lst, tag):
        idx = [i for i, t in enumerate(lst) if t == tag]
        return idx[-1] if idx else None
    def wvm(self, tag):
        i = self._last(self.vm, tag)
        if i is not None: self.wvmi(i)
    def wvmi(self, i):
        if i < self.vmdone: return
        n = min(len(self.vm) - 1 - i, 63); self.vmdone = len(self.vm) - n
        self.a(f"s_waitcnt vmcnt({n})")
    def wlg(self, tag):
        i = self._last(self.lg, tag)
        if i is None or i < self.lgdone: return
        n = min(len(self.lg) - 1 - i, 15); self.lgdone = len(self.lg) - n
        self.a(f"s_waitcnt lgkmcnt({n})")
    def wlg0(self):
        if self.lgdone < len(self.lg): self.lgdone = len(self.lg); self.a("s_waitcnt lgkmcnt(0)")
    def bar(self, name=None):
        self.wlg0()
        if name: self.stamp(name + "a")
        self.a("s_barrier")
        if name: self.stamp(name + "b")
    def stamp(self, name):
        nm = name + "AB"[self.X] if False else name
        if self.prof and nm in self.prof:
            r = sSTAMP + 2 * self.prof.index(nm)
            assert r + 1 <= 101
            self.a(f"s_memrealtime s[{r}:{r+1}]" if nm.startswith("rt") else f"s_memtime s[{r}:{r+1}]")
    def rec(self, name, src):
        if self.prof and name in self.prof:
            self.a(f"s_mov_b32 s{sSTAMP + 2*self.prof.index(name)}, {src}")
    def prio(self, p):
        m = self.opts.get("prio", 1)
        if m == 1: self.a(f"s_setprio {p}")
        if m == 2: self.a(f"s_setprio {2-p}")
    def dma(self, kind, l, g, pat=None):
        if l >= L: return []
        if self.opts.get("dma") == "off" and l >= 2: return []
        pat = pat or self.pat.split("/")[g]
        so = sSO[self.nso & 1]; self.nso += 1
        base, sg, vv, srd = (0, sVG, vV, sV) if kind == "V" else (16384, sUG, vU, sU)
        tag = f"{kind}{l}" + "ab"[g >> 1]
        items = []
        for j in range(4):
            def emit(j=j):
                while self.pw and len(self.vm) - self.pw[0][0] > self.lag: self.pw.pop(0)[1]()
                if j == 0:
                    self.a(f"s_add_u32 m0, s{sLB}, {base+g*4096}"); self.a(f"s_add_u32 s{so}, s{sg[g]}, {l*131072}")
                if pat[j % len(pat)] in "DBC":
                    self.vmop(f"buffer_load_dwordx4 v{vv[j]}, {sr(srd,4)}, s{so} offen offset:{1024*j} lds", tag)
                    for q in range({"D": 0, "B": 1, "C": 2}[pat[j % len(pat)]]): self.vmop(f"buffer_load_dword v{vJ}, off, {sr(sB,4)}, 0", "gap")
                else:
                    nv = pat[:j].count("V")
                    st = aS + 4 * ((g if g < 3 else 3 + nv) if pat.count("V") == 1 or g == 3 else (self.nst % 3)); self.nst += 1
                    assert st + 4 <= aS + 4*NS
                    self.vmop(f"buffer_load_dwordx4 {ar(st,4)}, v{vv[j]}, {sr(srd,4)}, s{so} offen offset:{1024*j}", tag)
                    vi = len(self.vm) - 1
                    def wr():
                        self.wvmi(vi)
                        self.lgop(f"ds_write_b128 v{vLIN}, {ar(st,4)} offset:{base+g*4096+j*1024}", "sw")
                    self.pw.append((vi, wr, g))
            items.append(emit)
        return items
    def flush(self, keep3=False):
        while self.pw and not (keep3 and self.pw[0][2] == 3): self.pw.pop(0)[1]()
    def rdV(self, g):
        return [lambda j=j: self.lgop(f"ds_read_b128 {ar(aV+4*(4*g+j),4)}, v{vA} offset:{g*4096+j*1024}", f"rV{g}_{j>>1}") for j in range(4)]
    def rdU(self, g):
        return [lambda j=j: self.lgop(f"ds_read_b128 {ar(aU+4*(4*g+j),4)}, v{vA} offset:{16384+g*4096+j*1024}", f"rU{g}") for j in range(4)]
    def mf1(self, ks, fill=None):
        for ta in range(2):
            b = vr(PK + 4*ks, 4) if ks < 2 else ar(aX + 4*(ks-2), 4)
            d = vr(ACC1 + 4*ta, 4)
            self.a(f"v_mfma_f32_16x16x32_bf16 {d}, {ar(aV+4*(2*ks+ta),4)}, {b}, {'0' if ks == 0 else d}")
            if fill: self.run(fill[ta])
    def mf2(self, P, kr, fill=None):
        for ta in range(2):
            b = vr(HP, 4) if kr == 0 else ar(aH + 4*(kr-1), 4)
            d = vr(ACC2 + 8*P + 4*ta, 4)
            idx = ((kr >> 1)*2 + P)*4 + (kr & 1)*2 + ta
            self.a(f"v_mfma_f32_16x16x32_bf16 {d}, {ar(aU+4*idx,4)}, {b}, {d}")
            if fill: self.run(fill[ta])
    def epi(self, P, l, pk=False):
        r = []
        if pk:
            for e in range(4):
                q = 8*P + 2*e
                r.append(lambda q=q: self.a(f"v_pk_fma_f32 {vr(ACC2+q,2)}, {vr(X0F+q,2)}, {vr(ACC2+q,2)}, {vr(XF+q,2)}"))
        else:
            for e in range(8):
                q = 8*P + e
                r.append(lambda q=q: self.a(f"v_fma_f32 v{ACC2+q}, v{X0F+q}, v{ACC2+q}, v{XF+q}"))
        for e in range(4):
            q = 8*P + 2*e
            r.append(lambda q=q: self.a(f"v_cvt_pk_bf16_f32 v{PK+q//2}, v{ACC2+q}, v{ACC2+q+1}"))
        if l < L-1: r.append(lambda: self.lgop(f"ds_write_b128 v{vXW}, {vr(PK+4*P,4)} offset:{P*1024}", "xw"))
        else: r.append(lambda: self.lgop(f"ds_write_b128 v{vT[P]}, {vr(PK+4*P,4)}", "xw"))
        return r
    def unpack(self, dst, src, n):
        r = []
        for i in range(n):
            r.append(lambda i=i: self.a(f"v_lshlrev_b32 v{dst+2*i}, 16, v{src+i}"))
            r.append(lambda i=i: self.a(f"v_and_b32 v{dst+2*i+1}, 0xffff0000, v{src+i}"))
        return r
    def bias_rd(self, l):
        for k in range(4):
            self.lgop(f"ds_read_b128 {vr(ACC2+4*k,4)}, v{vBI} offset:{l*256 + (k>>1)*128 + (k&1)*16}", "bias")
    def run(self, lst):
        for f in lst: f()
    def mix(self, *lists):
        lists = [list(x) for x in lists]
        while any(lists):
            for x in lists:
                if x: x.pop(0)()
    def srd(self, r, p, n, bias=0):
        if bias:
            self.a(f"s_sub_u32 s{r}, s{p}, {bias}"); self.a(f"s_subb_u32 s{r+1}, s{p+1}, 0")
        else:
            self.a(f"s_mov_b32 s{r}, s{p}"); self.a(f"s_mov_b32 s{r+1}, s{p+1}")
        self.a(f"s_mov_b32 s{r+2}, {n+bias}"); self.a(f"s_mov_b32 s{r+3}, 0x20000")
    def poll(self, l):
        self.vmop(f"buffer_load_dwordx4 {vr(RX,4)}, v{vE}, {sr(sE,4)}, s{sMY[l&1]} offen sc1", f"poll{l}")
    def send(self, l, u=None):
        a = self.a; u = u if u is not None else f"{self.X}{l}"
        a(f"s_xor_b32 s{sPTMP}, s{sMY[l&1]}, 512")
        for k in range(4): a(f"v_cvt_pk_bf16_f32 v{SP+k}, v{ACC1+2*k}, v{ACC1+2*k+1}")
        for k in range(4): a(f"v_or_b32 v{SP+k}, 1, v{SP+k}" if TAGS[l] else f"v_and_b32 v{SP+k}, -2, v{SP+k}")
        if l == 0: self.handshake()
        self.stamp(f"snd{u}")
        a(f"s_cmp_eq_u32 s{sMODE}, 0"); a(f"s_cbranch_scc1 L_ss{u}")
        self.vmop(f"buffer_store_dwordx4 {vr(SP,4)}, v{vE}, {sr(sE,4)}, s{sPTMP} offen", "st")
        self.lab(f"L_sd{u}")
        self.xl(f"L_ss{u}")
        self.x(f"buffer_store_dwordx4 {vr(SP,4)}, v{vE}, {sr(sE,4)}, s{sPTMP} offen sc1")
        self.x("s_nop 1"); self.x(f"s_branch L_sd{u}")
    def chk_ops(self, l):
        R = RX; t0 = vT[3]
        if TAGS[l]:
            return [f"v_bitop3_b32 v{t0}, v{R}, v{R+1}, v{R+2} bitop3:0x80", f"v_bitop3_b32 v{t0}, v{t0}, v{R+3}, 1 bitop3:0x80", f"v_cmp_eq_u32 vcc, 0, v{t0}"]
        return [f"v_or3_b32 v{t0}, v{R}, v{R+1}, v{R+2}", f"v_bitop3_b32 v{t0}, v{t0}, 1, v{R+3} bitop3:0xc8", f"v_cmp_ne_u32 vcc, 0, v{t0}"]
    def check_post(self, l, d=None):
        u = f"{self.X}{l}"; x = self.x; a = self.a
        self.wvm(f"poll{l}")
        self.stamp(f"chk{u}")
        if self.opts.get("dbgcnt"): a(f"s_mov_b32 s{sCNT}, 0")
        for s in self.chk_ops(l): a(s)
        a(f"s_cbranch_vccnz L_rt{u}")
        self.lab(f"L_got{u}")
        self.stamp(f"got{u}")
        if self.opts.get("dbgcnt"): self.rec(f"cnt{l}", f"s{sCNT}")
        self.xl(f"L_rt{u}")
        x(f"s_mov_b32 s{sCNT}, 0")
        self.xl(f"L_rl{u}")
        x(f"buffer_load_dwordx4 {vr(RX,4)}, v{vE}, {sr(sE,4)}, s{sMY[l&1]} offen sc1")
        x(f"s_add_u32 s{sCNT}, s{sCNT}, 1"); x(f"s_cmp_gt_u32 s{sCNT}, 0x200000")
        x("s_waitcnt vmcnt(0)")
        x(f"s_cbranch_scc1 L_got{u}")
        for s in self.chk_ops(l): x(s)
        x(f"s_cbranch_vccnz L_rl{u}")
        x(f"s_branch L_got{u}")
        ops = []
        for h in range(2):
            ops += self.unpack(T4, RX+2*h, 2)
            if self.opts.get("pkadd", 0):
                for k in range(2): ops.append(lambda k=k, h=h: a(f"v_pk_add_f32 {vr(T4+2*k,2)}, {vr(T4+2*k,2)}, {vr(ACC1+4*h+2*k,2)}"))
            else:
                for k in range(4): ops.append(lambda k=k, h=h: a(f"v_add_f32 v{T4+k}, v{T4+k}, v{ACC1+4*h+k}"))
            for k in range(2): ops.append(lambda k=k, h=h: a(f"v_cvt_pk_bf16_f32 v{HP+2*h+k}, v{T4+2*k}, v{T4+2*k+1}"))
        ops.append(lambda: self.lgop(f"ds_write_b128 v{vHW}, {vr(HP,4)}", "hw"))
        if d is None:
            self.run(ops); self.bias_rd(l); return
        d = list(d); st = self.opts.get("vper", 10)
        while ops:
            self.run(ops[:st]); ops = ops[st:]
            if ops and d: d.pop(0)()
        self.run(d)
    def x_reads(self):
        return [lambda ks=ks: self.lgop(f"ds_read_b128 {ar(aX+4*(ks-2),4)}, v{vXR[ks>>1]} offset:{(ks&1)*1024}", f"x{ks}") for ks in range(2, 8)]
    def h_reads(self):
        for kr in range(1, 4):
            self.lgop(f"ds_read_b128 {ar(aH+4*(kr-1),4)}, v{vHR[kr]}", f"h{kr}")

    def g2_phase(self, l, early=None, mid=None, late=None):
        early = list(early or []); mid = list(mid or []); late = list(late or [])
        def take(q): return [q[0:1], q[1:2]]
        self.h_reads()
        self.mf2(0, 0, take(early)); self.mf2(1, 0, take(early[2:]))
        self.wlg("h1"); self.mf2(0, 1, take(early[4:]))
        self.wlg("h2"); self.mf2(0, 2, take(early[6:] + mid))
        self.wlg("h3"); self.mf2(0, 3, take(mid[2:]))
        self.flush()
        e0 = self.epi(0, l); e1 = self.epi(1, l, pk=self.opts.get("pkfma", 1))
        u = f"{self.X}{l}"
        self.stamp(f"g2a{u}")
        self.mf2(1, 1); self.mf2(1, 2, [late[0:2], late[2:4]])
        self.stamp(f"g2b{u}")
        self.mf2(1, 3, [e0[0:2], e0[2:-1]])
        self.stamp(f"g2c{u}")
        e0[-1]()
        self.stamp(f"g2d{u}")
        self.run(e1[:-1])
        self.stamp(f"g2e{u}")
        e1[-1]()
        self.stamp(f"g2f{u}")
    def g1_phase(self, l, jitV=False, extra=None):
        xr = self.x_reads(); extra = list(extra or [])
        if jitV:
            rv = self.rdV(2) + self.rdV(3)
            self.run(xr[0:2])
            q = [xr[2], rv[0], rv[1], xr[3], rv[2], rv[3], xr[4], rv[4], rv[5], xr[5], rv[6], rv[7]]
            for ks in range(8):
                self.wlg(f"rV{ks>>1}_{ks&1}")
                if ks >= 2: self.wlg(f"x{ks}")
                self.mf1(ks, [q[0:2], q[2:3]]); q = q[3:]
        else:
            self.run(xr)
            for ks in range(8):
                if ks >= 2: self.wlg(f"x{ks}")
                self.mf1(ks, [extra[0:1], extra[1:2]]); extra = extra[2:]
            self.run(extra)
        self.send(l)

    def prologue(self):
        a = self.a; T = [X0F + i for i in range(10)]
        a(f"s_load_dwordx8 {sr(sKA,8)}, s[0:1], 0")
        a(f"s_load_dwordx4 {sr(sKA+8,4)}, s[0:1], 32")
        a(f"s_load_dwordx2 {sr(sKA+12,2)}, s[0:1], 48")
        a("s_cmp_ge_u32 s2, 256"); a("s_cbranch_scc1 L_end")
        self.stamp("start"); self.stamp("rt0")
        a(f"v_lshrrev_b32 v{T[0]}, 6, v0"); a(f"v_and_b32 v{vLANE}, 63, v0")
        a(f"s_lshr_b32 s{sT[0]}, s2, 3")
        a(f"v_readfirstlane_b32 s{sWV}, v{T[0]}")
        a(f"s_lshl_b32 s{sT[0]}, s{sT[0]}, 3"); a(f"s_add_u32 s{sT[6]}, s{sT[0]}, s{sWV}")
        if self.opts.get("codepf", 1):
            a(f"s_getpc_b64 {sr(sX0,2)}")
            a(f"s_and_b32 s{sX0}, s{sX0}, 0xffffff00")
            a(f"s_lshl_b32 s{sT[1]}, s{sT[6]}, 7"); a(f"v_mov_b32 v{T[1]}, s{sT[1]}")
            a(f"s_cmp_ge_u32 s{sT[1]}, CODE_BYTES"); a("s_cbranch_scc1 L_nocpf")
            a("s_mov_b64 exec, 1")
            a(f"global_load_dword v{vJ}, v{T[1]}, {sr(sX0,2)}")
            a("s_mov_b64 exec, -1")
            self.lab("L_nocpf")
        a(f"s_and_b32 s{sWS}, s{sWV}, 3"); a(f"s_lshr_b32 s{sXH}, s{sWV}, 2")
        a(f"v_lshrrev_b32 v{T[6]}, 2, v{vLANE}"); a(f"v_and_b32 v{T[7]}, 3, v{vLANE}")
        a(f"v_lshlrev_b32 v{T[9]}, 7, v{T[7]}"); a(f"v_lshl_add_u32 v{vT[3]}, v{T[6]}, 17, v{T[9]}")
        a(f"s_lshl_b32 s{sT[6]}, s{sT[6]}, 9"); a(f"s_add_u32 s{sT[6]}, s{sT[6]}, 3072")
        a(f"s_bfe_u32 s{sHF}, s2, 0x10003")
        a(f"s_lshr_b32 s{sT[0]}, s2, 4"); a(f"s_lshl_b32 s{sT[0]}, s{sT[0]}, 3"); a(f"s_and_b32 s{sRB}, s2, 7"); a(f"s_or_b32 s{sRB}, s{sRB}, s{sT[0]}")
        a(f"s_lshl_b32 s{sLB}, s{sWS}, 15")
        a(f"v_lshrrev_b32 v{T[0]}, 4, v{vLANE}")
        a(f"s_movk_i32 s{sPTMP}, 0x78"); a(f"v_lshlrev_b32 v{T[1]}, 1, v{T[0]}"); a(f"v_lshrrev_b32 v{T[2]}, v{T[1]}, s{sPTMP}")
        a(f"v_xor_b32 v{T[2]}, v{T[2]}, v{vLANE}"); a(f"v_and_b32 v{T[2]}, 3, v{T[2]}"); a(f"v_lshlrev_b32 v{T[2]}, 4, v{T[2]}")
        a(f"v_bfe_u32 v{T[1]}, v{vLANE}, 2, 2"); a(f"v_lshl_add_u32 v{T[1]}, v{T[0]}, 3, v{T[1]}")
        a(f"v_lshl_add_u32 v{T[3]}, v{T[1]}, 10, v{T[2]}"); a(f"v_lshl_add_u32 v{T[4]}, v{T[1]}, 8, v{T[2]}")
        for j in range(4):
            a(f"v_add_u32 v{vV[j]}, {(j&1)*4096 + (j>>1)*64 - 1024*j + 3072}, v{T[3]}")
        a(f"v_add_u32 v{T[5]}, {64 - 1024 + 3072}, v{T[3]}")
        a(f"s_lshl_b32 s{sT[2]}, s{sHF}, 9"); a(f"s_add_u32 s{sT[3]}, s{sLB}, s{sT[2]}")
        a(f"s_lshl_b32 s{sT[4]}, s{sRB}, 15"); a(f"s_add_u32 s{sT[4]}, s{sT[4]}, s{sT[2]}")
        a(f"s_lshl_b32 s{sT[5]}, s{sXH}, 12"); a(f"s_add_u32 s{sT[4]}, s{sT[4]}, s{sT[5]}")
        a(f"s_lshl_b32 s{sT[5]}, s{sWS}, 7"); a(f"s_add_u32 s{sT[7]}, s{sT[4]}, s{sT[5]}")
        a(f"s_lshr_b32 s{sT[5]}, s{sWS}, 1"); a(f"s_lshl_b32 s{sT[5]}, s{sT[5]}, 13"); a(f"s_add_u32 s{sT[4]}, s{sT[4]}, s{sT[5]}")
        a(f"s_and_b32 s{sT[5]}, s{sWS}, 1"); a(f"s_lshl_b32 s{sT[5]}, s{sT[5]}, 11"); a(f"s_add_u32 s{sMY[0]}, s{sT[4]}, s{sT[5]}")
        a(f"s_add_u32 s{sMY[1]}, s{sMY[0]}, 16384")
        for g in range(4):
            a(f"s_xor_b32 s{sT[4]}, s{sWS}, {g}"); a(f"s_lshl_b32 s{sT[4]}, s{sT[4]}, 7"); a(f"s_add_u32 s{sVG[g]}, s{sT[3]}, s{sT[4]}")
        a(f"v_lshrrev_b32 v{T[8]}, 5, v{vLANE}"); a(f"v_and_b32 v{vE}, 31, v{vLANE}"); a(f"v_lshlrev_b32 v{vE}, 4, v{vE}")
        a(f"v_lshl_add_u32 v{vE}, v{T[8]}, 10, v{vE}")
        for r in range(4): a(f"v_mov_b32 v{TM+r}, 0")
        a(f"v_mov_b32 v{vT[2]}, s2"); a(f"v_xor_b32 v{vT[2]}, 8, v{vT[2]}")
        a(f"s_lshl_b32 s{sT[5]}, s{sWS}, 12"); a(f"s_lshl_b32 s{sT[4]}, s{sXH}, 11"); a(f"s_add_u32 s{sT[5]}, s{sT[5]}, s{sT[4]}")
        a(f"s_add_u32 m0, s{sT[5]}, {XB}")
        a(f"v_lshrrev_b32 v{T[6]}, 3, v{vLANE}"); a(f"v_and_b32 v{T[7]}, 7, v{vLANE}")
        a(f"v_lshlrev_b32 v{T[8]}, 4, v{T[7]}"); a(f"v_lshl_add_u32 v{T[8]}, v{T[6]}, 10, v{T[8]}")
        a(f"s_lshl_b32 s{sT[5]}, s{sWS}, 7"); a(f"s_add_u32 s{sT[5]}, s{sT[5]}, s{sT[2]}"); a(f"s_mul_i32 s{sT[3]}, s{sXH}, 3072"); a(f"s_add_u32 s{sT[5]}, s{sT[5]}, s{sT[3]}")
        a("s_waitcnt lgkmcnt(0)")
        self.stamp("karg")
        pf = self.opts.get("pf", 1)
        def pfl(lo):
            if not pf or not lo: return
            a(f"s_mov_b64 exec, {lo}")
            self.vmop(f"buffer_load_dword v{vJ}, v{vT[3]}, {sr(sV,4)}, s{sT[6]} offen", "pf")
            self.vmop(f"buffer_load_dword v{vJ}, v{vT[3]}, {sr(sU,4)}, s{sT[6]} offen", "pf")
            a("s_mov_b64 exec, -1")
        self.pfl = pfl
        masks = [int(m, 16) for m in str(self.opts.get("pfm", "f,fffff0")).split(",")]
        self.pfmasks = masks
        self.srd(sX0, sKA+0, 4096*1024, 3072)
        self.vmop(f"buffer_load_dwordx4 v{vV[0]}, {sr(sX0,4)}, s{sT[7]} offen lds", "x0")
        self.vmop(f"buffer_load_dwordx4 v{T[5]}, {sr(sX0,4)}, s{sT[7]} offen offset:1024 lds", "x0")
        self.srd(sV, sKA+4, 6*131072, 3072)
        self.srd(sU, sKA+2, 6*131072, 3072)
        pfl(masks[0])
        self.srd(sB, sKA+6, 6*1024)
        self.srd(sD, sKA+10, 256)
        a("s_mov_b64 exec, 0xffffff")
        self.vmop(f"buffer_load_dwordx4 {vr(TM+4,4)}, v{T[8]}, {sr(sB,4)}, s{sT[5]} offen", "bias")
        a("s_mov_b64 exec, 1")
        self.vmop(f"buffer_load_ubyte v{vJ}, v{vT[2]}, {sr(sD,4)}, 0 offen", "touch")
        a("s_mov_b64 exec, -1")
        self.srd(sO, sKA+8, 4096*1024)
        bt = self.opts.get("boxtouch", 1)
        a(f"v_and_b32 v{RX+1}, 3, v{vLANE}"); a(f"v_lshlrev_b32 v{RX+1}, 7, v{RX+1}")
        a(f"v_bfe_u32 v{RX}, v{vLANE}, 2, 1"); a(f"v_lshl_add_u32 v{RX+1}, v{RX}, 10, v{RX+1}")
        a(f"v_bfe_u32 v{RX}, v{vLANE}, 3, 1"); a(f"v_lshl_add_u32 v{RX+1}, v{RX}, 14, v{RX+1}")
        def box(m):
            a(f"s_mov_b64 exec, {m}")
            self.vmop(f"buffer_load_dword v{vJ}, v{RX+1}, {sr(sO,4)}, s{sMY[0]} offen", "bt")
            a("s_mov_b64 exec, -1")
        self.box = box
        if bt == 1: box(0xffff)
        if bt == 2: box(0xff)
        if self.opts.get("clrearly", 1):
            self.vmop(f"buffer_store_dwordx4 {vr(TM,4)}, v{vE}, {sr(sO,4)}, s{sMY[0]} offen", "clr")
        self.stamp("i_x0")
        a("s_barrier")
        a(f"s_lshl_b32 s{sT[4]}, s{sXH}, 13"); a(f"s_add_u32 s{sT[4]}, s{sT[4]}, s{sLB}")
        a(f"s_cmp_eq_u32 s{sXH}, 0")
        a(f"s_cselect_b32 s{sT[0]}, s{sVG[0]}, s{sVG[2]}"); a(f"s_cselect_b32 s{sT[1]}, s{sVG[1]}, s{sVG[3]}")
        def v0grp(k):
            a(f"s_add_u32 m0, s{sT[4]}, {k*4096}"); a("s_nop 0")
            for j in range(4):
                self.vmop(f"buffer_load_dwordx4 v{vV[j]}, {sr(sV,4)}, s{sT[k]} offen offset:{1024*j} lds", "V0")
                if (j & 1) and self.opts.get("pgap", 1): self.vmop(f"buffer_load_dword v{vJ}, off, {sr(sB,4)}, 0", "gap")
        v0grp(0)
        self.stamp("i_v0a")
        self.srd(sW, sKA+12, 8 << 20)
        self.srd(sE, sKA+8, 4096*1024)
        a(f"s_getreg_b32 s{sXCC}, hwreg(HW_REG_XCC_ID)"); a(f"s_and_b32 s{sXCC}, s{sXCC}, 15"); a(f"s_or_b32 s{sXCC}, s{sXCC}, 16")
        a(f"s_and_b32 s{sT[0]}, s{sWS}, 1"); a(f"s_lshl_b32 s{sT[0]}, s{sT[0]}, 6"); a(f"s_xor_b32 s{sT[3]}, s{sT[0]}, 64")
        for j in range(4):
            a(f"v_add_u32 v{vU[j]}, {(j&1)*1024 - 1024*j + 3072}, v{T[4]}")
            a(f"v_add_u32 v{vU[j]}, s{sT[3] if j >> 1 else sT[0]}, v{vU[j]}")
        a(f"s_lshl_b32 s{sT[0]}, s{sHF}, 16"); a(f"s_lshl_b32 s{sT[5]}, s{sWS}, 14"); a(f"s_add_u32 s{sT[0]}, s{sT[0]}, s{sT[5]}")
        for g in range(4):
            pp, P = g >> 1, g & 1
            a(f"s_xor_b32 s{sT[5]}, s{sWS}, {2*pp}"); a(f"s_and_b32 s{sT[5]}, s{sT[5]}, 2"); a(f"s_lshl_b32 s{sT[5]}, s{sT[5]}, 6")
            a(f"s_add_u32 s{sT[5]}, s{sT[5]}, {P*8192}"); a(f"s_add_u32 s{sUG[g]}, s{sT[0]}, s{sT[5]}")
        a(f"v_bfe_u32 v{T[1]}, v{vLANE}, 2, 2"); a(f"v_lshlrev_b32 v{T[1]}, 1, v{T[1]}"); a(f"v_lshrrev_b32 v{T[2]}, v{T[1]}, s{sPTMP}")
        a(f"v_xor_b32 v{T[2]}, v{T[2]}, v{T[0]}"); a(f"v_and_b32 v{T[2]}, 3, v{T[2]}"); a(f"v_lshlrev_b32 v{T[2]}, 4, v{T[2]}")
        a(f"v_and_b32 v{T[1]}, 15, v{vLANE}"); a(f"v_lshl_add_u32 v{T[2]}, v{T[1]}, 6, v{T[2]}")
        a(f"v_add_u32 v{vA}, s{sLB}, v{T[2]}")
        a(f"s_lshl_b32 s{sT[5]}, s{sWS}, 12"); a(f"s_lshl_b32 s{sT[0]}, s{sXH}, 11"); a(f"s_add_u32 s{sT[5]}, s{sT[5]}, s{sT[0]}"); a(f"s_add_u32 s{sT[5]}, s{sT[5]}, {XB}")
        a(f"v_add_u32 v{T[3]}, s{sT[5]}, v{T[2]}")
        a(f"v_lshlrev_b32 v{T[1]}, 4, v{vLANE}")
        a(f"v_add_u32 v{vXW}, s{sT[5]}, v{T[1]}"); a(f"v_add_u32 v{vLIN}, s{sLB}, v{T[1]}")
        for g in range(1, 4): a(f"v_xor_b32 v{vXR[g]}, {g*4096}, v{vXW}")
        a(f"s_lshl_b32 s{sT[5]}, s{sWV}, 10"); a(f"s_add_u32 s{sT[5]}, s{sT[5]}, {HB}")
        a(f"v_add_u32 v{vHW}, s{sT[5]}, v{T[1]}")
        for g in range(1, 4): a(f"v_xor_b32 v{vHR[g]}, {g*1024}, v{vHW}")
        a(f"s_mul_i32 s{sT[5]}, s{sWS}, 1536"); a(f"s_add_u32 s{sT[5]}, s{sT[5]}, {BIASB}")
        a(f"v_lshlrev_b32 v{vBI}, 5, v{T[0]}"); a(f"v_add_u32 v{vBI}, s{sT[5]}, v{vBI}")
        a(f"s_mul_i32 s{sT[0]}, s{sXH}, 768"); a(f"s_add_u32 s{sT[5]}, s{sT[5]}, s{sT[0]}")
        a(f"v_lshlrev_b32 v{T[7]}, 5, v{T[7]}"); a(f"v_lshl_add_u32 v{T[7]}, v{T[6]}, 8, v{T[7]}"); a(f"v_add_u32 v{vT[0]}, s{sT[5]}, v{T[7]}")
        def xproc():
            self.wvm("x0")
            self.stamp("x0")
            for P in range(2):
                self.lgop(f"ds_read_b128 {vr(PK+4*P,4)}, v{T[3]} offset:{P*1024}", "x0r")
            self.wvm("bias")
            self.run(self.unpack(TM+8, TM+4, 4))
            self.wlg("x0r")
            for P in range(2):
                self.lgop(f"ds_write_b128 v{vXW}, {vr(PK+4*P,4)} offset:{P*1024}", "xw")
            a("s_mov_b64 exec, 0xffffff")
            self.lgop(f"ds_write_b128 v{vT[0]}, {vr(TM+8,4)}", "bw")
            self.lgop(f"ds_write_b128 v{vT[0]}, {vr(TM+12,4)} offset:16", "bw")
            a("s_mov_b64 exec, -1")
            self.run(self.unpack(X0F, PK, 8))
        xp = self.opts.get("xproc", 0)
        if xp == 0: xproc()
        v0grp(1)
        self.stamp("i_v0b")
        if not self.opts.get("clrearly", 1):
            self.vmop(f"buffer_store_dwordx4 {vr(TM,4)}, v{vE}, {sr(sO,4)}, s{sMY[0]} offen", "clr")
        if bt == 3: box(0xffff)
        if bt == 4: box(0xff)
        pfl(masks[1])
        a(f"s_cmp_eq_u32 s{sXH}, 0")
        a(f"s_cselect_b32 s{sT[0]}, s{sUG[0]}, s{sUG[2]}"); a(f"s_cselect_b32 s{sT[1]}, s{sUG[1]}, s{sUG[3]}")
        def u0grp(k):
            return [lambda j=j: ((a(f"s_add_u32 m0, s{sT[4]}, {16384+k*4096}"), a("s_nop 0")) if j == 0 else None,
                                 self.vmop(f"buffer_load_dwordx4 v{vU[j]}, {sr(sU,4)}, s{sT[k]} offen offset:{1024*j} lds", "U0"),
                                 self.vmop(f"buffer_load_dword v{vJ}, off, {sr(sB,4)}, 0", "gap") if (j & 1) and self.opts.get("pgap", 1) else None) for j in range(4)]
        if xp == 1: xproc()
        a("s_barrier")
        self.stamp("issued")
        self.run(u0grp(0))
        self.stamp("xdone")
        self.wvm("V0"); self.stamp("v0l"); self.wvm("clr")
        self.bar("b0")
        a(f"s_cmp_lg_u32 s{sWV}, 0"); a("s_cbranch_scc0 L_flag")
        self.lab("L_noflag")
        self.xl("L_flag")
        self.x(f"v_mov_b32 v{vT[0]}, s2"); self.x(f"v_mov_b32 v{vT[1]}, s{sXCC}"); self.x("s_mov_b64 exec, 1")
        self.x(f"buffer_store_byte v{vT[1]}, v{vT[0]}, {sr(sD,4)}, 0 offen"); self.x("s_mov_b64 exec, -1"); self.x("s_branch L_noflag")
        self.vmop(f"buffer_store_dwordx4 {vr(TM,4)}, v{vE}, {sr(sO,4)}, s{sMY[1]} offen", "clr1")
        xr = self.x_reads(); rv = [f for g in range(4) for f in self.rdV(g)]
        u1 = u0grp(1)
        self.run(rv[0:4]); self.run(xr[0:2]); self.run(rv[4:8]); self.run(xr[2:4])
        q = rv[8:12] + xr[4:6] + rv[12:16]
        for ks in range(8):
            self.wlg(f"rV{ks>>1}_{ks&1}")
            if ks >= 2: self.wlg(f"x{ks}")
            self.mf1(ks, [q[0:1], q[1:2]]); q = q[2:]
            if ks == 2: self.vmop(f"buffer_load_ubyte v{vT[1]}, v{vT[2]}, {sr(sD,4)}, 0 offen sc1", "flag")
            if ks >= 4: u1[ks-4]()
        self.send(0, "p")
        if self.opts.get("boxtouch", 1) in (2, 4): self.box(0xff00)
        if len(self.pfmasks) > 2: self.pfl(self.pfmasks[2])
        self.bar("b1")
        a(f"s_cmp_lg_u32 s{sXH}, 0"); a("s_cbranch_scc1 L_progB")

    def bias_ops(self, l):
        return [lambda k=k: self.lgop(f"ds_read_b128 {vr(ACC2+4*k,4)}, v{vBI} offset:{l*256 + (k>>1)*128 + (k&1)*16}", "bias") for k in range(4)]
    def light1(self, kind, l, rd, lp):
        d = self.dma(kind, l, 0) + self.dma(kind, l, 1)
        pp = self.opts.get("pollat", 6); r0 = self.opts.get("rd1at", 0)
        rd = list(rd) + self.bias_ops(lp)
        per = self.opts.get("rd1per", 4)
        for k in range(8):
            if k == pp: self.poll(lp)
            if k < len(d): d[k]()
            if r0 <= k: self.run(rd[:per]); rd = rd[per:]
            self.stamp(f"l1{self.X}{lp}_{k}")
        if pp >= 8: self.poll(lp)
    def light2(self, kind, l, rd, lp):
        d = self.dma(kind, l, 2) + self.dma(kind, l, 3) + [lambda: None] * 8
        p2 = self.opts.get("pre2", 3); rd = list(rd)
        self.run(d[:p2])
        self.run(rd[:4]); d[p2](); self.run(rd[4:]); d[p2+1]()
        self.stamp(f"pd{self.X}{lp}")
        self.check_post(lp, d[p2+2:p2+3])
        self.stamp(f"po{self.X}{lp}")
        ux = self.unpack(XF, PK, 8)
        self.run(ux[:8]); self.run(d[p2+3:p2+4]); self.run(ux[8:])
        self.wvm(f"{kind}{l}a")
        self.run(d[p2+4:8])
        self.stamp(f"en{self.X}{lp}")
    def progA(self):
        self.prio(0)
        d = self.dma("V", 1, 0) + self.dma("V", 1, 1)
        self.run(d[:4]); self.run(self.unpack(XF, PK, 8)); self.poll(0)
        self.wvm("U0")
        self.bar("b1x")
        self.mix(d[4:], self.rdU(0))
        self.check_post(0)
        self.run(self.rdU(1) + self.rdU(2) + self.rdU(3))
        self.wvm("V1a")
        self.bar("b2")
        for l in range(L):
            last = l == L-1
            self.c(f"==== A round {l} phase 0: G2 ====")
            self.prio(2)
            if last: self.final_addr()
            self.g2_phase(l, early=(None if last else self.rdV(0) + self.rdV(1)))
            if last:
                self.a("s_barrier"); self.final_store(); return
            self.wvm(f"V{l+1}b")
            self.stamp(f"g2g0{l}")
            self.bar(f"A0{l}")
            self.c(f"==== A round {l} phase 1: G1 ====")
            self.g1_phase(l+1, jitV=True)
            self.prio(0)
            self.bar(f"A1{l}")
            self.c(f"==== A round {l} phase 2 ====")
            self.light1("V", l+2, self.rdU(0) + self.rdU(1), l+1)
            self.bar(f"A2{l}")
            self.c(f"==== A round {l} phase 3 ====")
            self.light2("V", l+2, self.rdU(2) + self.rdU(3), l+1)
            self.bar(f"A3{l}")

    def progB(self):
        self.lab("L_progB")
        self.prio(0)
        d = self.dma("V", 1, 2) + self.dma("V", 1, 3)
        self.run(d[:4])
        self.wvm("U0")
        self.bar("b1x")
        self.mix(d[4:], [f for g in range(4) for f in self.rdU(g)])
        self.bar("b2")
        for l in range(L):
            last = l == L-1
            self.c(f"==== B round {l} phase 0 ====")
            if not last:
                self.light1("U", l+1, self.rdV(0) + self.rdV(1), l)
                if l == 0: self.wvm("V1b")
                self.bar(f"B0{l}")
                self.c(f"==== B round {l} phase 1 ====")
                self.light2("U", l+1, self.rdV(2) + self.rdV(3), l)
            else:
                self.run(self.unpack(XF, PK, 8)); self.final_addr()
                self.poll(l); self.check_post(l)
            self.bar(f"B1{l}")
            self.c(f"==== B round {l} phase 2: G2 ====")
            self.prio(2)
            if last:
                self.g2_phase(l); self.final_store(); return
            self.g2_phase(l, mid=self.rdU(0), late=self.rdU(1))
            self.wvm(f"U{l+1}b")
            self.bar(f"B2{l}")
            self.c(f"==== B round {l} phase 3: G1 ====")
            self.g1_phase(l+1, extra=self.rdU(2) + self.rdU(3))
            self.prio(0)
            self.bar(f"B3{l}")

    def final_addr(self):
        a = self.a; t = [RX, RX+1, RX+2]
        a(f"v_and_b32 v{t[0]}, 15, v{vLANE}"); a(f"v_lshrrev_b32 v{t[1]}, 4, v{vLANE}")
        a(f"v_and_b32 v{t[2]}, 7, v{t[0]}"); a(f"v_xor_b32 v{t[2]}, v{t[2]}, v{t[1]}"); a(f"v_lshlrev_b32 v{t[2]}, 4, v{t[2]}")
        a(f"v_lshl_add_u32 v{t[2]}, v{t[0]}, 7, v{t[2]}")
        a(f"v_and_b32 v{vT[0]}, 0xfffff800, v{vXW}"); a(f"v_add_u32 v{vT[0]}, v{vT[0]}, v{t[2]}"); a(f"v_xor_b32 v{vT[1]}, 64, v{vT[0]}")
        a(f"v_lshrrev_b32 v{t[0]}, 3, v{vLANE}"); a(f"v_xor_b32 v{t[1]}, v{t[0]}, v{vLANE}"); a(f"v_and_b32 v{t[1]}, 7, v{t[1]}")
        a(f"v_lshlrev_b32 v{t[1]}, 4, v{t[1]}")
        a(f"v_and_b32 v{t[2]}, 4, v{t[0]}"); a(f"v_add_u32 v{t[0]}, v{t[0]}, v{t[2]}")
        a(f"v_lshl_add_u32 v{vT[2]}, v{t[0]}, 10, v{t[1]}")

    def final_store(self):
        a = self.a; D = XF
        for m in range(2):
            self.lgop(f"ds_read_b128 {vr(D+4*m,4)}, v{vXW} offset:{m*1024}", f"fo{m}")
        fl = self.opts.get("outflags", "")
        for m in range(2):
            a(f"s_add_u32 s{sT[m]}, s{sT[7]}, {m*16384}")
            self.wlg(f"fo{m}")
            self.vmop(f"buffer_store_dwordx4 {vr(D+4*m,4)}, v{vT[2]}, {sr(sO,4)}, s{sT[m]} offen {fl}", "out")
        if self.prof:
            a("s_waitcnt vmcnt(0)")
            self.stamp("fin"); self.stamp("rt1")
            a("s_waitcnt lgkmcnt(0)")
            a(f"v_mov_b32 v{RX}, 0")
            for i in range(len(self.prof)): a(f"v_writelane_b32 v{RX}, s{sSTAMP+2*i}, {i}")
            a(f"s_lshl_b32 s{sT[0]}, s2, 3"); a(f"s_add_u32 s{sT[0]}, s{sT[0]}, s{sWV}"); a(f"s_lshl_b32 s{sT[0]}, s{sT[0]}, 8")
            a(f"s_add_u32 s{sT[0]}, s{sT[0]}, {6<<20}")
            a(f"v_lshlrev_b32 v{vT[0]}, 2, v{vLANE}")
            a(f"buffer_store_dword v{RX}, v{vT[0]}, {sr(sW,4)}, s{sT[0]} offen")
        for i in range(self.opts.get("delay", 0)): a("s_sleep 125")
        a("s_endpgm")

    def handshake(self):
        a = self.a; x = self.x; P = XF
        self.c("handshake: the partner's inbox is cleared; does it share this XCD?")
        a(f"s_mov_b32 s{sCNT}, 0"); a(f"s_mov_b32 s{sMODE}, 1")
        self.wvm("flag")
        a(f"v_readfirstlane_b32 s{sT[0]}, v{vT[1]}")
        a(f"s_cmp_eq_u32 s{sT[0]}, s{sXCC}"); a("s_cbranch_scc0 L_hs_fast")
        self.lab("L_hs_done")
        self.rec("hscnt", f"s{sCNT}"); self.rec("mode", f"s{sMODE}")
        self.xl("L_hs_fast")
        x(f"buffer_load_ubyte v{vT[1]}, v{vT[2]}, {sr(sD,4)}, 0 offen sc1")
        x("s_waitcnt vmcnt(0)")
        x(f"v_readfirstlane_b32 s{sT[0]}, v{vT[1]}")
        x(f"s_cmp_eq_u32 s{sT[0]}, s{sXCC}"); x("s_cbranch_scc1 L_hs_done")
        x(f"s_add_u32 s{sCNT}, s{sCNT}, 1"); x(f"s_cmp_lt_u32 s{sCNT}, {self.opts.get('fastpolls', 8)}"); x("s_cbranch_scc1 L_hs_fast")
        for r in range(4): x(f"v_mov_b32 v{P+4+r}, 0")
        for sl in range(2):
            x(f"buffer_store_dwordx4 {vr(P+4,4)}, v{vE}, {sr(sW,4)}, s{sMY[sl]} offen sc1")
        x(f"s_lshl_b32 s{sT[1]}, s2, 3"); x(f"s_add_u32 s{sT[1]}, s{sT[1]}, s{sWV}"); x(f"s_lshl_b32 s{sT[1]}, s{sT[1]}, 7")
        x(f"s_add_u32 s{sT[1]}, s{sT[1]}, {4<<20}")
        x(f"s_xor_b32 s{sT[2]}, s{sT[1]}, {8*8*128}")
        x(f"v_mov_b32 v{P+2}, 0")
        x("s_mov_b64 exec, 1")
        x(f"buffer_load_dwordx4 {vr(P+8,4)}, v{P+2}, {sr(sW,4)}, s{sT[2]} offen sc1")
        x("s_waitcnt vmcnt(0)")
        x(f"v_readfirstlane_b32 s{sT[3]}, v{P+10}")
        x(f"s_add_u32 s{sT[3]}, s{sT[3]}, 1")
        x(f"v_mov_b32 v{P+3}, s{sT[3]}")
        x(f"buffer_store_dword v{P+3}, v{P+2}, {sr(sW,4)}, s{sT[1]} offen sc1")
        x("s_waitcnt vmcnt(0)")
        x(f"s_mov_b32 s{sCNT}, 0")
        self.xl("L_hs_slow")
        x(f"buffer_load_ubyte v{vT[1]}, v{vT[2]}, {sr(sD,4)}, 0 offen sc1")
        x(f"buffer_load_dwordx4 {vr(P+8,4)}, v{P+2}, {sr(sW,4)}, s{sT[2]} offen sc1")
        x("s_waitcnt vmcnt(0)")
        x(f"v_readfirstlane_b32 s{sT[0]}, v{vT[1]}")
        x(f"v_readfirstlane_b32 s{sT[5]}, v{P+8}")
        x(f"v_readfirstlane_b32 s{sT[4]}, v{P+10}")
        x(f"v_readfirstlane_b32 s{sMODE}, v{P+11}")
        x(f"s_cmp_eq_u32 s{sT[0]}, s{sXCC}"); x("s_cbranch_scc1 L_hs_same")
        x(f"v_mov_b32 v{P+12}, s{sT[5]}"); x(f"v_mov_b32 v{P+13}, s{sXCC}")
        x(f"buffer_store_dwordx2 {vr(P+12,2)}, v{P+2}, {sr(sW,4)}, s{sT[1]} offen offset:8 sc1")
        x(f"s_add_u32 s{sCNT}, s{sCNT}, 1"); x(f"s_cmp_gt_u32 s{sCNT}, 0x200000"); x("s_cbranch_scc1 L_hs_same")
        x(f"s_cmp_eq_u32 s{sT[4]}, s{sT[3]}"); x("s_cbranch_scc0 L_hs_slow")
        x(f"s_cmp_eq_u32 s{sMODE}, s{sXCC}"); x("s_cbranch_scc1 L_hs_same")
        x(f"s_mov_b32 s{sMODE}, 0")
        x(f"s_mov_b32 s{sE}, s{sKA+12}"); x(f"s_mov_b32 s{sE+1}, s{sKA+13}")
        x("s_mov_b64 exec, -1")
        x("s_branch L_hs_done")
        self.xl("L_hs_same")
        x(f"s_mov_b32 s{sMODE}, 1")
        x("s_mov_b64 exec, -1")
        x("s_branch L_hs_done")

    def build(self):
        hdr = [f"; @launch grid=(256,1,1) block=(512,1,1) lds={LDS_BYTES}",
               '.amdgcn_target "amdgcn-amd-amdhsa--gfx950"', ".text", f".globl {KN}", ".p2align 8",
               f".type {KN},@function", f"{KN}:"]
        self.prologue()
        A = self.fork(0); A.progA()
        B = self.fork(1); B.progB()
        nb = lambda g: sum(1 for s in g.o if s.strip() == "s_barrier")
        assert nb(A) == nb(B), (nb(A), nb(B))
        assert NV + NA <= 256
        ftr = [f".set CODE_BYTES, L_end - {KN}", '.section .rodata,"a"', ".p2align 6", f".amdhsa_kernel {KN}",
               f"  .amdhsa_next_free_vgpr {NV+NA}", "  .amdhsa_next_free_sgpr 102", f"  .amdhsa_accum_offset {NV}",
               "  .amdhsa_group_segment_fixed_size 0", "  .amdhsa_kernarg_size 56", "  .amdhsa_user_sgpr_count 2",
               "  .amdhsa_user_sgpr_kernarg_segment_ptr 1", "  .amdhsa_system_sgpr_workgroup_id_x 1",
               "  .amdhsa_float_denorm_mode_32 3", ".end_amdhsa_kernel"]
        log = []
        m1, n1 = fix_hazards(self.o + A.o, log)
        m2, n2 = fix_hazards(B.o, log)
        ool, n3 = fix_hazards(self.ool)
        main = m1 + m2 + ["L_end:", "    s_endpgm"]
        wrap = lambda ls: "\n".join(hdr + ls + ool + ftr) + "\n"
        if self.opts.get("align", 1):
            main, nw, nn = align(main, wrap, self.opts.get("minrun", 99))
            sys.stderr.write(f"hazard nops {n1}+{n2}+{n3}, widened {nw}, align nops {nn}\n")
        if self.opts.get("hlog"):
            for e in log: sys.stderr.write(str(e) + "\n")
        return wrap(main)

if __name__ == "__main__":
    prof = None; opts = {}
    for x in sys.argv[1:]:
        if x.startswith("--prof="): prof = x[7:].split(",")
        elif x.startswith("--"):
            k, v = x[2:].split("="); opts[k] = int(v) if v.lstrip("-").isdigit() else v
    out = [x for x in sys.argv[1:] if not x.startswith("--")][0]
    g = Gen(prof, opts); txt = g.build()
    if prof: txt = txt + "; stamps: " + ",".join(prof) + "\n"
    open(out, "w").write(txt)
```

```python
import sys, copy
from asmlib import fix_hazards, align
KN = "standalone__cross_network_dcn_v2__recsys_kernel"
L = 6
XB = 131072; HB = 147456; BIASB = 155648; LDS_BYTES = 161792
TAGS = [1, 1, 0, 0, 1, 1]

vLANE = 1; vA = 2; vE = 3; vV = [4, 5, 6, 7]; vU = [8, 9, 10, 11]
vXW = 12; vXR = [None, 13, 14, 15]; vHW = 16; vHR = [None, 17, 18, 19]
vBI = 20; vLIN = 21; vT = [22, 23, 24, 25]; vJ = 0
ACC1 = 26; ACC2 = 34; XF = 50; X0F = 66; PK = 82; HP = 90; RX = 94; TM = ACC2; SP = HP; T4 = 98
NV = 104
aV = 0; aU = 64; aX = 128; aH = 128; aS = 128; NS = 6; NA = 152
sX0 = 4; sV = 8; sU = 12; sO = 16; sE = 20; sD = 24; sB = 28; sW = 32
sKA = 36
sWV = 50; sHF = 51; sRB = 52; sXCC = 53; sMODE = 54
sVG = [55, 56, 57, 58]; sUG = [59, 60, 61, 62]; sSO = [63, 64]; sLB = 65
sMY = [66, 67]; sWS = 68; sXH = 69
sCNT = 70; sT = [71, 72, 73, 74, 75, 76, 77, 78]; sPTMP = 79
sSTAMP = 80

def vr(b, n): return f"v[{b}:{b+n-1}]"
def ar(b, n): return f"a[{b}:{b+n-1}]"
def sr(b, n): return f"s[{b}:{b+n-1}]"

class Gen:
    def __init__(self, prof=None, opts=None):
        self.o = []; self.ool = []; self.vm = []; self.lg = []; self.vmdone = 0; self.lgdone = 0
        self.prof = prof; self.opts = opts or {}; self.names = []
        self.pw = []; self.nso = 0; self.nst = 0; self.X = 0
        self.pat = self.opts.get("pat", "BBBB/BBBB/DBDB/DBDB"); self.lag = self.opts.get("lag", 4)
    def fork(self, X):
        g = copy.copy(self); g.o = []; g.vm = list(self.vm); g.lg = list(self.lg); g.pw = list(self.pw); g.X = X
        return g
    def a(self, s): self.o.append("    " + s)
    def x(self, s): self.ool.append("    " + s)
    def xl(self, s): self.ool.append(s + ":")
    def lab(self, s): self.o.append(s + ":")
    def c(self, s): self.o.append("    ; " + s)
    def vmop(self, s, tag): self.vm.append(tag); self.a(s)
    def lgop(self, s, tag): self.lg.append(tag); self.a(s)
    def _last(self, lst, tag):
        idx = [i for i, t in enumerate(lst) if t == tag]
        return idx[-1] if idx else None
    def wvm(self, tag):
        i = self._last(self.vm, tag)
        if i is not None: self.wvmi(i)
    def wvmi(self, i):
        if i < self.vmdone: return
        n = min(len(self.vm) - 1 - i, 63); self.vmdone = len(self.vm) - n
        self.a(f"s_waitcnt vmcnt({n})")
    def wlg(self, tag):
        i = self._last(self.lg, tag)
        if i is None or i < self.lgdone: return
        n = min(len(self.lg) - 1 - i, 15); self.lgdone = len(self.lg) - n
        self.a(f"s_waitcnt lgkmcnt({n})")
    def wlg0(self):
        if self.lgdone < len(self.lg): self.lgdone = len(self.lg); self.a("s_waitcnt lgkmcnt(0)")
    def bar(self, name=None):
        self.wlg0()
        if name: self.stamp(name + "a")
        self.a("s_barrier")
        if name: self.stamp(name + "b")
    def stamp(self, name):
        nm = name + "AB"[self.X] if False else name
        if self.prof and nm in self.prof:
            r = sSTAMP + 2 * self.prof.index(nm)
            assert r + 1 <= 101
            self.a(f"s_memrealtime s[{r}:{r+1}]" if nm.startswith("rt") else f"s_memtime s[{r}:{r+1}]")
    def rec(self, name, src):
        if self.prof and name in self.prof:
            self.a(f"s_mov_b32 s{sSTAMP + 2*self.prof.index(name)}, {src}")
    def prio(self, p):
        m = self.opts.get("prio", 1)
        if m == 1: self.a(f"s_setprio {p}")
        if m == 2: self.a(f"s_setprio {2-p}")
    def dma(self, kind, l, g, pat=None):
        if l >= L: return []
        if self.opts.get("dma") == "off" and l >= 2: return []
        pat = pat or self.pat.split("/")[g]
        so = sSO[self.nso & 1]; self.nso += 1
        base, sg, vv, srd = (0, sVG, vV, sV) if kind == "V" else (16384, sUG, vU, sU)
        tag = f"{kind}{l}" + "ab"[g >> 1]
        items = []
        for j in range(4):
            def emit(j=j):
                while self.pw and len(self.vm) - self.pw[0][0] > self.lag: self.pw.pop(0)[1]()
                if j == 0:
                    self.a(f"s_add_u32 m0, s{sLB}, {base+g*4096}"); self.a(f"s_add_u32 s{so}, s{sg[g]}, {l*131072}")
                if pat[j % len(pat)] in "DBC":
                    self.vmop(f"buffer_load_dwordx4 v{vv[j]}, {sr(srd,4)}, s{so} offen offset:{1024*j} lds", tag)
                    for q in range({"D": 0, "B": 1, "C": 2}[pat[j % len(pat)]]): self.vmop(f"buffer_load_dword v{vJ}, off, {sr(sB,4)}, 0", "gap")
                else:
                    nv = pat[:j].count("V")
                    st = aS + 4 * ((g if g < 3 else 3 + nv) if pat.count("V") == 1 or g == 3 else (self.nst % 3)); self.nst += 1
                    assert st + 4 <= aS + 4*NS
                    self.vmop(f"buffer_load_dwordx4 {ar(st,4)}, v{vv[j]}, {sr(srd,4)}, s{so} offen offset:{1024*j}", tag)
                    vi = len(self.vm) - 1
                    def wr():
                        self.wvmi(vi)
                        self.lgop(f"ds_write_b128 v{vLIN}, {ar(st,4)} offset:{base+g*4096+j*1024}", "sw")
                    self.pw.append((vi, wr, g))
            items.append(emit)
        return items
    def flush(self, keep3=False):
        while self.pw and not (keep3 and self.pw[0][2] == 3): self.pw.pop(0)[1]()
    def rdV(self, g):
        return [lambda j=j: self.lgop(f"ds_read_b128 {ar(aV+4*(4*g+j),4)}, v{vA} offset:{g*4096+j*1024}", f"rV{g}_{j>>1}") for j in range(4)]
    def rdU(self, g):
        return [lambda j=j: self.lgop(f"ds_read_b128 {ar(aU+4*(4*g+j),4)}, v{vA} offset:{16384+g*4096+j*1024}", f"rU{g}") for j in range(4)]
    def mf1(self, ks, fill=None):
        for ta in range(2):
            b = vr(PK + 4*ks, 4) if ks < 2 else ar(aX + 4*(ks-2), 4)
            d = vr(ACC1 + 4*ta, 4)
            self.a(f"v_mfma_f32_16x16x32_bf16 {d}, {ar(aV+4*(2*ks+ta),4)}, {b}, {'0' if ks == 0 else d}")
            if fill: self.run(fill[ta])
    def mf2(self, P, kr, fill=None):
        for ta in range(2):
            b = vr(HP, 4) if kr == 0 else ar(aH + 4*(kr-1), 4)
            d = vr(ACC2 + 8*P + 4*ta, 4)
            idx = ((kr >> 1)*2 + P)*4 + (kr & 1)*2 + ta
            self.a(f"v_mfma_f32_16x16x32_bf16 {d}, {ar(aU+4*idx,4)}, {b}, {d}")
            if fill: self.run(fill[ta])
    def epi(self, P, l, pk=False):
        r = []
        if pk:
            for e in range(4):
                q = 8*P + 2*e
                r.append(lambda q=q: self.a(f"v_pk_fma_f32 {vr(ACC2+q,2)}, {vr(X0F+q,2)}, {vr(ACC2+q,2)}, {vr(XF+q,2)}"))
        else:
            for e in range(8):
                q = 8*P + e
                r.append(lambda q=q: self.a(f"v_fma_f32 v{ACC2+q}, v{X0F+q}, v{ACC2+q}, v{XF+q}"))
        for e in range(4):
            q = 8*P + 2*e
            r.append(lambda q=q: self.a(f"v_cvt_pk_bf16_f32 v{PK+q//2}, v{ACC2+q}, v{ACC2+q+1}"))
        if l < L-1: r.append(lambda: self.lgop(f"ds_write_b128 v{vXW}, {vr(PK+4*P,4)} offset:{P*1024}", "xw"))
        else: r.append(lambda: self.lgop(f"ds_write_b128 v{vT[P]}, {vr(PK+4*P,4)}", "xw"))
        return r
    def unpack(self, dst, src, n):
        r = []
        for i in range(n):
            r.append(lambda i=i: self.a(f"v_lshlrev_b32 v{dst+2*i}, 16, v{src+i}"))
            r.append(lambda i=i: self.a(f"v_and_b32 v{dst+2*i+1}, 0xffff0000, v{src+i}"))
        return r
    def bias_rd(self, l):
        for k in range(4):
            self.lgop(f"ds_read_b128 {vr(ACC2+4*k,4)}, v{vBI} offset:{l*256 + (k>>1)*128 + (k&1)*16}", "bias")
    def run(self, lst):
        for f in lst: f()
    def mix(self, *lists):
        lists = [list(x) for x in lists]
        while any(lists):
            for x in lists:
                if x: x.pop(0)()
    def srd(self, r, p, n, bias=0):
        if bias:
            self.a(f"s_sub_u32 s{r}, s{p}, {bias}"); self.a(f"s_subb_u32 s{r+1}, s{p+1}, 0")
        else:
            self.a(f"s_mov_b32 s{r}, s{p}"); self.a(f"s_mov_b32 s{r+1}, s{p+1}")
        self.a(f"s_mov_b32 s{r+2}, {n+bias}"); self.a(f"s_mov_b32 s{r+3}, 0x20000")
    def poll(self, l):
        self.vmop(f"buffer_load_dwordx4 {vr(RX,4)}, v{vE}, {sr(sE,4)}, s{sMY[l&1]} offen sc1", f"poll{l}")
    def send(self, l, u=None):
        a = self.a; u = u if u is not None else f"{self.X}{l}"
        a(f"s_xor_b32 s{sPTMP}, s{sMY[l&1]}, 512")
        for k in range(4): a(f"v_cvt_pk_bf16_f32 v{SP+k}, v{ACC1+2*k}, v{ACC1+2*k+1}")
        for k in range(4): a(f"v_or_b32 v{SP+k}, 1, v{SP+k}" if TAGS[l] else f"v_and_b32 v{SP+k}, -2, v{SP+k}")
        if l == 0: self.handshake()
        self.stamp(f"snd{u}")
        a(f"s_cmp_eq_u32 s{sMODE}, 0"); a(f"s_cbranch_scc1 L_ss{u}")
        self.vmop(f"buffer_store_dwordx4 {vr(SP,4)}, v{vE}, {sr(sE,4)}, s{sPTMP} offen", "st")
        self.lab(f"L_sd{u}")
        self.xl(f"L_ss{u}")
        self.x(f"buffer_store_dwordx4 {vr(SP,4)}, v{vE}, {sr(sE,4)}, s{sPTMP} offen sc1")
        self.x("s_nop 1"); self.x(f"s_branch L_sd{u}")
    def chk_ops(self, l):
        R = RX; t0 = vT[3]
        if TAGS[l]:
            return [f"v_bitop3_b32 v{t0}, v{R}, v{R+1}, v{R+2} bitop3:0x80", f"v_bitop3_b32 v{t0}, v{t0}, v{R+3}, 1 bitop3:0x80", f"v_cmp_eq_u32 vcc, 0, v{t0}"]
        return [f"v_or3_b32 v{t0}, v{R}, v{R+1}, v{R+2}", f"v_bitop3_b32 v{t0}, v{t0}, 1, v{R+3} bitop3:0xc8", f"v_cmp_ne_u32 vcc, 0, v{t0}"]
    def check_post(self, l, d=None):
        u = f"{self.X}{l}"; x = self.x; a = self.a
        self.wvm(f"poll{l}")
        self.stamp(f"chk{u}")
        if self.opts.get("dbgcnt"): a(f"s_mov_b32 s{sCNT}, 0")
        for s in self.chk_ops(l): a(s)
        a(f"s_cbranch_vccnz L_rt{u}")
        self.lab(f"L_got{u}")
        self.stamp(f"got{u}")
        if self.opts.get("dbgcnt"): self.rec(f"cnt{l}", f"s{sCNT}")
        self.xl(f"L_rt{u}")
        x(f"s_mov_b32 s{sCNT}, 0")
        self.xl(f"L_rl{u}")
        x(f"buffer_load_dwordx4 {vr(RX,4)}, v{vE}, {sr(sE,4)}, s{sMY[l&1]} offen sc1")
        x(f"s_add_u32 s{sCNT}, s{sCNT}, 1"); x(f"s_cmp_gt_u32 s{sCNT}, 0x200000")
        x("s_waitcnt vmcnt(0)")
        x(f"s_cbranch_scc1 L_got{u}")
        for s in self.chk_ops(l): x(s)
        x(f"s_cbranch_vccnz L_rl{u}")
        x(f"s_branch L_got{u}")
        ops = []
        for h in range(2):
            ops += self.unpack(T4, RX+2*h, 2)
            if self.opts.get("pkadd", 0):
                for k in range(2): ops.append(lambda k=k, h=h: a(f"v_pk_add_f32 {vr(T4+2*k,2)}, {vr(T4+2*k,2)}, {vr(ACC1+4*h+2*k,2)}"))
            else:
                for k in range(4): ops.append(lambda k=k, h=h: a(f"v_add_f32 v{T4+k}, v{T4+k}, v{ACC1+4*h+k}"))
            for k in range(2): ops.append(lambda k=k, h=h: a(f"v_cvt_pk_bf16_f32 v{HP+2*h+k}, v{T4+2*k}, v{T4+2*k+1}"))
        ops.append(lambda: self.lgop(f"ds_write_b128 v{vHW}, {vr(HP,4)}", "hw"))
        if d is None:
            self.run(ops); self.bias_rd(l); return
        d = list(d); st = self.opts.get("vper", 10)
        while ops:
            self.run(ops[:st]); ops = ops[st:]
            if ops and d: d.pop(0)()
        self.run(d)
    def x_reads(self):
        return [lambda ks=ks: self.lgop(f"ds_read_b128 {ar(aX+4*(ks-2),4)}, v{vXR[ks>>1]} offset:{(ks&1)*1024}", f"x{ks}") for ks in range(2, 8)]
    def h_reads(self):
        for kr in range(1, 4):
            self.lgop(f"ds_read_b128 {ar(aH+4*(kr-1),4)}, v{vHR[kr]}", f"h{kr}")

    def g2_phase(self, l, early=None, mid=None, late=None):
        early = list(early or []); mid = list(mid or []); late = list(late or [])
        def take(q): return [q[0:1], q[1:2]]
        self.h_reads()
        self.mf2(0, 0, take(early)); self.mf2(1, 0, take(early[2:]))
        self.wlg("h1"); self.mf2(0, 1, take(early[4:]))
        self.wlg("h2"); self.mf2(0, 2, take(early[6:] + mid))
        self.wlg("h3"); self.mf2(0, 3, take(mid[2:]))
        self.flush()
        e0 = self.epi(0, l); e1 = self.epi(1, l, pk=self.opts.get("pkfma", 1))
        u = f"{self.X}{l}"
        self.stamp(f"g2a{u}")
        self.mf2(1, 1); self.mf2(1, 2, [late[0:2], late[2:4]])
        self.stamp(f"g2b{u}")
        self.mf2(1, 3, [e0[0:2], e0[2:-1]])
        self.stamp(f"g2c{u}")
        e0[-1]()
        self.stamp(f"g2d{u}")
        self.run(e1[:-1])
        self.stamp(f"g2e{u}")
        e1[-1]()
        self.stamp(f"g2f{u}")
    def g1_phase(self, l, jitV=False, extra=None):
        xr = self.x_reads(); extra = list(extra or [])
        if jitV:
            rv = self.rdV(2) + self.rdV(3)
            self.run(xr[0:2])
            q = [xr[2], rv[0], rv[1], xr[3], rv[2], rv[3], xr[4], rv[4], rv[5], xr[5], rv[6], rv[7]]
            for ks in range(8):
                self.wlg(f"rV{ks>>1}_{ks&1}")
                if ks >= 2: self.wlg(f"x{ks}")
                self.mf1(ks, [q[0:2], q[2:3]]); q = q[3:]
        else:
            self.run(xr)
            for ks in range(8):
                if ks >= 2: self.wlg(f"x{ks}")
                self.mf1(ks, [extra[0:1], extra[1:2]]); extra = extra[2:]
            self.run(extra)
        self.send(l)

    def prologue(self):
        a = self.a; T = [X0F + i for i in range(10)]
        a(f"s_load_dwordx8 {sr(sKA,8)}, s[0:1], 0")
        a(f"s_load_dwordx4 {sr(sKA+8,4)}, s[0:1], 32")
        a(f"s_load_dwordx2 {sr(sKA+12,2)}, s[0:1], 48")
        a("s_cmp_ge_u32 s2, 256"); a("s_cbranch_scc1 L_end")
        self.stamp("start"); self.stamp("rt0")
        a(f"v_lshrrev_b32 v{T[0]}, 6, v0"); a(f"v_and_b32 v{vLANE}, 63, v0")
        a(f"s_lshr_b32 s{sT[0]}, s2, 3")
        a(f"v_readfirstlane_b32 s{sWV}, v{T[0]}")
        a(f"s_lshl_b32 s{sT[0]}, s{sT[0]}, 3"); a(f"s_add_u32 s{sT[6]}, s{sT[0]}, s{sWV}")
        if self.opts.get("codepf", 1):
            a(f"s_getpc_b64 {sr(sX0,2)}")
            a(f"s_and_b32 s{sX0}, s{sX0}, 0xffffff00")
            a(f"s_lshl_b32 s{sT[1]}, s{sT[6]}, 7"); a(f"v_mov_b32 v{T[1]}, s{sT[1]}")
            a(f"s_cmp_ge_u32 s{sT[1]}, CODE_BYTES"); a("s_cbranch_scc1 L_nocpf")
            a("s_mov_b64 exec, 1")
            a(f"global_load_dword v{vJ}, v{T[1]}, {sr(sX0,2)}")
            a("s_mov_b64 exec, -1")
            self.lab("L_nocpf")
        a(f"s_and_b32 s{sWS}, s{sWV}, 3"); a(f"s_lshr_b32 s{sXH}, s{sWV}, 2")
        a(f"v_lshrrev_b32 v{T[6]}, 2, v{vLANE}"); a(f"v_and_b32 v{T[7]}, 3, v{vLANE}")
        a(f"v_lshlrev_b32 v{T[9]}, 7, v{T[7]}"); a(f"v_lshl_add_u32 v{vT[3]}, v{T[6]}, 17, v{T[9]}")
        a(f"s_lshl_b32 s{sT[6]}, s{sT[6]}, 9"); a(f"s_add_u32 s{sT[6]}, s{sT[6]}, 3072")
        a(f"s_bfe_u32 s{sHF}, s2, 0x10003")
        a(f"s_lshr_b32 s{sT[0]}, s2, 4"); a(f"s_lshl_b32 s{sT[0]}, s{sT[0]}, 3"); a(f"s_and_b32 s{sRB}, s2, 7"); a(f"s_or_b32 s{sRB}, s{sRB}, s{sT[0]}")
        a(f"s_lshl_b32 s{sLB}, s{sWS}, 15")
        a(f"v_lshrrev_b32 v{T[0]}, 4, v{vLANE}")
        a(f"s_movk_i32 s{sPTMP}, 0x78"); a(f"v_lshlrev_b32 v{T[1]}, 1, v{T[0]}"); a(f"v_lshrrev_b32 v{T[2]}, v{T[1]}, s{sPTMP}")
        a(f"v_xor_b32 v{T[2]}, v{T[2]}, v{vLANE}"); a(f"v_and_b32 v{T[2]}, 3, v{T[2]}"); a(f"v_lshlrev_b32 v{T[2]}, 4, v{T[2]}")
        a(f"v_bfe_u32 v{T[1]}, v{vLANE}, 2, 2"); a(f"v_lshl_add_u32 v{T[1]}, v{T[0]}, 3, v{T[1]}")
        a(f"v_lshl_add_u32 v{T[3]}, v{T[1]}, 10, v{T[2]}"); a(f"v_lshl_add_u32 v{T[4]}, v{T[1]}, 8, v{T[2]}")
        for j in range(4):
            a(f"v_add_u32 v{vV[j]}, {(j&1)*4096 + (j>>1)*64 - 1024*j + 3072}, v{T[3]}")
        a(f"v_add_u32 v{T[5]}, {64 - 1024 + 3072}, v{T[3]}")
        a(f"s_lshl_b32 s{sT[2]}, s{sHF}, 9"); a(f"s_add_u32 s{sT[3]}, s{sLB}, s{sT[2]}")
        a(f"s_lshl_b32 s{sT[4]}, s{sRB}, 15"); a(f"s_add_u32 s{sT[4]}, s{sT[4]}, s{sT[2]}")
        a(f"s_lshl_b32 s{sT[5]}, s{sXH}, 12"); a(f"s_add_u32 s{sT[4]}, s{sT[4]}, s{sT[5]}")
        a(f"s_lshl_b32 s{sT[5]}, s{sWS}, 7"); a(f"s_add_u32 s{sT[7]}, s{sT[4]}, s{sT[5]}")
        a(f"s_lshr_b32 s{sT[5]}, s{sWS}, 1"); a(f"s_lshl_b32 s{sT[5]}, s{sT[5]}, 13"); a(f"s_add_u32 s{sT[4]}, s{sT[4]}, s{sT[5]}")
        a(f"s_and_b32 s{sT[5]}, s{sWS}, 1"); a(f"s_lshl_b32 s{sT[5]}, s{sT[5]}, 11"); a(f"s_add_u32 s{sMY[0]}, s{sT[4]}, s{sT[5]}")
        a(f"s_add_u32 s{sMY[1]}, s{sMY[0]}, 16384")
        for g in range(4):
            a(f"s_xor_b32 s{sT[4]}, s{sWS}, {g}"); a(f"s_lshl_b32 s{sT[4]}, s{sT[4]}, 7"); a(f"s_add_u32 s{sVG[g]}, s{sT[3]}, s{sT[4]}")
        a(f"v_lshrrev_b32 v{T[8]}, 5, v{vLANE}"); a(f"v_and_b32 v{vE}, 31, v{vLANE}"); a(f"v_lshlrev_b32 v{vE}, 4, v{vE}")
        a(f"v_lshl_add_u32 v{vE}, v{T[8]}, 10, v{vE}")
        for r in range(4): a(f"v_mov_b32 v{TM+r}, 0")
        a(f"v_mov_b32 v{vT[2]}, s2"); a(f"v_xor_b32 v{vT[2]}, 8, v{vT[2]}")
        a(f"s_lshl_b32 s{sT[5]}, s{sWS}, 12"); a(f"s_lshl_b32 s{sT[4]}, s{sXH}, 11"); a(f"s_add_u32 s{sT[5]}, s{sT[5]}, s{sT[4]}")
        a(f"s_add_u32 m0, s{sT[5]}, {XB}")
        a(f"v_lshrrev_b32 v{T[6]}, 3, v{vLANE}"); a(f"v_and_b32 v{T[7]}, 7, v{vLANE}")
        a(f"v_lshlrev_b32 v{T[8]}, 4, v{T[7]}"); a(f"v_lshl_add_u32 v{T[8]}, v{T[6]}, 10, v{T[8]}")
        a(f"s_lshl_b32 s{sT[5]}, s{sWS}, 7"); a(f"s_add_u32 s{sT[5]}, s{sT[5]}, s{sT[2]}"); a(f"s_mul_i32 s{sT[3]}, s{sXH}, 3072"); a(f"s_add_u32 s{sT[5]}, s{sT[5]}, s{sT[3]}")
        a("s_waitcnt lgkmcnt(0)")
        self.stamp("karg")
        pf = self.opts.get("pf", 1)
        def pfl(lo):
            if not pf or not lo: return
            a(f"s_mov_b64 exec, {lo}")
            self.vmop(f"buffer_load_dword v{vJ}, v{vT[3]}, {sr(sV,4)}, s{sT[6]} offen", "pf")
            self.vmop(f"buffer_load_dword v{vJ}, v{vT[3]}, {sr(sU,4)}, s{sT[6]} offen", "pf")
            a("s_mov_b64 exec, -1")
        self.pfl = pfl
        masks = [int(m, 16) for m in str(self.opts.get("pfm", "f,fffff0")).split(",")]
        self.pfmasks = masks
        self.srd(sX0, sKA+0, 4096*1024, 3072)
        self.vmop(f"buffer_load_dwordx4 v{vV[0]}, {sr(sX0,4)}, s{sT[7]} offen lds", "x0")
        self.vmop(f"buffer_load_dwordx4 v{T[5]}, {sr(sX0,4)}, s{sT[7]} offen offset:1024 lds", "x0")
        self.srd(sV, sKA+4, 6*131072, 3072)
        self.srd(sU, sKA+2, 6*131072, 3072)
        pfl(masks[0])
        self.srd(sB, sKA+6, 6*1024)
        self.srd(sD, sKA+10, 256)
        a("s_mov_b64 exec, 0xffffff")
        self.vmop(f"buffer_load_dwordx4 {vr(TM+4,4)}, v{T[8]}, {sr(sB,4)}, s{sT[5]} offen", "bias")
        a("s_mov_b64 exec, 1")
        self.vmop(f"buffer_load_ubyte v{vJ}, v{vT[2]}, {sr(sD,4)}, 0 offen", "touch")
        a("s_mov_b64 exec, -1")
        self.srd(sO, sKA+8, 4096*1024)
        bt = self.opts.get("boxtouch", 1)
        a(f"v_and_b32 v{RX+1}, 3, v{vLANE}"); a(f"v_lshlrev_b32 v{RX+1}, 7, v{RX+1}")
        a(f"v_bfe_u32 v{RX}, v{vLANE}, 2, 1"); a(f"v_lshl_add_u32 v{RX+1}, v{RX}, 10, v{RX+1}")
        a(f"v_bfe_u32 v{RX}, v{vLANE}, 3, 1"); a(f"v_lshl_add_u32 v{RX+1}, v{RX}, 14, v{RX+1}")
        def box(m):
            a(f"s_mov_b64 exec, {m}")
            self.vmop(f"buffer_load_dword v{vJ}, v{RX+1}, {sr(sO,4)}, s{sMY[0]} offen", "bt")
            a("s_mov_b64 exec, -1")
        self.box = box
        if bt == 1: box(0xffff)
        if bt == 2: box(0xff)
        if self.opts.get("clrearly", 1):
            self.vmop(f"buffer_store_dwordx4 {vr(TM,4)}, v{vE}, {sr(sO,4)}, s{sMY[0]} offen", "clr")
        self.stamp("i_x0")
        a("s_barrier")
        a(f"s_lshl_b32 s{sT[4]}, s{sXH}, 13"); a(f"s_add_u32 s{sT[4]}, s{sT[4]}, s{sLB}")
        a(f"s_cmp_eq_u32 s{sXH}, 0")
        a(f"s_cselect_b32 s{sT[0]}, s{sVG[0]}, s{sVG[2]}"); a(f"s_cselect_b32 s{sT[1]}, s{sVG[1]}, s{sVG[3]}")
        def v0grp(k):
            a(f"s_add_u32 m0, s{sT[4]}, {k*4096}"); a("s_nop 0")
            for j in range(4):
                self.vmop(f"buffer_load_dwordx4 v{vV[j]}, {sr(sV,4)}, s{sT[k]} offen offset:{1024*j} lds", "V0")
                if (j & 1) and self.opts.get("pgap", 1): self.vmop(f"buffer_load_dword v{vJ}, off, {sr(sB,4)}, 0", "gap")
        v0grp(0)
        self.stamp("i_v0a")
        self.srd(sW, sKA+12, 8 << 20)
        self.srd(sE, sKA+8, 4096*1024)
        a(f"s_getreg_b32 s{sXCC}, hwreg(HW_REG_XCC_ID)"); a(f"s_and_b32 s{sXCC}, s{sXCC}, 15"); a(f"s_or_b32 s{sXCC}, s{sXCC}, 16")
        a(f"s_and_b32 s{sT[0]}, s{sWS}, 1"); a(f"s_lshl_b32 s{sT[0]}, s{sT[0]}, 6"); a(f"s_xor_b32 s{sT[3]}, s{sT[0]}, 64")
        for j in range(4):
            a(f"v_add_u32 v{vU[j]}, {(j&1)*1024 - 1024*j + 3072}, v{T[4]}")
            a(f"v_add_u32 v{vU[j]}, s{sT[3] if j >> 1 else sT[0]}, v{vU[j]}")
        a(f"s_lshl_b32 s{sT[0]}, s{sHF}, 16"); a(f"s_lshl_b32 s{sT[5]}, s{sWS}, 14"); a(f"s_add_u32 s{sT[0]}, s{sT[0]}, s{sT[5]}")
        for g in range(4):
            pp, P = g >> 1, g & 1
            a(f"s_xor_b32 s{sT[5]}, s{sWS}, {2*pp}"); a(f"s_and_b32 s{sT[5]}, s{sT[5]}, 2"); a(f"s_lshl_b32 s{sT[5]}, s{sT[5]}, 6")
            a(f"s_add_u32 s{sT[5]}, s{sT[5]}, {P*8192}"); a(f"s_add_u32 s{sUG[g]}, s{sT[0]}, s{sT[5]}")
        a(f"v_bfe_u32 v{T[1]}, v{vLANE}, 2, 2"); a(f"v_lshlrev_b32 v{T[1]}, 1, v{T[1]}"); a(f"v_lshrrev_b32 v{T[2]}, v{T[1]}, s{sPTMP}")
        a(f"v_xor_b32 v{T[2]}, v{T[2]}, v{T[0]}"); a(f"v_and_b32 v{T[2]}, 3, v{T[2]}"); a(f"v_lshlrev_b32 v{T[2]}, 4, v{T[2]}")
        a(f"v_and_b32 v{T[1]}, 15, v{vLANE}"); a(f"v_lshl_add_u32 v{T[2]}, v{T[1]}, 6, v{T[2]}")
        a(f"v_add_u32 v{vA}, s{sLB}, v{T[2]}")
        a(f"s_lshl_b32 s{sT[5]}, s{sWS}, 12"); a(f"s_lshl_b32 s{sT[0]}, s{sXH}, 11"); a(f"s_add_u32 s{sT[5]}, s{sT[5]}, s{sT[0]}"); a(f"s_add_u32 s{sT[5]}, s{sT[5]}, {XB}")
        a(f"v_add_u32 v{T[3]}, s{sT[5]}, v{T[2]}")
        a(f"v_lshlrev_b32 v{T[1]}, 4, v{vLANE}")
        a(f"v_add_u32 v{vXW}, s{sT[5]}, v{T[1]}"); a(f"v_add_u32 v{vLIN}, s{sLB}, v{T[1]}")
        for g in range(1, 4): a(f"v_xor_b32 v{vXR[g]}, {g*4096}, v{vXW}")
        a(f"s_lshl_b32 s{sT[5]}, s{sWV}, 10"); a(f"s_add_u32 s{sT[5]}, s{sT[5]}, {HB}")
        a(f"v_add_u32 v{vHW}, s{sT[5]}, v{T[1]}")
        for g in range(1, 4): a(f"v_xor_b32 v{vHR[g]}, {g*1024}, v{vHW}")
        a(f"s_mul_i32 s{sT[5]}, s{sWS}, 1536"); a(f"s_add_u32 s{sT[5]}, s{sT[5]}, {BIASB}")
        a(f"v_lshlrev_b32 v{vBI}, 5, v{T[0]}"); a(f"v_add_u32 v{vBI}, s{sT[5]}, v{vBI}")
        a(f"s_mul_i32 s{sT[0]}, s{sXH}, 768"); a(f"s_add_u32 s{sT[5]}, s{sT[5]}, s{sT[0]}")
        a(f"v_lshlrev_b32 v{T[7]}, 5, v{T[7]}"); a(f"v_lshl_add_u32 v{T[7]}, v{T[6]}, 8, v{T[7]}"); a(f"v_add_u32 v{vT[0]}, s{sT[5]}, v{T[7]}")
        def xproc():
            self.wvm("x0")
            self.stamp("x0")
            for P in range(2):
                self.lgop(f"ds_read_b128 {vr(PK+4*P,4)}, v{T[3]} offset:{P*1024}", "x0r")
            self.wvm("bias")
            self.run(self.unpack(TM+8, TM+4, 4))
            self.wlg("x0r")
            for P in range(2):
                self.lgop(f"ds_write_b128 v{vXW}, {vr(PK+4*P,4)} offset:{P*1024}", "xw")
            a("s_mov_b64 exec, 0xffffff")
            self.lgop(f"ds_write_b128 v{vT[0]}, {vr(TM+8,4)}", "bw")
            self.lgop(f"ds_write_b128 v{vT[0]}, {vr(TM+12,4)} offset:16", "bw")
            a("s_mov_b64 exec, -1")
            self.run(self.unpack(X0F, PK, 8))
        xp = self.opts.get("xproc", 0)
        if xp == 0: xproc()
        v0grp(1)
        self.stamp("i_v0b")
        if not self.opts.get("clrearly", 1):
            self.vmop(f"buffer_store_dwordx4 {vr(TM,4)}, v{vE}, {sr(sO,4)}, s{sMY[0]} offen", "clr")
        if bt == 3: box(0xffff)
        if bt == 4: box(0xff)
        pfl(masks[1])
        if xp == 1: xproc()
        self.wvm("clr")
        a("s_barrier")
        self.stamp("issued")
        a(f"s_cmp_lg_u32 s{sWV}, 0"); a("s_cbranch_scc0 L_flag")
        self.lab("L_noflag")
        self.vmop(f"buffer_store_dwordx4 {vr(TM,4)}, v{vE}, {sr(sO,4)}, s{sMY[1]} offen", "clr1")
        a(f"s_xor_b32 s{sT[3]}, s2, 8"); a(f"s_and_b32 s{sT[2]}, s{sT[3]}, 0xfc"); a(f"s_and_b32 s{sT[3]}, s{sT[3]}, 3"); a(f"s_lshl_b32 s{sT[3]}, s{sT[3]}, 3")
        a(f"s_cmp_lg_u32 s{sXH}, 0"); a("s_cbranch_scc1 L_progB")
        self.xl("L_flag")
        self.x(f"v_mov_b32 v{RX}, s2"); self.x(f"v_mov_b32 v{vT[1]}, s{sXCC}"); self.x("s_mov_b64 exec, 1")
        self.x(f"buffer_store_byte v{vT[1]}, v{RX}, {sr(sD,4)}, 0 offen"); self.x("s_mov_b64 exec, -1"); self.x("s_branch L_noflag")

    def clr1_flag(self):
        self.a(f"s_load_dword s{sT[1]}, {sr(sKA+10,2)}, s{sT[2]}")
    def bias_ops(self, l):
        return [lambda k=k: self.lgop(f"ds_read_b128 {vr(ACC2+4*k,4)}, v{vBI} offset:{l*256 + (k>>1)*128 + (k&1)*16}", "bias") for k in range(4)]
    def light1(self, kind, l, rd, lp):
        d = self.dma(kind, l, 0) + self.dma(kind, l, 1)
        pp = self.opts.get("pollat", 6); r0 = self.opts.get("rd1at", 0)
        rd = list(rd) + self.bias_ops(lp)
        per = self.opts.get("rd1per", 4)
        for k in range(8):
            if k == pp: self.poll(lp)
            if k < len(d): d[k]()
            if r0 <= k: self.run(rd[:per]); rd = rd[per:]
            self.stamp(f"l1{self.X}{lp}_{k}")
        if pp >= 8: self.poll(lp)
    def light2(self, kind, l, rd, lp):
        d = self.dma(kind, l, 2) + self.dma(kind, l, 3) + [lambda: None] * 8
        p2 = self.opts.get("pre2", 3); rd = list(rd)
        self.run(d[:p2])
        self.run(rd[:4]); d[p2](); self.run(rd[4:]); d[p2+1]()
        self.stamp(f"pd{self.X}{lp}")
        self.check_post(lp, d[p2+2:p2+3])
        self.stamp(f"po{self.X}{lp}")
        ux = self.unpack(XF, PK, 8)
        self.run(ux[:8]); self.run(d[p2+3:p2+4]); self.run(ux[8:])
        self.wvm(f"{kind}{l}a")
        self.run(d[p2+4:8])
        self.stamp(f"en{self.X}{lp}")
    def progA(self):
        a = self.a
        self.wvm("V0"); self.stamp("v0l"); self.wvm("clr")
        self.bar("b0")
        self.prio(2)
        xr = self.x_reads(); rv = [f for g in range(4) for f in self.rdV(g)]
        self.run(rv[0:4]); self.run(xr[0:2]); self.run(rv[4:8]); self.run(xr[2:4])
        q = rv[8:12] + xr[4:6] + rv[12:16]
        for ks in range(8):
            self.wlg(f"rV{ks>>1}_{ks&1}")
            if ks >= 2: self.wlg(f"x{ks}")
            self.mf1(ks, [q[0:1], q[1:2]]); q = q[2:]
            if ks == self.opts.get("flagat", 2): self.clr1_flag()
        self.send(0)
        self.prio(0)
        self.bar("b1")
        self.light1("V", 1, self.rdU(0) + self.rdU(1), 0)
        self.bar("b1x")
        self.run(self.rdU(2))
        self.check_post(0, [])
        self.run(self.rdU(3)); self.run(self.unpack(XF, PK, 8))
        self.wvm("V1a")
        self.bar("b2")
        for l in range(L):
            last = l == L-1
            self.c(f"==== A round {l} phase 0: G2 ====")
            self.prio(2)
            if last: self.final_addr()
            self.g2_phase(l, early=(None if last else self.rdV(0) + self.rdV(1)))
            if last:
                self.a("s_barrier"); self.final_store(); return
            self.wvm(f"V{l+1}b")
            self.stamp(f"g2g0{l}")
            self.bar(f"A0{l}")
            self.c(f"==== A round {l} phase 1: G1 ====")
            self.g1_phase(l+1, jitV=True)
            self.prio(0)
            self.bar(f"A1{l}")
            self.c(f"==== A round {l} phase 2 ====")
            self.light1("V", l+2, self.rdU(0) + self.rdU(1), l+1)
            self.bar(f"A2{l}")
            self.c(f"==== A round {l} phase 3 ====")
            self.light2("V", l+2, self.rdU(2) + self.rdU(3), l+1)
            self.bar(f"A3{l}")

    def progB(self):
        self.lab("L_progB")
        self.run(self.dma("U", 0, 0) + self.dma("U", 0, 1))
        self.wvm("V0"); self.stamp("v0l"); self.wvm("clr")
        self.bar("b0")
        d = self.dma("U", 0, 2) + self.dma("U", 0, 3)
        rv = [f for g in range(4) for f in self.rdV(g)]
        self.run(d[:4])
        for k in range(4):
            self.run(rv[4*k:4*k+4]); d[4+k]()
        self.wvm("U0a")
        self.bar("b1")
        self.prio(2)
        self.clr1_flag()
        self.g1_phase(0, extra=self.rdU(0) + self.rdU(1))
        self.prio(0)
        self.wvm("U0b")
        self.bar("b1x")
        self.mix(self.dma("V", 1, 2) + self.dma("V", 1, 3), self.rdU(2) + self.rdU(3))
        self.bar("b2")
        for l in range(L):
            last = l == L-1
            self.c(f"==== B round {l} phase 0 ====")
            if not last:
                self.light1("U", l+1, self.rdV(0) + self.rdV(1), l)
                if l == 0: self.wvm("V1b")
                self.bar(f"B0{l}")
                self.c(f"==== B round {l} phase 1 ====")
                self.light2("U", l+1, self.rdV(2) + self.rdV(3), l)
            else:
                self.run(self.unpack(XF, PK, 8)); self.final_addr()
                self.poll(l); self.check_post(l)
            self.bar(f"B1{l}")
            self.c(f"==== B round {l} phase 2: G2 ====")
            self.prio(2)
            if last:
                self.g2_phase(l); self.final_store(); return
            self.g2_phase(l, mid=self.rdU(0), late=self.rdU(1))
            self.wvm(f"U{l+1}b")
            self.bar(f"B2{l}")
            self.c(f"==== B round {l} phase 3: G1 ====")
            self.g1_phase(l+1, extra=self.rdU(2) + self.rdU(3))
            self.prio(0)
            self.bar(f"B3{l}")

    def final_addr(self):
        a = self.a; t = [RX, RX+1, RX+2]
        a(f"v_and_b32 v{t[0]}, 15, v{vLANE}"); a(f"v_lshrrev_b32 v{t[1]}, 4, v{vLANE}")
        a(f"v_and_b32 v{t[2]}, 7, v{t[0]}"); a(f"v_xor_b32 v{t[2]}, v{t[2]}, v{t[1]}"); a(f"v_lshlrev_b32 v{t[2]}, 4, v{t[2]}")
        a(f"v_lshl_add_u32 v{t[2]}, v{t[0]}, 7, v{t[2]}")
        a(f"v_and_b32 v{vT[0]}, 0xfffff800, v{vXW}"); a(f"v_add_u32 v{vT[0]}, v{vT[0]}, v{t[2]}"); a(f"v_xor_b32 v{vT[1]}, 64, v{vT[0]}")
        a(f"v_lshrrev_b32 v{t[0]}, 3, v{vLANE}"); a(f"v_xor_b32 v{t[1]}, v{t[0]}, v{vLANE}"); a(f"v_and_b32 v{t[1]}, 7, v{t[1]}")
        a(f"v_lshlrev_b32 v{t[1]}, 4, v{t[1]}")
        a(f"v_and_b32 v{t[2]}, 4, v{t[0]}"); a(f"v_add_u32 v{t[0]}, v{t[0]}, v{t[2]}")
        a(f"v_lshl_add_u32 v{vT[2]}, v{t[0]}, 10, v{t[1]}")

    def final_store(self):
        a = self.a; D = XF
        for m in range(2):
            self.lgop(f"ds_read_b128 {vr(D+4*m,4)}, v{vXW} offset:{m*1024}", f"fo{m}")
        fl = self.opts.get("outflags", "")
        for m in range(2):
            a(f"s_add_u32 s{sT[m]}, s{sT[7]}, {m*16384}")
            self.wlg(f"fo{m}")
            self.vmop(f"buffer_store_dwordx4 {vr(D+4*m,4)}, v{vT[2]}, {sr(sO,4)}, s{sT[m]} offen {fl}", "out")
        if self.prof:
            a("s_waitcnt vmcnt(0)")
            self.stamp("fin"); self.stamp("rt1")
            a("s_waitcnt lgkmcnt(0)")
            a(f"v_mov_b32 v{RX}, 0")
            for i in range(len(self.prof)): a(f"v_writelane_b32 v{RX}, s{sSTAMP+2*i}, {i}")
            a(f"s_lshl_b32 s{sT[0]}, s2, 3"); a(f"s_add_u32 s{sT[0]}, s{sT[0]}, s{sWV}"); a(f"s_lshl_b32 s{sT[0]}, s{sT[0]}, 8")
            a(f"s_add_u32 s{sT[0]}, s{sT[0]}, {6<<20}")
            a(f"v_lshlrev_b32 v{vT[0]}, 2, v{vLANE}")
            a(f"buffer_store_dword v{RX}, v{vT[0]}, {sr(sW,4)}, s{sT[0]} offen")
        for i in range(self.opts.get("delay", 0)): a("s_sleep 125")
        a("s_endpgm")

    def handshake(self):
        a = self.a; x = self.x; P = XF; u = self.X
        self.c("handshake: the partner's inbox is cleared; does it share this XCD?")
        a(f"s_mov_b32 s{sCNT}, 0"); a(f"s_mov_b32 s{sMODE}, 1")
        self.wvm("clr1")
        a("s_waitcnt lgkmcnt(0)"); self.lgdone = len(self.lg)
        a(f"s_lshr_b32 s{sT[0]}, s{sT[1]}, s{sT[3]}"); a(f"s_and_b32 s{sT[0]}, s{sT[0]}, 0xff")
        a(f"s_cmp_eq_u32 s{sT[0]}, s{sXCC}"); a(f"s_cbranch_scc0 L_hs_fast{u}")
        self.lab(f"L_hs_done{u}")
        self.rec("hscnt", f"s{sCNT}"); self.rec("mode", f"s{sMODE}")
        self.xl(f"L_hs_fast{u}")
        x(f"buffer_load_ubyte v{vT[1]}, v{vT[2]}, {sr(sD,4)}, 0 offen sc1")
        x("s_waitcnt vmcnt(0)")
        x(f"v_readfirstlane_b32 s{sT[0]}, v{vT[1]}")
        x(f"s_cmp_eq_u32 s{sT[0]}, s{sXCC}"); x(f"s_cbranch_scc1 L_hs_done{u}")
        x(f"s_add_u32 s{sCNT}, s{sCNT}, 1"); x(f"s_cmp_lt_u32 s{sCNT}, {self.opts.get('fastpolls', 8)}"); x(f"s_cbranch_scc1 L_hs_fast{u}")
        for r in range(4): x(f"v_mov_b32 v{P+4+r}, 0")
        for sl in range(2):
            x(f"buffer_store_dwordx4 {vr(P+4,4)}, v{vE}, {sr(sW,4)}, s{sMY[sl]} offen sc1")
        x(f"s_lshl_b32 s{sT[1]}, s2, 3"); x(f"s_add_u32 s{sT[1]}, s{sT[1]}, s{sWV}"); x(f"s_lshl_b32 s{sT[1]}, s{sT[1]}, 7")
        x(f"s_add_u32 s{sT[1]}, s{sT[1]}, {4<<20}")
        x(f"s_xor_b32 s{sT[2]}, s{sT[1]}, {8*8*128}")
        x(f"v_mov_b32 v{P+2}, 0")
        x("s_mov_b64 exec, 1")
        x(f"buffer_load_dwordx4 {vr(P+8,4)}, v{P+2}, {sr(sW,4)}, s{sT[2]} offen sc1")
        x("s_waitcnt vmcnt(0)")
        x(f"v_readfirstlane_b32 s{sT[3]}, v{P+10}")
        x(f"s_add_u32 s{sT[3]}, s{sT[3]}, 1")
        x(f"v_mov_b32 v{P+3}, s{sT[3]}")
        x(f"buffer_store_dword v{P+3}, v{P+2}, {sr(sW,4)}, s{sT[1]} offen sc1")
        x("s_waitcnt vmcnt(0)")
        x(f"s_mov_b32 s{sCNT}, 0")
        self.xl(f"L_hs_slow{u}")
        x(f"buffer_load_ubyte v{vT[1]}, v{vT[2]}, {sr(sD,4)}, 0 offen sc1")
        x(f"buffer_load_dwordx4 {vr(P+8,4)}, v{P+2}, {sr(sW,4)}, s{sT[2]} offen sc1")
        x("s_waitcnt vmcnt(0)")
        x(f"v_readfirstlane_b32 s{sT[0]}, v{vT[1]}")
        x(f"v_readfirstlane_b32 s{sT[5]}, v{P+8}")
        x(f"v_readfirstlane_b32 s{sT[4]}, v{P+10}")
        x(f"v_readfirstlane_b32 s{sMODE}, v{P+11}")
        x(f"s_cmp_eq_u32 s{sT[0]}, s{sXCC}"); x(f"s_cbranch_scc1 L_hs_same{u}")
        x(f"v_mov_b32 v{P+12}, s{sT[5]}"); x(f"v_mov_b32 v{P+13}, s{sXCC}")
        x(f"buffer_store_dwordx2 {vr(P+12,2)}, v{P+2}, {sr(sW,4)}, s{sT[1]} offen offset:8 sc1")
        x(f"s_add_u32 s{sCNT}, s{sCNT}, 1"); x(f"s_cmp_gt_u32 s{sCNT}, 0x200000"); x(f"s_cbranch_scc1 L_hs_same{u}")
        x(f"s_cmp_eq_u32 s{sT[4]}, s{sT[3]}"); x(f"s_cbranch_scc0 L_hs_slow{u}")
        x(f"s_cmp_eq_u32 s{sMODE}, s{sXCC}"); x(f"s_cbranch_scc1 L_hs_same{u}")
        x(f"s_mov_b32 s{sMODE}, 0")
        x(f"s_mov_b32 s{sE}, s{sKA+12}"); x(f"s_mov_b32 s{sE+1}, s{sKA+13}")
        x("s_mov_b64 exec, -1")
        x(f"s_branch L_hs_done{u}")
        self.xl(f"L_hs_same{u}")
        x(f"s_mov_b32 s{sMODE}, 1")
        x("s_mov_b64 exec, -1")
        x(f"s_branch L_hs_done{u}")

    def build(self):
        hdr = [f"; @launch grid=(256,1,1) block=(512,1,1) lds={LDS_BYTES}",
               '.amdgcn_target "amdgcn-amd-amdhsa--gfx950"', ".text", f".globl {KN}", ".p2align 8",
               f".type {KN},@function", f"{KN}:"]
        self.prologue()
        A = self.fork(0); A.progA()
        B = self.fork(1); B.progB()
        nb = lambda g: sum(1 for s in g.o if s.strip() == "s_barrier")
        assert nb(A) == nb(B), (nb(A), nb(B))
        assert NV + NA <= 256
        ftr = [f".set CODE_BYTES, L_end - {KN}", '.section .rodata,"a"', ".p2align 6", f".amdhsa_kernel {KN}",
               f"  .amdhsa_next_free_vgpr {NV+NA}", "  .amdhsa_next_free_sgpr 102", f"  .amdhsa_accum_offset {NV}",
               "  .amdhsa_group_segment_fixed_size 0", "  .amdhsa_kernarg_size 56", "  .amdhsa_user_sgpr_count 2",
               "  .amdhsa_user_sgpr_kernarg_segment_ptr 1", "  .amdhsa_system_sgpr_workgroup_id_x 1",
               "  .amdhsa_float_denorm_mode_32 3", ".end_amdhsa_kernel"]
        log = []
        m1, n1 = fix_hazards(self.o + A.o, log)
        m2, n2 = fix_hazards(B.o, log)
        ool, n3 = fix_hazards(self.ool)
        main = m1 + m2 + ["L_end:", "    s_endpgm"]
        wrap = lambda ls: "\n".join(hdr + ls + ool + ftr) + "\n"
        if self.opts.get("align", 1):
            main, nw, nn = align(main, wrap, self.opts.get("minrun", 99))
            sys.stderr.write(f"hazard nops {n1}+{n2}+{n3}, widened {nw}, align nops {nn}\n")
        if self.opts.get("hlog"):
            for e in log: sys.stderr.write(str(e) + "\n")
        return wrap(main)

if __name__ == "__main__":
    prof = None; opts = {}
    for x in sys.argv[1:]:
        if x.startswith("--prof="): prof = x[7:].split(",")
        elif x.startswith("--"):
            k, v = x[2:].split("="); opts[k] = int(v) if v.lstrip("-").isdigit() else v
    out = [x for x in sys.argv[1:] if not x.startswith("--")][0]
    g = Gen(prof, opts); txt = g.build()
    if prof: txt = txt + "; stamps: " + ",".join(prof) + "\n"
    open(out, "w").write(txt)
```

```python
import sys, copy
from asmlib import fix_hazards, align
KN = "standalone__cross_network_dcn_v2__recsys_kernel"
L = 6
XB = 131072; HB = 147456; BIASB = 155648; LDS_BYTES = 161792
TAGS = [1, 1, 0, 0, 1, 1]

vLANE = 1; vA = 2; vE = 3; vV = [4, 5, 6, 7]; vU = [8, 9, 10, 11]
vXW = 12; vXR = [None, 13, 14, 15]; vHW = 16; vHR = [None, 17, 18, 19]
vBI = 20; vLIN = 21; vT = [22, 23, 24, 25]; vJ = 0
ACC1 = 26; ACC2 = 34; XF = 50; X0F = 66; PK = 82; HP = 90; RX = 94; TM = ACC2; SP = HP; T4 = 98
NV = 104
aV = 0; aU = 64; aX = 128; aH = 128; aS = 128; NS = 6; NA = 152
sX0 = 4; sV = 8; sU = 12; sO = 16; sE = 20; sD = 24; sB = 28; sW = 32
sKA = 36
sWV = 50; sHF = 51; sRB = 52; sXCC = 53; sMODE = 54
sVG = [55, 56, 57, 58]; sUG = [59, 60, 61, 62]; sSO = [63, 64]; sLB = 65
sMY = [66, 67]; sWS = 68; sXH = 69
sCNT = 70; sT = [71, 72, 73, 74, 75, 76, 77, 78]; sPTMP = 79
sSTAMP = 80

def vr(b, n): return f"v[{b}:{b+n-1}]"
def ar(b, n): return f"a[{b}:{b+n-1}]"
def sr(b, n): return f"s[{b}:{b+n-1}]"

class Gen:
    def __init__(self, prof=None, opts=None):
        self.o = []; self.ool = []; self.vm = []; self.lg = []; self.vmdone = 0; self.lgdone = 0
        self.prof = prof; self.opts = opts or {}; self.names = []
        self.pw = []; self.nso = 0; self.nst = 0; self.X = 0
        self.pat = self.opts.get("pat", "BBBB/BBBB/DBDB/DBDB"); self.lag = self.opts.get("lag", 4)
    def fork(self, X):
        g = copy.copy(self); g.o = []; g.vm = list(self.vm); g.lg = list(self.lg); g.pw = list(self.pw); g.X = X
        return g
    def a(self, s): self.o.append("    " + s)
    def x(self, s): self.ool.append("    " + s)
    def xl(self, s): self.ool.append(s + ":")
    def lab(self, s): self.o.append(s + ":")
    def c(self, s): self.o.append("    ; " + s)
    def vmop(self, s, tag): self.vm.append(tag); self.a(s)
    def lgop(self, s, tag): self.lg.append(tag); self.a(s)
    def _last(self, lst, tag):
        idx = [i for i, t in enumerate(lst) if t == tag]
        return idx[-1] if idx else None
    def wvm(self, tag):
        i = self._last(self.vm, tag)
        if i is not None: self.wvmi(i)
    def wvmi(self, i):
        if i < self.vmdone: return
        n = min(len(self.vm) - 1 - i, 63); self.vmdone = len(self.vm) - n
        self.a(f"s_waitcnt vmcnt({n})")
    def wlg(self, tag):
        i = self._last(self.lg, tag)
        if i is None or i < self.lgdone: return
        n = min(len(self.lg) - 1 - i, 15); self.lgdone = len(self.lg) - n
        self.a(f"s_waitcnt lgkmcnt({n})")
    def wlg0(self):
        if self.lgdone < len(self.lg): self.lgdone = len(self.lg); self.a("s_waitcnt lgkmcnt(0)")
    def bar(self, name=None):
        self.wlg0()
        if name: self.stamp(name + "a")
        self.a("s_barrier")
        if name: self.stamp(name + "b")
    def stamp(self, name):
        nm = name + "AB"[self.X] if False else name
        if self.prof and nm in self.prof:
            r = sSTAMP + 2 * self.prof.index(nm)
            assert r + 1 <= 101
            self.a(f"s_memrealtime s[{r}:{r+1}]" if nm.startswith("rt") else f"s_memtime s[{r}:{r+1}]")
    def rec(self, name, src):
        if self.prof and name in self.prof:
            self.a(f"s_mov_b32 s{sSTAMP + 2*self.prof.index(name)}, {src}")
    def prio(self, p):
        m = self.opts.get("prio", 1)
        if m == 1: self.a(f"s_setprio {p}")
        if m == 2: self.a(f"s_setprio {2-p}")
    def dma(self, kind, l, g, pat=None):
        if l >= L: return []
        if self.opts.get("dma") == "off" and l >= 2: return []
        pat = pat or self.pat.split("/")[g]
        so = sSO[self.nso & 1]; self.nso += 1
        base, sg, vv, srd = (0, sVG, vV, sV) if kind == "V" else (16384, sUG, vU, sU)
        tag = f"{kind}{l}" + "ab"[g >> 1]
        items = []
        for j in range(4):
            def emit(j=j):
                while self.pw and len(self.vm) - self.pw[0][0] > self.lag: self.pw.pop(0)[1]()
                if j == 0:
                    self.a(f"s_add_u32 m0, s{sLB}, {base+g*4096}"); self.a(f"s_add_u32 s{so}, s{sg[g]}, {l*131072}")
                if pat[j % len(pat)] in "DBC":
                    self.vmop(f"buffer_load_dwordx4 v{vv[j]}, {sr(srd,4)}, s{so} offen offset:{1024*j} lds", tag)
                    for q in range({"D": 0, "B": 1, "C": 2}[pat[j % len(pat)]]): self.vmop(f"buffer_load_dword v{vJ}, off, {sr(sB,4)}, 0", "gap")
                else:
                    nv = pat[:j].count("V")
                    st = aS + 4 * ((g if g < 3 else 3 + nv) if pat.count("V") == 1 or g == 3 else (self.nst % 3)); self.nst += 1
                    assert st + 4 <= aS + 4*NS
                    self.vmop(f"buffer_load_dwordx4 {ar(st,4)}, v{vv[j]}, {sr(srd,4)}, s{so} offen offset:{1024*j}", tag)
                    vi = len(self.vm) - 1
                    def wr():
                        self.wvmi(vi)
                        self.lgop(f"ds_write_b128 v{vLIN}, {ar(st,4)} offset:{base+g*4096+j*1024}", "sw")
                    self.pw.append((vi, wr, g))
            items.append(emit)
        return items
    def flush(self, keep3=False):
        while self.pw and not (keep3 and self.pw[0][2] == 3): self.pw.pop(0)[1]()
    def rdV(self, g):
        return [lambda j=j: self.lgop(f"ds_read_b128 {ar(aV+4*(4*g+j),4)}, v{vA} offset:{g*4096+j*1024}", f"rV{g}_{j>>1}") for j in range(4)]
    def rdU(self, g):
        return [lambda j=j: self.lgop(f"ds_read_b128 {ar(aU+4*(4*g+j),4)}, v{vA} offset:{16384+g*4096+j*1024}", f"rU{g}") for j in range(4)]
    def mf1(self, ks, fill=None):
        for ta in range(2):
            b = vr(PK + 4*ks, 4) if ks < 2 else ar(aX + 4*(ks-2), 4)
            d = vr(ACC1 + 4*ta, 4)
            self.a(f"v_mfma_f32_16x16x32_bf16 {d}, {ar(aV+4*(2*ks+ta),4)}, {b}, {'0' if ks == 0 else d}")
            if fill: self.run(fill[ta])
    def mf2(self, P, kr, fill=None):
        for ta in range(2):
            b = vr(HP, 4) if kr == 0 else ar(aH + 4*(kr-1), 4)
            d = vr(ACC2 + 8*P + 4*ta, 4)
            idx = ((kr >> 1)*2 + P)*4 + (kr & 1)*2 + ta
            self.a(f"v_mfma_f32_16x16x32_bf16 {d}, {ar(aU+4*idx,4)}, {b}, {d}")
            if fill: self.run(fill[ta])
    def epi(self, P, l, pk=False):
        r = []
        if pk:
            for e in range(4):
                q = 8*P + 2*e
                r.append(lambda q=q: self.a(f"v_pk_fma_f32 {vr(ACC2+q,2)}, {vr(X0F+q,2)}, {vr(ACC2+q,2)}, {vr(XF+q,2)}"))
        else:
            for e in range(8):
                q = 8*P + e
                r.append(lambda q=q: self.a(f"v_fma_f32 v{ACC2+q}, v{X0F+q}, v{ACC2+q}, v{XF+q}"))
        for e in range(4):
            q = 8*P + 2*e
            r.append(lambda q=q: self.a(f"v_cvt_pk_bf16_f32 v{PK+q//2}, v{ACC2+q}, v{ACC2+q+1}"))
        if l < L-1: r.append(lambda: self.lgop(f"ds_write_b128 v{vXW}, {vr(PK+4*P,4)} offset:{P*1024}", "xw"))
        else: r.append(lambda: self.lgop(f"ds_write_b128 v{vT[P]}, {vr(PK+4*P,4)}", "xw"))
        return r
    def unpack(self, dst, src, n):
        r = []
        for i in range(n):
            r.append(lambda i=i: self.a(f"v_lshlrev_b32 v{dst+2*i}, 16, v{src+i}"))
            r.append(lambda i=i: self.a(f"v_and_b32 v{dst+2*i+1}, 0xffff0000, v{src+i}"))
        return r
    def bias_rd(self, l):
        for k in range(4):
            self.lgop(f"ds_read_b128 {vr(ACC2+4*k,4)}, v{vBI} offset:{l*256 + (k>>1)*128 + (k&1)*16}", "bias")
    def run(self, lst):
        for f in lst: f()
    def mix(self, *lists):
        lists = [list(x) for x in lists]
        while any(lists):
            for x in lists:
                if x: x.pop(0)()
    def srd(self, r, p, n, bias=0):
        if bias:
            self.a(f"s_sub_u32 s{r}, s{p}, {bias}"); self.a(f"s_subb_u32 s{r+1}, s{p+1}, 0")
        else:
            self.a(f"s_mov_b32 s{r}, s{p}"); self.a(f"s_mov_b32 s{r+1}, s{p+1}")
        self.a(f"s_mov_b32 s{r+2}, {n+bias}"); self.a(f"s_mov_b32 s{r+3}, 0x20000")
    def poll(self, l):
        self.vmop(f"buffer_load_dwordx4 {vr(RX,4)}, v{vE}, {sr(sE,4)}, s{sMY[l&1]} offen sc1", f"poll{l}")
    def send(self, l, u=None):
        a = self.a; u = u if u is not None else f"{self.X}{l}"
        a(f"s_xor_b32 s{sPTMP}, s{sMY[l&1]}, 512")
        for k in range(4): a(f"v_cvt_pk_bf16_f32 v{SP+k}, v{ACC1+2*k}, v{ACC1+2*k+1}")
        for k in range(4): a(f"v_or_b32 v{SP+k}, 1, v{SP+k}" if TAGS[l] else f"v_and_b32 v{SP+k}, -2, v{SP+k}")
        if l == 0: self.handshake()
        self.stamp(f"snd{u}")
        a(f"s_cmp_eq_u32 s{sMODE}, 0"); a(f"s_cbranch_scc1 L_ss{u}")
        self.vmop(f"buffer_store_dwordx4 {vr(SP,4)}, v{vE}, {sr(sE,4)}, s{sPTMP} offen", "st")
        self.lab(f"L_sd{u}")
        self.xl(f"L_ss{u}")
        self.x(f"buffer_store_dwordx4 {vr(SP,4)}, v{vE}, {sr(sE,4)}, s{sPTMP} offen sc1")
        self.x("s_nop 1"); self.x(f"s_branch L_sd{u}")
    def chk_ops(self, l):
        R = RX; t0 = vT[3]
        if TAGS[l]:
            return [f"v_bitop3_b32 v{t0}, v{R}, v{R+1}, v{R+2} bitop3:0x80", f"v_bitop3_b32 v{t0}, v{t0}, v{R+3}, 1 bitop3:0x80", f"v_cmp_eq_u32 vcc, 0, v{t0}"]
        return [f"v_or3_b32 v{t0}, v{R}, v{R+1}, v{R+2}", f"v_bitop3_b32 v{t0}, v{t0}, 1, v{R+3} bitop3:0xc8", f"v_cmp_ne_u32 vcc, 0, v{t0}"]
    def check_post(self, l, d=None):
        u = f"{self.X}{l}"; x = self.x; a = self.a
        self.wvm(f"poll{l}")
        self.stamp(f"chk{u}")
        if self.opts.get("dbgcnt"): a(f"s_mov_b32 s{sCNT}, 0")
        for s in self.chk_ops(l): a(s)
        a(f"s_cbranch_vccnz L_rt{u}")
        self.lab(f"L_got{u}")
        self.stamp(f"got{u}")
        if self.opts.get("dbgcnt"): self.rec(f"cnt{l}", f"s{sCNT}")
        self.xl(f"L_rt{u}")
        x(f"s_mov_b32 s{sCNT}, 0")
        self.xl(f"L_rl{u}")
        x(f"buffer_load_dwordx4 {vr(RX,4)}, v{vE}, {sr(sE,4)}, s{sMY[l&1]} offen sc1")
        x(f"s_add_u32 s{sCNT}, s{sCNT}, 1"); x(f"s_cmp_gt_u32 s{sCNT}, 0x200000")
        x("s_waitcnt vmcnt(0)")
        x(f"s_cbranch_scc1 L_got{u}")
        for s in self.chk_ops(l): x(s)
        x(f"s_cbranch_vccnz L_rl{u}")
        x(f"s_branch L_got{u}")
        ops = []
        for h in range(2):
            ops += self.unpack(T4, RX+2*h, 2)
            if self.opts.get("pkadd", 0):
                for k in range(2): ops.append(lambda k=k, h=h: a(f"v_pk_add_f32 {vr(T4+2*k,2)}, {vr(T4+2*k,2)}, {vr(ACC1+4*h+2*k,2)}"))
            else:
                for k in range(4): ops.append(lambda k=k, h=h: a(f"v_add_f32 v{T4+k}, v{T4+k}, v{ACC1+4*h+k}"))
            for k in range(2): ops.append(lambda k=k, h=h: a(f"v_cvt_pk_bf16_f32 v{HP+2*h+k}, v{T4+2*k}, v{T4+2*k+1}"))
        ops.append(lambda: self.lgop(f"ds_write_b128 v{vHW}, {vr(HP,4)}", "hw"))
        if d is None:
            self.run(ops); self.bias_rd(l); return
        d = list(d); st = self.opts.get("vper", 10)
        while ops:
            self.run(ops[:st]); ops = ops[st:]
            if ops and d: d.pop(0)()
        self.run(d)
    def x_reads(self):
        return [lambda ks=ks: self.lgop(f"ds_read_b128 {ar(aX+4*(ks-2),4)}, v{vXR[ks>>1]} offset:{(ks&1)*1024}", f"x{ks}") for ks in range(2, 8)]
    def h_reads(self):
        for kr in range(1, 4):
            self.lgop(f"ds_read_b128 {ar(aH+4*(kr-1),4)}, v{vHR[kr]}", f"h{kr}")

    def g2_phase(self, l, early=None, mid=None, late=None):
        early = list(early or []); mid = list(mid or []); late = list(late or [])
        def take(q): return [q[0:1], q[1:2]]
        self.h_reads()
        self.mf2(0, 0, take(early)); self.mf2(1, 0, take(early[2:]))
        self.wlg("h1"); self.mf2(0, 1, take(early[4:]))
        self.wlg("h2"); self.mf2(0, 2, take(early[6:] + mid))
        self.wlg("h3"); self.mf2(0, 3, take(mid[2:]))
        self.flush()
        e0 = self.epi(0, l); e1 = self.epi(1, l, pk=self.opts.get("pkfma", 1))
        u = f"{self.X}{l}"
        self.stamp(f"g2a{u}")
        self.mf2(1, 1); self.mf2(1, 2, [late[0:2], late[2:4]])
        self.stamp(f"g2b{u}")
        self.mf2(1, 3, [e0[0:2], e0[2:-1]])
        self.stamp(f"g2c{u}")
        e0[-1]()
        self.stamp(f"g2d{u}")
        self.run(e1[:-1])
        self.stamp(f"g2e{u}")
        e1[-1]()
        self.stamp(f"g2f{u}")
    def g1_phase(self, l, jitV=False, extra=None):
        xr = self.x_reads(); extra = list(extra or [])
        if jitV:
            rv = self.rdV(2) + self.rdV(3)
            self.run(xr[0:2])
            q = [xr[2], rv[0], rv[1], xr[3], rv[2], rv[3], xr[4], rv[4], rv[5], xr[5], rv[6], rv[7]]
            for ks in range(8):
                self.wlg(f"rV{ks>>1}_{ks&1}")
                if ks >= 2: self.wlg(f"x{ks}")
                self.mf1(ks, [q[0:2], q[2:3]]); q = q[3:]
        else:
            self.run(xr)
            for ks in range(8):
                if ks >= 2: self.wlg(f"x{ks}")
                self.mf1(ks, [extra[0:1], extra[1:2]]); extra = extra[2:]
            self.run(extra)
        self.send(l)

    def prologue(self):
        a = self.a; T = [X0F + i for i in range(10)]
        a(f"s_load_dwordx8 {sr(sKA,8)}, s[0:1], 0")
        a(f"s_load_dwordx4 {sr(sKA+8,4)}, s[0:1], 32")
        a(f"s_load_dwordx2 {sr(sKA+12,2)}, s[0:1], 48")
        a("s_cmp_ge_u32 s2, 256"); a("s_cbranch_scc1 L_end")
        self.stamp("start"); self.stamp("rt0")
        a(f"v_lshrrev_b32 v{T[0]}, 6, v0"); a(f"v_and_b32 v{vLANE}, 63, v0")
        a(f"s_lshr_b32 s{sT[0]}, s2, 3")
        a(f"v_readfirstlane_b32 s{sWV}, v{T[0]}")
        a(f"s_lshl_b32 s{sT[0]}, s{sT[0]}, 3"); a(f"s_add_u32 s{sT[6]}, s{sT[0]}, s{sWV}")
        if self.opts.get("codepf", 1):
            a(f"s_getpc_b64 {sr(sX0,2)}")
            a(f"s_and_b32 s{sX0}, s{sX0}, 0xffffff00")
            a(f"s_lshl_b32 s{sT[1]}, s{sT[6]}, 7"); a(f"v_mov_b32 v{T[1]}, s{sT[1]}")
            a(f"s_cmp_ge_u32 s{sT[1]}, CODE_BYTES"); a("s_cbranch_scc1 L_nocpf")
            a("s_mov_b64 exec, 1")
            a(f"global_load_dword v{vJ}, v{T[1]}, {sr(sX0,2)}")
            a("s_mov_b64 exec, -1")
            self.lab("L_nocpf")
        a(f"s_and_b32 s{sWS}, s{sWV}, 3"); a(f"s_lshr_b32 s{sXH}, s{sWV}, 2")
        a(f"v_lshrrev_b32 v{T[6]}, 2, v{vLANE}"); a(f"v_and_b32 v{T[7]}, 3, v{vLANE}")
        a(f"v_lshlrev_b32 v{T[9]}, 7, v{T[7]}"); a(f"v_lshl_add_u32 v{vT[3]}, v{T[6]}, 17, v{T[9]}")
        a(f"s_lshl_b32 s{sT[6]}, s{sT[6]}, 9"); a(f"s_add_u32 s{sT[6]}, s{sT[6]}, 3072")
        a(f"s_bfe_u32 s{sHF}, s2, 0x10003")
        a(f"s_lshr_b32 s{sT[0]}, s2, 4"); a(f"s_lshl_b32 s{sT[0]}, s{sT[0]}, 3"); a(f"s_and_b32 s{sRB}, s2, 7"); a(f"s_or_b32 s{sRB}, s{sRB}, s{sT[0]}")
        a(f"s_lshl_b32 s{sLB}, s{sWS}, 15")
        a(f"v_lshrrev_b32 v{T[0]}, 4, v{vLANE}")
        a(f"s_movk_i32 s{sPTMP}, 0x78"); a(f"v_lshlrev_b32 v{T[1]}, 1, v{T[0]}"); a(f"v_lshrrev_b32 v{T[2]}, v{T[1]}, s{sPTMP}")
        a(f"v_xor_b32 v{T[2]}, v{T[2]}, v{vLANE}"); a(f"v_and_b32 v{T[2]}, 3, v{T[2]}"); a(f"v_lshlrev_b32 v{T[2]}, 4, v{T[2]}")
        a(f"v_bfe_u32 v{T[1]}, v{vLANE}, 2, 2"); a(f"v_lshl_add_u32 v{T[1]}, v{T[0]}, 3, v{T[1]}")
        a(f"v_lshl_add_u32 v{T[3]}, v{T[1]}, 10, v{T[2]}"); a(f"v_lshl_add_u32 v{T[4]}, v{T[1]}, 8, v{T[2]}")
        for j in range(4):
            a(f"v_add_u32 v{vV[j]}, {(j&1)*4096 + (j>>1)*64 - 1024*j + 3072}, v{T[3]}")
        a(f"v_add_u32 v{T[5]}, {64 - 1024 + 3072}, v{T[3]}")
        a(f"s_lshl_b32 s{sT[2]}, s{sHF}, 9"); a(f"s_add_u32 s{sT[3]}, s{sLB}, s{sT[2]}")
        a(f"s_lshl_b32 s{sT[4]}, s{sRB}, 15"); a(f"s_add_u32 s{sT[4]}, s{sT[4]}, s{sT[2]}")
        a(f"s_lshl_b32 s{sT[5]}, s{sXH}, 12"); a(f"s_add_u32 s{sT[4]}, s{sT[4]}, s{sT[5]}")
        a(f"s_lshl_b32 s{sT[5]}, s{sWS}, 7"); a(f"s_add_u32 s{sT[7]}, s{sT[4]}, s{sT[5]}")
        a(f"s_lshr_b32 s{sT[5]}, s{sWS}, 1"); a(f"s_lshl_b32 s{sT[5]}, s{sT[5]}, 13"); a(f"s_add_u32 s{sT[4]}, s{sT[4]}, s{sT[5]}")
        a(f"s_and_b32 s{sT[5]}, s{sWS}, 1"); a(f"s_lshl_b32 s{sT[5]}, s{sT[5]}, 11"); a(f"s_add_u32 s{sMY[0]}, s{sT[4]}, s{sT[5]}")
        a(f"s_add_u32 s{sMY[1]}, s{sMY[0]}, 16384")
        for g in range(4):
            a(f"s_xor_b32 s{sT[4]}, s{sWS}, {g}"); a(f"s_lshl_b32 s{sT[4]}, s{sT[4]}, 7"); a(f"s_add_u32 s{sVG[g]}, s{sT[3]}, s{sT[4]}")
        a(f"v_lshrrev_b32 v{T[8]}, 5, v{vLANE}"); a(f"v_and_b32 v{vE}, 31, v{vLANE}"); a(f"v_lshlrev_b32 v{vE}, 4, v{vE}")
        a(f"v_lshl_add_u32 v{vE}, v{T[8]}, 10, v{vE}")
        for r in range(4): a(f"v_mov_b32 v{TM+r}, 0")
        a(f"v_mov_b32 v{vT[2]}, s2"); a(f"v_xor_b32 v{vT[2]}, 8, v{vT[2]}")
        a(f"s_lshl_b32 s{sT[5]}, s{sWS}, 12"); a(f"s_lshl_b32 s{sT[4]}, s{sXH}, 11"); a(f"s_add_u32 s{sT[5]}, s{sT[5]}, s{sT[4]}")
        a(f"s_add_u32 m0, s{sT[5]}, {XB}")
        a(f"v_lshrrev_b32 v{T[6]}, 3, v{vLANE}"); a(f"v_and_b32 v{T[7]}, 7, v{vLANE}")
        a(f"v_lshlrev_b32 v{T[8]}, 4, v{T[7]}"); a(f"v_lshl_add_u32 v{T[8]}, v{T[6]}, 10, v{T[8]}")
        a(f"s_lshl_b32 s{sT[5]}, s{sWS}, 7"); a(f"s_add_u32 s{sT[5]}, s{sT[5]}, s{sT[2]}"); a(f"s_mul_i32 s{sT[3]}, s{sXH}, 3072"); a(f"s_add_u32 s{sT[5]}, s{sT[5]}, s{sT[3]}")
        a("s_waitcnt lgkmcnt(0)")
        self.stamp("karg")
        pf = self.opts.get("pf", 1)
        def pfl(lo):
            if not pf or not lo: return
            a(f"s_mov_b64 exec, {lo}")
            self.vmop(f"buffer_load_dword v{vJ}, v{vT[3]}, {sr(sV,4)}, s{sT[6]} offen", "pf")
            self.vmop(f"buffer_load_dword v{vJ}, v{vT[3]}, {sr(sU,4)}, s{sT[6]} offen", "pf")
            a("s_mov_b64 exec, -1")
        self.pfl = pfl
        masks = [int(m, 16) for m in str(self.opts.get("pfm", "f,fffff0")).split(",")]
        self.pfmasks = masks
        self.srd(sX0, sKA+0, 4096*1024, 3072)
        self.vmop(f"buffer_load_dwordx4 v{vV[0]}, {sr(sX0,4)}, s{sT[7]} offen lds", "x0")
        self.vmop(f"buffer_load_dwordx4 v{T[5]}, {sr(sX0,4)}, s{sT[7]} offen offset:1024 lds", "x0")
        self.srd(sV, sKA+4, 6*131072, 3072)
        self.srd(sU, sKA+2, 6*131072, 3072)
        pfl(masks[0])
        self.srd(sB, sKA+6, 6*1024)
        self.srd(sD, sKA+10, 256)
        a("s_mov_b64 exec, 0xffffff")
        self.vmop(f"buffer_load_dwordx4 {vr(TM+4,4)}, v{T[8]}, {sr(sB,4)}, s{sT[5]} offen", "bias")
        a("s_mov_b64 exec, 1")
        self.vmop(f"buffer_load_ubyte v{vJ}, v{vT[2]}, {sr(sD,4)}, 0 offen", "touch")
        a("s_mov_b64 exec, -1")
        self.srd(sO, sKA+8, 4096*1024)
        bt = self.opts.get("boxtouch", 1)
        a(f"v_and_b32 v{RX+1}, 3, v{vLANE}"); a(f"v_lshlrev_b32 v{RX+1}, 7, v{RX+1}")
        a(f"v_bfe_u32 v{RX}, v{vLANE}, 2, 1"); a(f"v_lshl_add_u32 v{RX+1}, v{RX}, 10, v{RX+1}")
        a(f"v_bfe_u32 v{RX}, v{vLANE}, 3, 1"); a(f"v_lshl_add_u32 v{RX+1}, v{RX}, 14, v{RX+1}")
        def box(m):
            a(f"s_mov_b64 exec, {m}")
            self.vmop(f"buffer_load_dword v{vJ}, v{RX+1}, {sr(sO,4)}, s{sMY[0]} offen", "bt")
            a("s_mov_b64 exec, -1")
        self.box = box
        if bt == 1: box(0xffff)
        if bt == 2: box(0xff)
        if self.opts.get("clrearly", 1):
            self.vmop(f"buffer_store_dwordx4 {vr(TM,4)}, v{vE}, {sr(sO,4)}, s{sMY[0]} offen", "clr")
        self.stamp("i_x0")
        a("s_barrier")
        a(f"s_lshl_b32 s{sT[4]}, s{sXH}, 13"); a(f"s_add_u32 s{sT[4]}, s{sT[4]}, s{sLB}")
        a(f"s_cmp_eq_u32 s{sXH}, 0")
        a(f"s_cselect_b32 s{sT[0]}, s{sVG[0]}, s{sVG[2]}"); a(f"s_cselect_b32 s{sT[1]}, s{sVG[1]}, s{sVG[3]}")
        def v0grp(k):
            a(f"s_add_u32 m0, s{sT[4]}, {k*4096}"); a("s_nop 0")
            for j in range(4):
                self.vmop(f"buffer_load_dwordx4 v{vV[j]}, {sr(sV,4)}, s{sT[k]} offen offset:{1024*j} lds", "V0")
                if (j & 1) and self.opts.get("pgap", 1): self.vmop(f"buffer_load_dword v{vJ}, off, {sr(sB,4)}, 0", "gap")
        v0grp(0)
        self.stamp("i_v0a")
        self.srd(sW, sKA+12, 8 << 20)
        self.srd(sE, sKA+8, 4096*1024)
        a(f"s_getreg_b32 s{sXCC}, hwreg(HW_REG_XCC_ID)"); a(f"s_and_b32 s{sXCC}, s{sXCC}, 15"); a(f"s_or_b32 s{sXCC}, s{sXCC}, 16")
        a(f"s_and_b32 s{sT[0]}, s{sWS}, 1"); a(f"s_lshl_b32 s{sT[0]}, s{sT[0]}, 6"); a(f"s_xor_b32 s{sT[3]}, s{sT[0]}, 64")
        for j in range(4):
            a(f"v_add_u32 v{vU[j]}, {(j&1)*1024 - 1024*j + 3072}, v{T[4]}")
            a(f"v_add_u32 v{vU[j]}, s{sT[3] if j >> 1 else sT[0]}, v{vU[j]}")
        a(f"s_lshl_b32 s{sT[0]}, s{sHF}, 16"); a(f"s_lshl_b32 s{sT[5]}, s{sWS}, 14"); a(f"s_add_u32 s{sT[0]}, s{sT[0]}, s{sT[5]}")
        for g in range(4):
            pp, P = g >> 1, g & 1
            a(f"s_xor_b32 s{sT[5]}, s{sWS}, {2*pp}"); a(f"s_and_b32 s{sT[5]}, s{sT[5]}, 2"); a(f"s_lshl_b32 s{sT[5]}, s{sT[5]}, 6")
            a(f"s_add_u32 s{sT[5]}, s{sT[5]}, {P*8192}"); a(f"s_add_u32 s{sUG[g]}, s{sT[0]}, s{sT[5]}")
        a(f"v_bfe_u32 v{T[1]}, v{vLANE}, 2, 2"); a(f"v_lshlrev_b32 v{T[1]}, 1, v{T[1]}"); a(f"v_lshrrev_b32 v{T[2]}, v{T[1]}, s{sPTMP}")
        a(f"v_xor_b32 v{T[2]}, v{T[2]}, v{T[0]}"); a(f"v_and_b32 v{T[2]}, 3, v{T[2]}"); a(f"v_lshlrev_b32 v{T[2]}, 4, v{T[2]}")
        a(f"v_and_b32 v{T[1]}, 15, v{vLANE}"); a(f"v_lshl_add_u32 v{T[2]}, v{T[1]}, 6, v{T[2]}")
        a(f"v_add_u32 v{vA}, s{sLB}, v{T[2]}")
        a(f"s_lshl_b32 s{sT[5]}, s{sWS}, 12"); a(f"s_lshl_b32 s{sT[0]}, s{sXH}, 11"); a(f"s_add_u32 s{sT[5]}, s{sT[5]}, s{sT[0]}"); a(f"s_add_u32 s{sT[5]}, s{sT[5]}, {XB}")
        a(f"v_add_u32 v{T[3]}, s{sT[5]}, v{T[2]}")
        a(f"v_lshlrev_b32 v{T[1]}, 4, v{vLANE}")
        a(f"v_add_u32 v{vXW}, s{sT[5]}, v{T[1]}"); a(f"v_add_u32 v{vLIN}, s{sLB}, v{T[1]}")
        for g in range(1, 4): a(f"v_xor_b32 v{vXR[g]}, {g*4096}, v{vXW}")
        a(f"s_lshl_b32 s{sT[5]}, s{sWV}, 10"); a(f"s_add_u32 s{sT[5]}, s{sT[5]}, {HB}")
        a(f"v_add_u32 v{vHW}, s{sT[5]}, v{T[1]}")
        for g in range(1, 4): a(f"v_xor_b32 v{vHR[g]}, {g*1024}, v{vHW}")
        a(f"s_mul_i32 s{sT[5]}, s{sWS}, 1536"); a(f"s_add_u32 s{sT[5]}, s{sT[5]}, {BIASB}")
        a(f"v_lshlrev_b32 v{vBI}, 5, v{T[0]}"); a(f"v_add_u32 v{vBI}, s{sT[5]}, v{vBI}")
        a(f"s_mul_i32 s{sT[0]}, s{sXH}, 768"); a(f"s_add_u32 s{sT[5]}, s{sT[5]}, s{sT[0]}")
        a(f"v_lshlrev_b32 v{T[7]}, 5, v{T[7]}"); a(f"v_lshl_add_u32 v{T[7]}, v{T[6]}, 8, v{T[7]}"); a(f"v_add_u32 v{vT[0]}, s{sT[5]}, v{T[7]}")
        def xproc():
            self.wvm("x0")
            self.stamp("x0")
            for P in range(2):
                self.lgop(f"ds_read_b128 {vr(PK+4*P,4)}, v{T[3]} offset:{P*1024}", "x0r")
            self.wvm("bias")
            self.run(self.unpack(TM+8, TM+4, 4))
            self.wlg("x0r")
            for P in range(2):
                self.lgop(f"ds_write_b128 v{vXW}, {vr(PK+4*P,4)} offset:{P*1024}", "xw")
            a("s_mov_b64 exec, 0xffffff")
            self.lgop(f"ds_write_b128 v{vT[0]}, {vr(TM+8,4)}", "bw")
            self.lgop(f"ds_write_b128 v{vT[0]}, {vr(TM+12,4)} offset:16", "bw")
            a("s_mov_b64 exec, -1")
            self.run(self.unpack(X0F, PK, 8))
        xp = self.opts.get("xproc", 0)
        if xp == 0: xproc()
        v0grp(1)
        self.stamp("i_v0b")
        if not self.opts.get("clrearly", 1):
            self.vmop(f"buffer_store_dwordx4 {vr(TM,4)}, v{vE}, {sr(sO,4)}, s{sMY[0]} offen", "clr")
        if bt == 3: box(0xffff)
        if bt == 4: box(0xff)
        pfl(masks[1])
        if xp == 1: xproc()
        self.wvm("clr")
        a("s_barrier")
        self.stamp("issued")
        a(f"s_cmp_lg_u32 s{sWV}, 0"); a("s_cbranch_scc0 L_flag")
        self.lab("L_noflag")
        self.vmop(f"buffer_store_dwordx4 {vr(TM,4)}, v{vE}, {sr(sO,4)}, s{sMY[1]} offen", "clr1")
        a(f"s_xor_b32 s{sT[3]}, s2, 8"); a(f"s_and_b32 s{sT[2]}, s{sT[3]}, 0xfc"); a(f"s_and_b32 s{sT[3]}, s{sT[3]}, 3"); a(f"s_lshl_b32 s{sT[3]}, s{sT[3]}, 3")
        a(f"s_cmp_lg_u32 s{sXH}, 0"); a("s_cbranch_scc1 L_progB")
        self.xl("L_flag")
        self.x(f"v_mov_b32 v{RX}, s2"); self.x(f"v_mov_b32 v{vT[1]}, s{sXCC}"); self.x("s_mov_b64 exec, 1")
        self.x(f"buffer_store_byte v{vT[1]}, v{RX}, {sr(sD,4)}, 0 offen"); self.x("s_mov_b64 exec, -1"); self.x("s_branch L_noflag")

    def clr1_flag(self):
        self.a(f"s_load_dword s{sT[1]}, {sr(sKA+10,2)}, s{sT[2]}")
    def bias_ops(self, l):
        return [lambda k=k: self.lgop(f"ds_read_b128 {vr(ACC2+4*k,4)}, v{vBI} offset:{l*256 + (k>>1)*128 + (k&1)*16}", "bias") for k in range(4)]
    def light1(self, kind, l, rd, lp):
        d = self.dma(kind, l, 0) + self.dma(kind, l, 1)
        pp = self.opts.get("pollat", 6); r0 = self.opts.get("rd1at", 0)
        rd = list(rd) + self.bias_ops(lp)
        per = self.opts.get("rd1per", 4)
        for k in range(8):
            if k == pp: self.poll(lp)
            if k < len(d): d[k]()
            if r0 <= k: self.run(rd[:per]); rd = rd[per:]
            self.stamp(f"l1{self.X}{lp}_{k}")
        if pp >= 8: self.poll(lp)
    def light2(self, kind, l, rd, lp):
        d = self.dma(kind, l, 2) + self.dma(kind, l, 3) + [lambda: None] * 8
        p2 = self.opts.get("pre2", 3); rd = list(rd)
        self.run(d[:p2])
        self.run(rd[:4]); d[p2](); self.run(rd[4:]); d[p2+1]()
        self.stamp(f"pd{self.X}{lp}")
        self.check_post(lp, d[p2+2:p2+3])
        self.stamp(f"po{self.X}{lp}")
        ux = self.unpack(XF, PK, 8)
        self.run(ux[:8]); self.run(d[p2+3:p2+4]); self.run(ux[8:])
        self.wvm(f"{kind}{l}a")
        self.run(d[p2+4:8])
        self.stamp(f"en{self.X}{lp}")
    def progA(self):
        a = self.a
        self.wvm("V0"); self.stamp("v0l"); self.wvm("clr")
        self.bar("b0")
        self.prio(2)
        xr = self.x_reads(); rv = [f for g in range(4) for f in self.rdV(g)]
        self.run(rv[0:4]); self.run(xr[0:2]); self.run(rv[4:8]); self.run(xr[2:4])
        q = rv[8:12] + xr[4:6] + rv[12:16]
        for ks in range(8):
            self.wlg(f"rV{ks>>1}_{ks&1}")
            if ks >= 2: self.wlg(f"x{ks}")
            self.mf1(ks, [q[0:1], q[1:2]]); q = q[2:]
            if ks == self.opts.get("flagat", 2): self.clr1_flag()
        self.send(0)
        self.prio(0)
        self.bar("b1")
        self.light1("V", 1, self.rdU(0) + self.rdU(1), 0)
        self.bar("b1x")
        self.run(self.rdU(2))
        self.check_post(0, [])
        self.run(self.rdU(3)); self.run(self.unpack(XF, PK, 8))
        self.wvm("V1a")
        self.bar("b2")
        for l in range(L):
            last = l == L-1
            self.c(f"==== A round {l} phase 0: G2 ====")
            self.prio(2)
            if last: self.final_addr()
            self.g2_phase(l, early=(None if last else self.rdV(0) + self.rdV(1)))
            if last:
                self.a("s_barrier"); self.final_store(); return
            self.wvm(f"V{l+1}b")
            self.stamp(f"g2g0{l}")
            self.bar(f"A0{l}")
            self.c(f"==== A round {l} phase 1: G1 ====")
            self.g1_phase(l+1, jitV=True)
            self.prio(0)
            self.bar(f"A1{l}")
            self.c(f"==== A round {l} phase 2 ====")
            self.light1("V", l+2, self.rdU(0) + self.rdU(1), l+1)
            self.bar(f"A2{l}")
            self.c(f"==== A round {l} phase 3 ====")
            self.light2("V", l+2, self.rdU(2) + self.rdU(3), l+1)
            self.bar(f"A3{l}")

    def progB(self):
        self.lab("L_progB")
        self.run(self.dma("U", 0, 0) + self.dma("U", 0, 1))
        self.wvm("V0"); self.stamp("v0l"); self.wvm("clr")
        self.bar("b0")
        d = self.dma("U", 0, 2) + self.dma("U", 0, 3)
        rv = [f for g in range(4) for f in self.rdV(g)]
        self.run(d[:4])
        for k in range(4):
            self.run(rv[4*k:4*k+4]); d[4+k]()
        self.wvm("U0a")
        self.bar("b1")
        self.prio(2)
        self.clr1_flag()
        self.g1_phase(0, extra=self.rdU(0) + self.rdU(1))
        self.prio(0)
        self.wvm("U0b")
        self.bar("b1x")
        self.mix(self.dma("V", 1, 2) + self.dma("V", 1, 3), self.rdU(2) + self.rdU(3))
        self.bar("b2")
        for l in range(L):
            last = l == L-1
            self.c(f"==== B round {l} phase 0 ====")
            if not last:
                self.light1("U", l+1, self.rdV(0) + self.rdV(1), l)
                if l == 0: self.wvm("V1b")
                self.bar(f"B0{l}")
                self.c(f"==== B round {l} phase 1 ====")
                self.light2("U", l+1, self.rdV(2) + self.rdV(3), l)
            else:
                self.run(self.unpack(XF, PK, 8)); self.final_addr()
                self.poll(l); self.check_post(l)
            self.bar(f"B1{l}")
            self.c(f"==== B round {l} phase 2: G2 ====")
            self.prio(2)
            if last:
                self.g2_phase(l); self.final_store(); return
            self.g2_phase(l, mid=self.rdU(0), late=self.rdU(1))
            self.wvm(f"U{l+1}b")
            self.bar(f"B2{l}")
            self.c(f"==== B round {l} phase 3: G1 ====")
            self.g1_phase(l+1, extra=self.rdU(2) + self.rdU(3))
            self.prio(0)
            self.bar(f"B3{l}")

    def final_addr(self):
        a = self.a; t = [RX, RX+1, RX+2]
        a(f"v_and_b32 v{t[0]}, 15, v{vLANE}"); a(f"v_lshrrev_b32 v{t[1]}, 4, v{vLANE}")
        a(f"v_and_b32 v{t[2]}, 7, v{t[0]}"); a(f"v_xor_b32 v{t[2]}, v{t[2]}, v{t[1]}"); a(f"v_lshlrev_b32 v{t[2]}, 4, v{t[2]}")
        a(f"v_lshl_add_u32 v{t[2]}, v{t[0]}, 7, v{t[2]}")
        a(f"v_and_b32 v{vT[0]}, 0xfffff800, v{vXW}"); a(f"v_add_u32 v{vT[0]}, v{vT[0]}, v{t[2]}"); a(f"v_xor_b32 v{vT[1]}, 64, v{vT[0]}")
        a(f"v_lshrrev_b32 v{t[0]}, 3, v{vLANE}"); a(f"v_xor_b32 v{t[1]}, v{t[0]}, v{vLANE}"); a(f"v_and_b32 v{t[1]}, 7, v{t[1]}")
        a(f"v_lshlrev_b32 v{t[1]}, 4, v{t[1]}")
        a(f"v_and_b32 v{t[2]}, 4, v{t[0]}"); a(f"v_add_u32 v{t[0]}, v{t[0]}, v{t[2]}")
        a(f"v_lshl_add_u32 v{vT[2]}, v{t[0]}, 10, v{t[1]}")

    def final_store(self):
        a = self.a; D = XF
        for m in range(2):
            self.lgop(f"ds_read_b128 {vr(D+4*m,4)}, v{vXW} offset:{m*1024}", f"fo{m}")
        fl = self.opts.get("outflags", "")
        for m in range(2):
            a(f"s_add_u32 s{sT[m]}, s{sT[7]}, {m*16384}")
            self.wlg(f"fo{m}")
            self.vmop(f"buffer_store_dwordx4 {vr(D+4*m,4)}, v{vT[2]}, {sr(sO,4)}, s{sT[m]} offen {fl}", "out")
        if self.opts.get("echo"):
            u = self.X
            a("s_waitcnt vmcnt(0)"); self.stamp("fin")
            a("s_memtime s[90:91]"); a("s_waitcnt lgkmcnt(0)")
            a(f"s_sub_u32 s92, s{sSTAMP+2}, s{sSTAMP}")
            self.lab(f"L_echo{u}")
            a("s_sleep 1"); a("s_memtime s[94:95]"); a("s_waitcnt lgkmcnt(0)"); a("s_sub_u32 s93, s94, s90")
            a("s_cmp_lt_u32 s93, s92"); a(f"s_cbranch_scc1 L_echo{u}")
        elif self.prof:
            a("s_waitcnt vmcnt(0)")
            self.stamp("fin"); self.stamp("rt1")
            a("s_waitcnt lgkmcnt(0)")
            a(f"v_mov_b32 v{RX}, 0")
            for i in range(len(self.prof)): a(f"v_writelane_b32 v{RX}, s{sSTAMP+2*i}, {i}")
            a(f"s_lshl_b32 s{sT[0]}, s2, 3"); a(f"s_add_u32 s{sT[0]}, s{sT[0]}, s{sWV}"); a(f"s_lshl_b32 s{sT[0]}, s{sT[0]}, 8")
            a(f"s_add_u32 s{sT[0]}, s{sT[0]}, {6<<20}")
            a(f"v_lshlrev_b32 v{vT[0]}, 2, v{vLANE}")
            a(f"buffer_store_dword v{RX}, v{vT[0]}, {sr(sW,4)}, s{sT[0]} offen")
        for i in range(self.opts.get("delay", 0)): a("s_sleep 125")
        a("s_endpgm")

    def handshake(self):
        a = self.a; x = self.x; P = XF; u = self.X
        self.c("handshake: the partner's inbox is cleared; does it share this XCD?")
        a(f"s_mov_b32 s{sCNT}, 0"); a(f"s_mov_b32 s{sMODE}, 1")
        self.wvm("clr1")
        a("s_waitcnt lgkmcnt(0)"); self.lgdone = len(self.lg)
        a(f"s_lshr_b32 s{sT[0]}, s{sT[1]}, s{sT[3]}"); a(f"s_and_b32 s{sT[0]}, s{sT[0]}, 0xff")
        a(f"s_cmp_eq_u32 s{sT[0]}, s{sXCC}"); a(f"s_cbranch_scc0 L_hs_fast{u}")
        self.lab(f"L_hs_done{u}")
        self.rec("hscnt", f"s{sCNT}"); self.rec("mode", f"s{sMODE}")
        self.xl(f"L_hs_fast{u}")
        x(f"buffer_load_ubyte v{vT[1]}, v{vT[2]}, {sr(sD,4)}, 0 offen sc1")
        x("s_waitcnt vmcnt(0)")
        x(f"v_readfirstlane_b32 s{sT[0]}, v{vT[1]}")
        x(f"s_cmp_eq_u32 s{sT[0]}, s{sXCC}"); x(f"s_cbranch_scc1 L_hs_done{u}")
        x(f"s_add_u32 s{sCNT}, s{sCNT}, 1"); x(f"s_cmp_lt_u32 s{sCNT}, {self.opts.get('fastpolls', 8)}"); x(f"s_cbranch_scc1 L_hs_fast{u}")
        for r in range(4): x(f"v_mov_b32 v{P+4+r}, 0")
        for sl in range(2):
            x(f"buffer_store_dwordx4 {vr(P+4,4)}, v{vE}, {sr(sW,4)}, s{sMY[sl]} offen sc1")
        x(f"s_lshl_b32 s{sT[1]}, s2, 3"); x(f"s_add_u32 s{sT[1]}, s{sT[1]}, s{sWV}"); x(f"s_lshl_b32 s{sT[1]}, s{sT[1]}, 7")
        x(f"s_add_u32 s{sT[1]}, s{sT[1]}, {4<<20}")
        x(f"s_xor_b32 s{sT[2]}, s{sT[1]}, {8*8*128}")
        x(f"v_mov_b32 v{P+2}, 0")
        x("s_mov_b64 exec, 1")
        x(f"buffer_load_dwordx4 {vr(P+8,4)}, v{P+2}, {sr(sW,4)}, s{sT[2]} offen sc1")
        x("s_waitcnt vmcnt(0)")
        x(f"v_readfirstlane_b32 s{sT[3]}, v{P+10}")
        x(f"s_add_u32 s{sT[3]}, s{sT[3]}, 1")
        x(f"v_mov_b32 v{P+3}, s{sT[3]}")
        x(f"buffer_store_dword v{P+3}, v{P+2}, {sr(sW,4)}, s{sT[1]} offen sc1")
        x("s_waitcnt vmcnt(0)")
        x(f"s_mov_b32 s{sCNT}, 0")
        self.xl(f"L_hs_slow{u}")
        x(f"buffer_load_ubyte v{vT[1]}, v{vT[2]}, {sr(sD,4)}, 0 offen sc1")
        x(f"buffer_load_dwordx4 {vr(P+8,4)}, v{P+2}, {sr(sW,4)}, s{sT[2]} offen sc1")
        x("s_waitcnt vmcnt(0)")
        x(f"v_readfirstlane_b32 s{sT[0]}, v{vT[1]}")
        x(f"v_readfirstlane_b32 s{sT[5]}, v{P+8}")
        x(f"v_readfirstlane_b32 s{sT[4]}, v{P+10}")
        x(f"v_readfirstlane_b32 s{sMODE}, v{P+11}")
        x(f"s_cmp_eq_u32 s{sT[0]}, s{sXCC}"); x(f"s_cbranch_scc1 L_hs_same{u}")
        x(f"v_mov_b32 v{P+12}, s{sT[5]}"); x(f"v_mov_b32 v{P+13}, s{sXCC}")
        x(f"buffer_store_dwordx2 {vr(P+12,2)}, v{P+2}, {sr(sW,4)}, s{sT[1]} offen offset:8 sc1")
        x(f"s_add_u32 s{sCNT}, s{sCNT}, 1"); x(f"s_cmp_gt_u32 s{sCNT}, 0x200000"); x(f"s_cbranch_scc1 L_hs_same{u}")
        x(f"s_cmp_eq_u32 s{sT[4]}, s{sT[3]}"); x(f"s_cbranch_scc0 L_hs_slow{u}")
        x(f"s_cmp_eq_u32 s{sMODE}, s{sXCC}"); x(f"s_cbranch_scc1 L_hs_same{u}")
        x(f"s_mov_b32 s{sMODE}, 0")
        x(f"s_mov_b32 s{sE}, s{sKA+12}"); x(f"s_mov_b32 s{sE+1}, s{sKA+13}")
        x("s_mov_b64 exec, -1")
        x(f"s_branch L_hs_done{u}")
        self.xl(f"L_hs_same{u}")
        x(f"s_mov_b32 s{sMODE}, 1")
        x("s_mov_b64 exec, -1")
        x(f"s_branch L_hs_done{u}")

    def build(self):
        hdr = [f"; @launch grid=(256,1,1) block=(512,1,1) lds={LDS_BYTES}",
               '.amdgcn_target "amdgcn-amd-amdhsa--gfx950"', ".text", f".globl {KN}", ".p2align 8",
               f".type {KN},@function", f"{KN}:"]
        self.prologue()
        A = self.fork(0); A.progA()
        B = self.fork(1); B.progB()
        nb = lambda g: sum(1 for s in g.o if s.strip() == "s_barrier")
        assert nb(A) == nb(B), (nb(A), nb(B))
        assert NV + NA <= 256
        ftr = [f".set CODE_BYTES, L_end - {KN}", '.section .rodata,"a"', ".p2align 6", f".amdhsa_kernel {KN}",
               f"  .amdhsa_next_free_vgpr {NV+NA}", "  .amdhsa_next_free_sgpr 102", f"  .amdhsa_accum_offset {NV}",
               "  .amdhsa_group_segment_fixed_size 0", "  .amdhsa_kernarg_size 56", "  .amdhsa_user_sgpr_count 2",
               "  .amdhsa_user_sgpr_kernarg_segment_ptr 1", "  .amdhsa_system_sgpr_workgroup_id_x 1",
               "  .amdhsa_float_denorm_mode_32 3", ".end_amdhsa_kernel"]
        log = []
        m1, n1 = fix_hazards(self.o + A.o, log)
        m2, n2 = fix_hazards(B.o, log)
        ool, n3 = fix_hazards(self.ool)
        main = m1 + m2 + ["L_end:", "    s_endpgm"]
        wrap = lambda ls: "\n".join(hdr + ls + ool + ftr) + "\n"
        if self.opts.get("align", 1):
            main, nw, nn = align(main, wrap, self.opts.get("minrun", 99))
            sys.stderr.write(f"hazard nops {n1}+{n2}+{n3}, widened {nw}, align nops {nn}\n")
        if self.opts.get("hlog"):
            for e in log: sys.stderr.write(str(e) + "\n")
        return wrap(main)

if __name__ == "__main__":
    prof = None; opts = {}
    for x in sys.argv[1:]:
        if x.startswith("--prof="): prof = x[7:].split(",")
        elif x.startswith("--"):
            k, v = x[2:].split("="); opts[k] = int(v) if v.lstrip("-").isdigit() else v
    out = [x for x in sys.argv[1:] if not x.startswith("--")][0]
    g = Gen(prof, opts); txt = g.build()
    if prof: txt = txt + "; stamps: " + ",".join(prof) + "\n"
    open(out, "w").write(txt)
```

```python
import sys, copy
from asmlib import fix_hazards, align
KN = "standalone__cross_network_dcn_v2__recsys_kernel"
L = 6
XB = 131072; HB = 147456; BIASB = 155648; LDS_BYTES = 161792
TAGS = [1, 1, 0, 0, 1, 1]

vLANE = 1; vA = 2; vE = 3; vV = [4, 5, 6, 7]; vU = [8, 9, 10, 11]
vXW = 12; vXR = [None, 13, 14, 15]; vHW = 16; vHR = [None, 17, 18, 19]
vBI = 20; vLIN = 21; vT = [22, 23, 24, 25]; vJ = 0
ACC1 = 26; ACC2 = 34; XF = 50; X0F = 66; PK = 82; HP = 90; RX = 94; TM = ACC2; SP = HP; T4 = 98
NV = 104
aV = 0; aU = 64; aX = 128; aH = 128; aS = 128; NS = 6; NA = 152
sX0 = 4; sV = 8; sU = 12; sO = 16; sE = 20; sD = 24; sB = 28; sW = 32
sKA = 36
sWV = 50; sHF = 51; sRB = 52; sXCC = 53; sMODE = 54
sVG = [55, 56, 57, 58]; sUG = [59, 60, 61, 62]; sSO = [63, 64]; sLB = 65
sMY = [66, 67]; sWS = 68; sXH = 69
sCNT = 70; sT = [71, 72, 73, 74, 75, 76, 77, 78]; sPTMP = 79
sSTAMP = 80

def vr(b, n): return f"v[{b}:{b+n-1}]"
def ar(b, n): return f"a[{b}:{b+n-1}]"
def sr(b, n): return f"s[{b}:{b+n-1}]"

class Gen:
    def __init__(self, prof=None, opts=None):
        self.o = []; self.ool = []; self.vm = []; self.lg = []; self.vmdone = 0; self.lgdone = 0
        self.prof = prof; self.opts = opts or {}; self.names = []
        self.pw = []; self.nso = 0; self.nst = 0; self.X = 0
        self.pat = self.opts.get("pat", "BBBB/BBBB/DBDB/DBDB"); self.lag = self.opts.get("lag", 4)
    def fork(self, X):
        g = copy.copy(self); g.o = []; g.vm = list(self.vm); g.lg = list(self.lg); g.pw = list(self.pw); g.X = X
        return g
    def a(self, s): self.o.append("    " + s)
    def x(self, s): self.ool.append("    " + s)
    def xl(self, s): self.ool.append(s + ":")
    def lab(self, s): self.o.append(s + ":")
    def c(self, s): self.o.append("    ; " + s)
    def vmop(self, s, tag): self.vm.append(tag); self.a(s)
    def lgop(self, s, tag): self.lg.append(tag); self.a(s)
    def _last(self, lst, tag):
        idx = [i for i, t in enumerate(lst) if t == tag]
        return idx[-1] if idx else None
    def wvm(self, tag):
        i = self._last(self.vm, tag)
        if i is not None: self.wvmi(i)
    def wvmi(self, i):
        if i < self.vmdone: return
        n = min(len(self.vm) - 1 - i, 63); self.vmdone = len(self.vm) - n
        self.a(f"s_waitcnt vmcnt({n})")
    def wlg(self, tag):
        i = self._last(self.lg, tag)
        if i is None or i < self.lgdone: return
        n = min(len(self.lg) - 1 - i, 15); self.lgdone = len(self.lg) - n
        self.a(f"s_waitcnt lgkmcnt({n})")
    def wlg0(self):
        if self.lgdone < len(self.lg): self.lgdone = len(self.lg); self.a("s_waitcnt lgkmcnt(0)")
    def bar(self, name=None):
        self.wlg0()
        if name: self.stamp(name + "a")
        self.a("s_barrier")
        if name: self.stamp(name + "b")
    def stamp(self, name):
        nm = name + "AB"[self.X] if False else name
        if self.prof and nm in self.prof:
            r = sSTAMP + 2 * self.prof.index(nm)
            assert r + 1 <= 101
            self.a(f"s_memrealtime s[{r}:{r+1}]" if nm.startswith("rt") else f"s_memtime s[{r}:{r+1}]")
    def rec(self, name, src):
        if self.prof and name in self.prof:
            self.a(f"s_mov_b32 s{sSTAMP + 2*self.prof.index(name)}, {src}")
    def prio(self, p):
        m = self.opts.get("prio", 1)
        if m == 1: self.a(f"s_setprio {p}")
        if m == 2: self.a(f"s_setprio {2-p}")
    def dma(self, kind, l, g, pat=None):
        if l >= L: return []
        if self.opts.get("dma") == "off" and l >= 2: return []
        pat = pat or self.pat.split("/")[g]
        so = sSO[self.nso & 1]; self.nso += 1
        base, sg, vv, srd = (0, sVG, vV, sV) if kind == "V" else (16384, sUG, vU, sU)
        tag = f"{kind}{l}" + "ab"[g >> 1]
        items = []
        for j in range(4):
            def emit(j=j):
                while self.pw and len(self.vm) - self.pw[0][0] > self.lag: self.pw.pop(0)[1]()
                if j == 0:
                    self.a(f"s_add_u32 m0, s{sLB}, {base+g*4096}"); self.a(f"s_add_u32 s{so}, s{sg[g]}, {l*131072}")
                if pat[j % len(pat)] in "DBC":
                    self.vmop(f"buffer_load_dwordx4 v{vv[j]}, {sr(srd,4)}, s{so} offen offset:{1024*j} lds", tag)
                    for q in range({"D": 0, "B": 1, "C": 2}[pat[j % len(pat)]]): self.vmop(f"buffer_load_dword v{vJ}, off, {sr(sB,4)}, 0", "gap")
                else:
                    nv = pat[:j].count("V")
                    st = aS + 4 * ((g if g < 3 else 3 + nv) if pat.count("V") == 1 or g == 3 else (self.nst % 3)); self.nst += 1
                    assert st + 4 <= aS + 4*NS
                    self.vmop(f"buffer_load_dwordx4 {ar(st,4)}, v{vv[j]}, {sr(srd,4)}, s{so} offen offset:{1024*j}", tag)
                    vi = len(self.vm) - 1
                    def wr():
                        self.wvmi(vi)
                        self.lgop(f"ds_write_b128 v{vLIN}, {ar(st,4)} offset:{base+g*4096+j*1024}", "sw")
                    self.pw.append((vi, wr, g))
            items.append(emit)
        return items
    def flush(self, keep3=False):
        while self.pw and not (keep3 and self.pw[0][2] == 3): self.pw.pop(0)[1]()
    def rdV(self, g):
        return [lambda j=j: self.lgop(f"ds_read_b128 {ar(aV+4*(4*g+j),4)}, v{vA} offset:{g*4096+j*1024}", f"rV{g}_{j>>1}") for j in range(4)]
    def rdU(self, g):
        return [lambda j=j: self.lgop(f"ds_read_b128 {ar(aU+4*(4*g+j),4)}, v{vA} offset:{16384+g*4096+j*1024}", f"rU{g}") for j in range(4)]
    def mf1(self, ks, fill=None):
        for ta in range(2):
            b = vr(PK + 4*ks, 4) if ks < 2 else ar(aX + 4*(ks-2), 4)
            d = vr(ACC1 + 4*ta, 4)
            self.a(f"v_mfma_f32_16x16x32_bf16 {d}, {ar(aV+4*(2*ks+ta),4)}, {b}, {'0' if ks == 0 else d}")
            if fill: self.run(fill[ta])
    def mf2(self, P, kr, fill=None):
        for ta in range(2):
            b = vr(HP, 4) if kr == 0 else ar(aH + 4*(kr-1), 4)
            d = vr(ACC2 + 8*P + 4*ta, 4)
            idx = ((kr >> 1)*2 + P)*4 + (kr & 1)*2 + ta
            self.a(f"v_mfma_f32_16x16x32_bf16 {d}, {ar(aU+4*idx,4)}, {b}, {d}")
            if fill: self.run(fill[ta])
    def epi(self, P, l, pk=False):
        r = []
        if pk:
            for e in range(4):
                q = 8*P + 2*e
                r.append(lambda q=q: self.a(f"v_pk_fma_f32 {vr(ACC2+q,2)}, {vr(X0F+q,2)}, {vr(ACC2+q,2)}, {vr(XF+q,2)}"))
        else:
            for e in range(8):
                q = 8*P + e
                r.append(lambda q=q: self.a(f"v_fma_f32 v{ACC2+q}, v{X0F+q}, v{ACC2+q}, v{XF+q}"))
        for e in range(4):
            q = 8*P + 2*e
            r.append(lambda q=q: self.a(f"v_cvt_pk_bf16_f32 v{PK+q//2}, v{ACC2+q}, v{ACC2+q+1}"))
        if l < L-1: r.append(lambda: self.lgop(f"ds_write_b128 v{vXW}, {vr(PK+4*P,4)} offset:{P*1024}", "xw"))
        else: r.append(lambda: self.lgop(f"ds_write_b128 v{vT[P]}, {vr(PK+4*P,4)}", "xw"))
        return r
    def unpack(self, dst, src, n):
        r = []
        for i in range(n):
            r.append(lambda i=i: self.a(f"v_lshlrev_b32 v{dst+2*i}, 16, v{src+i}"))
            r.append(lambda i=i: self.a(f"v_and_b32 v{dst+2*i+1}, 0xffff0000, v{src+i}"))
        return r
    def bias_rd(self, l):
        for k in range(4):
            self.lgop(f"ds_read_b128 {vr(ACC2+4*k,4)}, v{vBI} offset:{l*256 + (k>>1)*128 + (k&1)*16}", "bias")
    def run(self, lst):
        for f in lst: f()
    def mix(self, *lists):
        lists = [list(x) for x in lists]
        while any(lists):
            for x in lists:
                if x: x.pop(0)()
    def srd(self, r, p, n, bias=0):
        if bias:
            self.a(f"s_sub_u32 s{r}, s{p}, {bias}"); self.a(f"s_subb_u32 s{r+1}, s{p+1}, 0")
        else:
            self.a(f"s_mov_b32 s{r}, s{p}"); self.a(f"s_mov_b32 s{r+1}, s{p+1}")
        self.a(f"s_mov_b32 s{r+2}, {n+bias}"); self.a(f"s_mov_b32 s{r+3}, 0x20000")
    def poll(self, l):
        self.vmop(f"buffer_load_dwordx4 {vr(RX,4)}, v{vE}, {sr(sE,4)}, s{sMY[l&1]} offen sc1", f"poll{l}")
    def send(self, l, u=None):
        a = self.a; u = u if u is not None else f"{self.X}{l}"
        a(f"s_xor_b32 s{sPTMP}, s{sMY[l&1]}, 512")
        for k in range(4): a(f"v_cvt_pk_bf16_f32 v{SP+k}, v{ACC1+2*k}, v{ACC1+2*k+1}")
        for k in range(4): a(f"v_or_b32 v{SP+k}, 1, v{SP+k}" if TAGS[l] else f"v_and_b32 v{SP+k}, -2, v{SP+k}")
        if l == 0: self.handshake()
        self.stamp(f"snd{u}")
        a(f"s_cmp_eq_u32 s{sMODE}, 0"); a(f"s_cbranch_scc1 L_ss{u}")
        self.vmop(f"buffer_store_dwordx4 {vr(SP,4)}, v{vE}, {sr(sE,4)}, s{sPTMP} offen", "st")
        self.lab(f"L_sd{u}")
        self.xl(f"L_ss{u}")
        self.x(f"buffer_store_dwordx4 {vr(SP,4)}, v{vE}, {sr(sE,4)}, s{sPTMP} offen sc1")
        self.x("s_nop 1"); self.x(f"s_branch L_sd{u}")
    def chk_ops(self, l):
        R = RX; t0 = vT[3]
        if TAGS[l]:
            return [f"v_bitop3_b32 v{t0}, v{R}, v{R+1}, v{R+2} bitop3:0x80", f"v_bitop3_b32 v{t0}, v{t0}, v{R+3}, 1 bitop3:0x80", f"v_cmp_eq_u32 vcc, 0, v{t0}"]
        return [f"v_or3_b32 v{t0}, v{R}, v{R+1}, v{R+2}", f"v_bitop3_b32 v{t0}, v{t0}, 1, v{R+3} bitop3:0xc8", f"v_cmp_ne_u32 vcc, 0, v{t0}"]
    def check_post(self, l, d=None):
        u = f"{self.X}{l}"; x = self.x; a = self.a
        self.wvm(f"poll{l}")
        self.stamp(f"chk{u}")
        if self.opts.get("dbgcnt"): a(f"s_mov_b32 s{sCNT}, 0")
        for s in self.chk_ops(l): a(s)
        a(f"s_cbranch_vccnz L_rt{u}")
        self.lab(f"L_got{u}")
        self.stamp(f"got{u}")
        if self.opts.get("dbgcnt"): self.rec(f"cnt{l}", f"s{sCNT}")
        self.xl(f"L_rt{u}")
        x(f"s_mov_b32 s{sCNT}, 0")
        self.xl(f"L_rl{u}")
        x(f"buffer_load_dwordx4 {vr(RX,4)}, v{vE}, {sr(sE,4)}, s{sMY[l&1]} offen sc1")
        x(f"s_add_u32 s{sCNT}, s{sCNT}, 1"); x(f"s_cmp_gt_u32 s{sCNT}, 0x200000")
        x("s_waitcnt vmcnt(0)")
        x(f"s_cbranch_scc1 L_got{u}")
        for s in self.chk_ops(l): x(s)
        x(f"s_cbranch_vccnz L_rl{u}")
        x(f"s_branch L_got{u}")
        ops = []
        for h in range(2):
            ops += self.unpack(T4, RX+2*h, 2)
            if self.opts.get("pkadd", 0):
                for k in range(2): ops.append(lambda k=k, h=h: a(f"v_pk_add_f32 {vr(T4+2*k,2)}, {vr(T4+2*k,2)}, {vr(ACC1+4*h+2*k,2)}"))
            else:
                for k in range(4): ops.append(lambda k=k, h=h: a(f"v_add_f32 v{T4+k}, v{T4+k}, v{ACC1+4*h+k}"))
            for k in range(2): ops.append(lambda k=k, h=h: a(f"v_cvt_pk_bf16_f32 v{HP+2*h+k}, v{T4+2*k}, v{T4+2*k+1}"))
        ops.append(lambda: self.lgop(f"ds_write_b128 v{vHW}, {vr(HP,4)}", "hw"))
        if d is None:
            self.run(ops); self.bias_rd(l); return
        d = list(d); st = self.opts.get("vper", 10)
        while ops:
            self.run(ops[:st]); ops = ops[st:]
            if ops and d: d.pop(0)()
        self.run(d)
    def x_reads(self):
        return [lambda ks=ks: self.lgop(f"ds_read_b128 {ar(aX+4*(ks-2),4)}, v{vXR[ks>>1]} offset:{(ks&1)*1024}", f"x{ks}") for ks in range(2, 8)]
    def h_reads(self):
        for kr in range(1, 4):
            self.lgop(f"ds_read_b128 {ar(aH+4*(kr-1),4)}, v{vHR[kr]}", f"h{kr}")

    def g2_phase(self, l, early=None, mid=None, late=None):
        early = list(early or []); mid = list(mid or []); late = list(late or [])
        def take(q): return [q[0:1], q[1:2]]
        self.h_reads()
        self.mf2(0, 0, take(early)); self.mf2(1, 0, take(early[2:]))
        self.wlg("h1"); self.mf2(0, 1, take(early[4:]))
        self.wlg("h2"); self.mf2(0, 2, take(early[6:] + mid))
        self.wlg("h3"); self.mf2(0, 3, take(mid[2:]))
        self.flush()
        e0 = self.epi(0, l); e1 = self.epi(1, l, pk=self.opts.get("pkfma", 1))
        u = f"{self.X}{l}"
        self.stamp(f"g2a{u}")
        self.mf2(1, 1); self.mf2(1, 2, [late[0:2], late[2:4]])
        self.stamp(f"g2b{u}")
        self.mf2(1, 3, [e0[0:2], e0[2:-1]])
        self.stamp(f"g2c{u}")
        e0[-1]()
        self.stamp(f"g2d{u}")
        self.run(e1[:-1])
        self.stamp(f"g2e{u}")
        e1[-1]()
        self.stamp(f"g2f{u}")
    def g1_phase(self, l, jitV=False, extra=None):
        xr = self.x_reads(); extra = list(extra or [])
        if jitV:
            rv = self.rdV(2) + self.rdV(3)
            self.run(xr[0:2])
            q = [xr[2], rv[0], rv[1], xr[3], rv[2], rv[3], xr[4], rv[4], rv[5], xr[5], rv[6], rv[7]]
            for ks in range(8):
                self.wlg(f"rV{ks>>1}_{ks&1}")
                if ks >= 2: self.wlg(f"x{ks}")
                self.mf1(ks, [q[0:2], q[2:3]]); q = q[3:]
        else:
            self.run(xr)
            for ks in range(8):
                if ks >= 2: self.wlg(f"x{ks}")
                self.mf1(ks, [extra[0:1], extra[1:2]]); extra = extra[2:]
            self.run(extra)
        self.send(l)

    def prologue(self):
        a = self.a; T = [X0F + i for i in range(10)]
        a(f"s_load_dwordx8 {sr(sKA,8)}, s[0:1], 0")
        a(f"s_load_dwordx4 {sr(sKA+8,4)}, s[0:1], 32")
        a(f"s_load_dwordx2 {sr(sKA+12,2)}, s[0:1], 48")
        a("s_cmp_ge_u32 s2, 256"); a("s_cbranch_scc1 L_end")
        self.stamp("start"); self.stamp("rt0")
        a(f"v_lshrrev_b32 v{T[0]}, 6, v0"); a(f"v_and_b32 v{vLANE}, 63, v0")
        a(f"s_lshr_b32 s{sT[0]}, s2, 3")
        a(f"v_readfirstlane_b32 s{sWV}, v{T[0]}")
        a(f"s_lshl_b32 s{sT[0]}, s{sT[0]}, 3"); a(f"s_add_u32 s{sT[6]}, s{sT[0]}, s{sWV}")
        if self.opts.get("codepf", 1):
            a(f"s_getpc_b64 {sr(sX0,2)}")
            a(f"s_and_b32 s{sX0}, s{sX0}, 0xffffff00")
            a(f"s_lshl_b32 s{sT[1]}, s{sT[6]}, 7"); a(f"v_mov_b32 v{T[1]}, s{sT[1]}")
            a(f"s_cmp_ge_u32 s{sT[1]}, CODE_BYTES"); a("s_cbranch_scc1 L_nocpf")
            a("s_mov_b64 exec, 1")
            a(f"global_load_dword v{vJ}, v{T[1]}, {sr(sX0,2)}")
            a("s_mov_b64 exec, -1")
            self.lab("L_nocpf")
        a(f"s_and_b32 s{sWS}, s{sWV}, 3"); a(f"s_lshr_b32 s{sXH}, s{sWV}, 2")
        a(f"v_lshrrev_b32 v{T[6]}, 2, v{vLANE}"); a(f"v_and_b32 v{T[7]}, 3, v{vLANE}")
        a(f"v_lshlrev_b32 v{T[9]}, 7, v{T[7]}"); a(f"v_lshl_add_u32 v{vT[3]}, v{T[6]}, 17, v{T[9]}")
        a(f"s_lshl_b32 s{sT[6]}, s{sT[6]}, 9"); a(f"s_add_u32 s{sT[6]}, s{sT[6]}, 3072")
        a(f"s_bfe_u32 s{sHF}, s2, 0x10003")
        a(f"s_lshr_b32 s{sT[0]}, s2, 4"); a(f"s_lshl_b32 s{sT[0]}, s{sT[0]}, 3"); a(f"s_and_b32 s{sRB}, s2, 7"); a(f"s_or_b32 s{sRB}, s{sRB}, s{sT[0]}")
        a(f"s_lshl_b32 s{sLB}, s{sWS}, 15")
        a(f"v_lshrrev_b32 v{T[0]}, 4, v{vLANE}")
        a(f"s_movk_i32 s{sPTMP}, 0x78"); a(f"v_lshlrev_b32 v{T[1]}, 1, v{T[0]}"); a(f"v_lshrrev_b32 v{T[2]}, v{T[1]}, s{sPTMP}")
        a(f"v_xor_b32 v{T[2]}, v{T[2]}, v{vLANE}"); a(f"v_and_b32 v{T[2]}, 3, v{T[2]}"); a(f"v_lshlrev_b32 v{T[2]}, 4, v{T[2]}")
        a(f"v_bfe_u32 v{T[1]}, v{vLANE}, 2, 2"); a(f"v_lshl_add_u32 v{T[1]}, v{T[0]}, 3, v{T[1]}")
        a(f"v_lshl_add_u32 v{T[3]}, v{T[1]}, 10, v{T[2]}"); a(f"v_lshl_add_u32 v{T[4]}, v{T[1]}, 8, v{T[2]}")
        for j in range(4):
            a(f"v_add_u32 v{vV[j]}, {(j&1)*4096 + (j>>1)*64 - 1024*j + 3072}, v{T[3]}")
        a(f"v_add_u32 v{T[5]}, {64 - 1024 + 3072}, v{T[3]}")
        a(f"s_lshl_b32 s{sT[2]}, s{sHF}, 9"); a(f"s_add_u32 s{sT[3]}, s{sLB}, s{sT[2]}")
        a(f"s_lshl_b32 s{sT[4]}, s{sRB}, 15"); a(f"s_add_u32 s{sT[4]}, s{sT[4]}, s{sT[2]}")
        a(f"s_lshl_b32 s{sT[5]}, s{sXH}, 12"); a(f"s_add_u32 s{sT[4]}, s{sT[4]}, s{sT[5]}")
        a(f"s_lshl_b32 s{sT[5]}, s{sWS}, 7"); a(f"s_add_u32 s{sT[7]}, s{sT[4]}, s{sT[5]}")
        a(f"s_lshr_b32 s{sT[5]}, s{sWS}, 1"); a(f"s_lshl_b32 s{sT[5]}, s{sT[5]}, 13"); a(f"s_add_u32 s{sT[4]}, s{sT[4]}, s{sT[5]}")
        a(f"s_and_b32 s{sT[5]}, s{sWS}, 1"); a(f"s_lshl_b32 s{sT[5]}, s{sT[5]}, 11"); a(f"s_add_u32 s{sMY[0]}, s{sT[4]}, s{sT[5]}")
        a(f"s_add_u32 s{sMY[1]}, s{sMY[0]}, 16384")
        for g in range(4):
            a(f"s_xor_b32 s{sT[4]}, s{sWS}, {g}"); a(f"s_lshl_b32 s{sT[4]}, s{sT[4]}, 7"); a(f"s_add_u32 s{sVG[g]}, s{sT[3]}, s{sT[4]}")
        a(f"v_lshrrev_b32 v{T[8]}, 5, v{vLANE}"); a(f"v_and_b32 v{vE}, 31, v{vLANE}"); a(f"v_lshlrev_b32 v{vE}, 4, v{vE}")
        a(f"v_lshl_add_u32 v{vE}, v{T[8]}, 10, v{vE}")
        for r in range(4): a(f"v_mov_b32 v{TM+r}, 0")
        a(f"v_mov_b32 v{vT[2]}, s2"); a(f"v_xor_b32 v{vT[2]}, 8, v{vT[2]}")
        a(f"s_lshl_b32 s{sT[5]}, s{sWS}, 12"); a(f"s_lshl_b32 s{sT[4]}, s{sXH}, 11"); a(f"s_add_u32 s{sT[5]}, s{sT[5]}, s{sT[4]}")
        a(f"s_add_u32 m0, s{sT[5]}, {XB}")
        a(f"v_lshrrev_b32 v{T[6]}, 3, v{vLANE}"); a(f"v_and_b32 v{T[7]}, 7, v{vLANE}")
        a(f"v_lshlrev_b32 v{T[8]}, 4, v{T[7]}"); a(f"v_lshl_add_u32 v{T[8]}, v{T[6]}, 10, v{T[8]}")
        a(f"s_lshl_b32 s{sT[5]}, s{sWS}, 7"); a(f"s_add_u32 s{sT[5]}, s{sT[5]}, s{sT[2]}"); a(f"s_mul_i32 s{sT[3]}, s{sXH}, 3072"); a(f"s_add_u32 s{sT[5]}, s{sT[5]}, s{sT[3]}")
        a("s_waitcnt lgkmcnt(0)")
        self.stamp("karg")
        pf = self.opts.get("pf", 1)
        def pfl(lo):
            if not pf or not lo: return
            a(f"s_mov_b64 exec, {lo}")
            self.vmop(f"buffer_load_dword v{vJ}, v{vT[3]}, {sr(sV,4)}, s{sT[6]} offen", "pf")
            self.vmop(f"buffer_load_dword v{vJ}, v{vT[3]}, {sr(sU,4)}, s{sT[6]} offen", "pf")
            a("s_mov_b64 exec, -1")
        self.pfl = pfl
        masks = [int(m, 16) for m in str(self.opts.get("pfm", "f,fffff0")).split(",")]
        self.pfmasks = masks
        self.srd(sX0, sKA+0, 4096*1024, 3072)
        self.vmop(f"buffer_load_dwordx4 v{vV[0]}, {sr(sX0,4)}, s{sT[7]} offen lds", "x0")
        self.vmop(f"buffer_load_dwordx4 v{T[5]}, {sr(sX0,4)}, s{sT[7]} offen offset:1024 lds", "x0")
        self.srd(sV, sKA+4, 6*131072, 3072)
        self.srd(sU, sKA+2, 6*131072, 3072)
        pfl(masks[0])
        self.srd(sB, sKA+6, 6*1024)
        self.srd(sD, sKA+10, 256)
        a("s_mov_b64 exec, 0xffffff")
        self.vmop(f"buffer_load_dwordx4 {vr(TM+4,4)}, v{T[8]}, {sr(sB,4)}, s{sT[5]} offen", "bias")
        a("s_mov_b64 exec, 1")
        self.vmop(f"buffer_load_ubyte v{vJ}, v{vT[2]}, {sr(sD,4)}, 0 offen", "touch")
        a("s_mov_b64 exec, -1")
        self.srd(sO, sKA+8, 4096*1024)
        bt = self.opts.get("boxtouch", 1)
        a(f"v_and_b32 v{RX+1}, 3, v{vLANE}"); a(f"v_lshlrev_b32 v{RX+1}, 7, v{RX+1}")
        a(f"v_bfe_u32 v{RX}, v{vLANE}, 2, 1"); a(f"v_lshl_add_u32 v{RX+1}, v{RX}, 10, v{RX+1}")
        a(f"v_bfe_u32 v{RX}, v{vLANE}, 3, 1"); a(f"v_lshl_add_u32 v{RX+1}, v{RX}, 14, v{RX+1}")
        def box(m):
            a(f"s_mov_b64 exec, {m}")
            self.vmop(f"buffer_load_dword v{vJ}, v{RX+1}, {sr(sO,4)}, s{sMY[0]} offen", "bt")
            a("s_mov_b64 exec, -1")
        self.box = box
        if bt == 1: box(0xffff)
        if bt == 2: box(0xff)
        if self.opts.get("clrearly", 1):
            self.vmop(f"buffer_store_dwordx4 {vr(TM,4)}, v{vE}, {sr(sO,4)}, s{sMY[0]} offen", "clr")
        self.stamp("i_x0")
        a("s_barrier")
        a(f"s_lshl_b32 s{sT[4]}, s{sXH}, 13"); a(f"s_add_u32 s{sT[4]}, s{sT[4]}, s{sLB}")
        a(f"s_cmp_eq_u32 s{sXH}, 0")
        a(f"s_cselect_b32 s{sT[0]}, s{sVG[0]}, s{sVG[2]}"); a(f"s_cselect_b32 s{sT[1]}, s{sVG[1]}, s{sVG[3]}")
        def v0grp(k):
            a(f"s_add_u32 m0, s{sT[4]}, {k*4096}"); a("s_nop 0")
            for j in range(4):
                self.vmop(f"buffer_load_dwordx4 v{vV[j]}, {sr(sV,4)}, s{sT[k]} offen offset:{1024*j} lds", "V0")
                if (j & 1) and self.opts.get("pgap", 1): self.vmop(f"buffer_load_dword v{vJ}, off, {sr(sB,4)}, 0", "gap")
        v0grp(0)
        self.stamp("i_v0a")
        self.srd(sW, sKA+12, 8 << 20)
        self.srd(sE, sKA+8, 4096*1024)
        if self.opts.get("stag"):
            a(f"v_mov_b32 v{RX+2}, s{sSTAMP}"); a(f"s_lshl_b32 s90, s2, 2"); a("s_add_u32 s90, s90, 0x700000"); a(f"v_mov_b32 v{RX+3}, 0")
            a("s_mov_b64 exec, 1"); a(f"buffer_store_dword v{RX+2}, v{RX+3}, {sr(sW,4)}, s90 offen sc1"); a("s_mov_b64 exec, -1")
        a(f"s_getreg_b32 s{sXCC}, hwreg(HW_REG_XCC_ID)"); a(f"s_and_b32 s{sXCC}, s{sXCC}, 15"); a(f"s_or_b32 s{sXCC}, s{sXCC}, 16")
        a(f"s_and_b32 s{sT[0]}, s{sWS}, 1"); a(f"s_lshl_b32 s{sT[0]}, s{sT[0]}, 6"); a(f"s_xor_b32 s{sT[3]}, s{sT[0]}, 64")
        for j in range(4):
            a(f"v_add_u32 v{vU[j]}, {(j&1)*1024 - 1024*j + 3072}, v{T[4]}")
            a(f"v_add_u32 v{vU[j]}, s{sT[3] if j >> 1 else sT[0]}, v{vU[j]}")
        a(f"s_lshl_b32 s{sT[0]}, s{sHF}, 16"); a(f"s_lshl_b32 s{sT[5]}, s{sWS}, 14"); a(f"s_add_u32 s{sT[0]}, s{sT[0]}, s{sT[5]}")
        for g in range(4):
            pp, P = g >> 1, g & 1
            a(f"s_xor_b32 s{sT[5]}, s{sWS}, {2*pp}"); a(f"s_and_b32 s{sT[5]}, s{sT[5]}, 2"); a(f"s_lshl_b32 s{sT[5]}, s{sT[5]}, 6")
            a(f"s_add_u32 s{sT[5]}, s{sT[5]}, {P*8192}"); a(f"s_add_u32 s{sUG[g]}, s{sT[0]}, s{sT[5]}")
        a(f"v_bfe_u32 v{T[1]}, v{vLANE}, 2, 2"); a(f"v_lshlrev_b32 v{T[1]}, 1, v{T[1]}"); a(f"v_lshrrev_b32 v{T[2]}, v{T[1]}, s{sPTMP}")
        a(f"v_xor_b32 v{T[2]}, v{T[2]}, v{T[0]}"); a(f"v_and_b32 v{T[2]}, 3, v{T[2]}"); a(f"v_lshlrev_b32 v{T[2]}, 4, v{T[2]}")
        a(f"v_and_b32 v{T[1]}, 15, v{vLANE}"); a(f"v_lshl_add_u32 v{T[2]}, v{T[1]}, 6, v{T[2]}")
        a(f"v_add_u32 v{vA}, s{sLB}, v{T[2]}")
        a(f"s_lshl_b32 s{sT[5]}, s{sWS}, 12"); a(f"s_lshl_b32 s{sT[0]}, s{sXH}, 11"); a(f"s_add_u32 s{sT[5]}, s{sT[5]}, s{sT[0]}"); a(f"s_add_u32 s{sT[5]}, s{sT[5]}, {XB}")
        a(f"v_add_u32 v{T[3]}, s{sT[5]}, v{T[2]}")
        a(f"v_lshlrev_b32 v{T[1]}, 4, v{vLANE}")
        a(f"v_add_u32 v{vXW}, s{sT[5]}, v{T[1]}"); a(f"v_add_u32 v{vLIN}, s{sLB}, v{T[1]}")
        for g in range(1, 4): a(f"v_xor_b32 v{vXR[g]}, {g*4096}, v{vXW}")
        a(f"s_lshl_b32 s{sT[5]}, s{sWV}, 10"); a(f"s_add_u32 s{sT[5]}, s{sT[5]}, {HB}")
        a(f"v_add_u32 v{vHW}, s{sT[5]}, v{T[1]}")
        for g in range(1, 4): a(f"v_xor_b32 v{vHR[g]}, {g*1024}, v{vHW}")
        a(f"s_mul_i32 s{sT[5]}, s{sWS}, 1536"); a(f"s_add_u32 s{sT[5]}, s{sT[5]}, {BIASB}")
        a(f"v_lshlrev_b32 v{vBI}, 5, v{T[0]}"); a(f"v_add_u32 v{vBI}, s{sT[5]}, v{vBI}")
        a(f"s_mul_i32 s{sT[0]}, s{sXH}, 768"); a(f"s_add_u32 s{sT[5]}, s{sT[5]}, s{sT[0]}")
        a(f"v_lshlrev_b32 v{T[7]}, 5, v{T[7]}"); a(f"v_lshl_add_u32 v{T[7]}, v{T[6]}, 8, v{T[7]}"); a(f"v_add_u32 v{vT[0]}, s{sT[5]}, v{T[7]}")
        def xproc():
            self.wvm("x0")
            self.stamp("x0")
            for P in range(2):
                self.lgop(f"ds_read_b128 {vr(PK+4*P,4)}, v{T[3]} offset:{P*1024}", "x0r")
            self.wvm("bias")
            self.run(self.unpack(TM+8, TM+4, 4))
            self.wlg("x0r")
            for P in range(2):
                self.lgop(f"ds_write_b128 v{vXW}, {vr(PK+4*P,4)} offset:{P*1024}", "xw")
            a("s_mov_b64 exec, 0xffffff")
            self.lgop(f"ds_write_b128 v{vT[0]}, {vr(TM+8,4)}", "bw")
            self.lgop(f"ds_write_b128 v{vT[0]}, {vr(TM+12,4)} offset:16", "bw")
            a("s_mov_b64 exec, -1")
            self.run(self.unpack(X0F, PK, 8))
        xp = self.opts.get("xproc", 0)
        if xp == 0: xproc()
        v0grp(1)
        self.stamp("i_v0b")
        if not self.opts.get("clrearly", 1):
            self.vmop(f"buffer_store_dwordx4 {vr(TM,4)}, v{vE}, {sr(sO,4)}, s{sMY[0]} offen", "clr")
        if bt == 3: box(0xffff)
        if bt == 4: box(0xff)
        pfl(masks[1])
        if xp == 1: xproc()
        self.wvm("clr")
        a("s_barrier")
        self.stamp("issued")
        a(f"s_cmp_lg_u32 s{sWV}, 0"); a("s_cbranch_scc0 L_flag")
        self.lab("L_noflag")
        self.vmop(f"buffer_store_dwordx4 {vr(TM,4)}, v{vE}, {sr(sO,4)}, s{sMY[1]} offen", "clr1")
        a(f"s_xor_b32 s{sT[3]}, s2, 8"); a(f"s_and_b32 s{sT[2]}, s{sT[3]}, 0xfc"); a(f"s_and_b32 s{sT[3]}, s{sT[3]}, 3"); a(f"s_lshl_b32 s{sT[3]}, s{sT[3]}, 3")
        a(f"s_cmp_lg_u32 s{sXH}, 0"); a("s_cbranch_scc1 L_progB")
        self.xl("L_flag")
        self.x(f"v_mov_b32 v{RX}, s2"); self.x(f"v_mov_b32 v{vT[1]}, s{sXCC}"); self.x("s_mov_b64 exec, 1")
        self.x(f"buffer_store_byte v{vT[1]}, v{RX}, {sr(sD,4)}, 0 offen"); self.x("s_mov_b64 exec, -1"); self.x("s_branch L_noflag")

    def clr1_flag(self):
        self.a(f"s_load_dword s{sT[1]}, {sr(sKA+10,2)}, s{sT[2]}")
    def bias_ops(self, l):
        return [lambda k=k: self.lgop(f"ds_read_b128 {vr(ACC2+4*k,4)}, v{vBI} offset:{l*256 + (k>>1)*128 + (k&1)*16}", "bias") for k in range(4)]
    def light1(self, kind, l, rd, lp):
        d = self.dma(kind, l, 0) + self.dma(kind, l, 1)
        pp = self.opts.get("pollat", 6); r0 = self.opts.get("rd1at", 0)
        rd = list(rd) + self.bias_ops(lp)
        per = self.opts.get("rd1per", 4)
        for k in range(8):
            if k == pp: self.poll(lp)
            if k < len(d): d[k]()
            if r0 <= k: self.run(rd[:per]); rd = rd[per:]
            self.stamp(f"l1{self.X}{lp}_{k}")
        if pp >= 8: self.poll(lp)
    def light2(self, kind, l, rd, lp):
        d = self.dma(kind, l, 2) + self.dma(kind, l, 3) + [lambda: None] * 8
        p2 = self.opts.get("pre2", 3); rd = list(rd)
        self.run(d[:p2])
        self.run(rd[:4]); d[p2](); self.run(rd[4:]); d[p2+1]()
        self.stamp(f"pd{self.X}{lp}")
        self.check_post(lp, d[p2+2:p2+3])
        self.stamp(f"po{self.X}{lp}")
        ux = self.unpack(XF, PK, 8)
        self.run(ux[:8]); self.run(d[p2+3:p2+4]); self.run(ux[8:])
        self.wvm(f"{kind}{l}a")
        self.run(d[p2+4:8])
        self.stamp(f"en{self.X}{lp}")
    def progA(self):
        a = self.a
        self.wvm("V0"); self.stamp("v0l"); self.wvm("clr")
        self.bar("b0")
        self.prio(2)
        xr = self.x_reads(); rv = [f for g in range(4) for f in self.rdV(g)]
        self.run(rv[0:4]); self.run(xr[0:2]); self.run(rv[4:8]); self.run(xr[2:4])
        q = rv[8:12] + xr[4:6] + rv[12:16]
        for ks in range(8):
            self.wlg(f"rV{ks>>1}_{ks&1}")
            if ks >= 2: self.wlg(f"x{ks}")
            self.mf1(ks, [q[0:1], q[1:2]]); q = q[2:]
            if ks == self.opts.get("flagat", 2): self.clr1_flag()
        self.send(0)
        self.prio(0)
        self.bar("b1")
        self.light1("V", 1, self.rdU(0) + self.rdU(1), 0)
        self.bar("b1x")
        self.run(self.rdU(2))
        self.check_post(0, [])
        self.run(self.rdU(3)); self.run(self.unpack(XF, PK, 8))
        self.wvm("V1a")
        self.bar("b2")
        for l in range(L):
            last = l == L-1
            self.c(f"==== A round {l} phase 0: G2 ====")
            self.prio(2)
            if last: self.final_addr()
            self.g2_phase(l, early=(None if last else self.rdV(0) + self.rdV(1)))
            if last:
                self.a("s_barrier"); self.final_store(); return
            self.wvm(f"V{l+1}b")
            self.stamp(f"g2g0{l}")
            self.bar(f"A0{l}")
            self.c(f"==== A round {l} phase 1: G1 ====")
            self.g1_phase(l+1, jitV=True)
            self.prio(0)
            self.bar(f"A1{l}")
            self.c(f"==== A round {l} phase 2 ====")
            self.light1("V", l+2, self.rdU(0) + self.rdU(1), l+1)
            self.bar(f"A2{l}")
            self.c(f"==== A round {l} phase 3 ====")
            self.light2("V", l+2, self.rdU(2) + self.rdU(3), l+1)
            self.bar(f"A3{l}")

    def progB(self):
        self.lab("L_progB")
        self.run(self.dma("U", 0, 0) + self.dma("U", 0, 1))
        self.wvm("V0"); self.stamp("v0l"); self.wvm("clr")
        self.bar("b0")
        d = self.dma("U", 0, 2) + self.dma("U", 0, 3)
        rv = [f for g in range(4) for f in self.rdV(g)]
        self.run(d[:4])
        for k in range(4):
            self.run(rv[4*k:4*k+4]); d[4+k]()
        self.wvm("U0a")
        self.bar("b1")
        self.prio(2)
        self.clr1_flag()
        self.g1_phase(0, extra=self.rdU(0) + self.rdU(1))
        self.prio(0)
        self.wvm("U0b")
        self.bar("b1x")
        self.mix(self.dma("V", 1, 2) + self.dma("V", 1, 3), self.rdU(2) + self.rdU(3))
        self.bar("b2")
        for l in range(L):
            last = l == L-1
            self.c(f"==== B round {l} phase 0 ====")
            if not last:
                self.light1("U", l+1, self.rdV(0) + self.rdV(1), l)
                if l == 0: self.wvm("V1b")
                self.bar(f"B0{l}")
                self.c(f"==== B round {l} phase 1 ====")
                self.light2("U", l+1, self.rdV(2) + self.rdV(3), l)
            else:
                self.run(self.unpack(XF, PK, 8)); self.final_addr()
                self.poll(l); self.check_post(l)
            self.bar(f"B1{l}")
            self.c(f"==== B round {l} phase 2: G2 ====")
            self.prio(2)
            if last:
                self.g2_phase(l); self.final_store(); return
            self.g2_phase(l, mid=self.rdU(0), late=self.rdU(1))
            self.wvm(f"U{l+1}b")
            self.bar(f"B2{l}")
            self.c(f"==== B round {l} phase 3: G1 ====")
            self.g1_phase(l+1, extra=self.rdU(2) + self.rdU(3))
            self.prio(0)
            self.bar(f"B3{l}")

    def final_addr(self):
        a = self.a; t = [RX, RX+1, RX+2]
        a(f"v_and_b32 v{t[0]}, 15, v{vLANE}"); a(f"v_lshrrev_b32 v{t[1]}, 4, v{vLANE}")
        a(f"v_and_b32 v{t[2]}, 7, v{t[0]}"); a(f"v_xor_b32 v{t[2]}, v{t[2]}, v{t[1]}"); a(f"v_lshlrev_b32 v{t[2]}, 4, v{t[2]}")
        a(f"v_lshl_add_u32 v{t[2]}, v{t[0]}, 7, v{t[2]}")
        a(f"v_and_b32 v{vT[0]}, 0xfffff800, v{vXW}"); a(f"v_add_u32 v{vT[0]}, v{vT[0]}, v{t[2]}"); a(f"v_xor_b32 v{vT[1]}, 64, v{vT[0]}")
        a(f"v_lshrrev_b32 v{t[0]}, 3, v{vLANE}"); a(f"v_xor_b32 v{t[1]}, v{t[0]}, v{vLANE}"); a(f"v_and_b32 v{t[1]}, 7, v{t[1]}")
        a(f"v_lshlrev_b32 v{t[1]}, 4, v{t[1]}")
        a(f"v_and_b32 v{t[2]}, 4, v{t[0]}"); a(f"v_add_u32 v{t[0]}, v{t[0]}, v{t[2]}")
        a(f"v_lshl_add_u32 v{vT[2]}, v{t[0]}, 10, v{t[1]}")

    def final_store(self):
        a = self.a; D = XF
        for m in range(2):
            self.lgop(f"ds_read_b128 {vr(D+4*m,4)}, v{vXW} offset:{m*1024}", f"fo{m}")
        fl = self.opts.get("outflags", "")
        for m in range(2):
            a(f"s_add_u32 s{sT[m]}, s{sT[7]}, {m*16384}")
            self.wlg(f"fo{m}")
            self.vmop(f"buffer_store_dwordx4 {vr(D+4*m,4)}, v{vT[2]}, {sr(sO,4)}, s{sT[m]} offen {fl}", "out")
        if self.opts.get("stag"):
            u = self.X
            a("s_waitcnt vmcnt(0)")
            a(f"s_add_u32 s4, s{sKA+12}, 0x700000"); a(f"s_addc_u32 s5, s{sKA+13}, 0")
            a("s_load_dwordx8 s[84:91], s[4:5], 0"); a("s_memrealtime s[94:95]"); a("s_waitcnt lgkmcnt(0)")
            a("s_mov_b32 s92, 0")
            for i in range(8):
                a(f"s_sub_u32 s93, s{sSTAMP}, s{84+i}"); a("s_cmp_lt_u32 s93, 3000"); a("s_cselect_b32 s93, s93, 0"); a("s_max_u32 s92, s92, s93")
            self.lab(f"L_echo{u}")
            a("s_sleep 1"); a("s_memrealtime s[96:97]"); a("s_waitcnt lgkmcnt(0)"); a("s_sub_u32 s93, s96, s94")
            a("s_cmp_lt_u32 s93, s92"); a(f"s_cbranch_scc1 L_echo{u}")
        elif self.opts.get("echo"):
            u = self.X
            a("s_waitcnt vmcnt(0)"); self.stamp("fin")
            a("s_memtime s[90:91]"); a("s_waitcnt lgkmcnt(0)")
            a(f"s_sub_u32 s92, s{sSTAMP+2}, s{sSTAMP}")
            self.lab(f"L_echo{u}")
            a("s_sleep 1"); a("s_memtime s[94:95]"); a("s_waitcnt lgkmcnt(0)"); a("s_sub_u32 s93, s94, s90")
            a("s_cmp_lt_u32 s93, s92"); a(f"s_cbranch_scc1 L_echo{u}")
        elif self.prof:
            a("s_waitcnt vmcnt(0)")
            self.stamp("fin"); self.stamp("rt1")
            a("s_waitcnt lgkmcnt(0)")
            a(f"v_mov_b32 v{RX}, 0")
            for i in range(len(self.prof)): a(f"v_writelane_b32 v{RX}, s{sSTAMP+2*i}, {i}")
            a(f"s_lshl_b32 s{sT[0]}, s2, 3"); a(f"s_add_u32 s{sT[0]}, s{sT[0]}, s{sWV}"); a(f"s_lshl_b32 s{sT[0]}, s{sT[0]}, 8")
            a(f"s_add_u32 s{sT[0]}, s{sT[0]}, {6<<20}")
            a(f"v_lshlrev_b32 v{vT[0]}, 2, v{vLANE}")
            a(f"buffer_store_dword v{RX}, v{vT[0]}, {sr(sW,4)}, s{sT[0]} offen")
        for i in range(self.opts.get("delay", 0)): a("s_sleep 125")
        a("s_endpgm")

    def handshake(self):
        a = self.a; x = self.x; P = XF; u = self.X
        self.c("handshake: the partner's inbox is cleared; does it share this XCD?")
        a(f"s_mov_b32 s{sCNT}, 0"); a(f"s_mov_b32 s{sMODE}, 1")
        self.wvm("clr1")
        a("s_waitcnt lgkmcnt(0)"); self.lgdone = len(self.lg)
        a(f"s_lshr_b32 s{sT[0]}, s{sT[1]}, s{sT[3]}"); a(f"s_and_b32 s{sT[0]}, s{sT[0]}, 0xff")
        a(f"s_cmp_eq_u32 s{sT[0]}, s{sXCC}"); a(f"s_cbranch_scc0 L_hs_fast{u}")
        self.lab(f"L_hs_done{u}")
        self.rec("hscnt", f"s{sCNT}"); self.rec("mode", f"s{sMODE}")
        self.xl(f"L_hs_fast{u}")
        x(f"buffer_load_ubyte v{vT[1]}, v{vT[2]}, {sr(sD,4)}, 0 offen sc1")
        x("s_waitcnt vmcnt(0)")
        x(f"v_readfirstlane_b32 s{sT[0]}, v{vT[1]}")
        x(f"s_cmp_eq_u32 s{sT[0]}, s{sXCC}"); x(f"s_cbranch_scc1 L_hs_done{u}")
        x(f"s_add_u32 s{sCNT}, s{sCNT}, 1"); x(f"s_cmp_lt_u32 s{sCNT}, {self.opts.get('fastpolls', 8)}"); x(f"s_cbranch_scc1 L_hs_fast{u}")
        for r in range(4): x(f"v_mov_b32 v{P+4+r}, 0")
        for sl in range(2):
            x(f"buffer_store_dwordx4 {vr(P+4,4)}, v{vE}, {sr(sW,4)}, s{sMY[sl]} offen sc1")
        x(f"s_lshl_b32 s{sT[1]}, s2, 3"); x(f"s_add_u32 s{sT[1]}, s{sT[1]}, s{sWV}"); x(f"s_lshl_b32 s{sT[1]}, s{sT[1]}, 7")
        x(f"s_add_u32 s{sT[1]}, s{sT[1]}, {4<<20}")
        x(f"s_xor_b32 s{sT[2]}, s{sT[1]}, {8*8*128}")
        x(f"v_mov_b32 v{P+2}, 0")
        x("s_mov_b64 exec, 1")
        x(f"buffer_load_dwordx4 {vr(P+8,4)}, v{P+2}, {sr(sW,4)}, s{sT[2]} offen sc1")
        x("s_waitcnt vmcnt(0)")
        x(f"v_readfirstlane_b32 s{sT[3]}, v{P+10}")
        x(f"s_add_u32 s{sT[3]}, s{sT[3]}, 1")
        x(f"v_mov_b32 v{P+3}, s{sT[3]}")
        x(f"buffer_store_dword v{P+3}, v{P+2}, {sr(sW,4)}, s{sT[1]} offen sc1")
        x("s_waitcnt vmcnt(0)")
        x(f"s_mov_b32 s{sCNT}, 0")
        self.xl(f"L_hs_slow{u}")
        x(f"buffer_load_ubyte v{vT[1]}, v{vT[2]}, {sr(sD,4)}, 0 offen sc1")
        x(f"buffer_load_dwordx4 {vr(P+8,4)}, v{P+2}, {sr(sW,4)}, s{sT[2]} offen sc1")
        x("s_waitcnt vmcnt(0)")
        x(f"v_readfirstlane_b32 s{sT[0]}, v{vT[1]}")
        x(f"v_readfirstlane_b32 s{sT[5]}, v{P+8}")
        x(f"v_readfirstlane_b32 s{sT[4]}, v{P+10}")
        x(f"v_readfirstlane_b32 s{sMODE}, v{P+11}")
        x(f"s_cmp_eq_u32 s{sT[0]}, s{sXCC}"); x(f"s_cbranch_scc1 L_hs_same{u}")
        x(f"v_mov_b32 v{P+12}, s{sT[5]}"); x(f"v_mov_b32 v{P+13}, s{sXCC}")
        x(f"buffer_store_dwordx2 {vr(P+12,2)}, v{P+2}, {sr(sW,4)}, s{sT[1]} offen offset:8 sc1")
        x(f"s_add_u32 s{sCNT}, s{sCNT}, 1"); x(f"s_cmp_gt_u32 s{sCNT}, 0x200000"); x(f"s_cbranch_scc1 L_hs_same{u}")
        x(f"s_cmp_eq_u32 s{sT[4]}, s{sT[3]}"); x(f"s_cbranch_scc0 L_hs_slow{u}")
        x(f"s_cmp_eq_u32 s{sMODE}, s{sXCC}"); x(f"s_cbranch_scc1 L_hs_same{u}")
        x(f"s_mov_b32 s{sMODE}, 0")
        x(f"s_mov_b32 s{sE}, s{sKA+12}"); x(f"s_mov_b32 s{sE+1}, s{sKA+13}")
        x("s_mov_b64 exec, -1")
        x(f"s_branch L_hs_done{u}")
        self.xl(f"L_hs_same{u}")
        x(f"s_mov_b32 s{sMODE}, 1")
        x("s_mov_b64 exec, -1")
        x(f"s_branch L_hs_done{u}")

    def build(self):
        hdr = [f"; @launch grid=(256,1,1) block=(512,1,1) lds={LDS_BYTES}",
               '.amdgcn_target "amdgcn-amd-amdhsa--gfx950"', ".text", f".globl {KN}", ".p2align 8",
               f".type {KN},@function", f"{KN}:"]
        self.prologue()
        A = self.fork(0); A.progA()
        B = self.fork(1); B.progB()
        nb = lambda g: sum(1 for s in g.o if s.strip() == "s_barrier")
        assert nb(A) == nb(B), (nb(A), nb(B))
        assert NV + NA <= 256
        ftr = [f".set CODE_BYTES, L_end - {KN}", '.section .rodata,"a"', ".p2align 6", f".amdhsa_kernel {KN}",
               f"  .amdhsa_next_free_vgpr {NV+NA}", "  .amdhsa_next_free_sgpr 102", f"  .amdhsa_accum_offset {NV}",
               "  .amdhsa_group_segment_fixed_size 0", "  .amdhsa_kernarg_size 56", "  .amdhsa_user_sgpr_count 2",
               "  .amdhsa_user_sgpr_kernarg_segment_ptr 1", "  .amdhsa_system_sgpr_workgroup_id_x 1",
               "  .amdhsa_float_denorm_mode_32 3", ".end_amdhsa_kernel"]
        log = []
        m1, n1 = fix_hazards(self.o + A.o, log)
        m2, n2 = fix_hazards(B.o, log)
        ool, n3 = fix_hazards(self.ool)
        main = m1 + m2 + ["L_end:", "    s_endpgm"]
        wrap = lambda ls: "\n".join(hdr + ls + ool + ftr) + "\n"
        if self.opts.get("align", 1):
            main, nw, nn = align(main, wrap, self.opts.get("minrun", 99))
            sys.stderr.write(f"hazard nops {n1}+{n2}+{n3}, widened {nw}, align nops {nn}\n")
        if self.opts.get("hlog"):
            for e in log: sys.stderr.write(str(e) + "\n")
        return wrap(main)

if __name__ == "__main__":
    prof = None; opts = {}
    for x in sys.argv[1:]:
        if x.startswith("--prof="): prof = x[7:].split(",")
        elif x.startswith("--"):
            k, v = x[2:].split("="); opts[k] = int(v) if v.lstrip("-").isdigit() else v
    out = [x for x in sys.argv[1:] if not x.startswith("--")][0]
    g = Gen(prof, opts); txt = g.build()
    if prof: txt = txt + "; stamps: " + ",".join(prof) + "\n"
    open(out, "w").write(txt)
```

```python
import sys, copy
from asmlib import fix_hazards, align
KN = "standalone__cross_network_dcn_v2__recsys_kernel"
L = 6
XB = 131072; HB = 147456; BIASB = 155648; LDS_BYTES = 161792
TAGS = [1, 1, 0, 0, 1, 1]

vLANE = 1; vA = 2; vE = 3; vV = [4, 5, 6, 7]; vU = [8, 9, 10, 11]
vXW = 12; vXR = [None, 13, 14, 15]; vHW = 16; vHR = [None, 17, 18, 19]
vBI = 20; vLIN = 21; vT = [22, 23, 24, 25]; vJ = 0
ACC1 = 26; ACC2 = 34; XF = 50; X0F = 66; PK = 82; HP = 90; RX = 94; TM = ACC2; SP = HP; T4 = 98; vPF = 102
NV = 104
aV = 0; aU = 64; aX = 128; aH = 128; aS = 128; NS = 6; NA = 152
sX0 = 4; sV = 8; sU = 12; sO = 16; sE = 20; sD = 24; sB = 28; sW = 32
sKA = 36
sWV = 50; sHF = 51; sRB = 52; sXCC = 53; sMODE = 54
sVG = [55, 56, 57, 58]; sUG = [59, 60, 61, 62]; sSO = [63, 64]; sLB = 65
sMY = [66, 67]; sWS = 68; sXH = 69
sCNT = 70; sT = [71, 72, 73, 74, 75, 76, 77, 78]; sPTMP = 79
sSTAMP = 80

def vr(b, n): return f"v[{b}:{b+n-1}]"
def ar(b, n): return f"a[{b}:{b+n-1}]"
def sr(b, n): return f"s[{b}:{b+n-1}]"

class Gen:
    def __init__(self, prof=None, opts=None):
        self.o = []; self.ool = []; self.vm = []; self.lg = []; self.vmdone = 0; self.lgdone = 0
        self.prof = prof; self.opts = opts or {}; self.names = []
        self.pw = []; self.nso = 0; self.nst = 0; self.X = 0
        self.pat = self.opts.get("pat", "BBBB/BBBB/DBDB/DBDB"); self.lag = self.opts.get("lag", 4)
    def fork(self, X):
        g = copy.copy(self); g.o = []; g.vm = list(self.vm); g.lg = list(self.lg); g.pw = list(self.pw); g.X = X
        return g
    def a(self, s): self.o.append("    " + s)
    def x(self, s): self.ool.append("    " + s)
    def xl(self, s): self.ool.append(s + ":")
    def lab(self, s): self.o.append(s + ":")
    def c(self, s): self.o.append("    ; " + s)
    def vmop(self, s, tag): self.vm.append(tag); self.a(s)
    def lgop(self, s, tag): self.lg.append(tag); self.a(s)
    def _last(self, lst, tag):
        idx = [i for i, t in enumerate(lst) if t == tag]
        return idx[-1] if idx else None
    def wvm(self, tag):
        i = self._last(self.vm, tag)
        if i is not None: self.wvmi(i)
    def wvmi(self, i):
        if i < self.vmdone: return
        n = min(len(self.vm) - 1 - i, 63); self.vmdone = len(self.vm) - n
        self.a(f"s_waitcnt vmcnt({n})")
    def wlg(self, tag):
        i = self._last(self.lg, tag)
        if i is None or i < self.lgdone: return
        n = min(len(self.lg) - 1 - i, 15); self.lgdone = len(self.lg) - n
        self.a(f"s_waitcnt lgkmcnt({n})")
    def wlg0(self):
        if self.lgdone < len(self.lg): self.lgdone = len(self.lg); self.a("s_waitcnt lgkmcnt(0)")
    def bar(self, name=None):
        self.wlg0()
        if name: self.stamp(name + "a")
        self.a("s_barrier")
        if name: self.stamp(name + "b")
    def stamp(self, name):
        nm = name + "AB"[self.X] if False else name
        if self.prof and nm in self.prof:
            r = sSTAMP + 2 * self.prof.index(nm)
            assert r + 1 <= 101
            self.a(f"s_memrealtime s[{r}:{r+1}]" if nm.startswith("rt") else f"s_memtime s[{r}:{r+1}]")
    def rec(self, name, src):
        if self.prof and name in self.prof:
            self.a(f"s_mov_b32 s{sSTAMP + 2*self.prof.index(name)}, {src}")
    def prio(self, p):
        m = self.opts.get("prio", 1)
        if m == 1: self.a(f"s_setprio {p}")
        if m == 2: self.a(f"s_setprio {2-p}")
    def dma(self, kind, l, g, pat=None):
        if l >= L: return []
        if self.opts.get("dma") == "off" and l >= 2: return []
        pat = pat or self.pat.split("/")[g]
        so = sSO[self.nso & 1]; self.nso += 1
        base, sg, vv, srd = (0, sVG, vV, sV) if kind == "V" else (16384, sUG, vU, sU)
        tag = f"{kind}{l}" + "ab"[g >> 1]
        items = []
        for j in range(4):
            def emit(j=j):
                while self.pw and len(self.vm) - self.pw[0][0] > self.lag: self.pw.pop(0)[1]()
                if j == 0:
                    self.a(f"s_add_u32 m0, s{sLB}, {base+g*4096}"); self.a(f"s_add_u32 s{so}, s{sg[g]}, {l*131072}")
                if pat[j % len(pat)] in "DBC":
                    self.vmop(f"buffer_load_dwordx4 v{vv[j]}, {sr(srd,4)}, s{so} offen offset:{1024*j} lds", tag)
                    for q in range({"D": 0, "B": 1, "C": 2}[pat[j % len(pat)]]): self.vmop(f"buffer_load_dword v{vJ}, off, {sr(sB,4)}, 0", "gap")
                else:
                    nv = pat[:j].count("V")
                    st = aS + 4 * ((g if g < 3 else 3 + nv) if pat.count("V") == 1 or g == 3 else (self.nst % 3)); self.nst += 1
                    assert st + 4 <= aS + 4*NS
                    self.vmop(f"buffer_load_dwordx4 {ar(st,4)}, v{vv[j]}, {sr(srd,4)}, s{so} offen offset:{1024*j}", tag)
                    vi = len(self.vm) - 1
                    def wr():
                        self.wvmi(vi)
                        self.lgop(f"ds_write_b128 v{vLIN}, {ar(st,4)} offset:{base+g*4096+j*1024}", "sw")
                    self.pw.append((vi, wr, g))
            items.append(emit)
        return items
    def flush(self, keep3=False):
        while self.pw and not (keep3 and self.pw[0][2] == 3): self.pw.pop(0)[1]()
    def rdV(self, g):
        return [lambda j=j: self.lgop(f"ds_read_b128 {ar(aV+4*(4*g+j),4)}, v{vA} offset:{g*4096+j*1024}", f"rV{g}_{j>>1}") for j in range(4)]
    def rdU(self, g):
        return [lambda j=j: self.lgop(f"ds_read_b128 {ar(aU+4*(4*g+j),4)}, v{vA} offset:{16384+g*4096+j*1024}", f"rU{g}") for j in range(4)]
    def mf1(self, ks, fill=None):
        for ta in range(2):
            b = vr(PK + 4*ks, 4) if ks < 2 else ar(aX + 4*(ks-2), 4)
            d = vr(ACC1 + 4*ta, 4)
            self.a(f"v_mfma_f32_16x16x32_bf16 {d}, {ar(aV+4*(2*ks+ta),4)}, {b}, {'0' if ks == 0 else d}")
            if fill: self.run(fill[ta])
    def mf2(self, P, kr, fill=None):
        for ta in range(2):
            b = vr(HP, 4) if kr == 0 else ar(aH + 4*(kr-1), 4)
            d = vr(ACC2 + 8*P + 4*ta, 4)
            idx = ((kr >> 1)*2 + P)*4 + (kr & 1)*2 + ta
            self.a(f"v_mfma_f32_16x16x32_bf16 {d}, {ar(aU+4*idx,4)}, {b}, {d}")
            if fill: self.run(fill[ta])
    def epi(self, P, l, pk=False):
        r = []
        if pk:
            for e in range(4):
                q = 8*P + 2*e
                r.append(lambda q=q: self.a(f"v_pk_fma_f32 {vr(ACC2+q,2)}, {vr(X0F+q,2)}, {vr(ACC2+q,2)}, {vr(XF+q,2)}"))
        else:
            for e in range(8):
                q = 8*P + e
                r.append(lambda q=q: self.a(f"v_fma_f32 v{ACC2+q}, v{X0F+q}, v{ACC2+q}, v{XF+q}"))
        for e in range(4):
            q = 8*P + 2*e
            r.append(lambda q=q: self.a(f"v_cvt_pk_bf16_f32 v{PK+q//2}, v{ACC2+q}, v{ACC2+q+1}"))
        if l < L-1: r.append(lambda: self.lgop(f"ds_write_b128 v{vXW}, {vr(PK+4*P,4)} offset:{P*1024}", "xw"))
        else: r.append(lambda: self.lgop(f"ds_write_b128 v{vT[P]}, {vr(PK+4*P,4)}", "xw"))
        return r
    def unpack(self, dst, src, n):
        r = []
        for i in range(n):
            r.append(lambda i=i: self.a(f"v_lshlrev_b32 v{dst+2*i}, 16, v{src+i}"))
            r.append(lambda i=i: self.a(f"v_and_b32 v{dst+2*i+1}, 0xffff0000, v{src+i}"))
        return r
    def bias_rd(self, l):
        for k in range(4):
            self.lgop(f"ds_read_b128 {vr(ACC2+4*k,4)}, v{vBI} offset:{l*256 + (k>>1)*128 + (k&1)*16}", "bias")
    def run(self, lst):
        for f in lst: f()
    def mix(self, *lists):
        lists = [list(x) for x in lists]
        while any(lists):
            for x in lists:
                if x: x.pop(0)()
    def srd(self, r, p, n, bias=0):
        if bias:
            self.a(f"s_sub_u32 s{r}, s{p}, {bias}"); self.a(f"s_subb_u32 s{r+1}, s{p+1}, 0")
        else:
            self.a(f"s_mov_b32 s{r}, s{p}"); self.a(f"s_mov_b32 s{r+1}, s{p+1}")
        self.a(f"s_mov_b32 s{r+2}, {n+bias}"); self.a(f"s_mov_b32 s{r+3}, 0x20000")
    def poll(self, l):
        self.vmop(f"buffer_load_dwordx4 {vr(RX,4)}, v{vE}, {sr(sE,4)}, s{sMY[l&1]} offen sc1", f"poll{l}")
    def send(self, l, u=None):
        a = self.a; u = u if u is not None else f"{self.X}{l}"
        a(f"s_xor_b32 s{sPTMP}, s{sMY[l&1]}, 512")
        for k in range(4): a(f"v_cvt_pk_bf16_f32 v{SP+k}, v{ACC1+2*k}, v{ACC1+2*k+1}")
        for k in range(4): a(f"v_or_b32 v{SP+k}, 1, v{SP+k}" if TAGS[l] else f"v_and_b32 v{SP+k}, -2, v{SP+k}")
        if l == 0: self.handshake()
        self.stamp(f"snd{u}")
        a(f"s_cmp_eq_u32 s{sMODE}, 0"); a(f"s_cbranch_scc1 L_ss{u}")
        self.vmop(f"buffer_store_dwordx4 {vr(SP,4)}, v{vE}, {sr(sE,4)}, s{sPTMP} offen", "st")
        self.lab(f"L_sd{u}")
        self.xl(f"L_ss{u}")
        self.x(f"buffer_store_dwordx4 {vr(SP,4)}, v{vE}, {sr(sE,4)}, s{sPTMP} offen sc1")
        self.x("s_nop 1"); self.x(f"s_branch L_sd{u}")
    def chk_ops(self, l):
        R = RX; t0 = vT[3]
        if TAGS[l]:
            return [f"v_bitop3_b32 v{t0}, v{R}, v{R+1}, v{R+2} bitop3:0x80", f"v_bitop3_b32 v{t0}, v{t0}, v{R+3}, 1 bitop3:0x80", f"v_cmp_eq_u32 vcc, 0, v{t0}"]
        return [f"v_or3_b32 v{t0}, v{R}, v{R+1}, v{R+2}", f"v_bitop3_b32 v{t0}, v{t0}, 1, v{R+3} bitop3:0xc8", f"v_cmp_ne_u32 vcc, 0, v{t0}"]
    def check_post(self, l, d=None):
        u = f"{self.X}{l}"; x = self.x; a = self.a
        self.wvm(f"poll{l}")
        self.stamp(f"chk{u}")
        if self.opts.get("dbgcnt"): a(f"s_mov_b32 s{sCNT}, 0")
        for s in self.chk_ops(l): a(s)
        a(f"s_cbranch_vccnz L_rt{u}")
        self.lab(f"L_got{u}")
        self.stamp(f"got{u}")
        if self.opts.get("dbgcnt"): self.rec(f"cnt{l}", f"s{sCNT}")
        self.xl(f"L_rt{u}")
        x(f"s_mov_b32 s{sCNT}, 0")
        self.xl(f"L_rl{u}")
        x(f"buffer_load_dwordx4 {vr(RX,4)}, v{vE}, {sr(sE,4)}, s{sMY[l&1]} offen sc1")
        x(f"s_add_u32 s{sCNT}, s{sCNT}, 1"); x(f"s_cmp_gt_u32 s{sCNT}, 0x200000")
        x("s_waitcnt vmcnt(0)")
        x(f"s_cbranch_scc1 L_got{u}")
        for s in self.chk_ops(l): x(s)
        x(f"s_cbranch_vccnz L_rl{u}")
        x(f"s_branch L_got{u}")
        ops = []
        for h in range(2):
            ops += self.unpack(T4, RX+2*h, 2)
            if self.opts.get("pkadd", 0):
                for k in range(2): ops.append(lambda k=k, h=h: a(f"v_pk_add_f32 {vr(T4+2*k,2)}, {vr(T4+2*k,2)}, {vr(ACC1+4*h+2*k,2)}"))
            else:
                for k in range(4): ops.append(lambda k=k, h=h: a(f"v_add_f32 v{T4+k}, v{T4+k}, v{ACC1+4*h+k}"))
            for k in range(2): ops.append(lambda k=k, h=h: a(f"v_cvt_pk_bf16_f32 v{HP+2*h+k}, v{T4+2*k}, v{T4+2*k+1}"))
        ops.append(lambda: self.lgop(f"ds_write_b128 v{vHW}, {vr(HP,4)}", "hw"))
        if d is None:
            self.run(ops); self.bias_rd(l); return
        d = list(d); st = self.opts.get("vper", 10)
        while ops:
            self.run(ops[:st]); ops = ops[st:]
            if ops and d: d.pop(0)()
        self.run(d)
    def x_reads(self):
        return [lambda ks=ks: self.lgop(f"ds_read_b128 {ar(aX+4*(ks-2),4)}, v{vXR[ks>>1]} offset:{(ks&1)*1024}", f"x{ks}") for ks in range(2, 8)]
    def h_reads(self):
        for kr in range(1, 4):
            self.lgop(f"ds_read_b128 {ar(aH+4*(kr-1),4)}, v{vHR[kr]}", f"h{kr}")

    def g2_phase(self, l, early=None, mid=None, late=None):
        early = list(early or []); mid = list(mid or []); late = list(late or [])
        def take(q): return [q[0:1], q[1:2]]
        self.h_reads()
        self.mf2(0, 0, take(early)); self.mf2(1, 0, take(early[2:]))
        self.wlg("h1"); self.mf2(0, 1, take(early[4:]))
        self.wlg("h2"); self.mf2(0, 2, take(early[6:] + mid))
        self.wlg("h3"); self.mf2(0, 3, take(mid[2:]))
        self.flush()
        e0 = self.epi(0, l); e1 = self.epi(1, l, pk=self.opts.get("pkfma", 1))
        u = f"{self.X}{l}"
        self.stamp(f"g2a{u}")
        self.mf2(1, 1); self.mf2(1, 2, [late[0:2], late[2:4]])
        self.stamp(f"g2b{u}")
        self.mf2(1, 3, [e0[0:2], e0[2:-1]])
        self.stamp(f"g2c{u}")
        e0[-1]()
        self.stamp(f"g2d{u}")
        self.run(e1[:-1])
        self.stamp(f"g2e{u}")
        e1[-1]()
        self.stamp(f"g2f{u}")
    def g1_phase(self, l, jitV=False, extra=None):
        xr = self.x_reads(); extra = list(extra or [])
        if jitV:
            rv = self.rdV(2) + self.rdV(3)
            self.run(xr[0:2])
            q = [xr[2], rv[0], rv[1], xr[3], rv[2], rv[3], xr[4], rv[4], rv[5], xr[5], rv[6], rv[7]]
            for ks in range(8):
                self.wlg(f"rV{ks>>1}_{ks&1}")
                if ks >= 2: self.wlg(f"x{ks}")
                self.mf1(ks, [q[0:2], q[2:3]]); q = q[3:]
        else:
            self.run(xr)
            for ks in range(8):
                if ks >= 2: self.wlg(f"x{ks}")
                self.mf1(ks, [extra[0:1], extra[1:2]]); extra = extra[2:]
            self.run(extra)
        self.send(l)

    def prologue(self):
        a = self.a; T = [X0F + i for i in range(10)]
        a(f"s_load_dwordx8 {sr(sKA,8)}, s[0:1], 0")
        a(f"s_load_dwordx4 {sr(sKA+8,4)}, s[0:1], 32")
        a(f"s_load_dwordx2 {sr(sKA+12,2)}, s[0:1], 48")
        a("s_cmp_ge_u32 s2, 256"); a("s_cbranch_scc1 L_end")
        self.stamp("start"); self.stamp("rt0")
        a(f"v_lshrrev_b32 v{T[0]}, 6, v0"); a(f"v_and_b32 v{vLANE}, 63, v0")
        a(f"s_lshr_b32 s{sT[0]}, s2, 3")
        a(f"v_readfirstlane_b32 s{sWV}, v{T[0]}")
        a(f"s_lshl_b32 s{sT[0]}, s{sT[0]}, 3"); a(f"s_add_u32 s{sT[6]}, s{sT[0]}, s{sWV}")
        if self.opts.get("codepf", 1):
            a(f"s_getpc_b64 {sr(sX0,2)}")
            a(f"s_and_b32 s{sX0}, s{sX0}, 0xffffff00")
            a(f"s_lshl_b32 s{sT[1]}, s{sT[6]}, 7"); a(f"v_mov_b32 v{T[1]}, s{sT[1]}")
            a(f"s_cmp_ge_u32 s{sT[1]}, CODE_BYTES"); a("s_cbranch_scc1 L_nocpf")
            a("s_mov_b64 exec, 1")
            a(f"global_load_dword v{vJ}, v{T[1]}, {sr(sX0,2)}")
            a("s_mov_b64 exec, -1")
            self.lab("L_nocpf")
        a(f"s_and_b32 s{sWS}, s{sWV}, 3"); a(f"s_lshr_b32 s{sXH}, s{sWV}, 2")
        a(f"v_lshrrev_b32 v{T[6]}, 2, v{vLANE}"); a(f"v_and_b32 v{T[7]}, 3, v{vLANE}")
        a(f"v_lshlrev_b32 v{T[9]}, 7, v{T[7]}"); a(f"v_lshl_add_u32 v{vPF}, v{T[6]}, 17, v{T[9]}")
        a(f"s_lshl_b32 s{sT[6]}, s{sT[6]}, 9"); a(f"s_add_u32 s{sT[6]}, s{sT[6]}, 3072")
        a(f"s_bfe_u32 s{sHF}, s2, 0x10003")
        a(f"s_lshr_b32 s{sT[0]}, s2, 4"); a(f"s_lshl_b32 s{sT[0]}, s{sT[0]}, 3"); a(f"s_and_b32 s{sRB}, s2, 7"); a(f"s_or_b32 s{sRB}, s{sRB}, s{sT[0]}")
        a(f"s_lshl_b32 s{sLB}, s{sWS}, 15")
        a(f"v_lshrrev_b32 v{T[0]}, 4, v{vLANE}")
        a(f"s_movk_i32 s{sPTMP}, 0x78"); a(f"v_lshlrev_b32 v{T[1]}, 1, v{T[0]}"); a(f"v_lshrrev_b32 v{T[2]}, v{T[1]}, s{sPTMP}")
        a(f"v_xor_b32 v{T[2]}, v{T[2]}, v{vLANE}"); a(f"v_and_b32 v{T[2]}, 3, v{T[2]}"); a(f"v_lshlrev_b32 v{T[2]}, 4, v{T[2]}")
        a(f"v_bfe_u32 v{T[1]}, v{vLANE}, 2, 2"); a(f"v_lshl_add_u32 v{T[1]}, v{T[0]}, 3, v{T[1]}")
        a(f"v_lshl_add_u32 v{T[3]}, v{T[1]}, 10, v{T[2]}"); a(f"v_lshl_add_u32 v{T[4]}, v{T[1]}, 8, v{T[2]}")
        for j in range(4):
            a(f"v_add_u32 v{vV[j]}, {(j&1)*4096 + (j>>1)*64 - 1024*j + 3072}, v{T[3]}")
        a(f"v_add_u32 v{T[5]}, {64 - 1024 + 3072}, v{T[3]}")
        a(f"s_lshl_b32 s{sT[2]}, s{sHF}, 9"); a(f"s_add_u32 s{sT[3]}, s{sLB}, s{sT[2]}")
        a(f"s_lshl_b32 s{sT[4]}, s{sRB}, 15"); a(f"s_add_u32 s{sT[4]}, s{sT[4]}, s{sT[2]}")
        a(f"s_lshl_b32 s{sT[5]}, s{sXH}, 12"); a(f"s_add_u32 s{sT[4]}, s{sT[4]}, s{sT[5]}")
        a(f"s_lshl_b32 s{sT[5]}, s{sWS}, 7"); a(f"s_add_u32 s{sT[7]}, s{sT[4]}, s{sT[5]}")
        a(f"s_lshr_b32 s{sT[5]}, s{sWS}, 1"); a(f"s_lshl_b32 s{sT[5]}, s{sT[5]}, 13"); a(f"s_add_u32 s{sT[4]}, s{sT[4]}, s{sT[5]}")
        a(f"s_and_b32 s{sT[5]}, s{sWS}, 1"); a(f"s_lshl_b32 s{sT[5]}, s{sT[5]}, 11"); a(f"s_add_u32 s{sMY[0]}, s{sT[4]}, s{sT[5]}")
        a(f"s_add_u32 s{sMY[1]}, s{sMY[0]}, 16384")
        for g in range(4):
            a(f"s_xor_b32 s{sT[4]}, s{sWS}, {g}"); a(f"s_lshl_b32 s{sT[4]}, s{sT[4]}, 7"); a(f"s_add_u32 s{sVG[g]}, s{sT[3]}, s{sT[4]}")
        a(f"v_lshrrev_b32 v{T[8]}, 5, v{vLANE}"); a(f"v_and_b32 v{vE}, 31, v{vLANE}"); a(f"v_lshlrev_b32 v{vE}, 4, v{vE}")
        a(f"v_lshl_add_u32 v{vE}, v{T[8]}, 10, v{vE}")
        for r in range(4): a(f"v_mov_b32 v{TM+r}, 0")
        a(f"v_mov_b32 v{vT[2]}, s2"); a(f"v_xor_b32 v{vT[2]}, 8, v{vT[2]}")
        a(f"s_lshl_b32 s{sT[5]}, s{sWS}, 12"); a(f"s_lshl_b32 s{sT[4]}, s{sXH}, 11"); a(f"s_add_u32 s{sT[5]}, s{sT[5]}, s{sT[4]}")
        a(f"s_add_u32 m0, s{sT[5]}, {XB}")
        a(f"v_lshrrev_b32 v{T[6]}, 3, v{vLANE}"); a(f"v_and_b32 v{T[7]}, 7, v{vLANE}")
        a(f"v_lshlrev_b32 v{T[8]}, 4, v{T[7]}"); a(f"v_lshl_add_u32 v{T[8]}, v{T[6]}, 10, v{T[8]}")
        a(f"s_lshl_b32 s{sT[5]}, s{sWS}, 7"); a(f"s_add_u32 s{sT[5]}, s{sT[5]}, s{sT[2]}"); a(f"s_mul_i32 s{sT[3]}, s{sXH}, 3072"); a(f"s_add_u32 s{sT[5]}, s{sT[5]}, s{sT[3]}")
        a("s_waitcnt lgkmcnt(0)")
        self.stamp("karg")
        pf = self.opts.get("pf", 1)
        def pfl(lo):
            if not pf or not lo: return
            a(f"s_mov_b64 exec, {lo}")
            self.vmop(f"buffer_load_dword v{vJ}, v{vPF}, {sr(sV,4)}, s{sT[6]} offen", "pf")
            self.vmop(f"buffer_load_dword v{vJ}, v{vPF}, {sr(sU,4)}, s{sT[6]} offen", "pf")
            a("s_mov_b64 exec, -1")
        self.pfl = pfl
        masks = [int(m, 16) for m in str(self.opts.get("pfm", "f,fffff0")).split(",")]
        self.pfmasks = masks
        self.srd(sX0, sKA+0, 4096*1024, 3072)
        self.vmop(f"buffer_load_dwordx4 v{vV[0]}, {sr(sX0,4)}, s{sT[7]} offen lds", "x0")
        self.vmop(f"buffer_load_dwordx4 v{T[5]}, {sr(sX0,4)}, s{sT[7]} offen offset:1024 lds", "x0")
        self.srd(sV, sKA+4, 6*131072, 3072)
        self.srd(sU, sKA+2, 6*131072, 3072)
        pfl(masks[0])
        self.srd(sB, sKA+6, 6*1024)
        self.srd(sD, sKA+10, 256)
        a("s_mov_b64 exec, 0xffffff")
        self.vmop(f"buffer_load_dwordx4 {vr(TM+4,4)}, v{T[8]}, {sr(sB,4)}, s{sT[5]} offen", "bias")
        a("s_mov_b64 exec, 1")
        self.vmop(f"buffer_load_ubyte v{vJ}, v{vT[2]}, {sr(sD,4)}, 0 offen", "touch")
        a("s_mov_b64 exec, -1")
        self.srd(sO, sKA+8, 4096*1024)
        bt = self.opts.get("boxtouch", 1)
        a(f"v_and_b32 v{RX+1}, 3, v{vLANE}"); a(f"v_lshlrev_b32 v{RX+1}, 7, v{RX+1}")
        a(f"v_bfe_u32 v{RX}, v{vLANE}, 2, 1"); a(f"v_lshl_add_u32 v{RX+1}, v{RX}, 10, v{RX+1}")
        a(f"v_bfe_u32 v{RX}, v{vLANE}, 3, 1"); a(f"v_lshl_add_u32 v{RX+1}, v{RX}, {12 if bt == 5 else 14}, v{RX+1}")
        if bt == 5: a(f"v_bfe_u32 v{RX}, v{vLANE}, 4, 1"); a(f"v_lshl_add_u32 v{RX+1}, v{RX}, 14, v{RX+1}")
        def box(m):
            a(f"s_mov_b64 exec, {m}")
            self.vmop(f"buffer_load_dword v{vJ}, v{RX+1}, {sr(sO,4)}, s{sMY[0]} offen", "bt")
            a("s_mov_b64 exec, -1")
        self.box = box
        if bt == 1: box(0xffff)
        if bt == 2: box(0xff)
        if self.opts.get("clrearly", 1):
            self.vmop(f"buffer_store_dwordx4 {vr(TM,4)}, v{vE}, {sr(sO,4)}, s{sMY[0]} offen", "clr")
        self.stamp("i_x0")
        a("s_barrier")
        a(f"s_lshl_b32 s{sT[4]}, s{sXH}, 13"); a(f"s_add_u32 s{sT[4]}, s{sT[4]}, s{sLB}")
        a(f"s_cmp_eq_u32 s{sXH}, 0")
        a(f"s_cselect_b32 s{sT[0]}, s{sVG[0]}, s{sVG[2]}"); a(f"s_cselect_b32 s{sT[1]}, s{sVG[1]}, s{sVG[3]}")
        def v0grp(k):
            a(f"s_add_u32 m0, s{sT[4]}, {k*4096}"); a("s_nop 0")
            for j in range(4):
                self.vmop(f"buffer_load_dwordx4 v{vV[j]}, {sr(sV,4)}, s{sT[k]} offen offset:{1024*j} lds", "V0")
                if (j & 1) and self.opts.get("pgap", 1): self.vmop(f"buffer_load_dword v{vJ}, off, {sr(sB,4)}, 0", "gap")
        v0grp(0)
        self.stamp("i_v0a")
        self.srd(sW, sKA+12, 8 << 20)
        self.srd(sE, sKA+8, 4096*1024)
        if self.opts.get("stag"):
            a(f"v_mov_b32 v{RX+2}, s{sSTAMP}"); a(f"s_lshl_b32 s90, s2, 2"); a("s_add_u32 s90, s90, 0x700000"); a(f"v_mov_b32 v{RX+3}, 0")
            a("s_mov_b64 exec, 1"); a(f"buffer_store_dword v{RX+2}, v{RX+3}, {sr(sW,4)}, s90 offen sc1"); a("s_mov_b64 exec, -1")
        a(f"s_getreg_b32 s{sXCC}, hwreg(HW_REG_XCC_ID)"); a(f"s_and_b32 s{sXCC}, s{sXCC}, 15"); a(f"s_or_b32 s{sXCC}, s{sXCC}, 16")
        a(f"s_and_b32 s{sT[0]}, s{sWS}, 1"); a(f"s_lshl_b32 s{sT[0]}, s{sT[0]}, 6"); a(f"s_xor_b32 s{sT[3]}, s{sT[0]}, 64")
        for j in range(4):
            a(f"v_add_u32 v{vU[j]}, {(j&1)*1024 - 1024*j + 3072}, v{T[4]}")
            a(f"v_add_u32 v{vU[j]}, s{sT[3] if j >> 1 else sT[0]}, v{vU[j]}")
        a(f"s_lshl_b32 s{sT[0]}, s{sHF}, 16"); a(f"s_lshl_b32 s{sT[5]}, s{sWS}, 14"); a(f"s_add_u32 s{sT[0]}, s{sT[0]}, s{sT[5]}")
        for g in range(4):
            pp, P = g >> 1, g & 1
            a(f"s_xor_b32 s{sT[5]}, s{sWS}, {2*pp}"); a(f"s_and_b32 s{sT[5]}, s{sT[5]}, 2"); a(f"s_lshl_b32 s{sT[5]}, s{sT[5]}, 6")
            a(f"s_add_u32 s{sT[5]}, s{sT[5]}, {P*8192}"); a(f"s_add_u32 s{sUG[g]}, s{sT[0]}, s{sT[5]}")
        a(f"v_bfe_u32 v{T[1]}, v{vLANE}, 2, 2"); a(f"v_lshlrev_b32 v{T[1]}, 1, v{T[1]}"); a(f"v_lshrrev_b32 v{T[2]}, v{T[1]}, s{sPTMP}")
        a(f"v_xor_b32 v{T[2]}, v{T[2]}, v{T[0]}"); a(f"v_and_b32 v{T[2]}, 3, v{T[2]}"); a(f"v_lshlrev_b32 v{T[2]}, 4, v{T[2]}")
        a(f"v_and_b32 v{T[1]}, 15, v{vLANE}"); a(f"v_lshl_add_u32 v{T[2]}, v{T[1]}, 6, v{T[2]}")
        a(f"v_add_u32 v{vA}, s{sLB}, v{T[2]}")
        a(f"s_lshl_b32 s{sT[5]}, s{sWS}, 12"); a(f"s_lshl_b32 s{sT[0]}, s{sXH}, 11"); a(f"s_add_u32 s{sT[5]}, s{sT[5]}, s{sT[0]}"); a(f"s_add_u32 s{sT[5]}, s{sT[5]}, {XB}")
        a(f"v_add_u32 v{T[3]}, s{sT[5]}, v{T[2]}")
        a(f"v_lshlrev_b32 v{T[1]}, 4, v{vLANE}")
        a(f"v_add_u32 v{vXW}, s{sT[5]}, v{T[1]}"); a(f"v_add_u32 v{vLIN}, s{sLB}, v{T[1]}")
        for g in range(1, 4): a(f"v_xor_b32 v{vXR[g]}, {g*4096}, v{vXW}")
        a(f"s_lshl_b32 s{sT[5]}, s{sWV}, 10"); a(f"s_add_u32 s{sT[5]}, s{sT[5]}, {HB}")
        a(f"v_add_u32 v{vHW}, s{sT[5]}, v{T[1]}")
        for g in range(1, 4): a(f"v_xor_b32 v{vHR[g]}, {g*1024}, v{vHW}")
        a(f"s_mul_i32 s{sT[5]}, s{sWS}, 1536"); a(f"s_add_u32 s{sT[5]}, s{sT[5]}, {BIASB}")
        a(f"v_lshlrev_b32 v{vBI}, 5, v{T[0]}"); a(f"v_add_u32 v{vBI}, s{sT[5]}, v{vBI}")
        a(f"s_mul_i32 s{sT[0]}, s{sXH}, 768"); a(f"s_add_u32 s{sT[5]}, s{sT[5]}, s{sT[0]}")
        a(f"v_lshlrev_b32 v{T[7]}, 5, v{T[7]}"); a(f"v_lshl_add_u32 v{T[7]}, v{T[6]}, 8, v{T[7]}"); a(f"v_add_u32 v{vT[0]}, s{sT[5]}, v{T[7]}")
        def xproc():
            self.wvm("x0")
            self.stamp("x0")
            for P in range(2):
                self.lgop(f"ds_read_b128 {vr(PK+4*P,4)}, v{T[3]} offset:{P*1024}", "x0r")
            self.wvm("bias")
            self.run(self.unpack(TM+8, TM+4, 4))
            self.wlg("x0r")
            for P in range(2):
                self.lgop(f"ds_write_b128 v{vXW}, {vr(PK+4*P,4)} offset:{P*1024}", "xw")
            a("s_mov_b64 exec, 0xffffff")
            self.lgop(f"ds_write_b128 v{vT[0]}, {vr(TM+8,4)}", "bw")
            self.lgop(f"ds_write_b128 v{vT[0]}, {vr(TM+12,4)} offset:16", "bw")
            a("s_mov_b64 exec, -1")
            self.run(self.unpack(X0F, PK, 8))
        xp = self.opts.get("xproc", 0)
        if xp == 0: xproc()
        v0grp(1)
        self.stamp("i_v0b")
        if not self.opts.get("clrearly", 1):
            self.vmop(f"buffer_store_dwordx4 {vr(TM,4)}, v{vE}, {sr(sO,4)}, s{sMY[0]} offen", "clr")
        if bt == 3: box(0xffff)
        if bt == 4: box(0xff)
        pfl(masks[1])
        if xp == 1: xproc()
        self.wvm("clr")
        a("s_barrier")
        self.stamp("issued")
        a(f"s_cmp_lg_u32 s{sWV}, 0"); a("s_cbranch_scc0 L_flag")
        self.lab("L_noflag")
        self.vmop(f"buffer_store_dwordx4 {vr(TM,4)}, v{vE}, {sr(sO,4)}, s{sMY[1]} offen", "clr1")
        a(f"s_xor_b32 s{sT[3]}, s2, 8"); a(f"s_and_b32 s{sT[2]}, s{sT[3]}, 0xfc"); a(f"s_and_b32 s{sT[3]}, s{sT[3]}, 3"); a(f"s_lshl_b32 s{sT[3]}, s{sT[3]}, 3")
        a(f"s_cmp_lg_u32 s{sXH}, 0"); a("s_cbranch_scc1 L_progB")
        self.xl("L_flag")
        self.x(f"v_mov_b32 v{RX}, s2"); self.x(f"v_mov_b32 v{vT[1]}, s{sXCC}"); self.x("s_mov_b64 exec, 1")
        self.x(f"buffer_store_byte v{vT[1]}, v{RX}, {sr(sD,4)}, 0 offen"); self.x("s_mov_b64 exec, -1"); self.x("s_branch L_noflag")

    def late(self, step):
        a = self.a
        if self.opts.get("boxtouch", 1) == 5 and step == 0:
            a("s_mov_b64 exec, 0xffffffff")
            self.vmop(f"buffer_load_dword v{vJ}, v{RX+1}, {sr(sO,4)}, s{sMY[0]} offen", "bt")
            a("s_mov_b64 exec, -1")
        lm = [int(m, 16) for m in str(self.opts.get("lm", "0")).split(",")]
        if step < len(lm) and lm[step]:
            a(f"s_mov_b64 exec, {lm[step]}")
            for off in (0, 2048):
                self.vmop(f"buffer_load_dword v{vJ}, v{vPF}, {sr(sV,4)}, s{sT[6]} offen offset:{off}", "pf")
                self.vmop(f"buffer_load_dword v{vJ}, v{vPF}, {sr(sU,4)}, s{sT[6]} offen offset:{off}", "pf")
            a("s_mov_b64 exec, -1")
    def clr1_flag(self):
        self.a(f"s_load_dword s{sT[1]}, {sr(sKA+10,2)}, s{sT[2]}")
    def bias_ops(self, l):
        return [lambda k=k: self.lgop(f"ds_read_b128 {vr(ACC2+4*k,4)}, v{vBI} offset:{l*256 + (k>>1)*128 + (k&1)*16}", "bias") for k in range(4)]
    def light1(self, kind, l, rd, lp):
        d = self.dma(kind, l, 0) + self.dma(kind, l, 1)
        pp = self.opts.get("pollat", 6); r0 = self.opts.get("rd1at", 0)
        rd = list(rd) + self.bias_ops(lp)
        per = self.opts.get("rd1per", 4)
        for k in range(8):
            if k == pp: self.poll(lp)
            if k < len(d): d[k]()
            if r0 <= k: self.run(rd[:per]); rd = rd[per:]
            self.stamp(f"l1{self.X}{lp}_{k}")
        if pp >= 8: self.poll(lp)
    def light2(self, kind, l, rd, lp):
        d = self.dma(kind, l, 2) + self.dma(kind, l, 3) + [lambda: None] * 8
        p2 = self.opts.get("pre2", 3); rd = list(rd)
        self.run(d[:p2])
        self.run(rd[:4]); d[p2](); self.run(rd[4:]); d[p2+1]()
        self.stamp(f"pd{self.X}{lp}")
        self.check_post(lp, d[p2+2:p2+3])
        self.stamp(f"po{self.X}{lp}")
        ux = self.unpack(XF, PK, 8)
        self.run(ux[:8]); self.run(d[p2+3:p2+4]); self.run(ux[8:])
        self.wvm(f"{kind}{l}a")
        self.run(d[p2+4:8])
        self.stamp(f"en{self.X}{lp}")
    def progA(self):
        a = self.a
        self.wvm("V0"); self.stamp("v0l"); self.wvm("clr")
        self.bar("b0")
        self.prio(2)
        xr = self.x_reads(); rv = [f for g in range(4) for f in self.rdV(g)]
        self.run(rv[0:4]); self.run(xr[0:2]); self.run(rv[4:8]); self.run(xr[2:4])
        q = rv[8:12] + xr[4:6] + rv[12:16]
        for ks in range(8):
            self.wlg(f"rV{ks>>1}_{ks&1}")
            if ks >= 2: self.wlg(f"x{ks}")
            self.mf1(ks, [q[0:1], q[1:2]]); q = q[2:]
            if ks == self.opts.get("flagat", 2): self.clr1_flag()
            if ks == self.opts.get("lateat", 3): self.late(0)
        self.send(0)
        self.prio(0)
        self.bar("b1")
        self.light1("V", 1, self.rdU(0) + self.rdU(1), 0)
        self.late(1)
        self.bar("b1x")
        self.run(self.rdU(2))
        self.check_post(0, [])
        self.run(self.rdU(3)); self.run(self.unpack(XF, PK, 8))
        self.wvm("V1a")
        self.late(2)
        self.bar("b2")
        for l in range(L):
            last = l == L-1
            self.c(f"==== A round {l} phase 0: G2 ====")
            self.prio(2)
            if last: self.final_addr()
            self.g2_phase(l, early=(None if last else self.rdV(0) + self.rdV(1)))
            if last:
                self.a("s_barrier"); self.final_store(); return
            self.wvm(f"V{l+1}b")
            self.stamp(f"g2g0{l}")
            self.bar(f"A0{l}")
            self.c(f"==== A round {l} phase 1: G1 ====")
            self.g1_phase(l+1, jitV=True)
            self.late(3 + l)
            self.prio(0)
            self.bar(f"A1{l}")
            self.c(f"==== A round {l} phase 2 ====")
            self.light1("V", l+2, self.rdU(0) + self.rdU(1), l+1)
            self.bar(f"A2{l}")
            self.c(f"==== A round {l} phase 3 ====")
            self.light2("V", l+2, self.rdU(2) + self.rdU(3), l+1)
            self.bar(f"A3{l}")

    def progB(self):
        self.lab("L_progB")
        self.run(self.dma("U", 0, 0) + self.dma("U", 0, 1))
        self.wvm("V0"); self.stamp("v0l"); self.wvm("clr")
        self.bar("b0")
        d = self.dma("U", 0, 2) + self.dma("U", 0, 3)
        rv = [f for g in range(4) for f in self.rdV(g)]
        self.run(d[:4])
        for k in range(4):
            self.run(rv[4*k:4*k+4]); d[4+k]()
        self.wvm("U0a")
        self.bar("b1")
        self.prio(2)
        self.clr1_flag()
        self.g1_phase(0, extra=self.rdU(0) + self.rdU(1))
        self.prio(0)
        self.wvm("U0b")
        self.bar("b1x")
        self.mix(self.dma("V", 1, 2) + self.dma("V", 1, 3), self.rdU(2) + self.rdU(3))
        self.bar("b2")
        for l in range(L):
            last = l == L-1
            self.c(f"==== B round {l} phase 0 ====")
            if not last:
                self.light1("U", l+1, self.rdV(0) + self.rdV(1), l)
                if l == 0: self.wvm("V1b")
                self.bar(f"B0{l}")
                self.c(f"==== B round {l} phase 1 ====")
                self.light2("U", l+1, self.rdV(2) + self.rdV(3), l)
            else:
                self.run(self.unpack(XF, PK, 8)); self.final_addr()
                self.poll(l); self.check_post(l)
            self.bar(f"B1{l}")
            self.c(f"==== B round {l} phase 2: G2 ====")
            self.prio(2)
            if last:
                self.g2_phase(l); self.final_store(); return
            self.g2_phase(l, mid=self.rdU(0), late=self.rdU(1))
            self.wvm(f"U{l+1}b")
            self.bar(f"B2{l}")
            self.c(f"==== B round {l} phase 3: G1 ====")
            self.g1_phase(l+1, extra=self.rdU(2) + self.rdU(3))
            self.prio(0)
            self.bar(f"B3{l}")

    def final_addr(self):
        a = self.a; t = [RX, RX+1, RX+2]
        a(f"v_and_b32 v{t[0]}, 15, v{vLANE}"); a(f"v_lshrrev_b32 v{t[1]}, 4, v{vLANE}")
        a(f"v_and_b32 v{t[2]}, 7, v{t[0]}"); a(f"v_xor_b32 v{t[2]}, v{t[2]}, v{t[1]}"); a(f"v_lshlrev_b32 v{t[2]}, 4, v{t[2]}")
        a(f"v_lshl_add_u32 v{t[2]}, v{t[0]}, 7, v{t[2]}")
        a(f"v_and_b32 v{vT[0]}, 0xfffff800, v{vXW}"); a(f"v_add_u32 v{vT[0]}, v{vT[0]}, v{t[2]}"); a(f"v_xor_b32 v{vT[1]}, 64, v{vT[0]}")
        a(f"v_lshrrev_b32 v{t[0]}, 3, v{vLANE}"); a(f"v_xor_b32 v{t[1]}, v{t[0]}, v{vLANE}"); a(f"v_and_b32 v{t[1]}, 7, v{t[1]}")
        a(f"v_lshlrev_b32 v{t[1]}, 4, v{t[1]}")
        a(f"v_and_b32 v{t[2]}, 4, v{t[0]}"); a(f"v_add_u32 v{t[0]}, v{t[0]}, v{t[2]}")
        a(f"v_lshl_add_u32 v{vT[2]}, v{t[0]}, 10, v{t[1]}")

    def final_store(self):
        a = self.a; D = XF
        for m in range(2):
            self.lgop(f"ds_read_b128 {vr(D+4*m,4)}, v{vXW} offset:{m*1024}", f"fo{m}")
        fl = self.opts.get("outflags", "")
        for m in range(2):
            a(f"s_add_u32 s{sT[m]}, s{sT[7]}, {m*16384}")
            self.wlg(f"fo{m}")
            self.vmop(f"buffer_store_dwordx4 {vr(D+4*m,4)}, v{vT[2]}, {sr(sO,4)}, s{sT[m]} offen {fl}", "out")
        if self.opts.get("stag"):
            u = self.X
            a("s_waitcnt vmcnt(0)")
            a(f"s_add_u32 s4, s{sKA+12}, 0x700000"); a(f"s_addc_u32 s5, s{sKA+13}, 0")
            a("s_load_dwordx8 s[84:91], s[4:5], 0"); a("s_memrealtime s[94:95]"); a("s_waitcnt lgkmcnt(0)")
            a("s_mov_b32 s92, 0")
            for i in range(8):
                a(f"s_sub_u32 s93, s{sSTAMP}, s{84+i}"); a("s_cmp_lt_u32 s93, 3000"); a("s_cselect_b32 s93, s93, 0"); a("s_max_u32 s92, s92, s93")
            self.lab(f"L_echo{u}")
            a("s_sleep 1"); a("s_memrealtime s[96:97]"); a("s_waitcnt lgkmcnt(0)"); a("s_sub_u32 s93, s96, s94")
            a("s_cmp_lt_u32 s93, s92"); a(f"s_cbranch_scc1 L_echo{u}")
        elif self.opts.get("echo"):
            u = self.X
            a("s_waitcnt vmcnt(0)"); self.stamp("fin")
            a("s_memtime s[90:91]"); a("s_waitcnt lgkmcnt(0)")
            a(f"s_sub_u32 s92, s{sSTAMP+2}, s{sSTAMP}")
            self.lab(f"L_echo{u}")
            a("s_sleep 1"); a("s_memtime s[94:95]"); a("s_waitcnt lgkmcnt(0)"); a("s_sub_u32 s93, s94, s90")
            a("s_cmp_lt_u32 s93, s92"); a(f"s_cbranch_scc1 L_echo{u}")
        elif self.prof:
            a("s_waitcnt vmcnt(0)")
            self.stamp("fin"); self.stamp("rt1")
            a("s_waitcnt lgkmcnt(0)")
            a(f"v_mov_b32 v{RX}, 0")
            for i in range(len(self.prof)): a(f"v_writelane_b32 v{RX}, s{sSTAMP+2*i}, {i}")
            a(f"s_lshl_b32 s{sT[0]}, s2, 3"); a(f"s_add_u32 s{sT[0]}, s{sT[0]}, s{sWV}"); a(f"s_lshl_b32 s{sT[0]}, s{sT[0]}, 8")
            a(f"s_add_u32 s{sT[0]}, s{sT[0]}, {6<<20}")
            a(f"v_lshlrev_b32 v{vT[0]}, 2, v{vLANE}")
            a(f"buffer_store_dword v{RX}, v{vT[0]}, {sr(sW,4)}, s{sT[0]} offen")
        for i in range(self.opts.get("delay", 0)): a("s_sleep 125")
        a("s_endpgm")

    def handshake(self):
        a = self.a; x = self.x; P = XF; u = self.X
        self.c("handshake: the partner's inbox is cleared; does it share this XCD?")
        a(f"s_mov_b32 s{sCNT}, 0"); a(f"s_mov_b32 s{sMODE}, 1")
        self.wvm("clr1")
        a("s_waitcnt lgkmcnt(0)"); self.lgdone = len(self.lg)
        a(f"s_lshr_b32 s{sT[0]}, s{sT[1]}, s{sT[3]}"); a(f"s_and_b32 s{sT[0]}, s{sT[0]}, 0xff")
        a(f"s_cmp_eq_u32 s{sT[0]}, s{sXCC}"); a(f"s_cbranch_scc0 L_hs_fast{u}")
        self.lab(f"L_hs_done{u}")
        self.rec("hscnt", f"s{sCNT}"); self.rec("mode", f"s{sMODE}")
        self.xl(f"L_hs_fast{u}")
        x(f"buffer_load_ubyte v{vT[1]}, v{vT[2]}, {sr(sD,4)}, 0 offen sc1")
        x("s_waitcnt vmcnt(0)")
        x(f"v_readfirstlane_b32 s{sT[0]}, v{vT[1]}")
        x(f"s_cmp_eq_u32 s{sT[0]}, s{sXCC}"); x(f"s_cbranch_scc1 L_hs_done{u}")
        x(f"s_add_u32 s{sCNT}, s{sCNT}, 1"); x(f"s_cmp_lt_u32 s{sCNT}, {self.opts.get('fastpolls', 8)}"); x(f"s_cbranch_scc1 L_hs_fast{u}")
        for r in range(4): x(f"v_mov_b32 v{P+4+r}, 0")
        for sl in range(2):
            x(f"buffer_store_dwordx4 {vr(P+4,4)}, v{vE}, {sr(sW,4)}, s{sMY[sl]} offen sc1")
        x(f"s_lshl_b32 s{sT[1]}, s2, 3"); x(f"s_add_u32 s{sT[1]}, s{sT[1]}, s{sWV}"); x(f"s_lshl_b32 s{sT[1]}, s{sT[1]}, 7")
        x(f"s_add_u32 s{sT[1]}, s{sT[1]}, {4<<20}")
        x(f"s_xor_b32 s{sT[2]}, s{sT[1]}, {8*8*128}")
        x(f"v_mov_b32 v{P+2}, 0")
        x("s_mov_b64 exec, 1")
        x(f"buffer_load_dwordx4 {vr(P+8,4)}, v{P+2}, {sr(sW,4)}, s{sT[2]} offen sc1")
        x("s_waitcnt vmcnt(0)")
        x(f"v_readfirstlane_b32 s{sT[3]}, v{P+10}")
        x(f"s_add_u32 s{sT[3]}, s{sT[3]}, 1")
        x(f"v_mov_b32 v{P+3}, s{sT[3]}")
        x(f"buffer_store_dword v{P+3}, v{P+2}, {sr(sW,4)}, s{sT[1]} offen sc1")
        x("s_waitcnt vmcnt(0)")
        x(f"s_mov_b32 s{sCNT}, 0")
        self.xl(f"L_hs_slow{u}")
        x(f"buffer_load_ubyte v{vT[1]}, v{vT[2]}, {sr(sD,4)}, 0 offen sc1")
        x(f"buffer_load_dwordx4 {vr(P+8,4)}, v{P+2}, {sr(sW,4)}, s{sT[2]} offen sc1")
        x("s_waitcnt vmcnt(0)")
        x(f"v_readfirstlane_b32 s{sT[0]}, v{vT[1]}")
        x(f"v_readfirstlane_b32 s{sT[5]}, v{P+8}")
        x(f"v_readfirstlane_b32 s{sT[4]}, v{P+10}")
        x(f"v_readfirstlane_b32 s{sMODE}, v{P+11}")
        x(f"s_cmp_eq_u32 s{sT[0]}, s{sXCC}"); x(f"s_cbranch_scc1 L_hs_same{u}")
        x(f"v_mov_b32 v{P+12}, s{sT[5]}"); x(f"v_mov_b32 v{P+13}, s{sXCC}")
        x(f"buffer_store_dwordx2 {vr(P+12,2)}, v{P+2}, {sr(sW,4)}, s{sT[1]} offen offset:8 sc1")
        x(f"s_add_u32 s{sCNT}, s{sCNT}, 1"); x(f"s_cmp_gt_u32 s{sCNT}, 0x200000"); x(f"s_cbranch_scc1 L_hs_same{u}")
        x(f"s_cmp_eq_u32 s{sT[4]}, s{sT[3]}"); x(f"s_cbranch_scc0 L_hs_slow{u}")
        x(f"s_cmp_eq_u32 s{sMODE}, s{sXCC}"); x(f"s_cbranch_scc1 L_hs_same{u}")
        x(f"s_mov_b32 s{sMODE}, 0")
        x(f"s_mov_b32 s{sE}, s{sKA+12}"); x(f"s_mov_b32 s{sE+1}, s{sKA+13}")
        x("s_mov_b64 exec, -1")
        x(f"s_branch L_hs_done{u}")
        self.xl(f"L_hs_same{u}")
        x(f"s_mov_b32 s{sMODE}, 1")
        x("s_mov_b64 exec, -1")
        x(f"s_branch L_hs_done{u}")

    def build(self):
        hdr = [f"; @launch grid=(256,1,1) block=(512,1,1) lds={LDS_BYTES}",
               '.amdgcn_target "amdgcn-amd-amdhsa--gfx950"', ".text", f".globl {KN}", ".p2align 8",
               f".type {KN},@function", f"{KN}:"]
        self.prologue()
        A = self.fork(0); A.progA()
        B = self.fork(1); B.progB()
        nb = lambda g: sum(1 for s in g.o if s.strip() == "s_barrier")
        assert nb(A) == nb(B), (nb(A), nb(B))
        assert NV + NA <= 256
        ftr = [f".set CODE_BYTES, L_end - {KN}", '.section .rodata,"a"', ".p2align 6", f".amdhsa_kernel {KN}",
               f"  .amdhsa_next_free_vgpr {NV+NA}", "  .amdhsa_next_free_sgpr 102", f"  .amdhsa_accum_offset {NV}",
               "  .amdhsa_group_segment_fixed_size 0", "  .amdhsa_kernarg_size 56", "  .amdhsa_user_sgpr_count 2",
               "  .amdhsa_user_sgpr_kernarg_segment_ptr 1", "  .amdhsa_system_sgpr_workgroup_id_x 1",
               "  .amdhsa_float_denorm_mode_32 3", ".end_amdhsa_kernel"]
        log = []
        m1, n1 = fix_hazards(self.o + A.o, log)
        m2, n2 = fix_hazards(B.o, log)
        ool, n3 = fix_hazards(self.ool)
        main = m1 + m2 + ["L_end:", "    s_endpgm"]
        wrap = lambda ls: "\n".join(hdr + ls + ool + ftr) + "\n"
        if self.opts.get("align", 1):
            main, nw, nn = align(main, wrap, self.opts.get("minrun", 99))
            sys.stderr.write(f"hazard nops {n1}+{n2}+{n3}, widened {nw}, align nops {nn}\n")
        if self.opts.get("hlog"):
            for e in log: sys.stderr.write(str(e) + "\n")
        return wrap(main)

if __name__ == "__main__":
    prof = None; opts = {}
    for x in sys.argv[1:]:
        if x.startswith("--prof="): prof = x[7:].split(",")
        elif x.startswith("--"):
            k, v = x[2:].split("="); opts[k] = int(v) if v.lstrip("-").isdigit() else v
    out = [x for x in sys.argv[1:] if not x.startswith("--")][0]
    g = Gen(prof, opts); txt = g.build()
    if prof: txt = txt + "; stamps: " + ",".join(prof) + "\n"
    open(out, "w").write(txt)
```

```python
import sys, copy
from asmlib import fix_hazards, align
KN = "standalone__cross_network_dcn_v2__recsys_kernel"
L = 6
XB = 131072; HB = 147456; BIASB = 155648; LDS_BYTES = 161792
TAGS = [1, 1, 0, 0, 1, 1]

vLANE = 1; vA = [2, 21]; vE = 3; vV = [4, 5, 6, 7]; vU = [8, 9, 10, 11]
vXW = 12; vXR = [None, 13, 14, 15]; vHW = 16; vHR = [None, 17, 18, 19]
vBI = 20; vT = [22, 23, 24, 25]; vJ = 0
ACC1 = 26; ACC2 = 34; XF = 50; X0F = 66; PK = 82; HP = 90; RX = 94; TM = ACC2; SP = HP; T4 = 98; vPF = 102
NV = 104
aV = 0; aU = 64; aX = 128; aH = 128; aS = 128; NS = 6; NA = 152
sX0 = 4; sV = 8; sU = 12; sO = 16; sE = 20; sD = 24; sB = 28; sW = 32
sKA = 36
sWV = 50; sHF = 51; sRB = 52; sXCC = 53; sMODE = 54
sVG = [55, 56, 57, 58]; sUG = [59, 60, 61, 62]; sSO = [63, 64]; sLB = 65
sMY = [66, 67]; sWS = 68; sXH = 69
sCNT = 70; sT = [71, 72, 73, 74, 75, 76, 77, 78]; sPTMP = 79
sSTAMP = 80

def vr(b, n): return f"v[{b}:{b+n-1}]"
def ar(b, n): return f"a[{b}:{b+n-1}]"
def sr(b, n): return f"s[{b}:{b+n-1}]"

class Gen:
    def __init__(self, prof=None, opts=None):
        self.o = []; self.ool = []; self.vm = []; self.lg = []; self.vmdone = 0; self.lgdone = 0
        self.prof = prof; self.opts = opts or {}; self.names = []
        self.pw = []; self.nso = 0; self.nst = 0; self.X = 0
        self.pat = self.opts.get("pat", "BBBB/DBDB/DDDB/DDDB"); self.lag = self.opts.get("lag", 4)
    def fork(self, X):
        g = copy.copy(self); g.o = []; g.vm = list(self.vm); g.lg = list(self.lg); g.pw = list(self.pw); g.X = X
        return g
    def a(self, s): self.o.append("    " + s)
    def x(self, s): self.ool.append("    " + s)
    def xl(self, s): self.ool.append(s + ":")
    def lab(self, s): self.o.append(s + ":")
    def c(self, s): self.o.append("    ; " + s)
    def vmop(self, s, tag): self.vm.append(tag); self.a(s)
    def lgop(self, s, tag): self.lg.append(tag); self.a(s)
    def _last(self, lst, tag):
        idx = [i for i, t in enumerate(lst) if t == tag]
        return idx[-1] if idx else None
    def wvm(self, tag):
        i = self._last(self.vm, tag)
        if i is not None: self.wvmi(i)
    def wvmi(self, i):
        if i < self.vmdone: return
        n = min(len(self.vm) - 1 - i, 63); self.vmdone = len(self.vm) - n
        self.a(f"s_waitcnt vmcnt({n})")
    def wlg(self, tag):
        i = self._last(self.lg, tag)
        if i is None or i < self.lgdone: return
        n = min(len(self.lg) - 1 - i, 15); self.lgdone = len(self.lg) - n
        self.a(f"s_waitcnt lgkmcnt({n})")
    def wlg0(self):
        if self.lgdone < len(self.lg): self.lgdone = len(self.lg); self.a("s_waitcnt lgkmcnt(0)")
    def bar(self, name=None):
        self.wlg0()
        if name: self.stamp(name + "a")
        self.a("s_barrier")
        if name: self.stamp(name + "b")
    def stamp(self, name):
        nm = name + "AB"[self.X] if False else name
        if self.prof and nm in self.prof:
            r = sSTAMP + 2 * self.prof.index(nm)
            assert r + 1 <= 101
            self.a(f"s_memrealtime s[{r}:{r+1}]" if nm.startswith("rt") else f"s_memtime s[{r}:{r+1}]")
    def rec(self, name, src):
        if self.prof and name in self.prof:
            self.a(f"s_mov_b32 s{sSTAMP + 2*self.prof.index(name)}, {src}")
    def prio(self, p):
        m = self.opts.get("prio", 1)
        if m == 1: self.a(f"s_setprio {p}")
        if m == 2: self.a(f"s_setprio {2-p}")
    def dma(self, kind, l, g, pat=None):
        if l >= L: return []
        if self.opts.get("dma") == "off" and l >= 2: return []
        pat = pat or self.pat.split("/")[g]
        so = sSO[self.nso & 1]; self.nso += 1
        base, sg, vv, srd = (0, sVG, vV, sV) if kind == "V" else (16384, sUG, vU, sU)
        tag = f"{kind}{l}" + "ab"[g >> 1]
        items = []
        for j in range(4):
            def emit(j=j):
                while self.pw and len(self.vm) - self.pw[0][0] > self.lag: self.pw.pop(0)[1]()
                if j == 0:
                    self.a(f"s_add_u32 m0, s{sLB}, {base+g*4096}"); self.a(f"s_add_u32 s{so}, s{sg[g]}, {l*131072}")
                if pat[j % len(pat)] in "DBC":
                    self.vmop(f"buffer_load_dwordx4 v{vv[j]}, {sr(srd,4)}, s{so} offen offset:{1024*j} lds", tag)
                    for q in range({"D": 0, "B": 1, "C": 2}[pat[j % len(pat)]]): self.vmop(f"buffer_load_dword v{vJ}, off, {sr(sB,4)}, 0", "gap")
            items.append(emit)
        return items
    def flush(self, keep3=False):
        while self.pw and not (keep3 and self.pw[0][2] == 3): self.pw.pop(0)[1]()
    def rdV(self, g):
        return [lambda j=j: self.lgop(f"ds_read_b128 {ar(aV+4*(4*g+j),4)}, v{vA[j>>1]} offset:{g*4096+(j&1)*2048}", f"rV{g}_{j>>1}") for j in range(4)]
    def rdU(self, g):
        return [lambda j=j: self.lgop(f"ds_read_b128 {ar(aU+4*(4*g+j),4)}, v{vA[j>>1]} offset:{16384+g*4096+(j&1)*2048}", f"rU{g}") for j in range(4)]
    def mf1(self, ks, fill=None):
        for ta in range(2):
            b = vr(PK + 4*ks, 4) if ks < 2 else ar(aX + 4*(ks-2), 4)
            d = vr(ACC1 + 4*ta, 4)
            self.a(f"v_mfma_f32_16x16x32_bf16 {d}, {ar(aV+4*(2*ks+ta),4)}, {b}, {'0' if ks == 0 else d}")
            if fill: self.run(fill[ta])
    def mf2(self, P, kr, fill=None):
        for ta in range(2):
            b = vr(HP, 4) if kr == 0 else ar(aH + 4*(kr-1), 4)
            d = vr(ACC2 + 8*P + 4*ta, 4)
            idx = ((kr >> 1)*2 + P)*4 + (kr & 1)*2 + ta
            self.a(f"v_mfma_f32_16x16x32_bf16 {d}, {ar(aU+4*idx,4)}, {b}, {d}")
            if fill: self.run(fill[ta])
    def epi(self, P, l, pk=False):
        r = []
        if pk:
            for e in range(4):
                q = 8*P + 2*e
                r.append(lambda q=q: self.a(f"v_pk_fma_f32 {vr(ACC2+q,2)}, {vr(X0F+q,2)}, {vr(ACC2+q,2)}, {vr(XF+q,2)}"))
        else:
            for e in range(8):
                q = 8*P + e
                r.append(lambda q=q: self.a(f"v_fma_f32 v{ACC2+q}, v{X0F+q}, v{ACC2+q}, v{XF+q}"))
        for e in range(4):
            q = 8*P + 2*e
            r.append(lambda q=q: self.a(f"v_cvt_pk_bf16_f32 v{PK+q//2}, v{ACC2+q}, v{ACC2+q+1}"))
        if l < L-1: r.append(lambda: self.lgop(f"ds_write_b128 v{vXW}, {vr(PK+4*P,4)} offset:{P*1024}", "xw"))
        else: r.append(lambda: self.lgop(f"ds_write_b128 v{vT[P]}, {vr(PK+4*P,4)}", "xw"))
        return r
    def unpack(self, dst, src, n):
        r = []
        for i in range(n):
            r.append(lambda i=i: self.a(f"v_lshlrev_b32 v{dst+2*i}, 16, v{src+i}"))
            r.append(lambda i=i: self.a(f"v_and_b32 v{dst+2*i+1}, 0xffff0000, v{src+i}"))
        return r
    def bias_rd(self, l):
        for k in range(4):
            self.lgop(f"ds_read_b128 {vr(ACC2+4*k,4)}, v{vBI} offset:{l*256 + (k>>1)*128 + (k&1)*16}", "bias")
    def run(self, lst):
        for f in lst: f()
    def mix(self, *lists):
        lists = [list(x) for x in lists]
        while any(lists):
            for x in lists:
                if x: x.pop(0)()
    def srd(self, r, p, n, bias=0):
        if bias:
            self.a(f"s_sub_u32 s{r}, s{p}, {bias}"); self.a(f"s_subb_u32 s{r+1}, s{p+1}, 0")
        else:
            self.a(f"s_mov_b32 s{r}, s{p}"); self.a(f"s_mov_b32 s{r+1}, s{p+1}")
        self.a(f"s_mov_b32 s{r+2}, {n+bias}"); self.a(f"s_mov_b32 s{r+3}, 0x20000")
    def poll(self, l):
        self.vmop(f"buffer_load_dwordx4 {vr(RX,4)}, v{vE}, {sr(sE,4)}, s{sMY[l&1]} offen sc1", f"poll{l}")
    def send(self, l, u=None):
        a = self.a; u = u if u is not None else f"{self.X}{l}"
        a(f"s_xor_b32 s{sPTMP}, s{sMY[l&1]}, 512")
        for k in range(4): a(f"v_cvt_pk_bf16_f32 v{SP+k}, v{ACC1+2*k}, v{ACC1+2*k+1}")
        for k in range(4): a(f"v_or_b32 v{SP+k}, 1, v{SP+k}" if TAGS[l] else f"v_and_b32 v{SP+k}, -2, v{SP+k}")
        if l == 0: self.handshake()
        self.stamp(f"snd{u}")
        a(f"s_cmp_eq_u32 s{sMODE}, 0"); a(f"s_cbranch_scc1 L_ss{u}")
        self.vmop(f"buffer_store_dwordx4 {vr(SP,4)}, v{vE}, {sr(sE,4)}, s{sPTMP} offen", "st")
        self.lab(f"L_sd{u}")
        self.xl(f"L_ss{u}")
        self.x(f"buffer_store_dwordx4 {vr(SP,4)}, v{vE}, {sr(sE,4)}, s{sPTMP} offen sc1")
        self.x("s_nop 1"); self.x(f"s_branch L_sd{u}")
    def chk_ops(self, l):
        R = RX; t0 = vT[3]
        if TAGS[l]:
            return [f"v_bitop3_b32 v{t0}, v{R}, v{R+1}, v{R+2} bitop3:0x80", f"v_bitop3_b32 v{t0}, v{t0}, v{R+3}, 1 bitop3:0x80", f"v_cmp_eq_u32 vcc, 0, v{t0}"]
        return [f"v_or3_b32 v{t0}, v{R}, v{R+1}, v{R+2}", f"v_bitop3_b32 v{t0}, v{t0}, 1, v{R+3} bitop3:0xc8", f"v_cmp_ne_u32 vcc, 0, v{t0}"]
    def check_post(self, l, d=None):
        u = f"{self.X}{l}"; x = self.x; a = self.a
        self.wvm(f"poll{l}")
        self.stamp(f"chk{u}")
        if self.opts.get("dbgcnt"): a(f"s_mov_b32 s{sCNT}, 0")
        for s in self.chk_ops(l): a(s)
        a(f"s_cbranch_vccnz L_rt{u}")
        self.lab(f"L_got{u}")
        self.stamp(f"got{u}")
        if self.opts.get("dbgcnt"): self.rec(f"cnt{l}", f"s{sCNT}")
        self.xl(f"L_rt{u}")
        x(f"s_mov_b32 s{sCNT}, 0")
        self.xl(f"L_rl{u}")
        x(f"buffer_load_dwordx4 {vr(RX,4)}, v{vE}, {sr(sE,4)}, s{sMY[l&1]} offen sc1")
        x(f"s_add_u32 s{sCNT}, s{sCNT}, 1"); x(f"s_cmp_gt_u32 s{sCNT}, 0x200000")
        x("s_waitcnt vmcnt(0)")
        x(f"s_cbranch_scc1 L_got{u}")
        for s in self.chk_ops(l): x(s)
        x(f"s_cbranch_vccnz L_rl{u}")
        x(f"s_branch L_got{u}")
        ops = []
        for h in range(2):
            ops += self.unpack(T4, RX+2*h, 2)
            if self.opts.get("pkadd", 0):
                for k in range(2): ops.append(lambda k=k, h=h: a(f"v_pk_add_f32 {vr(T4+2*k,2)}, {vr(T4+2*k,2)}, {vr(ACC1+4*h+2*k,2)}"))
            else:
                for k in range(4): ops.append(lambda k=k, h=h: a(f"v_add_f32 v{T4+k}, v{T4+k}, v{ACC1+4*h+k}"))
            for k in range(2): ops.append(lambda k=k, h=h: a(f"v_cvt_pk_bf16_f32 v{HP+2*h+k}, v{T4+2*k}, v{T4+2*k+1}"))
        ops.append(lambda: self.lgop(f"ds_write_b128 v{vHW}, {vr(HP,4)}", "hw"))
        if d is None:
            self.run(ops); self.bias_rd(l); return
        d = list(d); st = self.opts.get("vper", 10)
        while ops:
            self.run(ops[:st]); ops = ops[st:]
            if ops and d: d.pop(0)()
        self.run(d)
    def x_reads(self):
        return [lambda ks=ks: self.lgop(f"ds_read_b128 {ar(aX+4*(ks-2),4)}, v{vXR[ks>>1]} offset:{(ks&1)*1024}", f"x{ks}") for ks in range(2, 8)]
    def h_reads(self):
        for kr in range(1, 4):
            self.lgop(f"ds_read_b128 {ar(aH+4*(kr-1),4)}, v{vHR[kr]}", f"h{kr}")

    def g2_phase(self, l, early=None, mid=None, late=None):
        early = list(early or []); mid = list(mid or []); late = list(late or [])
        def take(q): return [q[0:1], q[1:2]]
        self.h_reads()
        self.mf2(0, 0, take(early)); self.mf2(1, 0, take(early[2:]))
        self.wlg("h1"); self.mf2(0, 1, take(early[4:]))
        self.wlg("h2"); self.mf2(0, 2, take(early[6:] + mid))
        self.wlg("h3"); self.mf2(0, 3, take(mid[2:]))
        self.flush()
        e0 = self.epi(0, l); e1 = self.epi(1, l, pk=self.opts.get("pkfma", 1))
        u = f"{self.X}{l}"
        self.stamp(f"g2a{u}")
        if self.opts.get("e0mix", 1):
            self.mf2(1, 1, [[], late[0:4]])
            self.mf2(1, 2, [[], e0[0:3]])
            self.stamp(f"g2b{u}")
            self.mf2(1, 3, [e0[3:6], e0[6:-1]])
        else:
            self.mf2(1, 1); self.mf2(1, 2, [late[0:2], late[2:4]])
            self.stamp(f"g2b{u}")
            self.mf2(1, 3, [e0[0:2], e0[2:-1]])
        self.stamp(f"g2c{u}")
        e0[-1]()
        self.stamp(f"g2d{u}")
        self.run(e1[:-1])
        self.stamp(f"g2e{u}")
        e1[-1]()
        self.stamp(f"g2f{u}")
    def g1_phase(self, l, jitV=False, extra=None):
        xr = self.x_reads(); extra = list(extra or [])
        if jitV:
            rv = self.rdV(2) + self.rdV(3)
            ev = self.opts.get("earlyv", 8)
            pre = (self.rdV(0) + self.rdV(1))[ev:]
            self.run(pre[:4]); self.run(xr[0:2]); self.run(pre[4:])
            q = [xr[2], rv[0], rv[1], xr[3], rv[2], rv[3], xr[4], rv[4], rv[5], xr[5], rv[6], rv[7]]
            for ks in range(8):
                self.wlg(f"rV{ks>>1}_{ks&1}")
                if ks >= 2: self.wlg(f"x{ks}")
                self.mf1(ks, [q[0:2], q[2:3]]); q = q[3:]
        else:
            self.run(xr)
            for ks in range(8):
                if ks >= 2: self.wlg(f"x{ks}")
                self.mf1(ks, [extra[0:1], extra[1:2]]); extra = extra[2:]
            self.run(extra)
        self.send(l)
        self.run(self.unpack(XF, PK, 8))

    def prologue(self):
        a = self.a; T = [X0F + i for i in range(10)]
        a(f"s_load_dwordx8 {sr(sKA,8)}, s[0:1], 0")
        a(f"s_load_dwordx4 {sr(sKA+8,4)}, s[0:1], 32")
        a(f"s_load_dwordx2 {sr(sKA+12,2)}, s[0:1], 48")
        a("s_cmp_ge_u32 s2, 256"); a("s_cbranch_scc1 L_end")
        self.stamp("start"); self.stamp("rt0")
        a(f"v_lshrrev_b32 v{T[0]}, 6, v0"); a(f"v_and_b32 v{vLANE}, 63, v0")
        a(f"s_lshr_b32 s{sT[0]}, s2, 3")
        a(f"v_readfirstlane_b32 s{sWV}, v{T[0]}")
        a(f"s_lshl_b32 s{sT[0]}, s{sT[0]}, 3"); a(f"s_add_u32 s{sT[6]}, s{sT[0]}, s{sWV}")
        if self.opts.get("codepf", 1):
            a(f"s_getpc_b64 {sr(sX0,2)}")
            a(f"s_and_b32 s{sX0}, s{sX0}, 0xffffff00")
            a(f"s_lshl_b32 s{sT[1]}, s{sT[6]}, 7"); a(f"v_mov_b32 v{T[1]}, s{sT[1]}")
            a(f"s_cmp_ge_u32 s{sT[1]}, CODE_BYTES"); a("s_cbranch_scc1 L_nocpf")
            a("s_mov_b64 exec, 1")
            a(f"global_load_dword v{vJ}, v{T[1]}, {sr(sX0,2)}")
            a("s_mov_b64 exec, -1")
            self.lab("L_nocpf")
        a(f"s_and_b32 s{sWS}, s{sWV}, 3"); a(f"s_lshr_b32 s{sXH}, s{sWV}, 2")
        a(f"v_lshrrev_b32 v{T[6]}, 2, v{vLANE}"); a(f"v_and_b32 v{T[7]}, 3, v{vLANE}")
        a(f"v_lshlrev_b32 v{T[9]}, 7, v{T[7]}"); a(f"v_lshl_add_u32 v{vPF}, v{T[6]}, 17, v{T[9]}")
        a(f"s_lshl_b32 s{sT[6]}, s{sT[6]}, 9"); a(f"s_add_u32 s{sT[6]}, s{sT[6]}, 3072")
        a(f"s_bfe_u32 s{sHF}, s2, 0x10003")
        a(f"s_lshr_b32 s{sT[0]}, s2, 4"); a(f"s_lshl_b32 s{sT[0]}, s{sT[0]}, 3"); a(f"s_and_b32 s{sRB}, s2, 7"); a(f"s_or_b32 s{sRB}, s{sRB}, s{sT[0]}")
        a(f"s_lshl_b32 s{sLB}, s{sWS}, 15")
        a(f"v_lshrrev_b32 v{T[0]}, 4, v{vLANE}")
        a(f"v_lshrrev_b32 v{T[1]}, 3, v{vLANE}"); a(f"v_and_b32 v{T[2]}, 6, v{T[1]}"); a(f"v_xor_b32 v{T[2]}, v{T[2]}, v{vLANE}")
        a(f"v_and_b32 v{T[2]}, 7, v{T[2]}"); a(f"v_lshlrev_b32 v{T[2]}, 4, v{T[2]}")
        a(f"v_and_b32 v{T[3]}, 4, v{T[1]}"); a(f"v_add_u32 v{T[1]}, v{T[1]}, v{T[3]}")
        a(f"v_lshl_add_u32 v{T[3]}, v{T[1]}, 10, v{T[2]}"); a(f"v_lshl_add_u32 v{T[4]}, v{T[1]}, 8, v{T[2]}")
        for j in range(4):
            a(f"v_add_u32 v{vV[j]}, {((j&1)*16 + (j>>1)*4)*1024 - 1024*j + 3072}, v{T[3]}")
        a(f"s_lshl_b32 s{sT[2]}, s{sHF}, 9"); a(f"s_add_u32 s{sT[3]}, s{sLB}, s{sT[2]}")
        a(f"s_lshl_b32 s{sT[4]}, s{sRB}, 15"); a(f"s_add_u32 s{sT[4]}, s{sT[4]}, s{sT[2]}")
        a(f"s_lshl_b32 s{sT[5]}, s{sXH}, 12"); a(f"s_add_u32 s{sT[4]}, s{sT[4]}, s{sT[5]}")
        a(f"s_lshl_b32 s{sT[5]}, s{sWS}, 7"); a(f"s_add_u32 s{sT[7]}, s{sT[4]}, s{sT[5]}")
        a(f"s_lshr_b32 s{sT[5]}, s{sWS}, 1"); a(f"s_lshl_b32 s{sT[5]}, s{sT[5]}, 13"); a(f"s_add_u32 s{sT[4]}, s{sT[4]}, s{sT[5]}")
        a(f"s_and_b32 s{sT[5]}, s{sWS}, 1"); a(f"s_lshl_b32 s{sT[5]}, s{sT[5]}, 11"); a(f"s_add_u32 s{sMY[0]}, s{sT[4]}, s{sT[5]}")
        a(f"s_add_u32 s{sMY[1]}, s{sMY[0]}, 16384")
        for g in range(4):
            a(f"s_xor_b32 s{sT[4]}, s{sWS}, {g}"); a(f"s_lshl_b32 s{sT[4]}, s{sT[4]}, 7"); a(f"s_add_u32 s{sVG[g]}, s{sT[3]}, s{sT[4]}")
        a(f"v_lshrrev_b32 v{T[8]}, 5, v{vLANE}"); a(f"v_and_b32 v{vE}, 31, v{vLANE}"); a(f"v_lshlrev_b32 v{vE}, 4, v{vE}")
        a(f"v_lshl_add_u32 v{vE}, v{T[8]}, 10, v{vE}")
        for r in range(4): a(f"v_mov_b32 v{TM+r}, 0")
        a(f"v_mov_b32 v{vT[2]}, s2"); a(f"v_xor_b32 v{vT[2]}, 8, v{vT[2]}")
        a(f"s_lshl_b32 s{sT[5]}, s{sWS}, 12"); a(f"s_lshl_b32 s{sT[4]}, s{sXH}, 11"); a(f"s_add_u32 s{sT[5]}, s{sT[5]}, s{sT[4]}")
        a(f"s_add_u32 m0, s{sT[5]}, {XB}")
        a(f"v_lshrrev_b32 v{T[6]}, 3, v{vLANE}"); a(f"v_and_b32 v{T[7]}, 7, v{vLANE}")
        a(f"v_lshlrev_b32 v{T[8]}, 4, v{T[7]}"); a(f"v_lshl_add_u32 v{T[8]}, v{T[6]}, 10, v{T[8]}")
        a(f"s_lshl_b32 s{sT[5]}, s{sWS}, 7"); a(f"s_add_u32 s{sT[5]}, s{sT[5]}, s{sT[2]}"); a(f"s_mul_i32 s{sT[3]}, s{sXH}, 3072"); a(f"s_add_u32 s{sT[5]}, s{sT[5]}, s{sT[3]}")
        a("s_waitcnt lgkmcnt(0)")
        self.stamp("karg")
        pf = self.opts.get("pf", 1)
        def pfl(lo):
            if not pf or not lo: return
            a(f"s_mov_b64 exec, {lo}")
            self.vmop(f"buffer_load_dword v{vJ}, v{vPF}, {sr(sV,4)}, s{sT[6]} offen", "pf")
            self.vmop(f"buffer_load_dword v{vJ}, v{vPF}, {sr(sU,4)}, s{sT[6]} offen", "pf")
            a("s_mov_b64 exec, -1")
        self.pfl = pfl
        masks = [int(m, 16) for m in str(self.opts.get("pfm", "f,fffff0")).split(",")]
        self.pfmasks = masks
        self.srd(sX0, sKA+0, 4096*1024, 3072)
        self.vmop(f"buffer_load_dwordx4 v{vV[0]}, {sr(sX0,4)}, s{sT[7]} offen lds", "x0")
        self.vmop(f"buffer_load_dwordx4 v{vV[1]}, {sr(sX0,4)}, s{sT[7]} offen offset:1024 lds", "x0")
        self.srd(sV, sKA+4, 6*131072, 3072)
        self.srd(sU, sKA+2, 6*131072, 3072)
        pfl(masks[0])
        self.srd(sB, sKA+6, 6*1024)
        self.srd(sD, sKA+10, 256)
        a("s_mov_b64 exec, 0xffffff")
        self.vmop(f"buffer_load_dwordx4 {vr(TM+4,4)}, v{T[8]}, {sr(sB,4)}, s{sT[5]} offen", "bias")
        a("s_mov_b64 exec, 1")
        self.vmop(f"buffer_load_ubyte v{vJ}, v{vT[2]}, {sr(sD,4)}, 0 offen", "touch")
        a("s_mov_b64 exec, -1")
        self.srd(sO, sKA+8, 4096*1024)
        bt = self.opts.get("boxtouch", 1)
        a(f"v_and_b32 v{RX+1}, 3, v{vLANE}"); a(f"v_lshlrev_b32 v{RX+1}, 7, v{RX+1}")
        a(f"v_bfe_u32 v{RX}, v{vLANE}, 2, 1"); a(f"v_lshl_add_u32 v{RX+1}, v{RX}, 10, v{RX+1}")
        a(f"v_bfe_u32 v{RX}, v{vLANE}, 3, 1"); a(f"v_lshl_add_u32 v{RX+1}, v{RX}, {12 if bt == 5 else 14}, v{RX+1}")
        if bt == 5: a(f"v_bfe_u32 v{RX}, v{vLANE}, 4, 1"); a(f"v_lshl_add_u32 v{RX+1}, v{RX}, 14, v{RX+1}")
        def box(m):
            a(f"s_mov_b64 exec, {m}")
            self.vmop(f"buffer_load_dword v{vJ}, v{RX+1}, {sr(sO,4)}, s{sMY[0]} offen", "bt")
            a("s_mov_b64 exec, -1")
        self.box = box
        if bt == 1: box(0xffff)
        if bt == 2: box(0xff)
        if self.opts.get("clrearly", 1):
            self.vmop(f"buffer_store_dwordx4 {vr(TM,4)}, v{vE}, {sr(sO,4)}, s{sMY[0]} offen", "clr")
        self.stamp("i_x0")
        a("s_barrier")
        a(f"s_lshl_b32 s{sT[4]}, s{sXH}, 13"); a(f"s_add_u32 s{sT[4]}, s{sT[4]}, s{sLB}")
        a(f"s_cmp_eq_u32 s{sXH}, 0")
        a(f"s_cselect_b32 s{sT[0]}, s{sVG[0]}, s{sVG[2]}"); a(f"s_cselect_b32 s{sT[1]}, s{sVG[1]}, s{sVG[3]}")
        def v0grp(k):
            a(f"s_add_u32 m0, s{sT[4]}, {k*4096}"); a("s_nop 0")
            for j in range(4):
                self.vmop(f"buffer_load_dwordx4 v{vV[j]}, {sr(sV,4)}, s{sT[k]} offen offset:{1024*j} lds", "V0")
                if (j & 1) and self.opts.get("pgap", 1): self.vmop(f"buffer_load_dword v{vJ}, off, {sr(sB,4)}, 0", "gap")
        v0grp(0)
        self.stamp("i_v0a")
        self.srd(sW, sKA+12, 8 << 20)
        self.srd(sE, sKA+8, 4096*1024)
        if self.opts.get("stag"):
            a(f"v_mov_b32 v{RX+2}, s{sSTAMP}"); a(f"s_lshl_b32 s90, s2, 2"); a("s_add_u32 s90, s90, 0x700000"); a(f"v_mov_b32 v{RX+3}, 0")
            a("s_mov_b64 exec, 1"); a(f"buffer_store_dword v{RX+2}, v{RX+3}, {sr(sW,4)}, s90 offen sc1"); a("s_mov_b64 exec, -1")
        a(f"s_getreg_b32 s{sXCC}, hwreg(HW_REG_XCC_ID)"); a(f"s_and_b32 s{sXCC}, s{sXCC}, 15"); a(f"s_or_b32 s{sXCC}, s{sXCC}, 16")
        a(f"s_and_b32 s{sT[0]}, s{sWS}, 1"); a(f"s_lshl_b32 s{sT[0]}, s{sT[0]}, 6"); a(f"v_xor_b32 v{T[4]}, s{sT[0]}, v{T[4]}")
        for j in range(4):
            a(f"v_add_u32 v{vU[j]}, {((j&1)*16 + (j>>1)*4)*256 - 1024*j + 3072}, v{T[4]}")
        a(f"s_lshl_b32 s{sT[0]}, s{sHF}, 16"); a(f"s_lshl_b32 s{sT[5]}, s{sWS}, 14"); a(f"s_add_u32 s{sT[0]}, s{sT[0]}, s{sT[5]}")
        for g in range(4):
            pp, P = g >> 1, g & 1
            a(f"s_xor_b32 s{sT[5]}, s{sWS}, {2*pp}"); a(f"s_and_b32 s{sT[5]}, s{sT[5]}, 2"); a(f"s_lshl_b32 s{sT[5]}, s{sT[5]}, 6")
            a(f"s_add_u32 s{sT[5]}, s{sT[5]}, {P*8192}"); a(f"s_add_u32 s{sUG[g]}, s{sT[0]}, s{sT[5]}")
        a(f"v_and_b32 v{T[1]}, 6, v{vLANE}"); a(f"v_xor_b32 v{T[2]}, v{T[1]}, v{T[0]}"); a(f"v_lshlrev_b32 v{T[2]}, 4, v{T[2]}")
        a(f"v_and_b32 v{T[1]}, 15, v{vLANE}"); a(f"v_lshl_add_u32 v{T[2]}, v{T[1]}, 7, v{T[2]}")
        a(f"v_add_u32 v{vA[0]}, s{sLB}, v{T[2]}"); a(f"v_xor_b32 v{vA[1]}, 64, v{vA[0]}")
        a(f"s_lshl_b32 s{sT[5]}, s{sWS}, 12"); a(f"s_lshl_b32 s{sT[0]}, s{sXH}, 11"); a(f"s_add_u32 s{sT[5]}, s{sT[5]}, s{sT[0]}"); a(f"s_add_u32 s{sT[5]}, s{sT[5]}, {XB}")
        a(f"v_add_u32 v{T[3]}, s{sT[5]}, v{T[2]}"); a(f"v_xor_b32 v{T[5]}, 64, v{T[3]}")
        a(f"v_lshlrev_b32 v{T[1]}, 4, v{vLANE}")
        a(f"v_add_u32 v{vXW}, s{sT[5]}, v{T[1]}")
        for g in range(1, 4): a(f"v_xor_b32 v{vXR[g]}, {g*4096}, v{vXW}")
        a(f"s_lshl_b32 s{sT[5]}, s{sWV}, 10"); a(f"s_add_u32 s{sT[5]}, s{sT[5]}, {HB}")
        a(f"v_add_u32 v{vHW}, s{sT[5]}, v{T[1]}")
        for g in range(1, 4): a(f"v_xor_b32 v{vHR[g]}, {g*1024}, v{vHW}")
        a(f"s_mul_i32 s{sT[5]}, s{sWS}, 1536"); a(f"s_add_u32 s{sT[5]}, s{sT[5]}, {BIASB}")
        a(f"v_lshlrev_b32 v{vBI}, 5, v{T[0]}"); a(f"v_add_u32 v{vBI}, s{sT[5]}, v{vBI}")
        a(f"s_mul_i32 s{sT[0]}, s{sXH}, 768"); a(f"s_add_u32 s{sT[5]}, s{sT[5]}, s{sT[0]}")
        a(f"v_lshlrev_b32 v{T[7]}, 5, v{T[7]}"); a(f"v_lshl_add_u32 v{T[7]}, v{T[6]}, 8, v{T[7]}"); a(f"v_add_u32 v{vT[0]}, s{sT[5]}, v{T[7]}")
        def xproc():
            self.wvm("x0")
            self.stamp("x0")
            for P in range(2):
                self.lgop(f"ds_read_b128 {vr(PK+4*P,4)}, v{T[5] if P else T[3]}", "x0r")
            self.wvm("bias")
            self.run(self.unpack(TM+8, TM+4, 4))
            self.wlg("x0r")
            for P in range(2):
                self.lgop(f"ds_write_b128 v{vXW}, {vr(PK+4*P,4)} offset:{P*1024}", "xw")
            a("s_mov_b64 exec, 0xffffff")
            self.lgop(f"ds_write_b128 v{vT[0]}, {vr(TM+8,4)}", "bw")
            self.lgop(f"ds_write_b128 v{vT[0]}, {vr(TM+12,4)} offset:16", "bw")
            a("s_mov_b64 exec, -1")
            self.run(self.unpack(X0F, PK, 8))
        xp = self.opts.get("xproc", 0)
        if xp == 0: xproc()
        v0grp(1)
        self.stamp("i_v0b")
        if not self.opts.get("clrearly", 1):
            self.vmop(f"buffer_store_dwordx4 {vr(TM,4)}, v{vE}, {sr(sO,4)}, s{sMY[0]} offen", "clr")
        if bt == 3: box(0xffff)
        if bt == 4: box(0xff)
        pfl(masks[1])
        if xp == 1: xproc()
        self.wvm("clr")
        a("s_barrier")
        self.stamp("issued")
        a(f"s_cmp_lg_u32 s{sWV}, 0"); a("s_cbranch_scc0 L_flag")
        self.lab("L_noflag")
        self.vmop(f"buffer_store_dwordx4 {vr(TM,4)}, v{vE}, {sr(sO,4)}, s{sMY[1]} offen", "clr1")
        a(f"s_xor_b32 s{sT[3]}, s2, 8"); a(f"s_and_b32 s{sT[2]}, s{sT[3]}, 0xfc"); a(f"s_and_b32 s{sT[3]}, s{sT[3]}, 3"); a(f"s_lshl_b32 s{sT[3]}, s{sT[3]}, 3")
        a(f"s_cmp_lg_u32 s{sXH}, 0"); a("s_cbranch_scc1 L_progB")
        self.xl("L_flag")
        self.x(f"v_mov_b32 v{RX}, s2"); self.x(f"v_mov_b32 v{vT[1]}, s{sXCC}"); self.x("s_mov_b64 exec, 1")
        self.x(f"buffer_store_byte v{vT[1]}, v{RX}, {sr(sD,4)}, 0 offen"); self.x("s_mov_b64 exec, -1"); self.x("s_branch L_noflag")

    def late(self, step):
        a = self.a
        if self.opts.get("boxtouch", 1) == 5 and step == 0:
            a("s_mov_b64 exec, 0xffffffff")
            self.vmop(f"buffer_load_dword v{vJ}, v{RX+1}, {sr(sO,4)}, s{sMY[0]} offen", "bt")
            a("s_mov_b64 exec, -1")
        lm = [int(m, 16) for m in str(self.opts.get("lm", "0")).split(",")]
        if step < len(lm) and lm[step]:
            a(f"s_mov_b64 exec, {lm[step]}")
            for off in (0, 2048):
                self.vmop(f"buffer_load_dword v{vJ}, v{vPF}, {sr(sV,4)}, s{sT[6]} offen offset:{off}", "pf")
                self.vmop(f"buffer_load_dword v{vJ}, v{vPF}, {sr(sU,4)}, s{sT[6]} offen offset:{off}", "pf")
            a("s_mov_b64 exec, -1")
    def clr1_flag(self):
        self.a(f"s_load_dword s{sT[1]}, {sr(sKA+10,2)}, s{sT[2]}")
    def bias_ops(self, l):
        return [lambda k=k: self.lgop(f"ds_read_b128 {vr(ACC2+4*k,4)}, v{vBI} offset:{l*256 + (k>>1)*128 + (k&1)*16}", "bias") for k in range(4)]
    def light1(self, kind, l, rd, lp, n1=None):
        d = self.dma(kind, l, 0) + self.dma(kind, l, 1)
        n1 = n1 or self.opts.get("n1", 8)
        self.carry = d[n1:]; d = d[:n1]
        pp = self.opts.get("pollat", 2); r0 = self.opts.get("rd1at", 0)
        rd = list(rd) + self.bias_ops(lp)
        per = self.opts.get("rd1per", 4)
        for k in range(8):
            if k == pp: self.poll(lp)
            if k < len(d): d[k]()
            if r0 <= k and (k - r0) % self.opts.get("dper", 1) == 0: self.run(rd[:per]); rd = rd[per:]
            self.stamp(f"l1{self.X}{lp}_{k}")
        if pp >= 8: self.poll(lp)
    def light2(self, kind, l, rd, lp):
        self.run(self.carry)
        d = self.dma(kind, l, 2) + self.dma(kind, l, 3) + [lambda: None] * 8
        p2 = self.opts.get("pre2", 3); rd = list(rd)
        if self.opts.get("l2mode", 0) == 1 or l >= L:
            m2 = self.opts.get("mid2", 1)
            self.run(d[:p2])
            self.check_post(lp, d[p2:p2+m2])
            self.run(rd[:4]); d[p2+m2](); self.run(rd[4:])
            self.wvm(f"{kind}{l}a")
            self.run(d[p2+m2+1:8])
            return
        self.run(d[:p2])
        self.run(rd[:4]); d[p2](); self.run(rd[4:]); d[p2+1]()
        self.stamp(f"pd{self.X}{lp}")
        self.check_post(lp, d[p2+2:p2+3])
        self.stamp(f"po{self.X}{lp}")
        self.wvm(f"{kind}{l}a")
        self.run(d[p2+3:8])
        self.stamp(f"en{self.X}{lp}")
    def progA(self):
        a = self.a
        self.wvm("V0"); self.stamp("v0l"); self.wvm("clr")
        self.bar("b0")
        self.prio(2)
        xr = self.x_reads(); rv = [f for g in range(4) for f in self.rdV(g)]
        self.run(rv[0:4]); self.run(xr[0:2]); self.run(rv[4:8]); self.run(xr[2:4])
        q = rv[8:12] + xr[4:6] + rv[12:16]
        for ks in range(8):
            self.wlg(f"rV{ks>>1}_{ks&1}")
            if ks >= 2: self.wlg(f"x{ks}")
            self.mf1(ks, [q[0:1], q[1:2]]); q = q[2:]
            if ks == self.opts.get("flagat", 2): self.clr1_flag()
            if ks == self.opts.get("lateat", 3): self.late(0)
        self.send(0)
        self.run(self.unpack(XF, PK, 8))
        self.prio(0)
        self.bar("b1")
        self.light1("V", 1, self.rdU(0) + self.rdU(1), 0, 8)
        self.late(1)
        self.bar("b1x")
        self.run(self.rdU(2))
        self.check_post(0, [])
        self.run(self.rdU(3))
        self.wvm("V1a")
        self.late(2)
        self.bar("b2")
        for l in range(L):
            last = l == L-1
            self.c(f"==== A round {l} phase 0: G2 ====")
            self.prio(2)
            if last: self.final_addr()
            ev = self.opts.get("earlyv", 8)
            self.g2_phase(l, early=(None if last else (self.rdV(0) + self.rdV(1))[:ev]))
            if last:
                self.final_store(bar=True); return
            self.wvm(f"V{l+1}b")
            self.stamp(f"g2g0{l}")
            self.bar(f"A0{l}")
            self.c(f"==== A round {l} phase 1: G1 ====")
            self.g1_phase(l+1, jitV=True)
            self.late(3 + l)
            self.prio(0)
            self.bar(f"A1{l}")
            self.c(f"==== A round {l} phase 2 ====")
            self.light1("V", l+2, self.rdU(0) + self.rdU(1), l+1)
            self.bar(f"A2{l}")
            self.c(f"==== A round {l} phase 3 ====")
            self.light2("V", l+2, self.rdU(2) + self.rdU(3), l+1)
            self.bar(f"A3{l}")

    def progB(self):
        self.lab("L_progB")
        self.run(self.dma("U", 0, 0) + self.dma("U", 0, 1))
        self.wvm("V0"); self.stamp("v0l"); self.wvm("clr")
        self.bar("b0")
        d = self.dma("U", 0, 2) + self.dma("U", 0, 3)
        rv = [f for g in range(4) for f in self.rdV(g)]
        self.run(d[:4])
        for k in range(4):
            self.run(rv[4*k:4*k+4]); d[4+k]()
        self.wvm("U0a")
        self.bar("b1")
        self.prio(2)
        self.clr1_flag()
        self.g1_phase(0, extra=self.rdU(0) + self.rdU(1))
        self.prio(0)
        self.wvm("U0b")
        self.bar("b1x")
        self.mix(self.dma("V", 1, 2) + self.dma("V", 1, 3), self.rdU(2) + self.rdU(3))
        self.bar("b2")
        for l in range(L):
            last = l == L-1
            self.c(f"==== B round {l} phase 0 ====")
            if not last:
                self.light1("U", l+1, self.rdV(0) + self.rdV(1), l)
                if l == 0: self.wvm("V1b")
                self.bar(f"B0{l}")
                self.c(f"==== B round {l} phase 1 ====")
                self.light2("U", l+1, self.rdV(2) + self.rdV(3), l)
            else:
                self.final_addr(); self.bias_rd(l)
                for q in range(self.opts.get("lastwait", 0)): self.a("s_nop 15")
                self.poll(l); self.check_post(l, [])
            self.bar(f"B1{l}")
            self.c(f"==== B round {l} phase 2: G2 ====")
            self.prio(2)
            if last:
                self.g2_phase(l); self.final_store(); return
            self.g2_phase(l, mid=self.rdU(0), late=self.rdU(1))
            self.wvm(f"U{l+1}b")
            self.bar(f"B2{l}")
            self.c(f"==== B round {l} phase 3: G1 ====")
            self.g1_phase(l+1, extra=self.rdU(2) + self.rdU(3))
            self.prio(0)
            self.bar(f"B3{l}")

    def final_addr(self):
        a = self.a; t = [RX, RX+1, RX+2]
        a(f"v_and_b32 v{t[0]}, 15, v{vLANE}"); a(f"v_lshrrev_b32 v{t[1]}, 4, v{vLANE}")
        a(f"v_and_b32 v{t[2]}, 7, v{t[0]}"); a(f"v_xor_b32 v{t[2]}, v{t[2]}, v{t[1]}"); a(f"v_lshlrev_b32 v{t[2]}, 4, v{t[2]}")
        a(f"v_lshl_add_u32 v{t[2]}, v{t[0]}, 7, v{t[2]}")
        a(f"v_and_b32 v{vT[0]}, 0xfffff800, v{vXW}"); a(f"v_add_u32 v{vT[0]}, v{vT[0]}, v{t[2]}"); a(f"v_xor_b32 v{vT[1]}, 64, v{vT[0]}")
        a(f"v_lshrrev_b32 v{t[0]}, 3, v{vLANE}"); a(f"v_xor_b32 v{t[1]}, v{t[0]}, v{vLANE}"); a(f"v_and_b32 v{t[1]}, 7, v{t[1]}")
        a(f"v_lshlrev_b32 v{t[1]}, 4, v{t[1]}")
        a(f"v_and_b32 v{t[2]}, 4, v{t[0]}"); a(f"v_add_u32 v{t[0]}, v{t[0]}, v{t[2]}")
        a(f"v_lshl_add_u32 v{vT[2]}, v{t[0]}, 10, v{t[1]}")

    def final_store(self, bar=False):
        a = self.a; D = XF
        for m in range(2):
            self.lgop(f"ds_read_b128 {vr(D+4*m,4)}, v{vXW} offset:{m*1024}", f"fo{m}")
        fl = self.opts.get("outflags", "")
        for m in range(2):
            a(f"s_add_u32 s{sT[m]}, s{sT[7]}, {m*16384}")
            self.wlg(f"fo{m}")
            self.vmop(f"buffer_store_dwordx4 {vr(D+4*m,4)}, v{vT[2]}, {sr(sO,4)}, s{sT[m]} offen {fl}", "out")
        if bar: a("s_barrier")
        if self.opts.get("stag"):
            u = self.X
            a("s_waitcnt vmcnt(0)")
            a(f"s_add_u32 s4, s{sKA+12}, 0x700000"); a(f"s_addc_u32 s5, s{sKA+13}, 0")
            a("s_load_dwordx8 s[84:91], s[4:5], 0"); a("s_memrealtime s[94:95]"); a("s_waitcnt lgkmcnt(0)")
            a("s_mov_b32 s92, 0")
            for i in range(8):
                a(f"s_sub_u32 s93, s{sSTAMP}, s{84+i}"); a("s_cmp_lt_u32 s93, 3000"); a("s_cselect_b32 s93, s93, 0"); a("s_max_u32 s92, s92, s93")
            self.lab(f"L_echo{u}")
            a("s_sleep 1"); a("s_memrealtime s[96:97]"); a("s_waitcnt lgkmcnt(0)"); a("s_sub_u32 s93, s96, s94")
            a("s_cmp_lt_u32 s93, s92"); a(f"s_cbranch_scc1 L_echo{u}")
        elif self.opts.get("echo"):
            u = self.X
            a("s_waitcnt vmcnt(0)"); self.stamp("fin")
            a("s_memtime s[90:91]"); a("s_waitcnt lgkmcnt(0)")
            a(f"s_sub_u32 s92, s{sSTAMP+2}, s{sSTAMP}")
            self.lab(f"L_echo{u}")
            a("s_sleep 1"); a("s_memtime s[94:95]"); a("s_waitcnt lgkmcnt(0)"); a("s_sub_u32 s93, s94, s90")
            a("s_cmp_lt_u32 s93, s92"); a(f"s_cbranch_scc1 L_echo{u}")
        elif self.prof:
            a("s_waitcnt vmcnt(0)")
            self.stamp("fin"); self.stamp("rt1")
            a("s_waitcnt lgkmcnt(0)")
            a(f"v_mov_b32 v{RX}, 0")
            for i in range(len(self.prof)): a(f"v_writelane_b32 v{RX}, s{sSTAMP+2*i}, {i}")
            a(f"s_lshl_b32 s{sT[0]}, s2, 3"); a(f"s_add_u32 s{sT[0]}, s{sT[0]}, s{sWV}"); a(f"s_lshl_b32 s{sT[0]}, s{sT[0]}, 8")
            a(f"s_add_u32 s{sT[0]}, s{sT[0]}, {6<<20}")
            a(f"v_lshlrev_b32 v{vT[0]}, 2, v{vLANE}")
            a(f"buffer_store_dword v{RX}, v{vT[0]}, {sr(sW,4)}, s{sT[0]} offen")
        for i in range(self.opts.get("delay", 0)): a("s_sleep 125")
        a("s_endpgm")

    def handshake(self):
        a = self.a; x = self.x; P = XF; u = self.X
        self.c("handshake: the partner's inbox is cleared; does it share this XCD?")
        a(f"s_mov_b32 s{sCNT}, 0"); a(f"s_mov_b32 s{sMODE}, 1")
        self.wvm("clr1")
        a("s_waitcnt lgkmcnt(0)"); self.lgdone = len(self.lg)
        a(f"s_lshr_b32 s{sT[0]}, s{sT[1]}, s{sT[3]}"); a(f"s_and_b32 s{sT[0]}, s{sT[0]}, 0xff")
        a(f"s_cmp_eq_u32 s{sT[0]}, s{sXCC}"); a(f"s_cbranch_scc0 L_hs_fast{u}")
        self.lab(f"L_hs_done{u}")
        self.rec("hscnt", f"s{sCNT}"); self.rec("mode", f"s{sMODE}")
        self.xl(f"L_hs_fast{u}")
        x(f"buffer_load_ubyte v{vT[1]}, v{vT[2]}, {sr(sD,4)}, 0 offen sc1")
        x("s_waitcnt vmcnt(0)")
        x(f"v_readfirstlane_b32 s{sT[0]}, v{vT[1]}")
        x(f"s_cmp_eq_u32 s{sT[0]}, s{sXCC}"); x(f"s_cbranch_scc1 L_hs_done{u}")
        x(f"s_add_u32 s{sCNT}, s{sCNT}, 1"); x(f"s_cmp_lt_u32 s{sCNT}, {self.opts.get('fastpolls', 8)}"); x(f"s_cbranch_scc1 L_hs_fast{u}")
        for r in range(4): x(f"v_mov_b32 v{P+4+r}, 0")
        for sl in range(2):
            x(f"buffer_store_dwordx4 {vr(P+4,4)}, v{vE}, {sr(sW,4)}, s{sMY[sl]} offen sc1")
        x(f"s_lshl_b32 s{sT[1]}, s2, 3"); x(f"s_add_u32 s{sT[1]}, s{sT[1]}, s{sWV}"); x(f"s_lshl_b32 s{sT[1]}, s{sT[1]}, 7")
        x(f"s_add_u32 s{sT[1]}, s{sT[1]}, {4<<20}")
        x(f"s_xor_b32 s{sT[2]}, s{sT[1]}, {8*8*128}")
        x(f"v_mov_b32 v{P+2}, 0")
        x("s_mov_b64 exec, 1")
        x(f"buffer_load_dwordx4 {vr(P+8,4)}, v{P+2}, {sr(sW,4)}, s{sT[2]} offen sc1")
        x("s_waitcnt vmcnt(0)")
        x(f"v_readfirstlane_b32 s{sT[3]}, v{P+10}")
        x(f"s_add_u32 s{sT[3]}, s{sT[3]}, 1")
        x(f"v_mov_b32 v{P+3}, s{sT[3]}")
        x(f"buffer_store_dword v{P+3}, v{P+2}, {sr(sW,4)}, s{sT[1]} offen sc1")
        x("s_waitcnt vmcnt(0)")
        x(f"s_mov_b32 s{sCNT}, 0")
        self.xl(f"L_hs_slow{u}")
        x(f"buffer_load_ubyte v{vT[1]}, v{vT[2]}, {sr(sD,4)}, 0 offen sc1")
        x(f"buffer_load_dwordx4 {vr(P+8,4)}, v{P+2}, {sr(sW,4)}, s{sT[2]} offen sc1")
        x("s_waitcnt vmcnt(0)")
        x(f"v_readfirstlane_b32 s{sT[0]}, v{vT[1]}")
        x(f"v_readfirstlane_b32 s{sT[5]}, v{P+8}")
        x(f"v_readfirstlane_b32 s{sT[4]}, v{P+10}")
        x(f"v_readfirstlane_b32 s{sMODE}, v{P+11}")
        x(f"s_cmp_eq_u32 s{sT[0]}, s{sXCC}"); x(f"s_cbranch_scc1 L_hs_same{u}")
        x(f"v_mov_b32 v{P+12}, s{sT[5]}"); x(f"v_mov_b32 v{P+13}, s{sXCC}")
        x(f"buffer_store_dwordx2 {vr(P+12,2)}, v{P+2}, {sr(sW,4)}, s{sT[1]} offen offset:8 sc1")
        x(f"s_add_u32 s{sCNT}, s{sCNT}, 1"); x(f"s_cmp_gt_u32 s{sCNT}, 0x200000"); x(f"s_cbranch_scc1 L_hs_same{u}")
        x(f"s_cmp_eq_u32 s{sT[4]}, s{sT[3]}"); x(f"s_cbranch_scc0 L_hs_slow{u}")
        x(f"s_cmp_eq_u32 s{sMODE}, s{sXCC}"); x(f"s_cbranch_scc1 L_hs_same{u}")
        x(f"s_mov_b32 s{sMODE}, 0")
        x(f"s_mov_b32 s{sE}, s{sKA+12}"); x(f"s_mov_b32 s{sE+1}, s{sKA+13}")
        x("s_mov_b64 exec, -1")
        x(f"s_branch L_hs_done{u}")
        self.xl(f"L_hs_same{u}")
        x(f"s_mov_b32 s{sMODE}, 1")
        x("s_mov_b64 exec, -1")
        x(f"s_branch L_hs_done{u}")

    def build(self):
        hdr = [f"; @launch grid=(256,1,1) block=(512,1,1) lds={LDS_BYTES}",
               '.amdgcn_target "amdgcn-amd-amdhsa--gfx950"', ".text", f".globl {KN}", ".p2align 8",
               f".type {KN},@function", f"{KN}:"]
        self.prologue()
        A = self.fork(0); A.progA()
        B = self.fork(1); B.progB()
        nb = lambda g: sum(1 for s in g.o if s.strip() == "s_barrier")
        assert nb(A) == nb(B), (nb(A), nb(B))
        assert NV + NA <= 256
        ftr = [f".set CODE_BYTES, L_end - {KN}", '.section .rodata,"a"', ".p2align 6", f".amdhsa_kernel {KN}",
               f"  .amdhsa_next_free_vgpr {NV+NA}", "  .amdhsa_next_free_sgpr 102", f"  .amdhsa_accum_offset {NV}",
               "  .amdhsa_group_segment_fixed_size 0", "  .amdhsa_kernarg_size 56", "  .amdhsa_user_sgpr_count 2",
               "  .amdhsa_user_sgpr_kernarg_segment_ptr 1", "  .amdhsa_system_sgpr_workgroup_id_x 1",
               "  .amdhsa_float_denorm_mode_32 3", ".end_amdhsa_kernel"]
        log = []
        m1, n1 = fix_hazards(self.o + A.o, log)
        m2, n2 = fix_hazards(B.o, log)
        ool, n3 = fix_hazards(self.ool)
        main = m1 + m2 + ["L_end:", "    s_endpgm"]
        wrap = lambda ls: "\n".join(hdr + ls + ool + ftr) + "\n"
        if self.opts.get("align", 1):
            main, nw, nn = align(main, wrap, self.opts.get("minrun", 99))
            sys.stderr.write(f"hazard nops {n1}+{n2}+{n3}, widened {nw}, align nops {nn}\n")
        if self.opts.get("hlog"):
            for e in log: sys.stderr.write(str(e) + "\n")
        return wrap(main)

if __name__ == "__main__":
    prof = None; opts = {}
    for x in sys.argv[1:]:
        if x.startswith("--prof="): prof = x[7:].split(",")
        elif x.startswith("--"):
            k, v = x[2:].split("="); opts[k] = int(v) if v.lstrip("-").isdigit() else v
    out = [x for x in sys.argv[1:] if not x.startswith("--")][0]
    g = Gen(prof, opts); txt = g.build()
    if prof: txt = txt + "; stamps: " + ",".join(prof) + "\n"
    open(out, "w").write(txt)
```

```python
import sys, copy
from asmlib import fix_hazards, align
KN = "standalone__cross_network_dcn_v2__recsys_kernel"
L = 6
XB = 131072; HB = 147456; BIASB = 155648; LDS_BYTES = 161792
TAGS = [1, 1, 0, 0, 1, 1]

vLANE = 1; vA = [2, 21]; vE = 3; vV = [4, 5, 6, 7]; vU = [8, 9, 10, 11]
vXW = 12; vXR = [None, 13, 14, 15]; vHW = 16; vHR = [None, 17, 18, 19]
vBI = 20; vT = [22, 23, 24, 25]; vJ = 0
ACC1 = 26; ACC2 = 34; XF = 50; X0F = 66; PK = 82; HP = 90; RX = 94; TM = ACC2; SP = HP; T4 = 98; vPF = 102
NV = 104
aV = 0; aU = 64; aX = 128; aH = 128; aS = 128; NS = 6; NA = 152
sX0 = 4; sV = 8; sU = 12; sO = 16; sE = 20; sD = 24; sB = 28; sW = 32
sKA = 36
sWV = 50; sHF = 51; sRB = 52; sXCC = 53; sMODE = 54
sVG = [55, 56, 57, 58]; sUG = [59, 60, 61, 62]; sSO = [63, 64]; sLB = 65
sMY = [66, 67]; sWS = 68; sXH = 69
sCNT = 70; sT = [71, 72, 73, 74, 75, 76, 77, 78]; sPTMP = 79
sSTAMP = 80

def vr(b, n): return f"v[{b}:{b+n-1}]"
def ar(b, n): return f"a[{b}:{b+n-1}]"
def sr(b, n): return f"s[{b}:{b+n-1}]"

class Gen:
    def __init__(self, prof=None, opts=None):
        self.o = []; self.ool = []; self.vm = []; self.lg = []; self.vmdone = 0; self.lgdone = 0
        self.prof = prof; self.opts = opts or {}; self.names = []
        self.pw = []; self.nso = 0; self.nst = 0; self.X = 0
        self.pat = self.opts.get("pat", "BBBB/DBDB/DDDB/DDDB"); self.lag = self.opts.get("lag", 4)
    def fork(self, X):
        g = copy.copy(self); g.o = []; g.vm = list(self.vm); g.lg = list(self.lg); g.pw = list(self.pw); g.X = X
        return g
    def a(self, s): self.o.append("    " + s)
    def x(self, s): self.ool.append("    " + s)
    def xl(self, s): self.ool.append(s + ":")
    def lab(self, s): self.o.append(s + ":")
    def c(self, s): self.o.append("    ; " + s)
    def vmop(self, s, tag): self.vm.append(tag); self.a(s)
    def lgop(self, s, tag): self.lg.append(tag); self.a(s)
    def _last(self, lst, tag):
        idx = [i for i, t in enumerate(lst) if t == tag]
        return idx[-1] if idx else None
    def wvm(self, tag):
        i = self._last(self.vm, tag)
        if i is not None: self.wvmi(i)
    def wvmi(self, i):
        if i < self.vmdone: return
        n = min(len(self.vm) - 1 - i, 63); self.vmdone = len(self.vm) - n
        self.a(f"s_waitcnt vmcnt({n})")
    def wlg(self, tag):
        i = self._last(self.lg, tag)
        if i is None or i < self.lgdone: return
        n = min(len(self.lg) - 1 - i, 15); self.lgdone = len(self.lg) - n
        self.a(f"s_waitcnt lgkmcnt({n})")
    def wlg0(self):
        if self.lgdone < len(self.lg): self.lgdone = len(self.lg); self.a("s_waitcnt lgkmcnt(0)")
    def bar(self, name=None):
        self.wlg0()
        if name: self.stamp(name + "a")
        self.a("s_barrier")
        if name: self.stamp(name + "b")
    def stamp(self, name):
        nm = name + "AB"[self.X] if False else name
        if self.prof and nm in self.prof:
            r = sSTAMP + 2 * self.prof.index(nm)
            assert r + 1 <= 101
            self.a(f"s_memrealtime s[{r}:{r+1}]" if nm.startswith("rt") else f"s_memtime s[{r}:{r+1}]")
    def rec(self, name, src):
        if self.prof and name in self.prof:
            self.a(f"s_mov_b32 s{sSTAMP + 2*self.prof.index(name)}, {src}")
    def prio(self, p):
        m = self.opts.get("prio", 1)
        if m == 1: self.a(f"s_setprio {p}")
        if m == 2: self.a(f"s_setprio {2-p}")
    def dma(self, kind, l, g, pat=None):
        if l >= L: return []
        if self.opts.get("dma") == "off" and l >= 2: return []
        pat = pat or self.pat.split("/")[g]
        so = sSO[self.nso & 1]; self.nso += 1
        base, sg, vv, srd = (0, sVG, vV, sV) if kind == "V" else (16384, sUG, vU, sU)
        tag = f"{kind}{l}" + "ab"[g >> 1]
        items = []
        for j in range(4):
            def emit(j=j):
                while self.pw and len(self.vm) - self.pw[0][0] > self.lag: self.pw.pop(0)[1]()
                if j == 0:
                    self.a(f"s_add_u32 m0, s{sLB}, {base+g*4096}"); self.a(f"s_add_u32 s{so}, s{sg[g]}, {l*131072}")
                if pat[j % len(pat)] in "DBC":
                    self.vmop(f"buffer_load_dwordx4 v{vv[j]}, {sr(srd,4)}, s{so} offen offset:{1024*j} lds", tag)
                    for q in range({"D": 0, "B": 1, "C": 2}[pat[j % len(pat)]]): self.vmop(f"buffer_load_dword v{vJ}, off, {sr(sB,4)}, 0", "gap")
            items.append(emit)
        return items
    def flush(self, keep3=False):
        while self.pw and not (keep3 and self.pw[0][2] == 3): self.pw.pop(0)[1]()
    def rdV(self, g):
        return [lambda j=j: self.lgop(f"ds_read_b128 {ar(aV+4*(4*g+j),4)}, v{vA[j>>1]} offset:{g*4096+(j&1)*2048}", f"rV{g}_{j>>1}") for j in range(4)]
    def rdU(self, g):
        return [lambda j=j: self.lgop(f"ds_read_b128 {ar(aU+4*(4*g+j),4)}, v{vA[j>>1]} offset:{16384+g*4096+(j&1)*2048}", f"rU{g}") for j in range(4)]
    def mf1(self, ks, fill=None):
        for ta in range(2):
            b = vr(PK + 4*ks, 4) if ks < 2 else ar(aX + 4*(ks-2), 4)
            d = vr(ACC1 + 4*ta, 4)
            self.a(f"v_mfma_f32_16x16x32_bf16 {d}, {ar(aV+4*(2*ks+ta),4)}, {b}, {'0' if ks == 0 else d}")
            if fill: self.run(fill[ta])
    def mf2(self, P, kr, fill=None):
        for ta in range(2):
            b = vr(HP, 4) if kr == 0 else ar(aH + 4*(kr-1), 4)
            d = vr(ACC2 + 8*P + 4*ta, 4)
            idx = ((kr >> 1)*2 + P)*4 + (kr & 1)*2 + ta
            self.a(f"v_mfma_f32_16x16x32_bf16 {d}, {ar(aU+4*idx,4)}, {b}, {d}")
            if fill: self.run(fill[ta])
    def epi(self, P, l, pk=False):
        r = []
        if pk:
            for e in range(4):
                q = 8*P + 2*e
                r.append(lambda q=q: self.a(f"v_pk_fma_f32 {vr(ACC2+q,2)}, {vr(X0F+q,2)}, {vr(ACC2+q,2)}, {vr(XF+q,2)}"))
        else:
            for e in range(8):
                q = 8*P + e
                r.append(lambda q=q: self.a(f"v_fma_f32 v{ACC2+q}, v{X0F+q}, v{ACC2+q}, v{XF+q}"))
        for e in range(4):
            q = 8*P + 2*e
            r.append(lambda q=q: self.a(f"v_cvt_pk_bf16_f32 v{PK+q//2}, v{ACC2+q}, v{ACC2+q+1}"))
        if l < L-1: r.append(lambda: self.lgop(f"ds_write_b128 v{vXW}, {vr(PK+4*P,4)} offset:{P*1024}", "xw"))
        else: r.append(lambda: self.lgop(f"ds_write_b128 v{vT[P]}, {vr(PK+4*P,4)}", "xw"))
        return r
    def unpack(self, dst, src, n):
        r = []
        for i in range(n):
            r.append(lambda i=i: self.a(f"v_lshlrev_b32 v{dst+2*i}, 16, v{src+i}"))
            r.append(lambda i=i: self.a(f"v_and_b32 v{dst+2*i+1}, 0xffff0000, v{src+i}"))
        return r
    def bias_rd(self, l):
        for k in range(4):
            self.lgop(f"ds_read_b128 {vr(ACC2+4*k,4)}, v{vBI} offset:{l*256 + (k>>1)*128 + (k&1)*16}", "bias")
    def run(self, lst):
        for f in lst: f()
    def mix(self, *lists):
        lists = [list(x) for x in lists]
        while any(lists):
            for x in lists:
                if x: x.pop(0)()
    def srd(self, r, p, n, bias=0):
        if bias:
            self.a(f"s_sub_u32 s{r}, s{p}, {bias}"); self.a(f"s_subb_u32 s{r+1}, s{p+1}, 0")
        else:
            self.a(f"s_mov_b32 s{r}, s{p}"); self.a(f"s_mov_b32 s{r+1}, s{p+1}")
        self.a(f"s_mov_b32 s{r+2}, {n+bias}"); self.a(f"s_mov_b32 s{r+3}, 0x20000")
    def poll(self, l):
        self.vmop(f"buffer_load_dwordx4 {vr(RX,4)}, v{vE}, {sr(sE,4)}, s{sMY[l&1]} offen sc1", f"poll{l}")
    def send(self, l, u=None):
        a = self.a; u = u if u is not None else f"{self.X}{l}"
        a(f"s_xor_b32 s{sPTMP}, s{sMY[l&1]}, 512")
        for k in range(4): a(f"v_cvt_pk_bf16_f32 v{SP+k}, v{ACC1+2*k}, v{ACC1+2*k+1}")
        for k in range(4): a(f"v_or_b32 v{SP+k}, 1, v{SP+k}" if TAGS[l] else f"v_and_b32 v{SP+k}, -2, v{SP+k}")
        if l == 0: self.handshake()
        self.stamp(f"snd{u}")
        a(f"s_cmp_eq_u32 s{sMODE}, 0"); a(f"s_cbranch_scc1 L_ss{u}")
        self.vmop(f"buffer_store_dwordx4 {vr(SP,4)}, v{vE}, {sr(sE,4)}, s{sPTMP} offen", "st")
        self.lab(f"L_sd{u}")
        self.xl(f"L_ss{u}")
        self.x(f"buffer_store_dwordx4 {vr(SP,4)}, v{vE}, {sr(sE,4)}, s{sPTMP} offen sc1")
        self.x("s_nop 1"); self.x(f"s_branch L_sd{u}")
    def chk_ops(self, l):
        R = RX; t0 = vT[3]
        if TAGS[l]:
            return [f"v_bitop3_b32 v{t0}, v{R}, v{R+1}, v{R+2} bitop3:0x80", f"v_bitop3_b32 v{t0}, v{t0}, v{R+3}, 1 bitop3:0x80", f"v_cmp_eq_u32 vcc, 0, v{t0}"]
        return [f"v_or3_b32 v{t0}, v{R}, v{R+1}, v{R+2}", f"v_bitop3_b32 v{t0}, v{t0}, 1, v{R+3} bitop3:0xc8", f"v_cmp_ne_u32 vcc, 0, v{t0}"]
    def check_post(self, l, d=None):
        u = f"{self.X}{l}"; x = self.x; a = self.a
        self.wvm(f"poll{l}")
        self.stamp(f"chk{u}")
        if self.opts.get("dbgcnt"): a(f"s_mov_b32 s{sCNT}, 0")
        for s in self.chk_ops(l): a(s)
        a(f"s_cbranch_vccnz L_rt{u}")
        self.lab(f"L_got{u}")
        self.stamp(f"got{u}")
        if self.opts.get("dbgcnt"): self.rec(f"cnt{l}", f"s{sCNT}")
        self.xl(f"L_rt{u}")
        x(f"s_mov_b32 s{sCNT}, 0")
        self.xl(f"L_rl{u}")
        x(f"buffer_load_dwordx4 {vr(RX,4)}, v{vE}, {sr(sE,4)}, s{sMY[l&1]} offen sc1")
        x(f"s_add_u32 s{sCNT}, s{sCNT}, 1"); x(f"s_cmp_gt_u32 s{sCNT}, 0x200000")
        x("s_waitcnt vmcnt(0)")
        x(f"s_cbranch_scc1 L_got{u}")
        for s in self.chk_ops(l): x(s)
        x(f"s_cbranch_vccnz L_rl{u}")
        x(f"s_branch L_got{u}")
        ops = []
        for h in range(2):
            ops += self.unpack(T4, RX+2*h, 2)
            if self.opts.get("pkadd", 0):
                for k in range(2): ops.append(lambda k=k, h=h: a(f"v_pk_add_f32 {vr(T4+2*k,2)}, {vr(T4+2*k,2)}, {vr(ACC1+4*h+2*k,2)}"))
            else:
                for k in range(4): ops.append(lambda k=k, h=h: a(f"v_add_f32 v{T4+k}, v{T4+k}, v{ACC1+4*h+k}"))
            for k in range(2): ops.append(lambda k=k, h=h: a(f"v_cvt_pk_bf16_f32 v{HP+2*h+k}, v{T4+2*k}, v{T4+2*k+1}"))
        ops.append(lambda: self.lgop(f"ds_write_b128 v{vHW}, {vr(HP,4)}", "hw"))
        if d is None:
            self.run(ops); self.bias_rd(l); return
        d = list(d); st = self.opts.get("vper", 10)
        while ops:
            self.run(ops[:st]); ops = ops[st:]
            if ops and d: d.pop(0)()
        self.run(d)
    def x_reads(self):
        return [lambda ks=ks: self.lgop(f"ds_read_b128 {ar(aX+4*(ks-2),4)}, v{vXR[ks>>1]} offset:{(ks&1)*1024}", f"x{ks}") for ks in range(2, 8)]
    def h_reads(self):
        for kr in range(1, 4):
            self.lgop(f"ds_read_b128 {ar(aH+4*(kr-1),4)}, v{vHR[kr]}", f"h{kr}")

    def g2_phase(self, l, early=None, mid=None, late=None):
        early = list(early or []); mid = list(mid or []); late = list(late or [])
        def take(q): return [q[0:1], q[1:2]]
        self.h_reads()
        self.mf2(0, 0, take(early)); self.mf2(1, 0, take(early[2:]))
        self.wlg("h1"); self.mf2(0, 1, take(early[4:]))
        self.wlg("h2"); self.mf2(0, 2, take(early[6:] + mid))
        self.wlg("h3"); self.mf2(0, 3, take(mid[2:]))
        self.flush()
        e0 = self.epi(0, l); e1 = self.epi(1, l, pk=self.opts.get("pkfma", 1))
        u = f"{self.X}{l}"
        self.stamp(f"g2a{u}")
        if self.opts.get("e0mix", 1):
            self.mf2(1, 1, [[], late[0:4]])
            self.mf2(1, 2, [[], e0[0:3]])
            self.stamp(f"g2b{u}")
            self.mf2(1, 3, [e0[3:6], e0[6:-1]])
        else:
            self.mf2(1, 1); self.mf2(1, 2, [late[0:2], late[2:4]])
            self.stamp(f"g2b{u}")
            self.mf2(1, 3, [e0[0:2], e0[2:-1]])
        self.stamp(f"g2c{u}")
        e0[-1]()
        self.stamp(f"g2d{u}")
        self.run(e1[:-1])
        self.stamp(f"g2e{u}")
        e1[-1]()
        self.stamp(f"g2f{u}")
    def g1_phase(self, l, jitV=False, extra=None):
        xr = self.x_reads(); extra = list(extra or [])
        if jitV:
            rv = self.rdV(2) + self.rdV(3)
            ev = self.opts.get("earlyv", 8)
            pre = (self.rdV(0) + self.rdV(1))[ev:]
            self.run(pre[:4]); self.run(xr[0:2]); self.run(pre[4:])
            q = [xr[2], rv[0], rv[1], xr[3], rv[2], rv[3], xr[4], rv[4], rv[5], xr[5], rv[6], rv[7]]
            for ks in range(8):
                self.wlg(f"rV{ks>>1}_{ks&1}")
                if ks >= 2: self.wlg(f"x{ks}")
                self.mf1(ks, [q[0:2], q[2:3]]); q = q[3:]
        else:
            self.run(xr)
            for ks in range(8):
                if ks >= 2: self.wlg(f"x{ks}")
                self.mf1(ks, [extra[0:1], extra[1:2]]); extra = extra[2:]
            self.run(extra)
        self.send(l)
        self.run(self.unpack(XF, PK, 8))

    def prologue(self):
        a = self.a; T = [X0F + i for i in range(10)]
        a(f"s_load_dwordx8 {sr(sKA,8)}, s[0:1], 0")
        a(f"s_load_dwordx4 {sr(sKA+8,4)}, s[0:1], 32")
        a(f"s_load_dwordx2 {sr(sKA+12,2)}, s[0:1], 48")
        a("s_cmp_ge_u32 s2, 256"); a("s_cbranch_scc1 L_end")
        self.stamp("start"); self.stamp("rt0")
        a(f"v_lshrrev_b32 v{T[0]}, 6, v0"); a(f"v_and_b32 v{vLANE}, 63, v0")
        a(f"s_lshr_b32 s{sT[0]}, s2, 3")
        a(f"v_readfirstlane_b32 s{sWV}, v{T[0]}")
        a(f"s_lshl_b32 s{sT[0]}, s{sT[0]}, 3"); a(f"s_add_u32 s{sT[6]}, s{sT[0]}, s{sWV}")
        if self.opts.get("codepf", 1):
            a(f"s_getpc_b64 {sr(sX0,2)}")
            a(f"s_and_b32 s{sX0}, s{sX0}, 0xffffff00")
            a(f"s_lshl_b32 s{sT[1]}, s{sT[6]}, 7"); a(f"v_mov_b32 v{T[1]}, s{sT[1]}")
            a(f"s_cmp_ge_u32 s{sT[1]}, CODE_BYTES"); a("s_cbranch_scc1 L_nocpf")
            a("s_mov_b64 exec, 1")
            a(f"global_load_dword v{vJ}, v{T[1]}, {sr(sX0,2)}")
            a("s_mov_b64 exec, -1")
            self.lab("L_nocpf")
        a(f"s_and_b32 s{sWS}, s{sWV}, 3"); a(f"s_lshr_b32 s{sXH}, s{sWV}, 2")
        a(f"v_lshrrev_b32 v{T[6]}, 2, v{vLANE}"); a(f"v_and_b32 v{T[7]}, 3, v{vLANE}")
        a(f"v_lshlrev_b32 v{T[9]}, 7, v{T[7]}"); a(f"v_lshl_add_u32 v{vPF}, v{T[6]}, 17, v{T[9]}")
        a(f"s_lshl_b32 s{sT[6]}, s{sT[6]}, 9"); a(f"s_add_u32 s{sT[6]}, s{sT[6]}, 3072")
        a(f"s_bfe_u32 s{sHF}, s2, 0x10003")
        a(f"s_lshr_b32 s{sT[0]}, s2, 4"); a(f"s_lshl_b32 s{sT[0]}, s{sT[0]}, 3"); a(f"s_and_b32 s{sRB}, s2, 7"); a(f"s_or_b32 s{sRB}, s{sRB}, s{sT[0]}")
        a(f"s_lshl_b32 s{sLB}, s{sWS}, 15")
        a(f"v_lshrrev_b32 v{T[0]}, 4, v{vLANE}")
        a(f"v_lshrrev_b32 v{T[1]}, 3, v{vLANE}"); a(f"v_and_b32 v{T[2]}, 6, v{T[1]}"); a(f"v_xor_b32 v{T[2]}, v{T[2]}, v{vLANE}")
        a(f"v_and_b32 v{T[2]}, 7, v{T[2]}"); a(f"v_lshlrev_b32 v{T[2]}, 4, v{T[2]}")
        a(f"v_and_b32 v{T[3]}, 4, v{T[1]}"); a(f"v_add_u32 v{T[1]}, v{T[1]}, v{T[3]}")
        a(f"v_lshl_add_u32 v{T[3]}, v{T[1]}, 10, v{T[2]}"); a(f"v_lshl_add_u32 v{T[4]}, v{T[1]}, 8, v{T[2]}")
        for j in range(4):
            a(f"v_add_u32 v{vV[j]}, {((j&1)*16 + (j>>1)*4)*1024 - 1024*j + 3072}, v{T[3]}")
        a(f"s_lshl_b32 s{sT[2]}, s{sHF}, 9"); a(f"s_add_u32 s{sT[3]}, s{sLB}, s{sT[2]}")
        a(f"s_lshl_b32 s{sT[4]}, s{sRB}, 15"); a(f"s_add_u32 s{sT[4]}, s{sT[4]}, s{sT[2]}")
        a(f"s_lshl_b32 s{sT[5]}, s{sXH}, 12"); a(f"s_add_u32 s{sT[4]}, s{sT[4]}, s{sT[5]}")
        a(f"s_lshl_b32 s{sT[5]}, s{sWS}, 7"); a(f"s_add_u32 s{sT[7]}, s{sT[4]}, s{sT[5]}")
        a(f"s_lshr_b32 s{sT[5]}, s{sWS}, 1"); a(f"s_lshl_b32 s{sT[5]}, s{sT[5]}, 13"); a(f"s_add_u32 s{sT[4]}, s{sT[4]}, s{sT[5]}")
        a(f"s_and_b32 s{sT[5]}, s{sWS}, 1"); a(f"s_lshl_b32 s{sT[5]}, s{sT[5]}, 11"); a(f"s_add_u32 s{sMY[0]}, s{sT[4]}, s{sT[5]}")
        a(f"s_add_u32 s{sMY[1]}, s{sMY[0]}, 16384")
        for g in range(4):
            a(f"s_xor_b32 s{sT[4]}, s{sWS}, {g}"); a(f"s_lshl_b32 s{sT[4]}, s{sT[4]}, 7"); a(f"s_add_u32 s{sVG[g]}, s{sT[3]}, s{sT[4]}")
        a(f"v_lshrrev_b32 v{T[8]}, 5, v{vLANE}"); a(f"v_and_b32 v{vE}, 31, v{vLANE}"); a(f"v_lshlrev_b32 v{vE}, 4, v{vE}")
        a(f"v_lshl_add_u32 v{vE}, v{T[8]}, 10, v{vE}")
        for r in range(4): a(f"v_mov_b32 v{TM+r}, 0")
        a(f"v_mov_b32 v{vT[2]}, s2"); a(f"v_xor_b32 v{vT[2]}, 8, v{vT[2]}")
        a(f"s_lshl_b32 s{sT[5]}, s{sWS}, 12"); a(f"s_lshl_b32 s{sT[4]}, s{sXH}, 11"); a(f"s_add_u32 s{sT[5]}, s{sT[5]}, s{sT[4]}")
        a(f"s_add_u32 m0, s{sT[5]}, {XB}")
        a(f"v_lshrrev_b32 v{T[6]}, 3, v{vLANE}"); a(f"v_and_b32 v{T[7]}, 7, v{vLANE}")
        a(f"v_lshlrev_b32 v{T[8]}, 4, v{T[7]}"); a(f"v_lshl_add_u32 v{T[8]}, v{T[6]}, 10, v{T[8]}")
        a(f"s_lshl_b32 s{sT[5]}, s{sWS}, 7"); a(f"s_add_u32 s{sT[5]}, s{sT[5]}, s{sT[2]}"); a(f"s_mul_i32 s{sT[3]}, s{sXH}, 3072"); a(f"s_add_u32 s{sT[5]}, s{sT[5]}, s{sT[3]}")
        a("s_waitcnt lgkmcnt(0)")
        self.stamp("karg")
        pf = self.opts.get("pf", 1)
        def pfl(lo):
            if not pf or not lo: return
            a(f"s_mov_b64 exec, {lo}")
            self.vmop(f"buffer_load_dword v{vJ}, v{vPF}, {sr(sV,4)}, s{sT[6]} offen", "pf")
            self.vmop(f"buffer_load_dword v{vJ}, v{vPF}, {sr(sU,4)}, s{sT[6]} offen", "pf")
            a("s_mov_b64 exec, -1")
        self.pfl = pfl
        masks = [int(m, 16) for m in str(self.opts.get("pfm", "f,fffff0")).split(",")]
        self.pfmasks = masks
        self.srd(sX0, sKA+0, 4096*1024, 3072)
        self.vmop(f"buffer_load_dwordx4 v{vV[0]}, {sr(sX0,4)}, s{sT[7]} offen lds", "x0")
        self.vmop(f"buffer_load_dwordx4 v{vV[1]}, {sr(sX0,4)}, s{sT[7]} offen offset:1024 lds", "x0")
        self.srd(sV, sKA+4, 6*131072, 3072)
        self.srd(sU, sKA+2, 6*131072, 3072)
        pfl(masks[0])
        self.srd(sB, sKA+6, 6*1024)
        self.srd(sD, sKA+10, 256)
        a("s_mov_b64 exec, 0xffffff")
        self.vmop(f"buffer_load_dwordx4 {vr(TM+4,4)}, v{T[8]}, {sr(sB,4)}, s{sT[5]} offen", "bias")
        a("s_mov_b64 exec, 1")
        self.vmop(f"buffer_load_ubyte v{vJ}, v{vT[2]}, {sr(sD,4)}, 0 offen", "touch")
        a("s_mov_b64 exec, -1")
        self.srd(sO, sKA+8, 4096*1024)
        bt = self.opts.get("boxtouch", 1)
        a(f"v_and_b32 v{RX+1}, 3, v{vLANE}"); a(f"v_lshlrev_b32 v{RX+1}, 7, v{RX+1}")
        a(f"v_bfe_u32 v{RX}, v{vLANE}, 2, 1"); a(f"v_lshl_add_u32 v{RX+1}, v{RX}, 10, v{RX+1}")
        a(f"v_bfe_u32 v{RX}, v{vLANE}, 3, 1"); a(f"v_lshl_add_u32 v{RX+1}, v{RX}, {12 if bt == 5 else 14}, v{RX+1}")
        if bt == 5: a(f"v_bfe_u32 v{RX}, v{vLANE}, 4, 1"); a(f"v_lshl_add_u32 v{RX+1}, v{RX}, 14, v{RX+1}")
        def box(m):
            a(f"s_mov_b64 exec, {m}")
            self.vmop(f"buffer_load_dword v{vJ}, v{RX+1}, {sr(sO,4)}, s{sMY[0]} offen", "bt")
            a("s_mov_b64 exec, -1")
        self.box = box
        if bt == 1: box(0xffff)
        if bt == 2: box(0xff)
        if self.opts.get("clrearly", 1):
            self.vmop(f"buffer_store_dwordx4 {vr(TM,4)}, v{vE}, {sr(sO,4)}, s{sMY[0]} offen", "clr")
        self.stamp("i_x0")
        a("s_barrier")
        a(f"s_lshl_b32 s{sT[4]}, s{sXH}, 13"); a(f"s_add_u32 s{sT[4]}, s{sT[4]}, s{sLB}")
        a(f"s_cmp_eq_u32 s{sXH}, 0")
        a(f"s_cselect_b32 s{sT[0]}, s{sVG[0]}, s{sVG[2]}"); a(f"s_cselect_b32 s{sT[1]}, s{sVG[1]}, s{sVG[3]}")
        def v0grp(k):
            a(f"s_add_u32 m0, s{sT[4]}, {k*4096}"); a("s_nop 0")
            for j in range(4):
                self.vmop(f"buffer_load_dwordx4 v{vV[j]}, {sr(sV,4)}, s{sT[k]} offen offset:{1024*j} lds", "V0")
                if (j & 1) and self.opts.get("pgap", 0): self.vmop(f"buffer_load_dword v{vJ}, off, {sr(sB,4)}, 0", "gap")
        v0grp(0)
        self.stamp("i_v0a")
        self.srd(sW, sKA+12, 8 << 20)
        self.srd(sE, sKA+8, 4096*1024)
        if self.opts.get("stag"):
            a(f"v_mov_b32 v{RX+2}, s{sSTAMP}"); a(f"s_lshl_b32 s90, s2, 2"); a("s_add_u32 s90, s90, 0x700000"); a(f"v_mov_b32 v{RX+3}, 0")
            a("s_mov_b64 exec, 1"); a(f"buffer_store_dword v{RX+2}, v{RX+3}, {sr(sW,4)}, s90 offen sc1"); a("s_mov_b64 exec, -1")
        a(f"s_getreg_b32 s{sXCC}, hwreg(HW_REG_XCC_ID)"); a(f"s_and_b32 s{sXCC}, s{sXCC}, 15"); a(f"s_or_b32 s{sXCC}, s{sXCC}, 16")
        a(f"s_and_b32 s{sT[0]}, s{sWS}, 1"); a(f"s_lshl_b32 s{sT[0]}, s{sT[0]}, 6"); a(f"v_xor_b32 v{T[4]}, s{sT[0]}, v{T[4]}")
        for j in range(4):
            a(f"v_add_u32 v{vU[j]}, {((j&1)*16 + (j>>1)*4)*256 - 1024*j + 3072}, v{T[4]}")
        a(f"s_lshl_b32 s{sT[0]}, s{sHF}, 16"); a(f"s_lshl_b32 s{sT[5]}, s{sWS}, 14"); a(f"s_add_u32 s{sT[0]}, s{sT[0]}, s{sT[5]}")
        for g in range(4):
            pp, P = g >> 1, g & 1
            a(f"s_xor_b32 s{sT[5]}, s{sWS}, {2*pp}"); a(f"s_and_b32 s{sT[5]}, s{sT[5]}, 2"); a(f"s_lshl_b32 s{sT[5]}, s{sT[5]}, 6")
            a(f"s_add_u32 s{sT[5]}, s{sT[5]}, {P*8192}"); a(f"s_add_u32 s{sUG[g]}, s{sT[0]}, s{sT[5]}")
        a(f"v_and_b32 v{T[1]}, 6, v{vLANE}"); a(f"v_xor_b32 v{T[2]}, v{T[1]}, v{T[0]}"); a(f"v_lshlrev_b32 v{T[2]}, 4, v{T[2]}")
        a(f"v_and_b32 v{T[1]}, 15, v{vLANE}"); a(f"v_lshl_add_u32 v{T[2]}, v{T[1]}, 7, v{T[2]}")
        a(f"v_add_u32 v{vA[0]}, s{sLB}, v{T[2]}"); a(f"v_xor_b32 v{vA[1]}, 64, v{vA[0]}")
        a(f"s_lshl_b32 s{sT[5]}, s{sWS}, 12"); a(f"s_lshl_b32 s{sT[0]}, s{sXH}, 11"); a(f"s_add_u32 s{sT[5]}, s{sT[5]}, s{sT[0]}"); a(f"s_add_u32 s{sT[5]}, s{sT[5]}, {XB}")
        a(f"v_add_u32 v{T[3]}, s{sT[5]}, v{T[2]}"); a(f"v_xor_b32 v{T[5]}, 64, v{T[3]}")
        a(f"v_lshlrev_b32 v{T[1]}, 4, v{vLANE}")
        a(f"v_add_u32 v{vXW}, s{sT[5]}, v{T[1]}")
        for g in range(1, 4): a(f"v_xor_b32 v{vXR[g]}, {g*4096}, v{vXW}")
        a(f"s_lshl_b32 s{sT[5]}, s{sWV}, 10"); a(f"s_add_u32 s{sT[5]}, s{sT[5]}, {HB}")
        a(f"v_add_u32 v{vHW}, s{sT[5]}, v{T[1]}")
        for g in range(1, 4): a(f"v_xor_b32 v{vHR[g]}, {g*1024}, v{vHW}")
        a(f"s_mul_i32 s{sT[5]}, s{sWS}, 1536"); a(f"s_add_u32 s{sT[5]}, s{sT[5]}, {BIASB}")
        a(f"v_lshlrev_b32 v{vBI}, 5, v{T[0]}"); a(f"v_add_u32 v{vBI}, s{sT[5]}, v{vBI}")
        a(f"s_mul_i32 s{sT[0]}, s{sXH}, 768"); a(f"s_add_u32 s{sT[5]}, s{sT[5]}, s{sT[0]}")
        a(f"v_lshlrev_b32 v{T[7]}, 5, v{T[7]}"); a(f"v_lshl_add_u32 v{T[7]}, v{T[6]}, 8, v{T[7]}"); a(f"v_add_u32 v{vT[0]}, s{sT[5]}, v{T[7]}")
        def xproc():
            self.wvm("x0")
            self.stamp("x0")
            for P in range(2):
                self.lgop(f"ds_read_b128 {vr(PK+4*P,4)}, v{T[5] if P else T[3]}", "x0r")
            self.wvm("bias")
            self.run(self.unpack(TM+8, TM+4, 4))
            self.wlg("x0r")
            for P in range(2):
                self.lgop(f"ds_write_b128 v{vXW}, {vr(PK+4*P,4)} offset:{P*1024}", "xw")
            a("s_mov_b64 exec, 0xffffff")
            self.lgop(f"ds_write_b128 v{vT[0]}, {vr(TM+8,4)}", "bw")
            self.lgop(f"ds_write_b128 v{vT[0]}, {vr(TM+12,4)} offset:16", "bw")
            a("s_mov_b64 exec, -1")
            self.run(self.unpack(X0F, PK, 8))
        xp = self.opts.get("xproc", 0)
        if xp == 0: xproc()
        v0grp(1)
        self.stamp("i_v0b")
        if not self.opts.get("clrearly", 1):
            self.vmop(f"buffer_store_dwordx4 {vr(TM,4)}, v{vE}, {sr(sO,4)}, s{sMY[0]} offen", "clr")
        if bt == 3: box(0xffff)
        if bt == 4: box(0xff)
        pfl(masks[1])
        if xp == 1: xproc()
        self.wvm("clr")
        a("s_barrier")
        self.stamp("issued")
        a(f"s_cmp_lg_u32 s{sWV}, 0"); a("s_cbranch_scc0 L_flag")
        self.lab("L_noflag")
        self.vmop(f"buffer_store_dwordx4 {vr(TM,4)}, v{vE}, {sr(sO,4)}, s{sMY[1]} offen", "clr1")
        a(f"s_xor_b32 s{sT[3]}, s2, 8"); a(f"s_and_b32 s{sT[2]}, s{sT[3]}, 0xfc"); a(f"s_and_b32 s{sT[3]}, s{sT[3]}, 3"); a(f"s_lshl_b32 s{sT[3]}, s{sT[3]}, 3")
        a(f"s_cmp_lg_u32 s{sXH}, 0"); a("s_cbranch_scc1 L_progB")
        self.xl("L_flag")
        self.x(f"v_mov_b32 v{RX}, s2"); self.x(f"v_mov_b32 v{vT[1]}, s{sXCC}"); self.x("s_mov_b64 exec, 1")
        self.x(f"buffer_store_byte v{vT[1]}, v{RX}, {sr(sD,4)}, 0 offen"); self.x("s_mov_b64 exec, -1"); self.x("s_branch L_noflag")

    def late(self, step):
        a = self.a
        if self.opts.get("boxtouch", 1) == 5 and step == 0:
            a("s_mov_b64 exec, 0xffffffff")
            self.vmop(f"buffer_load_dword v{vJ}, v{RX+1}, {sr(sO,4)}, s{sMY[0]} offen", "bt")
            a("s_mov_b64 exec, -1")
        lm = [int(m, 16) for m in str(self.opts.get("lm", "0")).split(",")]
        if step < len(lm) and lm[step]:
            a(f"s_mov_b64 exec, {lm[step]}")
            for off in (0, 2048):
                self.vmop(f"buffer_load_dword v{vJ}, v{vPF}, {sr(sV,4)}, s{sT[6]} offen offset:{off}", "pf")
                self.vmop(f"buffer_load_dword v{vJ}, v{vPF}, {sr(sU,4)}, s{sT[6]} offen offset:{off}", "pf")
            a("s_mov_b64 exec, -1")
    def clr1_flag(self):
        self.a(f"s_load_dword s{sT[1]}, {sr(sKA+10,2)}, s{sT[2]}")
    def bias_ops(self, l):
        return [lambda k=k: self.lgop(f"ds_read_b128 {vr(ACC2+4*k,4)}, v{vBI} offset:{l*256 + (k>>1)*128 + (k&1)*16}", "bias") for k in range(4)]
    def light1(self, kind, l, rd, lp, n1=None):
        d = self.dma(kind, l, 0) + self.dma(kind, l, 1)
        n1 = n1 or self.opts.get("n1", 8)
        self.carry = d[n1:]; d = d[:n1]
        pp = self.opts.get("pollat", 2); r0 = self.opts.get("rd1at", 0)
        rd = list(rd) + self.bias_ops(lp)
        per = self.opts.get("rd1per", 4)
        for k in range(8):
            if k == pp: self.poll(lp)
            if k < len(d): d[k]()
            if r0 <= k and (k - r0) % self.opts.get("dper", 1) == 0: self.run(rd[:per]); rd = rd[per:]
            self.stamp(f"l1{self.X}{lp}_{k}")
        if pp >= 8: self.poll(lp)
    def light2(self, kind, l, rd, lp):
        self.run(self.carry)
        d = self.dma(kind, l, 2) + self.dma(kind, l, 3) + [lambda: None] * 8
        p2 = self.opts.get("pre2", 3); rd = list(rd)
        if self.opts.get("l2mode", 0) == 1 or l >= L:
            m2 = self.opts.get("mid2", 1)
            self.run(d[:p2])
            self.check_post(lp, d[p2:p2+m2])
            self.run(rd[:4]); d[p2+m2](); self.run(rd[4:])
            self.wvm(f"{kind}{l}a")
            self.run(d[p2+m2+1:8])
            return
        self.run(d[:p2])
        self.run(rd[:4]); d[p2](); self.run(rd[4:]); d[p2+1]()
        self.stamp(f"pd{self.X}{lp}")
        self.check_post(lp, d[p2+2:p2+3])
        self.stamp(f"po{self.X}{lp}")
        self.wvm(f"{kind}{l}a")
        self.run(d[p2+3:8])
        self.stamp(f"en{self.X}{lp}")
    def progA(self):
        a = self.a
        self.wvm("V0"); self.stamp("v0l"); self.wvm("clr")
        self.bar("b0")
        self.prio(2)
        xr = self.x_reads(); rv = [f for g in range(4) for f in self.rdV(g)]
        self.run(rv[0:4]); self.run(xr[0:2]); self.run(rv[4:8]); self.run(xr[2:4])
        q = rv[8:12] + xr[4:6] + rv[12:16]
        for ks in range(8):
            self.wlg(f"rV{ks>>1}_{ks&1}")
            if ks >= 2: self.wlg(f"x{ks}")
            self.mf1(ks, [q[0:1], q[1:2]]); q = q[2:]
            if ks == self.opts.get("flagat", 2): self.clr1_flag()
            if ks == self.opts.get("lateat", 3): self.late(0)
        self.send(0)
        self.run(self.unpack(XF, PK, 8))
        self.prio(0)
        self.bar("b1")
        self.light1("V", 1, self.rdU(0) + self.rdU(1), 0, 8)
        self.late(1)
        self.bar("b1x")
        self.run(self.rdU(2))
        self.check_post(0, [])
        self.run(self.rdU(3))
        self.wvm("V1a")
        self.late(2)
        self.bar("b2")
        for l in range(L):
            last = l == L-1
            self.c(f"==== A round {l} phase 0: G2 ====")
            self.prio(2)
            ev = self.opts.get("earlyv", 8)
            self.g2_phase(l, early=(None if last else (self.rdV(0) + self.rdV(1))[:ev]))
            if last:
                self.final_store(bar=True); return
            self.wvm(f"V{l+1}b")
            self.stamp(f"g2g0{l}")
            self.bar(f"A0{l}")
            self.c(f"==== A round {l} phase 1: G1 ====")
            self.g1_phase(l+1, jitV=True)
            self.late(3 + l)
            self.prio(0)
            self.bar(f"A1{l}")
            self.c(f"==== A round {l} phase 2 ====")
            self.light1("V", l+2, self.rdU(0) + self.rdU(1), l+1)
            self.bar(f"A2{l}")
            self.c(f"==== A round {l} phase 3 ====")
            self.light2("V", l+2, self.rdU(2) + self.rdU(3), l+1)
            if l == L-2: self.final_addr()
            self.bar(f"A3{l}")

    def progB(self):
        self.lab("L_progB")
        self.run(self.dma("U", 0, 0) + self.dma("U", 0, 1))
        self.wvm("V0"); self.stamp("v0l"); self.wvm("clr")
        self.bar("b0")
        d = self.dma("U", 0, 2) + self.dma("U", 0, 3)
        rv = [f for g in range(4) for f in self.rdV(g)]
        self.run(d[:4])
        for k in range(4):
            self.run(rv[4*k:4*k+4]); d[4+k]()
        self.wvm("U0a")
        self.bar("b1")
        self.prio(2)
        self.clr1_flag()
        self.g1_phase(0, extra=self.rdU(0) + self.rdU(1))
        self.prio(0)
        self.wvm("U0b")
        self.bar("b1x")
        self.mix(self.dma("V", 1, 2) + self.dma("V", 1, 3), self.rdU(2) + self.rdU(3))
        self.bar("b2")
        for l in range(L):
            last = l == L-1
            self.c(f"==== B round {l} phase 0 ====")
            if not last:
                self.light1("U", l+1, self.rdV(0) + self.rdV(1), l)
                if l == 0: self.wvm("V1b")
                self.bar(f"B0{l}")
                self.c(f"==== B round {l} phase 1 ====")
                self.light2("U", l+1, self.rdV(2) + self.rdV(3), l)
            else:
                self.poll(l); self.bias_rd(l); self.check_post(l, [])
            self.bar(f"B1{l}")
            self.c(f"==== B round {l} phase 2: G2 ====")
            self.prio(2)
            if last:
                self.g2_phase(l); self.final_store(); return
            self.g2_phase(l, mid=self.rdU(0), late=self.rdU(1))
            self.wvm(f"U{l+1}b")
            self.bar(f"B2{l}")
            self.c(f"==== B round {l} phase 3: G1 ====")
            self.g1_phase(l+1, extra=self.rdU(2) + self.rdU(3))
            if l == L-2: self.final_addr()
            self.prio(0)
            self.bar(f"B3{l}")

    def final_addr(self):
        a = self.a; t = [RX, RX+1, RX+2]
        a(f"v_and_b32 v{t[0]}, 15, v{vLANE}"); a(f"v_lshrrev_b32 v{t[1]}, 4, v{vLANE}")
        a(f"v_and_b32 v{t[2]}, 7, v{t[0]}"); a(f"v_xor_b32 v{t[2]}, v{t[2]}, v{t[1]}"); a(f"v_lshlrev_b32 v{t[2]}, 4, v{t[2]}")
        a(f"v_lshl_add_u32 v{t[2]}, v{t[0]}, 7, v{t[2]}")
        a(f"v_and_b32 v{vT[0]}, 0xfffff800, v{vXW}"); a(f"v_add_u32 v{vT[0]}, v{vT[0]}, v{t[2]}"); a(f"v_xor_b32 v{vT[1]}, 64, v{vT[0]}")
        a(f"v_lshrrev_b32 v{t[0]}, 3, v{vLANE}"); a(f"v_xor_b32 v{t[1]}, v{t[0]}, v{vLANE}"); a(f"v_and_b32 v{t[1]}, 7, v{t[1]}")
        a(f"v_lshlrev_b32 v{t[1]}, 4, v{t[1]}")
        a(f"v_and_b32 v{t[2]}, 4, v{t[0]}"); a(f"v_add_u32 v{t[0]}, v{t[0]}, v{t[2]}")
        a(f"v_lshl_add_u32 v{vT[2]}, v{t[0]}, 10, v{t[1]}")

    def final_store(self, bar=False):
        a = self.a; D = XF
        for m in range(2):
            self.lgop(f"ds_read_b128 {vr(D+4*m,4)}, v{vXW} offset:{m*1024}", f"fo{m}")
        fl = self.opts.get("outflags", "") if self.X else self.opts.get("outflagsA", self.opts.get("outflags", ""))
        for m in range(2):
            a(f"s_add_u32 s{sT[m]}, s{sT[7]}, {m*16384}")
            self.wlg(f"fo{m}")
            self.vmop(f"buffer_store_dwordx4 {vr(D+4*m,4)}, v{vT[2]}, {sr(sO,4)}, s{sT[m]} offen {fl}", "out")
        if bar and self.opts.get("junk"):
            for m in range(4):
                a(f"s_add_u32 s{sT[2]}, s{sMY[0]}, {m*4096 if m < 2 else 16384 + (m-2)*4096}")
                a(f"buffer_store_dwordx4 {vr(D,4)}, v{vE}, {sr(sW,4)}, s{sT[2]} offen")
        if bar: a("s_barrier")
        if self.opts.get("stag"):
            u = self.X
            a("s_waitcnt vmcnt(0)")
            a(f"s_add_u32 s4, s{sKA+12}, 0x700000"); a(f"s_addc_u32 s5, s{sKA+13}, 0")
            a("s_load_dwordx8 s[84:91], s[4:5], 0"); a("s_memrealtime s[94:95]"); a("s_waitcnt lgkmcnt(0)")
            a("s_mov_b32 s92, 0")
            for i in range(8):
                a(f"s_sub_u32 s93, s{sSTAMP}, s{84+i}"); a("s_cmp_lt_u32 s93, 3000"); a("s_cselect_b32 s93, s93, 0"); a("s_max_u32 s92, s92, s93")
            self.lab(f"L_echo{u}")
            a("s_sleep 1"); a("s_memrealtime s[96:97]"); a("s_waitcnt lgkmcnt(0)"); a("s_sub_u32 s93, s96, s94")
            a("s_cmp_lt_u32 s93, s92"); a(f"s_cbranch_scc1 L_echo{u}")
        elif self.opts.get("echo"):
            u = self.X
            a("s_waitcnt vmcnt(0)"); self.stamp("fin")
            a("s_memtime s[90:91]"); a("s_waitcnt lgkmcnt(0)")
            a(f"s_sub_u32 s92, s{sSTAMP+2}, s{sSTAMP}")
            self.lab(f"L_echo{u}")
            a("s_sleep 1"); a("s_memtime s[94:95]"); a("s_waitcnt lgkmcnt(0)"); a("s_sub_u32 s93, s94, s90")
            a("s_cmp_lt_u32 s93, s92"); a(f"s_cbranch_scc1 L_echo{u}")
        elif self.prof:
            a("s_waitcnt vmcnt(0)")
            self.stamp("fin"); self.stamp("rt1")
            a("s_waitcnt lgkmcnt(0)")
            a(f"v_mov_b32 v{RX}, 0")
            for i in range(len(self.prof)): a(f"v_writelane_b32 v{RX}, s{sSTAMP+2*i}, {i}")
            a(f"s_lshl_b32 s{sT[0]}, s2, 3"); a(f"s_add_u32 s{sT[0]}, s{sT[0]}, s{sWV}"); a(f"s_lshl_b32 s{sT[0]}, s{sT[0]}, 8")
            a(f"s_add_u32 s{sT[0]}, s{sT[0]}, {6<<20}")
            a(f"v_lshlrev_b32 v{vT[0]}, 2, v{vLANE}")
            a(f"buffer_store_dword v{RX}, v{vT[0]}, {sr(sW,4)}, s{sT[0]} offen")
        for i in range(self.opts.get("delay", 0)): a("s_sleep 125")
        a("s_endpgm")

    def handshake(self):
        a = self.a; x = self.x; P = XF; u = self.X
        self.c("handshake: the partner's inbox is cleared; does it share this XCD?")
        a(f"s_mov_b32 s{sCNT}, 0"); a(f"s_mov_b32 s{sMODE}, 1")
        self.wvm("clr1")
        a("s_waitcnt lgkmcnt(0)"); self.lgdone = len(self.lg)
        a(f"s_lshr_b32 s{sT[0]}, s{sT[1]}, s{sT[3]}"); a(f"s_and_b32 s{sT[0]}, s{sT[0]}, 0xff")
        a(f"s_cmp_eq_u32 s{sT[0]}, s{sXCC}"); a(f"s_cbranch_scc0 L_hs_fast{u}")
        self.lab(f"L_hs_done{u}")
        self.rec("hscnt", f"s{sCNT}"); self.rec("mode", f"s{sMODE}")
        self.xl(f"L_hs_fast{u}")
        x(f"buffer_load_ubyte v{vT[1]}, v{vT[2]}, {sr(sD,4)}, 0 offen sc1")
        x("s_waitcnt vmcnt(0)")
        x(f"v_readfirstlane_b32 s{sT[0]}, v{vT[1]}")
        x(f"s_cmp_eq_u32 s{sT[0]}, s{sXCC}"); x(f"s_cbranch_scc1 L_hs_done{u}")
        x(f"s_add_u32 s{sCNT}, s{sCNT}, 1"); x(f"s_cmp_lt_u32 s{sCNT}, {self.opts.get('fastpolls', 8)}"); x(f"s_cbranch_scc1 L_hs_fast{u}")
        for r in range(4): x(f"v_mov_b32 v{P+4+r}, 0")
        for sl in range(2):
            x(f"buffer_store_dwordx4 {vr(P+4,4)}, v{vE}, {sr(sW,4)}, s{sMY[sl]} offen sc1")
        x(f"s_lshl_b32 s{sT[1]}, s2, 3"); x(f"s_add_u32 s{sT[1]}, s{sT[1]}, s{sWV}"); x(f"s_lshl_b32 s{sT[1]}, s{sT[1]}, 7")
        x(f"s_add_u32 s{sT[1]}, s{sT[1]}, {4<<20}")
        x(f"s_xor_b32 s{sT[2]}, s{sT[1]}, {8*8*128}")
        x(f"v_mov_b32 v{P+2}, 0")
        x("s_mov_b64 exec, 1")
        x(f"buffer_load_dwordx4 {vr(P+8,4)}, v{P+2}, {sr(sW,4)}, s{sT[2]} offen sc1")
        x("s_waitcnt vmcnt(0)")
        x(f"v_readfirstlane_b32 s{sT[3]}, v{P+10}")
        x(f"s_add_u32 s{sT[3]}, s{sT[3]}, 1")
        x(f"v_mov_b32 v{P+3}, s{sT[3]}")
        x(f"buffer_store_dword v{P+3}, v{P+2}, {sr(sW,4)}, s{sT[1]} offen sc1")
        x("s_waitcnt vmcnt(0)")
        x(f"s_mov_b32 s{sCNT}, 0")
        self.xl(f"L_hs_slow{u}")
        x(f"buffer_load_ubyte v{vT[1]}, v{vT[2]}, {sr(sD,4)}, 0 offen sc1")
        x(f"buffer_load_dwordx4 {vr(P+8,4)}, v{P+2}, {sr(sW,4)}, s{sT[2]} offen sc1")
        x("s_waitcnt vmcnt(0)")
        x(f"v_readfirstlane_b32 s{sT[0]}, v{vT[1]}")
        x(f"v_readfirstlane_b32 s{sT[5]}, v{P+8}")
        x(f"v_readfirstlane_b32 s{sT[4]}, v{P+10}")
        x(f"v_readfirstlane_b32 s{sMODE}, v{P+11}")
        x(f"s_cmp_eq_u32 s{sT[0]}, s{sXCC}"); x(f"s_cbranch_scc1 L_hs_same{u}")
        x(f"v_mov_b32 v{P+12}, s{sT[5]}"); x(f"v_mov_b32 v{P+13}, s{sXCC}")
        x(f"buffer_store_dwordx2 {vr(P+12,2)}, v{P+2}, {sr(sW,4)}, s{sT[1]} offen offset:8 sc1")
        x(f"s_add_u32 s{sCNT}, s{sCNT}, 1"); x(f"s_cmp_gt_u32 s{sCNT}, 0x200000"); x(f"s_cbranch_scc1 L_hs_same{u}")
        x(f"s_cmp_eq_u32 s{sT[4]}, s{sT[3]}"); x(f"s_cbranch_scc0 L_hs_slow{u}")
        x(f"s_cmp_eq_u32 s{sMODE}, s{sXCC}"); x(f"s_cbranch_scc1 L_hs_same{u}")
        x(f"s_mov_b32 s{sMODE}, 0")
        x(f"s_mov_b32 s{sE}, s{sKA+12}"); x(f"s_mov_b32 s{sE+1}, s{sKA+13}")
        x("s_mov_b64 exec, -1")
        x(f"s_branch L_hs_done{u}")
        self.xl(f"L_hs_same{u}")
        x(f"s_mov_b32 s{sMODE}, 1")
        x("s_mov_b64 exec, -1")
        x(f"s_branch L_hs_done{u}")

    def build(self):
        hdr = [f"; @launch grid=(256,1,1) block=(512,1,1) lds={LDS_BYTES}",
               '.amdgcn_target "amdgcn-amd-amdhsa--gfx950"', ".text", f".globl {KN}", ".p2align 8",
               f".type {KN},@function", f"{KN}:"]
        self.prologue()
        A = self.fork(0); A.progA()
        B = self.fork(1); B.progB()
        nb = lambda g: sum(1 for s in g.o if s.strip() == "s_barrier")
        assert nb(A) == nb(B), (nb(A), nb(B))
        assert NV + NA <= 256
        ftr = [f".set CODE_BYTES, L_end - {KN}", '.section .rodata,"a"', ".p2align 6", f".amdhsa_kernel {KN}",
               f"  .amdhsa_next_free_vgpr {NV+NA}", "  .amdhsa_next_free_sgpr 102", f"  .amdhsa_accum_offset {NV}",
               "  .amdhsa_group_segment_fixed_size 0", "  .amdhsa_kernarg_size 56", "  .amdhsa_user_sgpr_count 2",
               "  .amdhsa_user_sgpr_kernarg_segment_ptr 1", "  .amdhsa_system_sgpr_workgroup_id_x 1",
               "  .amdhsa_float_denorm_mode_32 3", ".end_amdhsa_kernel"]
        log = []
        m1, n1 = fix_hazards(self.o + A.o, log)
        m2, n2 = fix_hazards(B.o, log)
        ool, n3 = fix_hazards(self.ool)
        main = m1 + m2 + ["L_end:", "    s_endpgm"]
        wrap = lambda ls: "\n".join(hdr + ls + ool + ftr) + "\n"
        if self.opts.get("align", 1):
            main, nw, nn = align(main, wrap, self.opts.get("minrun", 99))
            sys.stderr.write(f"hazard nops {n1}+{n2}+{n3}, widened {nw}, align nops {nn}\n")
        if self.opts.get("hlog"):
            for e in log: sys.stderr.write(str(e) + "\n")
        return wrap(main)

if __name__ == "__main__":
    prof = None; opts = {}
    for x in sys.argv[1:]:
        if x.startswith("--prof="): prof = x[7:].split(",")
        elif x.startswith("--"):
            k, v = x[2:].split("="); opts[k] = int(v) if v.lstrip("-").isdigit() else v
    out = [x for x in sys.argv[1:] if not x.startswith("--")][0]
    g = Gen(prof, opts); txt = g.build()
    if prof: txt = txt + "; stamps: " + ",".join(prof) + "\n"
    open(out, "w").write(txt)
```

```python
import re, subprocess, os, tempfile

def _regs(tok):
    tok = tok.strip()
    m = re.fullmatch(r"([vas])(\d+)", tok)
    if m: return {(m.group(1), int(m.group(2)))}
    m = re.fullmatch(r"([vas])\[(\d+):(\d+)\]", tok)
    if m: return {(m.group(1), i) for i in range(int(m.group(2)), int(m.group(3)) + 1)}
    if tok in ("vcc", "m0", "exec"): return {(tok, 0)}
    if tok in ("exec_lo", "exec_hi"): return {("exec", 0)}
    return set()

def parse(line):
    s = line.split(";")[0].strip()
    if not s or s.endswith(":") or s.startswith("."): return None
    parts = s.split(None, 1)
    mn = parts[0]; ops = []
    if len(parts) > 1:
        ops = [o.strip() for o in re.split(r",(?![^\[]*\])", parts[1])]
        if ops: ops[-1:] = ops[-1].split()
    d = dict(mn=mn, ops=ops, wr=set(), rd=set(), kind="other", slots=1, C=set(), AB=set(), data=set())
    R = lambda i: _regs(ops[i]) if i < len(ops) else set()
    if mn == "s_nop": d["slots"] = int(ops[0]) + 1; d["kind"] = "nop"
    elif mn.startswith("v_mfma"):
        d["kind"] = "mfma"; d["wr"] = R(0); d["AB"] = R(1) | R(2); d["C"] = R(3); d["rd"] = d["AB"] | d["C"]
        d["passes"] = 8 if "32x32" in mn else 4
    elif mn.startswith("v_cmp"):
        d["kind"] = "valu"; d["wr"] = R(0); d["rd"] = R(1) | R(2)
    elif mn.startswith("v_readfirstlane") or mn.startswith("v_readlane"):
        d["kind"] = "valu"; d["sub"] = "rl"; d["wr"] = R(0); d["rd"] = R(1)
    elif mn.startswith("v_"):
        d["kind"] = "valu"; d["wr"] = R(0)
        for i in range(1, len(ops)): d["rd"] |= R(i)
        if mn.startswith("v_writelane") or mn.startswith("v_fmac"): d["rd"] |= R(0)
    elif mn.startswith("ds_read"):
        d["kind"] = "ds"; d["wr"] = R(0); d["rd"] = R(1)
    elif mn.startswith("ds_write"):
        d["kind"] = "ds"; d["rd"] = R(0) | R(1)
    elif mn.startswith("buffer_load") or mn.startswith("global_load"):
        d["kind"] = "vmem"
        if "lds" in ops:
            d["lds"] = True
            for i in range(len(ops)): d["rd"] |= R(i)
        else:
            d["wr"] = R(0)
            for i in range(1, len(ops)): d["rd"] |= R(i)
    elif mn.startswith("buffer_store") or mn.startswith("global_store"):
        d["kind"] = "vmem"
        for i in range(len(ops)): d["rd"] |= R(i)
        if "x4" in mn or "x3" in mn: d["data"] = R(0) if mn.startswith("buffer") else R(1)
    elif mn.startswith("s_"):
        d["kind"] = "salu"
        if not (mn.startswith("s_cmp") or mn.startswith("s_cbranch") or mn in ("s_branch", "s_waitcnt", "s_barrier", "s_endpgm", "s_sleep", "s_setprio")):
            d["wr"] = R(0)
            for i in range(1, len(ops)): d["rd"] |= R(i)
        else:
            for i in range(len(ops)): d["rd"] |= R(i)
    return d

def need(p, c):
    n = 0
    vec = lambda S: {r for r in S if r[0] in "va"}
    sc = lambda S: {r for r in S if r[0] == "s" or r[0] == "vcc"}
    if p["kind"] == "valu":
        if c["kind"] == "mfma" and vec(p["wr"]) & c["rd"]: n = max(n, 2)
        if c.get("sub") == "rl" and vec(p["wr"]) & c["rd"]: n = max(n, 1)
        if c["kind"] == "vmem" and sc(p["wr"]) & c["rd"]: n = max(n, 5)
        if c["kind"] == "valu" and sc(p["wr"]) & c["rd"]: n = max(n, 2)
        if c["mn"].startswith("v_permlane") and vec(p["wr"]) & (c["rd"] | c["wr"]): n = max(n, 2)
    if p["kind"] == "mfma":
        big = p["passes"] == 8
        if c["kind"] == "mfma":
            if p["wr"] & c["AB"]: n = max(n, 12 if big else 8)
            if p["wr"] & c["C"] and not (p["wr"] == c["C"] and p["passes"] == c["passes"]): n = max(n, 10 if big else 6)
            if p["wr"] & c["wr"] and not (p["wr"] == c["C"]): n = max(n, 12 if big else 8)
        elif c["kind"] in ("valu", "ds", "vmem"):
            if p["wr"] & (c["rd"] | c["wr"]): n = max(n, 12 if big else 8)
            if c["kind"] == "valu" and p["C"] & c["wr"]: n = max(n, 7 if big else 3)
    if p["data"] and c["kind"] == "valu" and p["data"] & c["wr"]: n = max(n, 2)
    if p["data"] and c["kind"] in ("ds", "vmem") and p["data"] & c["wr"]: n = max(n, 1)
    if p["kind"] == "salu" and ("m0", 0) in p["wr"] and c.get("lds"): n = max(n, 1)
    return n

def fix_hazards(lines, log=None):
    out = []; hist = []
    added = 0
    for ln in lines:
        d = parse(ln)
        if d is None:
            out.append(ln); continue
        dist = 0; pad = 0
        for p in reversed(hist[-16:]):
            r = need(p, d)
            if r > dist: pad = max(pad, r - dist)
            dist += p["slots"]
            if dist >= 12: break
        if pad:
            out.append(f"    s_nop {pad-1}"); hist.append(parse(f"s_nop {pad-1}")); added += pad
            if log is not None: log.append((ln.strip(), pad))
        out.append(ln); hist.append(d)
    return out, added

def sizes(text):
    with tempfile.TemporaryDirectory() as td:
        s = os.path.join(td, "a.s"); o = os.path.join(td, "a.o")
        open(s, "w").write(text)
        r = subprocess.run(["clang", "-x", "assembler", "-target", "amdgcn-amd-amdhsa", "-mcpu=gfx950", "-c", s, "-o", o], capture_output=True, text=True)
        assert r.returncode == 0, r.stderr
        dis = subprocess.run(["llvm-objdump", "-d", "--mcpu=gfx950", o], capture_output=True, text=True).stdout
    res = []
    for l in dis.splitlines():
        m = re.search(r"//\s*([0-9A-F]{12}):((?: [0-9A-F]{8})+)", l)
        if m: res.append(4 * len(m.group(2).split()))
    return res

WIDEN = ("v_lshlrev_b32", "v_lshrrev_b32", "v_and_b32", "v_or_b32", "v_xor_b32", "v_mov_b32", "v_add_u32", "v_cmp_eq_u32", "v_cmp_ne_u32", "v_add_f32")
def align(lines, wrap, minrun=2):
    idx = [i for i, l in enumerate(lines) if parse(l) is not None]
    sz = sizes(wrap([l for l in lines if not l.strip().startswith(".p2align")]))
    resets = set()
    for i, l in enumerate(lines):
        if l.strip().startswith(".p2align"):
            nxt = [k for k in idx if k > i]
            if nxt: resets.add(nxt[0])
    assert len(sz) >= len(idx), (len(sz), len(idx))
    out = list(lines); ins = {}
    off = 0; last4 = None; nw = nn = 0
    for k, i in enumerate(idx):
        s = sz[k]
        if i in resets: off = 0; last4 = None
        if s == 8 and off % 8 == 4:
            run = 0
            while k + run < len(idx) and sz[k + run] == 8: run += 1
            if last4 is not None and parse(out[last4])["mn"] in WIDEN:
                t = out[last4]; mn = parse(t)["mn"]
                out[last4] = t.replace(mn, mn + "_e64", 1); off += 4; nw += 1
            elif run >= minrun:
                ins[i] = "    s_nop 0"; off += 4; nn += 1
        if s == 4: last4 = i
        elif off % 8 == 0: last4 = None
        off += s
        if s == 4 and off % 8 == 0: last4 = None
    res = []
    for i, l in enumerate(out):
        if i in ins: res.append(ins[i])
        res.append(l)
    return res, nw, nn
```

```python
import sys, copy
from asmlib import fix_hazards, align
KN = "standalone__cross_network_dcn_v2__recsys_kernel"
L = 6
XB = 131072; HB = 147456; BIASB = 155648; LDS_BYTES = 161792
TAGS = [1, 1, 0, 0, 1, 1]

vLANE = 1; vA = [2, 21]; vE = 3; vV = [4, 5, 6, 7]; vU = [8, 9, 10, 11]
vXW = 12; vXR = [None, 13, 14, 15]; vHW = 16; vHR = [None, 17, 18, 19]
vBI = 20; vT = [22, 23, 24, 25]; vJ = 0
ACC1 = 26; ACC2 = 34; XF = 50; X0F = 66; PK = 82; HP = 90; RX = 94; TM = ACC2; SP = HP; T4 = 98; vPF = 102
NV = 104
aV = 0; aU = 64; aX = 128; aH = 128; aS = 128; NS = 6; NA = 152
sX0 = 4; sV = 8; sU = 12; sO = 16; sE = 20; sD = 24; sB = 28; sW = 32
sKA = 36
sWV = 50; sHF = 51; sRB = 52; sXCC = 53; sMODE = 54
sVG = [55, 56, 57, 58]; sUG = [59, 60, 61, 62]; sSO = [63, 64]; sLB = 65
sMY = [66, 67]; sWS = 68; sXH = 69
sLOFF = 4; sSL = 5; sTS = 6; sTAG = 7; sIT = 3
sCNT = 70; sT = [71, 72, 73, 74, 75, 76, 77, 78]; sPTMP = 79
sSTAMP = 80

def vr(b, n): return f"v[{b}:{b+n-1}]"
def ar(b, n): return f"a[{b}:{b+n-1}]"
def sr(b, n): return f"s[{b}:{b+n-1}]"

class Gen:
    def __init__(self, prof=None, opts=None):
        self.o = []; self.ool = []; self.vm = []; self.lg = []; self.vmdone = 0; self.lgdone = 0
        self.prof = prof; self.opts = opts or {}; self.names = []
        self.pw = []; self.nso = 0; self.nst = 0; self.X = 0; self.dyn = False; self.emit_ool = True
        self.pat = self.opts.get("pat", "BBBB/DBDB/DDDB/DDDB"); self.lag = self.opts.get("lag", 4)
    def fork(self, X):
        g = copy.copy(self); g.o = []; g.vm = list(self.vm); g.lg = list(self.lg); g.pw = list(self.pw); g.X = X
        return g
    def a(self, s): self.o.append("    " + s)
    def x(self, s):
        if self.emit_ool: self.ool.append("    " + s)
    def xl(self, s):
        if self.emit_ool: self.ool.append(s + ":")
    def lab(self, s): self.o.append(s + ":")
    def c(self, s): self.o.append("    ; " + s)
    def vmop(self, s, tag): self.vm.append(tag); self.a(s)
    def lgop(self, s, tag): self.lg.append(tag); self.a(s)
    def _last(self, lst, tag):
        idx = [i for i, t in enumerate(lst) if t == tag]
        return idx[-1] if idx else None
    def wvm(self, tag):
        i = self._last(self.vm, tag)
        if i is not None: self.wvmi(i)
    def wvmi(self, i):
        if i < self.vmdone: return
        n = min(len(self.vm) - 1 - i, 63); self.vmdone = len(self.vm) - n
        self.a(f"s_waitcnt vmcnt({n})")
    def wlg(self, tag):
        i = self._last(self.lg, tag)
        if i is None or i < self.lgdone: return
        n = min(len(self.lg) - 1 - i, 15); self.lgdone = len(self.lg) - n
        self.a(f"s_waitcnt lgkmcnt({n})")
    def wlg0(self):
        if self.lgdone < len(self.lg): self.lgdone = len(self.lg); self.a("s_waitcnt lgkmcnt(0)")
    def bar(self, name=None):
        self.wlg0()
        if name: self.stamp(name + "a")
        self.a("s_barrier")
        if name: self.stamp(name + "b")
    def stamp(self, name):
        nm = name + "AB"[self.X] if False else name
        if self.prof and nm in self.prof:
            r = sSTAMP + 2 * self.prof.index(nm)
            assert r + 1 <= 101
            self.a(f"s_memrealtime s[{r}:{r+1}]" if nm.startswith("rt") else f"s_memtime s[{r}:{r+1}]")
    def rec(self, name, src):
        if self.prof and name in self.prof:
            self.a(f"s_mov_b32 s{sSTAMP + 2*self.prof.index(name)}, {src}")
    def prio(self, p):
        m = self.opts.get("prio", 1)
        if m == 1: self.a(f"s_setprio {p}")
        if m == 2: self.a(f"s_setprio {2-p}")
    def dma(self, kind, l, g, pat=None):
        if l >= L: return []
        if self.opts.get("dma") == "off" and l >= 2: return []
        pat = pat or self.pat.split("/")[g]
        so = sSO[self.nso & 1]; self.nso += 1
        base, sg, vv, srd = (0, sVG, vV, sV) if kind == "V" else (16384, sUG, vU, sU)
        tag = f"{kind}{l}" + "ab"[g >> 1]
        items = []
        for j in range(4):
            def emit(j=j):
                while self.pw and len(self.vm) - self.pw[0][0] > self.lag: self.pw.pop(0)[1]()
                if j == 0:
                    self.a(f"s_add_u32 m0, s{sLB}, {base+g*4096}"); self.a(f"s_add_u32 s{so}, s{sg[g]}, s{sLOFF}" if self.dyn else f"s_add_u32 s{so}, s{sg[g]}, {l*131072}")
                if pat[j % len(pat)] in "DBC":
                    self.vmop(f"buffer_load_dwordx4 v{vv[j]}, {sr(srd,4)}, s{so} offen offset:{1024*j} lds", tag)
                    for q in range({"D": 0, "B": 1, "C": 2}[pat[j % len(pat)]]): self.vmop(f"buffer_load_dword v{vJ}, off, {sr(sB,4)}, 0", "gap")
            items.append(emit)
        return items
    def flush(self, keep3=False):
        while self.pw and not (keep3 and self.pw[0][2] == 3): self.pw.pop(0)[1]()
    def rdV(self, g):
        return [lambda j=j: self.lgop(f"ds_read_b128 {ar(aV+4*(4*g+j),4)}, v{vA[j>>1]} offset:{g*4096+(j&1)*2048}", f"rV{g}_{j>>1}") for j in range(4)]
    def rdU(self, g):
        return [lambda j=j: self.lgop(f"ds_read_b128 {ar(aU+4*(4*g+j),4)}, v{vA[j>>1]} offset:{16384+g*4096+(j&1)*2048}", f"rU{g}") for j in range(4)]
    def mf1(self, ks, fill=None):
        for ta in range(2):
            b = vr(PK + 4*ks, 4) if ks < 2 else ar(aX + 4*(ks-2), 4)
            d = vr(ACC1 + 4*ta, 4)
            self.a(f"v_mfma_f32_16x16x32_bf16 {d}, {ar(aV+4*(2*ks+ta),4)}, {b}, {'0' if ks == 0 else d}")
            if fill: self.run(fill[ta])
    def mf2(self, P, kr, fill=None):
        for ta in range(2):
            b = vr(HP, 4) if kr == 0 else ar(aH + 4*(kr-1), 4)
            d = vr(ACC2 + 8*P + 4*ta, 4)
            idx = ((kr >> 1)*2 + P)*4 + (kr & 1)*2 + ta
            self.a(f"v_mfma_f32_16x16x32_bf16 {d}, {ar(aU+4*idx,4)}, {b}, {d}")
            if fill: self.run(fill[ta])
    def epi(self, P, l, pk=False):
        r = []
        if pk:
            for e in range(4):
                q = 8*P + 2*e
                r.append(lambda q=q: self.a(f"v_pk_fma_f32 {vr(ACC2+q,2)}, {vr(X0F+q,2)}, {vr(ACC2+q,2)}, {vr(XF+q,2)}"))
        else:
            for e in range(8):
                q = 8*P + e
                r.append(lambda q=q: self.a(f"v_fma_f32 v{ACC2+q}, v{X0F+q}, v{ACC2+q}, v{XF+q}"))
        for e in range(4):
            q = 8*P + 2*e
            r.append(lambda q=q: self.a(f"v_cvt_pk_bf16_f32 v{PK+q//2}, v{ACC2+q}, v{ACC2+q+1}"))
        if l < L-1: r.append(lambda: self.lgop(f"ds_write_b128 v{vXW}, {vr(PK+4*P,4)} offset:{P*1024}", "xw"))
        else: r.append(lambda: self.lgop(f"ds_write_b128 v{vT[P]}, {vr(PK+4*P,4)}", "xw"))
        return r
    def unpack(self, dst, src, n):
        r = []
        for i in range(n):
            r.append(lambda i=i: self.a(f"v_lshlrev_b32 v{dst+2*i}, 16, v{src+i}"))
            r.append(lambda i=i: self.a(f"v_and_b32 v{dst+2*i+1}, 0xffff0000, v{src+i}"))
        return r
    def bias_rd(self, l):
        for k in range(4):
            self.lgop(f"ds_read_b128 {vr(ACC2+4*k,4)}, v{vBI} offset:{(0 if self.dyn else l*256) + (k>>1)*128 + (k&1)*16}", "bias")
    def run(self, lst):
        for f in lst: f()
    def mix(self, *lists):
        lists = [list(x) for x in lists]
        while any(lists):
            for x in lists:
                if x: x.pop(0)()
    def srd(self, r, p, n, bias=0):
        if bias:
            self.a(f"s_sub_u32 s{r}, s{p}, {bias}"); self.a(f"s_subb_u32 s{r+1}, s{p+1}, 0")
        else:
            self.a(f"s_mov_b32 s{r}, s{p}"); self.a(f"s_mov_b32 s{r+1}, s{p+1}")
        self.a(f"s_mov_b32 s{r+2}, {n+bias}"); self.a(f"s_mov_b32 s{r+3}, 0x20000")
    def poll(self, l):
        self.vmop(f"buffer_load_dwordx4 {vr(RX,4)}, v{vE}, {sr(sE,4)}, s{sSL} offen sc1", f"poll{l}")
    def send(self, l, u=None):
        a = self.a; u = u if u is not None else f"{self.X}{l}"
        a(f"s_xor_b32 s{sPTMP}, s{sSL}, 512")
        for k in range(4): a(f"v_cvt_pk_bf16_f32 v{SP+k}, v{ACC1+2*k}, v{ACC1+2*k+1}")
        for k in range(4): a(f"v_and_or_b32 v{SP+k}, v{SP+k}, -2, s{sTAG}")
        if l == 0: self.handshake()
        self.stamp(f"snd{u}")
        a(f"s_cmp_eq_u32 s{sMODE}, 0"); a(f"s_cbranch_scc1 L_ss{u}")
        self.vmop(f"buffer_store_dwordx4 {vr(SP,4)}, v{vE}, {sr(sE,4)}, s{sPTMP} offen", "st")
        self.lab(f"L_sd{u}")
        self.xl(f"L_ss{u}")
        self.x(f"buffer_store_dwordx4 {vr(SP,4)}, v{vE}, {sr(sE,4)}, s{sPTMP} offen sc1")
        self.x("s_nop 1"); self.x(f"s_branch L_sd{u}")
    def chk_ops(self, l):
        R = RX; t0 = vT[3]
        return [f"v_xor_b32 v{t0}, s{sTAG}, v{R}"] + [f"v_bitop3_b32 v{t0}, v{R+k}, v{t0}, s{sTAG} bitop3:0xde" for k in (1, 2, 3)] + \
               [f"v_and_b32 v{t0}, 1, v{t0}", f"v_cmp_ne_u32 vcc, 0, v{t0}"]
    def next_msg(self):
        self.a(f"s_xor_b32 s{sSL}, s{sSL}, 16384"); self.a(f"s_lshr_b32 s{sTS}, s{sTS}, 1"); self.a(f"s_and_b32 s{sTAG}, s{sTS}, 1")
    def check_post(self, l, d=None):
        u = f"{self.X}{l}"; x = self.x; a = self.a
        self.wvm(f"poll{l}")
        self.stamp(f"chk{u}")
        if self.opts.get("dbgcnt"): a(f"s_mov_b32 s{sCNT}, 0")
        for s in self.chk_ops(l): a(s)
        a(f"s_cbranch_vccnz L_rt{u}")
        self.lab(f"L_got{u}")
        self.stamp(f"got{u}")
        if self.opts.get("dbgcnt"): self.rec(f"cnt{l}", f"s{sCNT}")
        self.xl(f"L_rt{u}")
        x(f"s_mov_b32 s{sCNT}, 0")
        self.xl(f"L_rl{u}")
        x(f"buffer_load_dwordx4 {vr(RX,4)}, v{vE}, {sr(sE,4)}, s{sSL} offen sc1")
        x(f"s_add_u32 s{sCNT}, s{sCNT}, 1"); x(f"s_cmp_gt_u32 s{sCNT}, 0x200000")
        x("s_waitcnt vmcnt(0)")
        x(f"s_cbranch_scc1 L_got{u}")
        for s in self.chk_ops(l): x(s)
        x(f"s_cbranch_vccnz L_rl{u}")
        x(f"s_branch L_got{u}")
        ops = []
        for h in range(2):
            ops += self.unpack(T4, RX+2*h, 2)
            if self.opts.get("pkadd", 0):
                for k in range(2): ops.append(lambda k=k, h=h: a(f"v_pk_add_f32 {vr(T4+2*k,2)}, {vr(T4+2*k,2)}, {vr(ACC1+4*h+2*k,2)}"))
            else:
                for k in range(4): ops.append(lambda k=k, h=h: a(f"v_add_f32 v{T4+k}, v{T4+k}, v{ACC1+4*h+k}"))
            for k in range(2): ops.append(lambda k=k, h=h: a(f"v_cvt_pk_bf16_f32 v{HP+2*h+k}, v{T4+2*k}, v{T4+2*k+1}"))
        ops.append(lambda: self.lgop(f"ds_write_b128 v{vHW}, {vr(HP,4)}", "hw"))
        ops.append(self.next_msg)
        if d is None:
            self.run(ops); self.bias_rd(l); return
        d = list(d); st = self.opts.get("vper", 10)
        while ops:
            self.run(ops[:st]); ops = ops[st:]
            if ops and d: d.pop(0)()
        self.run(d)
    def x_reads(self):
        return [lambda ks=ks: self.lgop(f"ds_read_b128 {ar(aX+4*(ks-2),4)}, v{vXR[ks>>1]} offset:{(ks&1)*1024}", f"x{ks}") for ks in range(2, 8)]
    def h_reads(self):
        for kr in range(1, 4):
            self.lgop(f"ds_read_b128 {ar(aH+4*(kr-1),4)}, v{vHR[kr]}", f"h{kr}")

    def g2_phase(self, l, early=None, mid=None, late=None):
        early = list(early or []); mid = list(mid or []); late = list(late or [])
        def take(q): return [q[0:1], q[1:2]]
        self.h_reads()
        self.mf2(0, 0, take(early)); self.mf2(1, 0, take(early[2:]))
        self.wlg("h1"); self.mf2(0, 1, take(early[4:]))
        self.wlg("h2"); self.mf2(0, 2, take(early[6:] + mid))
        self.wlg("h3"); self.mf2(0, 3, take(mid[2:]))
        self.flush()
        e0 = self.epi(0, l); e1 = self.epi(1, l, pk=self.opts.get("pkfma", 1))
        u = f"{self.X}{l}"
        self.stamp(f"g2a{u}")
        if self.opts.get("e0mix", 1):
            self.mf2(1, 1, [[], late[0:4]])
            self.mf2(1, 2, [[], e0[0:3]])
            self.stamp(f"g2b{u}")
            self.mf2(1, 3, [e0[3:6], e0[6:-1]])
        else:
            self.mf2(1, 1); self.mf2(1, 2, [late[0:2], late[2:4]])
            self.stamp(f"g2b{u}")
            self.mf2(1, 3, [e0[0:2], e0[2:-1]])
        self.stamp(f"g2c{u}")
        e0[-1]()
        self.stamp(f"g2d{u}")
        self.run(e1[:-1])
        self.stamp(f"g2e{u}")
        e1[-1]()
        self.stamp(f"g2f{u}")
    def g1_phase(self, l, jitV=False, extra=None):
        xr = self.x_reads(); extra = list(extra or [])
        if jitV:
            rv = self.rdV(2) + self.rdV(3)
            ev = self.opts.get("earlyv", 8)
            pre = (self.rdV(0) + self.rdV(1))[ev:]
            self.run(pre[:4]); self.run(xr[0:2]); self.run(pre[4:])
            q = [xr[2], rv[0], rv[1], xr[3], rv[2], rv[3], xr[4], rv[4], rv[5], xr[5], rv[6], rv[7]]
            for ks in range(8):
                self.wlg(f"rV{ks>>1}_{ks&1}")
                if ks >= 2: self.wlg(f"x{ks}")
                self.mf1(ks, [q[0:2], q[2:3]]); q = q[3:]
        else:
            self.run(xr)
            for ks in range(8):
                if ks >= 2: self.wlg(f"x{ks}")
                self.mf1(ks, [extra[0:1], extra[1:2]]); extra = extra[2:]
            self.run(extra)
        self.send(l)
        self.run(self.unpack(XF, PK, 8))

    def prologue(self):
        a = self.a; T = [X0F + i for i in range(10)]
        a(f"s_load_dwordx8 {sr(sKA,8)}, s[0:1], 0")
        a(f"s_load_dwordx4 {sr(sKA+8,4)}, s[0:1], 32")
        a(f"s_load_dwordx2 {sr(sKA+12,2)}, s[0:1], 48")
        a("s_cmp_ge_u32 s2, 256"); a("s_cbranch_scc1 L_end")
        self.stamp("start"); self.stamp("rt0")
        a(f"v_lshrrev_b32 v{T[0]}, 6, v0"); a(f"v_and_b32 v{vLANE}, 63, v0")
        a(f"s_lshr_b32 s{sT[0]}, s2, 3")
        a(f"v_readfirstlane_b32 s{sWV}, v{T[0]}")
        a(f"s_lshl_b32 s{sT[0]}, s{sT[0]}, 3"); a(f"s_add_u32 s{sT[6]}, s{sT[0]}, s{sWV}")
        if self.opts.get("codepf", 1):
            a(f"s_getpc_b64 {sr(sX0,2)}")
            a(f"s_and_b32 s{sX0}, s{sX0}, 0xffffff00")
            a(f"s_lshl_b32 s{sT[1]}, s{sT[6]}, 7"); a(f"v_mov_b32 v{T[1]}, s{sT[1]}")
            a(f"s_cmp_ge_u32 s{sT[1]}, CODE_BYTES"); a("s_cbranch_scc1 L_nocpf")
            a("s_mov_b64 exec, 1")
            a(f"global_load_dword v{vJ}, v{T[1]}, {sr(sX0,2)}")
            a("s_mov_b64 exec, -1")
            self.lab("L_nocpf")
        a(f"s_and_b32 s{sWS}, s{sWV}, 3"); a(f"s_lshr_b32 s{sXH}, s{sWV}, 2")
        a(f"v_lshrrev_b32 v{T[6]}, 2, v{vLANE}"); a(f"v_and_b32 v{T[7]}, 3, v{vLANE}")
        a(f"v_lshlrev_b32 v{T[9]}, 7, v{T[7]}"); a(f"v_lshl_add_u32 v{vPF}, v{T[6]}, 17, v{T[9]}")
        a(f"s_lshl_b32 s{sT[6]}, s{sT[6]}, 9"); a(f"s_add_u32 s{sT[6]}, s{sT[6]}, 3072")
        a(f"s_bfe_u32 s{sHF}, s2, 0x10003")
        a(f"s_lshr_b32 s{sT[0]}, s2, 4"); a(f"s_lshl_b32 s{sT[0]}, s{sT[0]}, 3"); a(f"s_and_b32 s{sRB}, s2, 7"); a(f"s_or_b32 s{sRB}, s{sRB}, s{sT[0]}")
        a(f"s_lshl_b32 s{sLB}, s{sWS}, 15")
        a(f"v_lshrrev_b32 v{T[0]}, 4, v{vLANE}")
        a(f"v_lshrrev_b32 v{T[1]}, 3, v{vLANE}"); a(f"v_and_b32 v{T[2]}, 6, v{T[1]}"); a(f"v_xor_b32 v{T[2]}, v{T[2]}, v{vLANE}")
        a(f"v_and_b32 v{T[2]}, 7, v{T[2]}"); a(f"v_lshlrev_b32 v{T[2]}, 4, v{T[2]}")
        a(f"v_and_b32 v{T[3]}, 4, v{T[1]}"); a(f"v_add_u32 v{T[1]}, v{T[1]}, v{T[3]}")
        a(f"v_lshl_add_u32 v{T[3]}, v{T[1]}, 10, v{T[2]}"); a(f"v_lshl_add_u32 v{T[4]}, v{T[1]}, 8, v{T[2]}")
        for j in range(4):
            a(f"v_add_u32 v{vV[j]}, {((j&1)*16 + (j>>1)*4)*1024 - 1024*j + 3072}, v{T[3]}")
        a(f"s_lshl_b32 s{sT[2]}, s{sHF}, 9"); a(f"s_add_u32 s{sT[3]}, s{sLB}, s{sT[2]}")
        a(f"s_lshl_b32 s{sT[4]}, s{sRB}, 15"); a(f"s_add_u32 s{sT[4]}, s{sT[4]}, s{sT[2]}")
        a(f"s_lshl_b32 s{sT[5]}, s{sXH}, 12"); a(f"s_add_u32 s{sT[4]}, s{sT[4]}, s{sT[5]}")
        a(f"s_lshl_b32 s{sT[5]}, s{sWS}, 7"); a(f"s_add_u32 s{sT[7]}, s{sT[4]}, s{sT[5]}")
        a(f"s_lshr_b32 s{sT[5]}, s{sWS}, 1"); a(f"s_lshl_b32 s{sT[5]}, s{sT[5]}, 13"); a(f"s_add_u32 s{sT[4]}, s{sT[4]}, s{sT[5]}")
        a(f"s_and_b32 s{sT[5]}, s{sWS}, 1"); a(f"s_lshl_b32 s{sT[5]}, s{sT[5]}, 11"); a(f"s_add_u32 s{sMY[0]}, s{sT[4]}, s{sT[5]}")
        a(f"s_add_u32 s{sMY[1]}, s{sMY[0]}, 16384")
        for g in range(4):
            a(f"s_xor_b32 s{sT[4]}, s{sWS}, {g}"); a(f"s_lshl_b32 s{sT[4]}, s{sT[4]}, 7"); a(f"s_add_u32 s{sVG[g]}, s{sT[3]}, s{sT[4]}")
        a(f"v_lshrrev_b32 v{T[8]}, 5, v{vLANE}"); a(f"v_and_b32 v{vE}, 31, v{vLANE}"); a(f"v_lshlrev_b32 v{vE}, 4, v{vE}")
        a(f"v_lshl_add_u32 v{vE}, v{T[8]}, 10, v{vE}")
        for r in range(4): a(f"v_mov_b32 v{TM+r}, 0")
        a(f"v_mov_b32 v{vT[2]}, s2"); a(f"v_xor_b32 v{vT[2]}, 8, v{vT[2]}")
        a(f"s_lshl_b32 s{sT[5]}, s{sWS}, 12"); a(f"s_lshl_b32 s{sT[4]}, s{sXH}, 11"); a(f"s_add_u32 s{sT[5]}, s{sT[5]}, s{sT[4]}")
        a(f"s_add_u32 m0, s{sT[5]}, {XB}")
        a(f"v_lshrrev_b32 v{T[6]}, 3, v{vLANE}"); a(f"v_and_b32 v{T[7]}, 7, v{vLANE}")
        a(f"v_lshlrev_b32 v{T[8]}, 4, v{T[7]}"); a(f"v_lshl_add_u32 v{T[8]}, v{T[6]}, 10, v{T[8]}")
        a(f"s_lshl_b32 s{sT[5]}, s{sWS}, 7"); a(f"s_add_u32 s{sT[5]}, s{sT[5]}, s{sT[2]}"); a(f"s_mul_i32 s{sT[3]}, s{sXH}, 3072"); a(f"s_add_u32 s{sT[5]}, s{sT[5]}, s{sT[3]}")
        a("s_waitcnt lgkmcnt(0)")
        self.stamp("karg")
        pf = self.opts.get("pf", 1)
        def pfl(lo):
            if not pf or not lo: return
            a(f"s_mov_b64 exec, {lo}")
            self.vmop(f"buffer_load_dword v{vJ}, v{vPF}, {sr(sV,4)}, s{sT[6]} offen", "pf")
            self.vmop(f"buffer_load_dword v{vJ}, v{vPF}, {sr(sU,4)}, s{sT[6]} offen", "pf")
            a("s_mov_b64 exec, -1")
        self.pfl = pfl
        masks = [int(m, 16) for m in str(self.opts.get("pfm", "f,fffff0")).split(",")]
        self.pfmasks = masks
        self.srd(sX0, sKA+0, 4096*1024, 3072)
        self.vmop(f"buffer_load_dwordx4 v{vV[0]}, {sr(sX0,4)}, s{sT[7]} offen lds", "x0")
        self.vmop(f"buffer_load_dwordx4 v{vV[1]}, {sr(sX0,4)}, s{sT[7]} offen offset:1024 lds", "x0")
        self.srd(sV, sKA+4, 6*131072, 3072)
        self.srd(sU, sKA+2, 6*131072, 3072)
        pfl(masks[0])
        self.srd(sB, sKA+6, 6*1024)
        self.srd(sD, sKA+10, 256)
        a("s_mov_b64 exec, 0xffffff")
        self.vmop(f"buffer_load_dwordx4 {vr(TM+4,4)}, v{T[8]}, {sr(sB,4)}, s{sT[5]} offen", "bias")
        a("s_mov_b64 exec, 1")
        self.vmop(f"buffer_load_ubyte v{vJ}, v{vT[2]}, {sr(sD,4)}, 0 offen", "touch")
        a("s_mov_b64 exec, -1")
        self.srd(sO, sKA+8, 4096*1024)
        bt = self.opts.get("boxtouch", 1)
        a(f"v_and_b32 v{RX+1}, 3, v{vLANE}"); a(f"v_lshlrev_b32 v{RX+1}, 7, v{RX+1}")
        a(f"v_bfe_u32 v{RX}, v{vLANE}, 2, 1"); a(f"v_lshl_add_u32 v{RX+1}, v{RX}, 10, v{RX+1}")
        a(f"v_bfe_u32 v{RX}, v{vLANE}, 3, 1"); a(f"v_lshl_add_u32 v{RX+1}, v{RX}, {12 if bt == 5 else 14}, v{RX+1}")
        if bt == 5: a(f"v_bfe_u32 v{RX}, v{vLANE}, 4, 1"); a(f"v_lshl_add_u32 v{RX+1}, v{RX}, 14, v{RX+1}")
        def box(m):
            a(f"s_mov_b64 exec, {m}")
            self.vmop(f"buffer_load_dword v{vJ}, v{RX+1}, {sr(sO,4)}, s{sMY[0]} offen", "bt")
            a("s_mov_b64 exec, -1")
        self.box = box
        if bt == 1: box(0xffff)
        if bt == 2: box(0xff)
        if self.opts.get("clrearly", 1):
            self.vmop(f"buffer_store_dwordx4 {vr(TM,4)}, v{vE}, {sr(sO,4)}, s{sMY[0]} offen", "clr")
        gm = int(str(self.opts.get("gm", "0")), 16)
        def gpf():
            if not gm: return
            a(f"s_lshl_b32 s{sT[0]}, s2, 2"); a(f"s_add_u32 s{sT[0]}, s{sT[0]}, s{sWS}"); a(f"s_lshl_b32 s{sT[0]}, s{sT[0]}, 7"); a(f"s_add_u32 s{sT[0]}, s{sT[0]}, 3072")
            a(f"v_lshlrev_b32 v{RX+2}, 17, v{vLANE}")
            a(f"s_mov_b64 exec, {gm}")
            a(f"s_cmp_lg_u32 s{sXH}, 0"); a("s_cbranch_scc1 L_gU")
            a(f"buffer_load_dword v{vJ}, v{RX+2}, {sr(sV,4)}, s{sT[0]} offen"); a("s_branch L_gD")
            self.lab("L_gU")
            self.vmop(f"buffer_load_dword v{vJ}, v{RX+2}, {sr(sU,4)}, s{sT[0]} offen", "gpf")
            self.lab("L_gD")
            a("s_mov_b64 exec, -1")
        if self.opts.get("gpos", 1) == 0: gpf()
        self.stamp("i_x0")
        a("s_barrier")
        a(f"s_lshl_b32 s{sT[4]}, s{sXH}, 13"); a(f"s_add_u32 s{sT[4]}, s{sT[4]}, s{sLB}")
        a(f"s_cmp_eq_u32 s{sXH}, 0")
        a(f"s_cselect_b32 s{sT[0]}, s{sVG[0]}, s{sVG[2]}"); a(f"s_cselect_b32 s{sT[1]}, s{sVG[1]}, s{sVG[3]}")
        def v0grp(k):
            a(f"s_add_u32 m0, s{sT[4]}, {k*4096}"); a("s_nop 0")
            for j in range(4):
                self.vmop(f"buffer_load_dwordx4 v{vV[j]}, {sr(sV,4)}, s{sT[k]} offen offset:{1024*j} lds", "V0")
                if (j & 1) and self.opts.get("pgap", 0): self.vmop(f"buffer_load_dword v{vJ}, off, {sr(sB,4)}, 0", "gap")
        v0grp(0)
        self.stamp("i_v0a")
        self.srd(sW, sKA+12, 8 << 20)
        self.srd(sE, sKA+8, 4096*1024)
        if self.opts.get("stag"):
            a(f"v_mov_b32 v{RX+2}, s{sSTAMP}"); a(f"s_lshl_b32 s90, s2, 2"); a("s_add_u32 s90, s90, 0x700000"); a(f"v_mov_b32 v{RX+3}, 0")
            a("s_mov_b64 exec, 1"); a(f"buffer_store_dword v{RX+2}, v{RX+3}, {sr(sW,4)}, s90 offen sc1"); a("s_mov_b64 exec, -1")
        a(f"s_getreg_b32 s{sXCC}, hwreg(HW_REG_XCC_ID)"); a(f"s_and_b32 s{sXCC}, s{sXCC}, 15"); a(f"s_or_b32 s{sXCC}, s{sXCC}, 16")
        a(f"s_and_b32 s{sT[0]}, s{sWS}, 1"); a(f"s_lshl_b32 s{sT[0]}, s{sT[0]}, 6"); a(f"v_xor_b32 v{T[4]}, s{sT[0]}, v{T[4]}")
        for j in range(4):
            a(f"v_add_u32 v{vU[j]}, {((j&1)*16 + (j>>1)*4)*256 - 1024*j + 3072}, v{T[4]}")
        a(f"s_lshl_b32 s{sT[0]}, s{sHF}, 16"); a(f"s_lshl_b32 s{sT[5]}, s{sWS}, 14"); a(f"s_add_u32 s{sT[0]}, s{sT[0]}, s{sT[5]}")
        for g in range(4):
            pp, P = g >> 1, g & 1
            a(f"s_xor_b32 s{sT[5]}, s{sWS}, {2*pp}"); a(f"s_and_b32 s{sT[5]}, s{sT[5]}, 2"); a(f"s_lshl_b32 s{sT[5]}, s{sT[5]}, 6")
            a(f"s_add_u32 s{sT[5]}, s{sT[5]}, {P*8192}"); a(f"s_add_u32 s{sUG[g]}, s{sT[0]}, s{sT[5]}")
        a(f"v_and_b32 v{T[1]}, 6, v{vLANE}"); a(f"v_xor_b32 v{T[2]}, v{T[1]}, v{T[0]}"); a(f"v_lshlrev_b32 v{T[2]}, 4, v{T[2]}")
        a(f"v_and_b32 v{T[1]}, 15, v{vLANE}"); a(f"v_lshl_add_u32 v{T[2]}, v{T[1]}, 7, v{T[2]}")
        a(f"v_add_u32 v{vA[0]}, s{sLB}, v{T[2]}"); a(f"v_xor_b32 v{vA[1]}, 64, v{vA[0]}")
        a(f"s_lshl_b32 s{sT[5]}, s{sWS}, 12"); a(f"s_lshl_b32 s{sT[0]}, s{sXH}, 11"); a(f"s_add_u32 s{sT[5]}, s{sT[5]}, s{sT[0]}"); a(f"s_add_u32 s{sT[5]}, s{sT[5]}, {XB}")
        a(f"v_add_u32 v{T[3]}, s{sT[5]}, v{T[2]}"); a(f"v_xor_b32 v{T[5]}, 64, v{T[3]}")
        a(f"v_lshlrev_b32 v{T[1]}, 4, v{vLANE}")
        a(f"v_add_u32 v{vXW}, s{sT[5]}, v{T[1]}")
        for g in range(1, 4): a(f"v_xor_b32 v{vXR[g]}, {g*4096}, v{vXW}")
        a(f"s_lshl_b32 s{sT[5]}, s{sWV}, 10"); a(f"s_add_u32 s{sT[5]}, s{sT[5]}, {HB}")
        a(f"v_add_u32 v{vHW}, s{sT[5]}, v{T[1]}")
        for g in range(1, 4): a(f"v_xor_b32 v{vHR[g]}, {g*1024}, v{vHW}")
        a(f"s_mul_i32 s{sT[5]}, s{sWS}, 1536"); a(f"s_add_u32 s{sT[5]}, s{sT[5]}, {BIASB}")
        a(f"v_lshlrev_b32 v{vBI}, 5, v{T[0]}"); a(f"v_add_u32 v{vBI}, s{sT[5]}, v{vBI}")
        a(f"s_mul_i32 s{sT[0]}, s{sXH}, 768"); a(f"s_add_u32 s{sT[5]}, s{sT[5]}, s{sT[0]}")
        a(f"v_lshlrev_b32 v{T[7]}, 5, v{T[7]}"); a(f"v_lshl_add_u32 v{T[7]}, v{T[6]}, 8, v{T[7]}"); a(f"v_add_u32 v{vT[0]}, s{sT[5]}, v{T[7]}")
        def xproc():
            self.wvm("x0")
            self.stamp("x0")
            for P in range(2):
                self.lgop(f"ds_read_b128 {vr(PK+4*P,4)}, v{T[5] if P else T[3]}", "x0r")
            self.wvm("bias")
            self.run(self.unpack(TM+8, TM+4, 4))
            self.wlg("x0r")
            for P in range(2):
                self.lgop(f"ds_write_b128 v{vXW}, {vr(PK+4*P,4)} offset:{P*1024}", "xw")
            a("s_mov_b64 exec, 0xffffff")
            self.lgop(f"ds_write_b128 v{vT[0]}, {vr(TM+8,4)}", "bw")
            self.lgop(f"ds_write_b128 v{vT[0]}, {vr(TM+12,4)} offset:16", "bw")
            a("s_mov_b64 exec, -1")
            self.run(self.unpack(X0F, PK, 8))
        xp = self.opts.get("xproc", 0)
        if xp == 0: xproc()
        v0grp(1)
        self.stamp("i_v0b")
        if not self.opts.get("clrearly", 1):
            self.vmop(f"buffer_store_dwordx4 {vr(TM,4)}, v{vE}, {sr(sO,4)}, s{sMY[0]} offen", "clr")
        if bt == 3: box(0xffff)
        if bt == 4: box(0xff)
        pfl(masks[1])
        if self.opts.get("gpos", 1) == 1: gpf()
        if xp == 1: xproc()
        self.wvm("clr")
        a("s_barrier")
        self.stamp("issued")
        a(f"s_cmp_lg_u32 s{sWV}, 0"); a("s_cbranch_scc0 L_flag")
        self.lab("L_noflag")
        self.vmop(f"buffer_store_dwordx4 {vr(TM,4)}, v{vE}, {sr(sO,4)}, s{sMY[1]} offen", "clr1")
        a(f"s_mov_b32 s{sSL}, s{sMY[0]}"); a(f"s_mov_b32 s{sTS}, {sum(t << i for i, t in enumerate(TAGS))}"); a(f"s_mov_b32 s{sTAG}, {TAGS[0]}")
        a(f"s_xor_b32 s{sT[3]}, s2, 8"); a(f"s_and_b32 s{sT[2]}, s{sT[3]}, 0xfc"); a(f"s_and_b32 s{sT[3]}, s{sT[3]}, 3"); a(f"s_lshl_b32 s{sT[3]}, s{sT[3]}, 3")
        a(f"s_cmp_lg_u32 s{sXH}, 0"); a("s_cbranch_scc1 L_progB")
        self.xl("L_flag")
        self.x(f"v_mov_b32 v{RX}, s2"); self.x(f"v_mov_b32 v{vT[1]}, s{sXCC}"); self.x("s_mov_b64 exec, 1")
        self.x(f"buffer_store_byte v{vT[1]}, v{RX}, {sr(sD,4)}, 0 offen"); self.x("s_mov_b64 exec, -1"); self.x("s_branch L_noflag")

    def late(self, step):
        a = self.a
        if self.opts.get("boxtouch", 1) == 5 and step == 0:
            a("s_mov_b64 exec, 0xffffffff")
            self.vmop(f"buffer_load_dword v{vJ}, v{RX+1}, {sr(sO,4)}, s{sMY[0]} offen", "bt")
            a("s_mov_b64 exec, -1")
        lm = [int(m, 16) for m in str(self.opts.get("lm", "0")).split(",")]
        if step < len(lm) and lm[step]:
            a(f"s_mov_b64 exec, {lm[step]}")
            for off in (0, 2048):
                self.vmop(f"buffer_load_dword v{vJ}, v{vPF}, {sr(sV,4)}, s{sT[6]} offen offset:{off}", "pf")
                self.vmop(f"buffer_load_dword v{vJ}, v{vPF}, {sr(sU,4)}, s{sT[6]} offen offset:{off}", "pf")
            a("s_mov_b64 exec, -1")
    def clr1_flag(self):
        self.a(f"s_load_dword s{sT[1]}, {sr(sKA+10,2)}, s{sT[2]}")
    def bias_ops(self, l):
        return [lambda k=k: self.lgop(f"ds_read_b128 {vr(ACC2+4*k,4)}, v{vBI} offset:{(0 if self.dyn else l*256) + (k>>1)*128 + (k&1)*16}", "bias") for k in range(4)]
    def light1(self, kind, l, rd, lp, n1=None):
        d = self.dma(kind, l, 0) + self.dma(kind, l, 1)
        n1 = n1 or self.opts.get("n1", 8)
        self.carry = d[n1:]; d = d[:n1]
        pp = self.opts.get("pollat", 2); r0 = self.opts.get("rd1at", 0)
        rd = list(rd) + self.bias_ops(lp)
        per = self.opts.get("rd1per", 4)
        for k in range(8):
            if k == pp: self.poll(lp)
            if k < len(d): d[k]()
            if r0 <= k and (k - r0) % self.opts.get("dper", 1) == 0: self.run(rd[:per]); rd = rd[per:]
            self.stamp(f"l1{self.X}{lp}_{k}")
        if pp >= 8: self.poll(lp)
    def light2(self, kind, l, rd, lp):
        self.run(self.carry)
        d = self.dma(kind, l, 2) + self.dma(kind, l, 3) + [lambda: None] * 8
        p2 = self.opts.get("pre2", 3); rd = list(rd)
        if self.opts.get("l2mode", 0) == 1 or l >= L:
            m2 = self.opts.get("mid2", 1)
            self.run(d[:p2])
            self.check_post(lp, d[p2:p2+m2])
            self.run(rd[:4]); d[p2+m2](); self.run(rd[4:])
            self.wvm(f"{kind}{l}a")
            self.run(d[p2+m2+1:8])
            return
        self.run(d[:p2])
        self.run(rd[:4]); d[p2](); self.run(rd[4:]); d[p2+1]()
        self.stamp(f"pd{self.X}{lp}")
        self.check_post(lp, d[p2+2:p2+3])
        self.stamp(f"po{self.X}{lp}")
        self.wvm(f"{kind}{l}a")
        self.run(d[p2+3:8])
        self.stamp(f"en{self.X}{lp}")
    def progA(self):
        a = self.a
        self.wvm("V0"); self.stamp("v0l"); self.wvm("clr")
        self.bar("b0")
        self.prio(2)
        xr = self.x_reads(); rv = [f for g in range(4) for f in self.rdV(g)]
        self.run(rv[0:4]); self.run(xr[0:2]); self.run(rv[4:8]); self.run(xr[2:4])
        q = rv[8:12] + xr[4:6] + rv[12:16]
        for ks in range(8):
            self.wlg(f"rV{ks>>1}_{ks&1}")
            if ks >= 2: self.wlg(f"x{ks}")
            self.mf1(ks, [q[0:1], q[1:2]]); q = q[2:]
            if ks == self.opts.get("flagat", 2): self.clr1_flag()
            if ks == self.opts.get("lateat", 3): self.late(0)
        self.send(0)
        self.run(self.unpack(XF, PK, 8))
        self.prio(0)
        self.bar("b1")
        self.light1("V", 1, self.rdU(0) + self.rdU(1), 0, 8)
        self.bar("b1x")
        self.run(self.rdU(2))
        self.check_post(0, [])
        self.run(self.rdU(3))
        self.wvm("V1a")
        self.bar("b2")
        self.a(f"s_mov_b32 s{sLOFF}, {2*131072}"); self.a(f"v_add_u32 v{vBI}, 256, v{vBI}")
        self.rounds(self.roundA)
    def rounds(self, body):
        self.dyn = True
        if not self.opts.get("loop", 1):
            for l in range(L): body(l, None)
            return
        u = self.X
        self.a(f"s_mov_b32 s{sIT}, 4")
        keep = self.o; self.o = []; self.emit_ool = False
        body(0, None)
        self.o = keep; self.emit_ool = True
        if self.opts.get("loopalign", 1): self.o.append("    .p2align 6")
        self.lab(f"L_loop{u}")
        body(1, f"L_loop{u}")
        keep = self.o; self.o = []; self.emit_ool = False
        body(2, None); body(3, None)
        self.o = keep; self.emit_ool = True
        body(4, None); body(5, None)
    def adv(self, back):
        self.a(f"s_add_u32 s{sLOFF}, s{sLOFF}, 131072"); self.a(f"v_add_u32 v{vBI}, 256, v{vBI}")
        if back: self.a(f"s_sub_u32 s{sIT}, s{sIT}, 1"); self.a(f"s_cmp_lg_u32 s{sIT}, 0")
    def roundA(self, l, back):
        last = l == L-1
        self.c(f"==== A round {l} phase 0: G2 ====")
        self.prio(2)
        ev = self.opts.get("earlyv", 8)
        self.g2_phase(l, early=(None if last else (self.rdV(0) + self.rdV(1))[:ev]))
        if last:
            self.final_store(bar=True); return
        self.wvm(f"V{l+1}b")
        self.stamp(f"g2g0{l}")
        self.bar(f"A0{l}")
        self.c(f"==== A round {l} phase 1: G1 ====")
        self.g1_phase(l+1, jitV=True)
        self.prio(0)
        self.bar(f"A1{l}")
        self.c(f"==== A round {l} phase 2 ====")
        self.light1("V", l+2, self.rdU(0) + self.rdU(1), l+1)
        self.bar(f"A2{l}")
        self.c(f"==== A round {l} phase 3 ====")
        self.light2("V", l+2, self.rdU(2) + self.rdU(3), l+1)
        if l == L-2: self.final_addr()
        self.wlg0()
        self.adv(back)
        self.bar(f"A3{l}")
        if back: self.a(f"s_cbranch_scc1 {back}")

    def progB(self):
        self.lab("L_progB")
        self.run(self.dma("U", 0, 0) + self.dma("U", 0, 1))
        self.wvm("V0"); self.stamp("v0l"); self.wvm("clr")
        self.bar("b0")
        d = self.dma("U", 0, 2) + self.dma("U", 0, 3)
        rv = [f for g in range(4) for f in self.rdV(g)]
        self.run(d[:4])
        for k in range(4):
            self.run(rv[4*k:4*k+4]); d[4+k]()
        self.wvm("U0a")
        self.bar("b1")
        self.prio(2)
        self.clr1_flag()
        self.g1_phase(0, extra=self.rdU(0) + self.rdU(1))
        self.prio(0)
        self.wvm("U0b")
        self.bar("b1x")
        self.mix(self.dma("V", 1, 2) + self.dma("V", 1, 3), self.rdU(2) + self.rdU(3))
        self.bar("b2")
        self.a(f"s_mov_b32 s{sLOFF}, 131072")
        self.rounds(self.roundB)
    def roundB(self, l, back):
        last = l == L-1
        self.c(f"==== B round {l} phase 0 ====")
        if not last:
            n0 = len(self.vm)
            self.light1("U", l+1, self.rdV(0) + self.rdV(1), l)
            self.a(f"s_waitcnt vmcnt({len(self.vm) - n0})"); self.vmdone = max(self.vmdone, n0)
            self.bar(f"B0{l}")
            self.c(f"==== B round {l} phase 1 ====")
            self.light2("U", l+1, self.rdV(2) + self.rdV(3), l)
        else:
            self.poll(l); self.bias_rd(l); self.check_post(l, [])
        self.bar(f"B1{l}")
        self.c(f"==== B round {l} phase 2: G2 ====")
        self.prio(2)
        if last:
            self.g2_phase(l); self.final_store(); return
        self.g2_phase(l, mid=self.rdU(0), late=self.rdU(1))
        self.wvm(f"U{l+1}b")
        self.bar(f"B2{l}")
        self.c(f"==== B round {l} phase 3: G1 ====")
        self.g1_phase(l+1, extra=self.rdU(2) + self.rdU(3))
        if l == L-2: self.final_addr()
        self.prio(0)
        self.wlg0()
        self.adv(back)
        self.bar(f"B3{l}")
        if back: self.a(f"s_cbranch_scc1 {back}")

    def final_addr(self):
        a = self.a; t = [RX, RX+1, RX+2]
        a(f"v_and_b32 v{t[0]}, 15, v{vLANE}"); a(f"v_lshrrev_b32 v{t[1]}, 4, v{vLANE}")
        a(f"v_and_b32 v{t[2]}, 7, v{t[0]}"); a(f"v_xor_b32 v{t[2]}, v{t[2]}, v{t[1]}"); a(f"v_lshlrev_b32 v{t[2]}, 4, v{t[2]}")
        a(f"v_lshl_add_u32 v{t[2]}, v{t[0]}, 7, v{t[2]}")
        a(f"v_and_b32 v{vT[0]}, 0xfffff800, v{vXW}"); a(f"v_add_u32 v{vT[0]}, v{vT[0]}, v{t[2]}"); a(f"v_xor_b32 v{vT[1]}, 64, v{vT[0]}")
        a(f"v_lshrrev_b32 v{t[0]}, 3, v{vLANE}"); a(f"v_xor_b32 v{t[1]}, v{t[0]}, v{vLANE}"); a(f"v_and_b32 v{t[1]}, 7, v{t[1]}")
        a(f"v_lshlrev_b32 v{t[1]}, 4, v{t[1]}")
        a(f"v_and_b32 v{t[2]}, 4, v{t[0]}"); a(f"v_add_u32 v{t[0]}, v{t[0]}, v{t[2]}")
        a(f"v_lshl_add_u32 v{vT[2]}, v{t[0]}, 10, v{t[1]}")

    def final_store(self, bar=False):
        a = self.a; D = XF
        for m in range(2):
            self.lgop(f"ds_read_b128 {vr(D+4*m,4)}, v{vXW} offset:{m*1024}", f"fo{m}")
        fl = self.opts.get("outflags", "") if self.X else self.opts.get("outflagsA", self.opts.get("outflags", ""))
        for m in range(2):
            a(f"s_add_u32 s{sT[m]}, s{sT[7]}, {m*16384}")
            self.wlg(f"fo{m}")
            self.vmop(f"buffer_store_dwordx4 {vr(D+4*m,4)}, v{vT[2]}, {sr(sO,4)}, s{sT[m]} offen {fl}", "out")
        if bar and self.opts.get("junk"):
            for m in range(4):
                a(f"s_add_u32 s{sT[2]}, s{sMY[0]}, {m*4096 if m < 2 else 16384 + (m-2)*4096}")
                a(f"buffer_store_dwordx4 {vr(D,4)}, v{vE}, {sr(sW,4)}, s{sT[2]} offen")
        if bar: a("s_barrier")
        if self.opts.get("stag"):
            u = self.X
            a("s_waitcnt vmcnt(0)")
            a(f"s_add_u32 s4, s{sKA+12}, 0x700000"); a(f"s_addc_u32 s5, s{sKA+13}, 0")
            a("s_load_dwordx8 s[84:91], s[4:5], 0"); a("s_memrealtime s[94:95]"); a("s_waitcnt lgkmcnt(0)")
            a("s_mov_b32 s92, 0")
            for i in range(8):
                a(f"s_sub_u32 s93, s{sSTAMP}, s{84+i}"); a("s_cmp_lt_u32 s93, 3000"); a("s_cselect_b32 s93, s93, 0"); a("s_max_u32 s92, s92, s93")
            self.lab(f"L_echo{u}")
            a("s_sleep 1"); a("s_memrealtime s[96:97]"); a("s_waitcnt lgkmcnt(0)"); a("s_sub_u32 s93, s96, s94")
            a("s_cmp_lt_u32 s93, s92"); a(f"s_cbranch_scc1 L_echo{u}")
        elif self.opts.get("echo"):
            u = self.X
            a("s_waitcnt vmcnt(0)"); self.stamp("fin")
            a("s_memtime s[90:91]"); a("s_waitcnt lgkmcnt(0)")
            a(f"s_sub_u32 s92, s{sSTAMP+2}, s{sSTAMP}")
            self.lab(f"L_echo{u}")
            a("s_sleep 1"); a("s_memtime s[94:95]"); a("s_waitcnt lgkmcnt(0)"); a("s_sub_u32 s93, s94, s90")
            a("s_cmp_lt_u32 s93, s92"); a(f"s_cbranch_scc1 L_echo{u}")
        elif self.prof:
            a("s_waitcnt vmcnt(0)")
            self.stamp("fin"); self.stamp("rt1")
            a("s_waitcnt lgkmcnt(0)")
            a(f"v_mov_b32 v{RX}, 0")
            for i in range(len(self.prof)): a(f"v_writelane_b32 v{RX}, s{sSTAMP+2*i}, {i}")
            a(f"s_lshl_b32 s{sT[0]}, s2, 3"); a(f"s_add_u32 s{sT[0]}, s{sT[0]}, s{sWV}"); a(f"s_lshl_b32 s{sT[0]}, s{sT[0]}, 8")
            a(f"s_add_u32 s{sT[0]}, s{sT[0]}, {6<<20}")
            a(f"v_lshlrev_b32 v{vT[0]}, 2, v{vLANE}")
            a(f"buffer_store_dword v{RX}, v{vT[0]}, {sr(sW,4)}, s{sT[0]} offen")
        for i in range(self.opts.get("delay", 0)): a("s_sleep 125")
        a("s_endpgm")

    def handshake(self):
        a = self.a; x = self.x; P = XF; u = self.X
        self.c("handshake: the partner's inbox is cleared; does it share this XCD?")
        a(f"s_mov_b32 s{sCNT}, 0"); a(f"s_mov_b32 s{sMODE}, 1")
        self.wvm("clr1")
        a("s_waitcnt lgkmcnt(0)"); self.lgdone = len(self.lg)
        a(f"s_lshr_b32 s{sT[0]}, s{sT[1]}, s{sT[3]}"); a(f"s_and_b32 s{sT[0]}, s{sT[0]}, 0xff")
        a(f"s_cmp_eq_u32 s{sT[0]}, s{sXCC}"); a(f"s_cbranch_scc0 L_hs_fast{u}")
        self.lab(f"L_hs_done{u}")
        self.rec("hscnt", f"s{sCNT}"); self.rec("mode", f"s{sMODE}")
        self.xl(f"L_hs_fast{u}")
        x(f"buffer_load_ubyte v{vT[1]}, v{vT[2]}, {sr(sD,4)}, 0 offen sc1")
        x("s_waitcnt vmcnt(0)")
        x(f"v_readfirstlane_b32 s{sT[0]}, v{vT[1]}")
        x(f"s_cmp_eq_u32 s{sT[0]}, s{sXCC}"); x(f"s_cbranch_scc1 L_hs_done{u}")
        x(f"s_add_u32 s{sCNT}, s{sCNT}, 1"); x(f"s_cmp_lt_u32 s{sCNT}, {self.opts.get('fastpolls', 8)}"); x(f"s_cbranch_scc1 L_hs_fast{u}")
        for r in range(4): x(f"v_mov_b32 v{P+4+r}, 0")
        for sl in range(2):
            x(f"buffer_store_dwordx4 {vr(P+4,4)}, v{vE}, {sr(sW,4)}, s{sMY[sl]} offen sc1")
        x(f"s_lshl_b32 s{sT[1]}, s2, 3"); x(f"s_add_u32 s{sT[1]}, s{sT[1]}, s{sWV}"); x(f"s_lshl_b32 s{sT[1]}, s{sT[1]}, 7")
        x(f"s_add_u32 s{sT[1]}, s{sT[1]}, {4<<20}")
        x(f"s_xor_b32 s{sT[2]}, s{sT[1]}, {8*8*128}")
        x(f"v_mov_b32 v{P+2}, 0")
        x("s_mov_b64 exec, 1")
        x(f"buffer_load_dwordx4 {vr(P+8,4)}, v{P+2}, {sr(sW,4)}, s{sT[2]} offen sc1")
        x("s_waitcnt vmcnt(0)")
        x(f"v_readfirstlane_b32 s{sT[3]}, v{P+10}")
        x(f"s_add_u32 s{sT[3]}, s{sT[3]}, 1")
        x(f"v_mov_b32 v{P+3}, s{sT[3]}")
        x(f"buffer_store_dword v{P+3}, v{P+2}, {sr(sW,4)}, s{sT[1]} offen sc1")
        x("s_waitcnt vmcnt(0)")
        x(f"s_mov_b32 s{sCNT}, 0")
        self.xl(f"L_hs_slow{u}")
        x(f"buffer_load_ubyte v{vT[1]}, v{vT[2]}, {sr(sD,4)}, 0 offen sc1")
        x(f"buffer_load_dwordx4 {vr(P+8,4)}, v{P+2}, {sr(sW,4)}, s{sT[2]} offen sc1")
        x("s_waitcnt vmcnt(0)")
        x(f"v_readfirstlane_b32 s{sT[0]}, v{vT[1]}")
        x(f"v_readfirstlane_b32 s{sT[5]}, v{P+8}")
        x(f"v_readfirstlane_b32 s{sT[4]}, v{P+10}")
        x(f"v_readfirstlane_b32 s{sMODE}, v{P+11}")
        x(f"s_cmp_eq_u32 s{sT[0]}, s{sXCC}"); x(f"s_cbranch_scc1 L_hs_same{u}")
        x(f"v_mov_b32 v{P+12}, s{sT[5]}"); x(f"v_mov_b32 v{P+13}, s{sXCC}")
        x(f"buffer_store_dwordx2 {vr(P+12,2)}, v{P+2}, {sr(sW,4)}, s{sT[1]} offen offset:8 sc1")
        x(f"s_add_u32 s{sCNT}, s{sCNT}, 1"); x(f"s_cmp_gt_u32 s{sCNT}, 0x200000"); x(f"s_cbranch_scc1 L_hs_same{u}")
        x(f"s_cmp_eq_u32 s{sT[4]}, s{sT[3]}"); x(f"s_cbranch_scc0 L_hs_slow{u}")
        x(f"s_cmp_eq_u32 s{sMODE}, s{sXCC}"); x(f"s_cbranch_scc1 L_hs_same{u}")
        x(f"s_mov_b32 s{sMODE}, 0")
        x(f"s_mov_b32 s{sE}, s{sKA+12}"); x(f"s_mov_b32 s{sE+1}, s{sKA+13}")
        x("s_mov_b64 exec, -1")
        x(f"s_branch L_hs_done{u}")
        self.xl(f"L_hs_same{u}")
        x(f"s_mov_b32 s{sMODE}, 1")
        x("s_mov_b64 exec, -1")
        x(f"s_branch L_hs_done{u}")

    def build(self):
        hdr = [f"; @launch grid=(256,1,1) block=(512,1,1) lds={LDS_BYTES}",
               '.amdgcn_target "amdgcn-amd-amdhsa--gfx950"', ".text", f".globl {KN}", ".p2align 8",
               f".type {KN},@function", f"{KN}:"]
        self.prologue()
        A = self.fork(0); A.progA()
        B = self.fork(1); B.progB()
        nb = lambda g: sum(1 for s in g.o if s.strip() == "s_barrier")
        assert nb(A) == nb(B), (nb(A), nb(B))
        assert NV + NA <= 256
        ftr = [f".set CODE_BYTES, L_end - {KN}", '.section .rodata,"a"', ".p2align 6", f".amdhsa_kernel {KN}",
               f"  .amdhsa_next_free_vgpr {NV+NA}", "  .amdhsa_next_free_sgpr 102", f"  .amdhsa_accum_offset {NV}",
               "  .amdhsa_group_segment_fixed_size 0", "  .amdhsa_kernarg_size 56", "  .amdhsa_user_sgpr_count 2",
               "  .amdhsa_user_sgpr_kernarg_segment_ptr 1", "  .amdhsa_system_sgpr_workgroup_id_x 1",
               "  .amdhsa_float_denorm_mode_32 3", ".end_amdhsa_kernel"]
        log = []
        m1, n1 = fix_hazards(self.o + A.o, log)
        m2, n2 = fix_hazards(B.o, log)
        ool, n3 = fix_hazards(self.ool)
        main = m1 + m2 + ["L_end:", "    s_endpgm"]
        wrap = lambda ls: "\n".join(hdr + ls + ool + ftr) + "\n"
        if self.opts.get("align", 1):
            main, nw, nn = align(main, wrap, self.opts.get("minrun", 99))
            sys.stderr.write(f"hazard nops {n1}+{n2}+{n3}, widened {nw}, align nops {nn}\n")
        if self.opts.get("hlog"):
            for e in log: sys.stderr.write(str(e) + "\n")
        return wrap(main)

if __name__ == "__main__":
    prof = None; opts = {}
    for x in sys.argv[1:]:
        if x.startswith("--prof="): prof = x[7:].split(",")
        elif x.startswith("--"):
            k, v = x[2:].split("="); opts[k] = int(v) if v.lstrip("-").isdigit() else v
    out = [x for x in sys.argv[1:] if not x.startswith("--")][0]
    g = Gen(prof, opts); txt = g.build()
    if prof: txt = txt + "; stamps: " + ",".join(prof) + "\n"
    open(out, "w").write(txt)
```

```python
import sys, copy
from asmlib import fix_hazards, align
KN = "standalone__cross_network_dcn_v2__recsys_kernel"
L = 6
XB = 131072; HB = 147456; BIASB = 155648; LDS_BYTES = 161792
TAGS = [1, 1, 0, 0, 1, 1]

vLANE = 1; vA = [2, 21]; vE = 3; vV = [4, 5, 6, 7]; vU = [8, 9, 10, 11]
vXW = 12; vXR = [None, 13, 14, 15]; vHW = 16; vHR = [None, 17, 18, 19]
vBI = 20; vT = [22, 23, 24, 25]; vJ = 0
ACC1 = 26; ACC2 = 34; XF = 50; X0F = 66; PK = 82; HP = 90; RX = 94; TM = ACC2; SP = HP; T4 = 98; vPF = 102
NV = 104
aV = 0; aU = 64; aX = 128; aH = 128; aS = 128; NS = 6; NA = 152
sX0 = 4; sV = 8; sU = 12; sO = 16; sE = 20; sD = 24; sB = 28; sW = 32
sKA = 36
sWV = 50; sHF = 51; sRB = 52; sXCC = 53; sMODE = 54
sVG = [55, 56, 57, 58]; sUG = [59, 60, 61, 62]; sSO = [63, 64]; sLB = 65
sMY = [66, 67]; sWS = 68; sXH = 69
sLOFF = 4; sSL = 5; sTS = 6; sTAG = 7; sIT = 3
sCNT = 70; sT = [71, 72, 73, 74, 75, 76, 77, 78]; sPTMP = 79
sSTAMP = 80

def vr(b, n): return f"v[{b}:{b+n-1}]"
def ar(b, n): return f"a[{b}:{b+n-1}]"
def sr(b, n): return f"s[{b}:{b+n-1}]"

class Gen:
    def __init__(self, prof=None, opts=None):
        self.o = []; self.ool = []; self.vm = []; self.lg = []; self.vmdone = 0; self.lgdone = 0
        self.prof = prof; self.opts = opts or {}; self.names = []
        self.pw = []; self.nso = 0; self.nst = 0; self.X = 0; self.dyn = False; self.emit_ool = True
        self.pat = self.opts.get("pat", "BBBB/DBDB/DDDB/DDDB"); self.lag = self.opts.get("lag", 4)
    def fork(self, X):
        g = copy.copy(self); g.o = []; g.vm = list(self.vm); g.lg = list(self.lg); g.pw = list(self.pw); g.X = X
        return g
    def a(self, s): self.o.append("    " + s)
    def x(self, s):
        if self.emit_ool: self.ool.append("    " + s)
    def xl(self, s):
        if self.emit_ool: self.ool.append(s + ":")
    def lab(self, s): self.o.append(s + ":")
    def c(self, s): self.o.append("    ; " + s)
    def vmop(self, s, tag): self.vm.append(tag); self.a(s)
    def lgop(self, s, tag): self.lg.append(tag); self.a(s)
    def _last(self, lst, tag):
        idx = [i for i, t in enumerate(lst) if t == tag]
        return idx[-1] if idx else None
    def wvm(self, tag):
        i = self._last(self.vm, tag)
        if i is not None: self.wvmi(i)
    def wvmi(self, i):
        if i < self.vmdone: return
        n = min(len(self.vm) - 1 - i, 63); self.vmdone = len(self.vm) - n
        self.a(f"s_waitcnt vmcnt({n})")
    def wlg(self, tag):
        i = self._last(self.lg, tag)
        if i is None or i < self.lgdone: return
        n = min(len(self.lg) - 1 - i, 15); self.lgdone = len(self.lg) - n
        self.a(f"s_waitcnt lgkmcnt({n})")
    def wlg0(self):
        if self.lgdone < len(self.lg): self.lgdone = len(self.lg); self.a("s_waitcnt lgkmcnt(0)")
    def bar(self, name=None):
        self.wlg0()
        if name: self.stamp(name + "a")
        self.a("s_barrier")
        if name: self.stamp(name + "b")
    def stamp(self, name):
        nm = name + "AB"[self.X] if False else name
        if self.prof and nm in self.prof:
            r = sSTAMP + 2 * self.prof.index(nm)
            assert r + 1 <= 101
            self.a(f"s_memrealtime s[{r}:{r+1}]" if nm.startswith("rt") else f"s_memtime s[{r}:{r+1}]")
    def rec(self, name, src):
        if self.prof and name in self.prof:
            self.a(f"s_mov_b32 s{sSTAMP + 2*self.prof.index(name)}, {src}")
    def prio(self, p):
        m = self.opts.get("prio", 1)
        if m == 1: self.a(f"s_setprio {p}")
        if m == 2: self.a(f"s_setprio {2-p}")
    def dma(self, kind, l, g, pat=None):
        if l >= L: return []
        if self.opts.get("dma") == "off" and l >= 2: return []
        pat = pat or self.pat.split("/")[g]
        so = sSO[self.nso & 1]; self.nso += 1
        base, sg, vv, srd = (0, sVG, vV, sV) if kind == "V" else (16384, sUG, vU, sU)
        tag = f"{kind}{l}" + "ab"[g >> 1]
        items = []
        for j in range(4):
            def emit(j=j):
                while self.pw and len(self.vm) - self.pw[0][0] > self.lag: self.pw.pop(0)[1]()
                if j == 0:
                    self.a(f"s_add_u32 m0, s{sLB}, {base+g*4096}"); self.a(f"s_add_u32 s{so}, s{sg[g]}, s{sLOFF}" if self.dyn else f"s_add_u32 s{so}, s{sg[g]}, {l*131072}")
                if pat[j % len(pat)] in "DBC":
                    self.vmop(f"buffer_load_dwordx4 v{vv[j]}, {sr(srd,4)}, s{so} offen offset:{1024*j} lds", tag)
                    for q in range({"D": 0, "B": 1, "C": 2}[pat[j % len(pat)]]): self.vmop(f"buffer_load_dword v{vJ}, off, {sr(sB,4)}, 0", "gap")
            items.append(emit)
        return items
    def flush(self, keep3=False):
        while self.pw and not (keep3 and self.pw[0][2] == 3): self.pw.pop(0)[1]()
    def rdV(self, g):
        return [lambda j=j: self.lgop(f"ds_read_b128 {ar(aV+4*(4*g+j),4)}, v{vA[j>>1]} offset:{g*4096+(j&1)*2048}", f"rV{g}_{j>>1}") for j in range(4)]
    def rdU(self, g):
        return [lambda j=j: self.lgop(f"ds_read_b128 {ar(aU+4*(4*g+j),4)}, v{vA[j>>1]} offset:{16384+g*4096+(j&1)*2048}", f"rU{g}") for j in range(4)]
    def mf1(self, ks, fill=None):
        for ta in range(2):
            b = vr(PK + 4*ks, 4) if ks < 2 else ar(aX + 4*(ks-2), 4)
            d = vr(ACC1 + 4*ta, 4)
            self.a(f"v_mfma_f32_16x16x32_bf16 {d}, {ar(aV+4*(2*ks+ta),4)}, {b}, {'0' if ks == 0 else d}")
            if fill: self.run(fill[ta])
    def mf2(self, P, kr, fill=None):
        for ta in range(2):
            b = vr(HP, 4) if kr == 0 else ar(aH + 4*(kr-1), 4)
            d = vr(ACC2 + 8*P + 4*ta, 4)
            idx = ((kr >> 1)*2 + P)*4 + (kr & 1)*2 + ta
            self.a(f"v_mfma_f32_16x16x32_bf16 {d}, {ar(aU+4*idx,4)}, {b}, {d}")
            if fill: self.run(fill[ta])
    def epi(self, P, l, pk=False):
        r = []
        if pk:
            for e in range(4):
                q = 8*P + 2*e
                r.append(lambda q=q: self.a(f"v_pk_fma_f32 {vr(ACC2+q,2)}, {vr(X0F+q,2)}, {vr(ACC2+q,2)}, {vr(XF+q,2)}"))
        else:
            for e in range(8):
                q = 8*P + e
                r.append(lambda q=q: self.a(f"v_fma_f32 v{ACC2+q}, v{X0F+q}, v{ACC2+q}, v{XF+q}"))
        for e in range(4):
            q = 8*P + 2*e
            r.append(lambda q=q: self.a(f"v_cvt_pk_bf16_f32 v{PK+q//2}, v{ACC2+q}, v{ACC2+q+1}"))
        if l < L-1: r.append(lambda: self.lgop(f"ds_write_b128 v{vXW}, {vr(PK+4*P,4)} offset:{P*1024}", "xw"))
        else: r.append(lambda: self.lgop(f"ds_write_b128 v{vT[P]}, {vr(PK+4*P,4)}", "xw"))
        return r
    def unpack(self, dst, src, n):
        r = []
        for i in range(n):
            r.append(lambda i=i: self.a(f"v_lshlrev_b32 v{dst+2*i}, 16, v{src+i}"))
            r.append(lambda i=i: self.a(f"v_and_b32 v{dst+2*i+1}, 0xffff0000, v{src+i}"))
        return r
    def bias_rd(self, l):
        for k in range(4):
            self.lgop(f"ds_read_b128 {vr(ACC2+4*k,4)}, v{vBI} offset:{(0 if self.dyn else l*256) + (k>>1)*128 + (k&1)*16}", "bias")
    def run(self, lst):
        for f in lst: f()
    def mix(self, *lists):
        lists = [list(x) for x in lists]
        while any(lists):
            for x in lists:
                if x: x.pop(0)()
    def srd(self, r, p, n, bias=0):
        if bias:
            self.a(f"s_sub_u32 s{r}, s{p}, {bias}"); self.a(f"s_subb_u32 s{r+1}, s{p+1}, 0")
        else:
            self.a(f"s_mov_b32 s{r}, s{p}"); self.a(f"s_mov_b32 s{r+1}, s{p+1}")
        self.a(f"s_mov_b32 s{r+2}, {n+bias}"); self.a(f"s_mov_b32 s{r+3}, 0x20000")
    def poll(self, l):
        self.vmop(f"buffer_load_dwordx4 {vr(RX,4)}, v{vE}, {sr(sE,4)}, s{sSL} offen sc1", f"poll{l}")
    def send(self, l, u=None):
        a = self.a; u = u if u is not None else f"{self.X}{l}"
        a(f"s_xor_b32 s{sPTMP}, s{sSL}, 512")
        for k in range(4): a(f"v_cvt_pk_bf16_f32 v{SP+k}, v{ACC1+2*k}, v{ACC1+2*k+1}")
        for k in range(4): a(f"v_and_or_b32 v{SP+k}, v{SP+k}, -2, s{sTAG}")
        if l == 0: self.handshake()
        self.stamp(f"snd{u}")
        a(f"s_cmp_eq_u32 s{sMODE}, 0"); a(f"s_cbranch_scc1 L_ss{u}")
        self.vmop(f"buffer_store_dwordx4 {vr(SP,4)}, v{vE}, {sr(sE,4)}, s{sPTMP} offen", "st")
        self.lab(f"L_sd{u}")
        self.xl(f"L_ss{u}")
        self.x(f"buffer_store_dwordx4 {vr(SP,4)}, v{vE}, {sr(sE,4)}, s{sPTMP} offen sc1")
        self.x("s_nop 1"); self.x(f"s_branch L_sd{u}")
    def chk_ops(self, l):
        R = RX; t0 = vT[3]
        return [f"v_xor_b32 v{t0}, s{sTAG}, v{R}"] + [f"v_bitop3_b32 v{t0}, v{R+k}, v{t0}, s{sTAG} bitop3:0xde" for k in (1, 2, 3)] + \
               [f"v_and_b32 v{t0}, 1, v{t0}", f"v_cmp_ne_u32 vcc, 0, v{t0}"]
    def next_msg(self):
        self.a(f"s_xor_b32 s{sSL}, s{sSL}, 16384"); self.a(f"s_lshr_b32 s{sTS}, s{sTS}, 1"); self.a(f"s_and_b32 s{sTAG}, s{sTS}, 1")
    def check_post(self, l, d=None):
        u = f"{self.X}{l}"; x = self.x; a = self.a
        self.wvm(f"poll{l}")
        self.stamp(f"chk{u}")
        if self.opts.get("dbgcnt"): a(f"s_mov_b32 s{sCNT}, 0")
        for s in self.chk_ops(l): a(s)
        a(f"s_cbranch_vccnz L_rt{u}")
        self.lab(f"L_got{u}")
        self.stamp(f"got{u}")
        if self.opts.get("dbgcnt"): self.rec(f"cnt{l}", f"s{sCNT}")
        self.xl(f"L_rt{u}")
        x(f"s_mov_b32 s{sCNT}, 0")
        self.xl(f"L_rl{u}")
        x(f"buffer_load_dwordx4 {vr(RX,4)}, v{vE}, {sr(sE,4)}, s{sSL} offen sc1")
        x(f"s_add_u32 s{sCNT}, s{sCNT}, 1"); x(f"s_cmp_gt_u32 s{sCNT}, 0x200000")
        x("s_waitcnt vmcnt(0)")
        x(f"s_cbranch_scc1 L_got{u}")
        for s in self.chk_ops(l): x(s)
        x(f"s_cbranch_vccnz L_rl{u}")
        x(f"s_branch L_got{u}")
        ops = []
        for h in range(2):
            ops += self.unpack(T4, RX+2*h, 2)
            if self.opts.get("pkadd", 0):
                for k in range(2): ops.append(lambda k=k, h=h: a(f"v_pk_add_f32 {vr(T4+2*k,2)}, {vr(T4+2*k,2)}, {vr(ACC1+4*h+2*k,2)}"))
            else:
                for k in range(4): ops.append(lambda k=k, h=h: a(f"v_add_f32 v{T4+k}, v{T4+k}, v{ACC1+4*h+k}"))
            for k in range(2): ops.append(lambda k=k, h=h: a(f"v_cvt_pk_bf16_f32 v{HP+2*h+k}, v{T4+2*k}, v{T4+2*k+1}"))
        ops.append(lambda: self.lgop(f"ds_write_b128 v{vHW}, {vr(HP,4)}", "hw"))
        ops.append(self.next_msg)
        if d is None:
            self.run(ops); self.bias_rd(l); return
        d = list(d); st = self.opts.get("vper", 10)
        while ops:
            self.run(ops[:st]); ops = ops[st:]
            if ops and d: d.pop(0)()
        self.run(d)
    def x_reads(self):
        return [lambda ks=ks: self.lgop(f"ds_read_b128 {ar(aX+4*(ks-2),4)}, v{vXR[ks>>1]} offset:{(ks&1)*1024}", f"x{ks}") for ks in range(2, 8)]
    def h_reads(self):
        for kr in range(1, 4):
            self.lgop(f"ds_read_b128 {ar(aH+4*(kr-1),4)}, v{vHR[kr]}", f"h{kr}")

    def g2_phase(self, l, early=None, mid=None, late=None):
        early = list(early or []); mid = list(mid or []); late = list(late or [])
        def take(q): return [q[0:1], q[1:2]]
        self.h_reads()
        self.mf2(0, 0, take(early)); self.mf2(1, 0, take(early[2:]))
        self.wlg("h1"); self.mf2(0, 1, take(early[4:]))
        self.wlg("h2"); self.mf2(0, 2, take(early[6:] + mid))
        self.wlg("h3"); self.mf2(0, 3, take(mid[2:]))
        self.flush()
        e0 = self.epi(0, l); e1 = self.epi(1, l, pk=self.opts.get("pkfma", 1))
        u = f"{self.X}{l}"
        self.stamp(f"g2a{u}")
        if self.opts.get("e0mix", 1):
            self.mf2(1, 1, [[], late[0:4]])
            self.mf2(1, 2, [[], e0[0:3]])
            self.stamp(f"g2b{u}")
            self.mf2(1, 3, [e0[3:6], e0[6:-1]])
        else:
            self.mf2(1, 1); self.mf2(1, 2, [late[0:2], late[2:4]])
            self.stamp(f"g2b{u}")
            self.mf2(1, 3, [e0[0:2], e0[2:-1]])
        self.stamp(f"g2c{u}")
        e0[-1]()
        self.stamp(f"g2d{u}")
        self.run(e1[:-1])
        self.stamp(f"g2e{u}")
        e1[-1]()
        self.stamp(f"g2f{u}")
    def g1_phase(self, l, jitV=False, extra=None):
        xr = self.x_reads(); extra = list(extra or [])
        if jitV:
            rv = self.rdV(2) + self.rdV(3)
            ev = self.opts.get("earlyv", 8)
            pre = (self.rdV(0) + self.rdV(1))[ev:]
            self.run(pre[:4]); self.run(xr[0:2]); self.run(pre[4:])
            q = [xr[2], rv[0], rv[1], xr[3], rv[2], rv[3], xr[4], rv[4], rv[5], xr[5], rv[6], rv[7]]
            for ks in range(8):
                self.wlg(f"rV{ks>>1}_{ks&1}")
                if ks >= 2: self.wlg(f"x{ks}")
                self.mf1(ks, [q[0:2], q[2:3]]); q = q[3:]
        else:
            self.run(xr)
            for ks in range(8):
                if ks >= 2: self.wlg(f"x{ks}")
                self.mf1(ks, [extra[0:1], extra[1:2]]); extra = extra[2:]
            self.run(extra)
        self.send(l)
        self.run(self.unpack(XF, PK, 8))

    def prologue(self):
        a = self.a; T = [X0F + i for i in range(10)]
        a(f"s_load_dwordx8 {sr(sKA,8)}, s[0:1], 0")
        a(f"s_load_dwordx4 {sr(sKA+8,4)}, s[0:1], 32")
        a(f"s_load_dwordx2 {sr(sKA+12,2)}, s[0:1], 48")
        a("s_cmp_ge_u32 s2, 256"); a("s_cbranch_scc1 L_end")
        self.stamp("start"); self.stamp("rt0")
        a(f"v_lshrrev_b32 v{T[0]}, 6, v0"); a(f"v_and_b32 v{vLANE}, 63, v0")
        a(f"s_lshr_b32 s{sT[0]}, s2, 3")
        a(f"v_readfirstlane_b32 s{sWV}, v{T[0]}")
        a(f"s_lshl_b32 s{sT[0]}, s{sT[0]}, 3"); a(f"s_add_u32 s{sT[6]}, s{sT[0]}, s{sWV}")
        if self.opts.get("codepf", 1):
            a(f"s_getpc_b64 {sr(sX0,2)}")
            a(f"s_and_b32 s{sX0}, s{sX0}, 0xffffff00")
            a(f"s_lshl_b32 s{sT[1]}, s{sT[6]}, 7"); a(f"v_mov_b32 v{T[1]}, s{sT[1]}")
            a(f"s_cmp_ge_u32 s{sT[1]}, CODE_BYTES"); a("s_cbranch_scc1 L_nocpf")
            a("s_mov_b64 exec, 1")
            a(f"global_load_dword v{vJ}, v{T[1]}, {sr(sX0,2)}")
            a("s_mov_b64 exec, -1")
            self.lab("L_nocpf")
        a(f"s_and_b32 s{sWS}, s{sWV}, 3"); a(f"s_lshr_b32 s{sXH}, s{sWV}, 2")
        a(f"v_lshrrev_b32 v{T[6]}, 2, v{vLANE}"); a(f"v_and_b32 v{T[7]}, 3, v{vLANE}")
        a(f"v_lshlrev_b32 v{T[9]}, 7, v{T[7]}"); a(f"v_lshl_add_u32 v{vPF}, v{T[6]}, 17, v{T[9]}")
        a(f"s_lshl_b32 s{sT[6]}, s{sT[6]}, 9"); a(f"s_add_u32 s{sT[6]}, s{sT[6]}, 3072")
        a(f"s_bfe_u32 s{sHF}, s2, 0x10003")
        a(f"s_lshr_b32 s{sT[0]}, s2, 4"); a(f"s_lshl_b32 s{sT[0]}, s{sT[0]}, 3"); a(f"s_and_b32 s{sRB}, s2, 7"); a(f"s_or_b32 s{sRB}, s{sRB}, s{sT[0]}")
        a(f"s_lshl_b32 s{sLB}, s{sWS}, 15")
        a(f"v_lshrrev_b32 v{T[0]}, 4, v{vLANE}")
        a(f"v_lshrrev_b32 v{T[1]}, 3, v{vLANE}"); a(f"v_and_b32 v{T[2]}, 6, v{T[1]}"); a(f"v_xor_b32 v{T[2]}, v{T[2]}, v{vLANE}")
        a(f"v_and_b32 v{T[2]}, 7, v{T[2]}"); a(f"v_lshlrev_b32 v{T[2]}, 4, v{T[2]}")
        a(f"v_and_b32 v{T[3]}, 4, v{T[1]}"); a(f"v_add_u32 v{T[1]}, v{T[1]}, v{T[3]}")
        a(f"v_lshl_add_u32 v{T[3]}, v{T[1]}, 10, v{T[2]}"); a(f"v_lshl_add_u32 v{T[4]}, v{T[1]}, 8, v{T[2]}")
        for j in range(4):
            a(f"v_add_u32 v{vV[j]}, {((j&1)*16 + (j>>1)*4)*1024 - 1024*j + 3072}, v{T[3]}")
        a(f"s_lshl_b32 s{sT[2]}, s{sHF}, 9"); a(f"s_add_u32 s{sT[3]}, s{sLB}, s{sT[2]}")
        a(f"s_lshl_b32 s{sT[4]}, s{sRB}, 15"); a(f"s_add_u32 s{sT[4]}, s{sT[4]}, s{sT[2]}")
        a(f"s_lshl_b32 s{sT[5]}, s{sXH}, 12"); a(f"s_add_u32 s{sT[4]}, s{sT[4]}, s{sT[5]}")
        a(f"s_lshl_b32 s{sT[5]}, s{sWS}, 7"); a(f"s_add_u32 s{sT[7]}, s{sT[4]}, s{sT[5]}")
        a(f"s_lshr_b32 s{sT[5]}, s{sWS}, 1"); a(f"s_lshl_b32 s{sT[5]}, s{sT[5]}, 13"); a(f"s_add_u32 s{sT[4]}, s{sT[4]}, s{sT[5]}")
        a(f"s_and_b32 s{sT[5]}, s{sWS}, 1"); a(f"s_lshl_b32 s{sT[5]}, s{sT[5]}, 11"); a(f"s_add_u32 s{sMY[0]}, s{sT[4]}, s{sT[5]}")
        a(f"s_add_u32 s{sMY[1]}, s{sMY[0]}, 16384")
        for g in range(4):
            a(f"s_xor_b32 s{sT[4]}, s{sWS}, {g}"); a(f"s_lshl_b32 s{sT[4]}, s{sT[4]}, 7"); a(f"s_add_u32 s{sVG[g]}, s{sT[3]}, s{sT[4]}")
        a(f"v_lshrrev_b32 v{T[8]}, 5, v{vLANE}"); a(f"v_and_b32 v{vE}, 31, v{vLANE}"); a(f"v_lshlrev_b32 v{vE}, 4, v{vE}")
        a(f"v_lshl_add_u32 v{vE}, v{T[8]}, 10, v{vE}")
        for r in range(4): a(f"v_mov_b32 v{TM+r}, 0")
        a(f"v_mov_b32 v{vT[2]}, s2"); a(f"v_xor_b32 v{vT[2]}, 8, v{vT[2]}")
        a(f"s_lshl_b32 s{sT[5]}, s{sWS}, 12"); a(f"s_lshl_b32 s{sT[4]}, s{sXH}, 11"); a(f"s_add_u32 s{sT[5]}, s{sT[5]}, s{sT[4]}")
        a(f"s_add_u32 m0, s{sT[5]}, {XB}")
        a(f"v_lshrrev_b32 v{T[6]}, 3, v{vLANE}"); a(f"v_and_b32 v{T[7]}, 7, v{vLANE}")
        a(f"v_lshlrev_b32 v{T[8]}, 4, v{T[7]}"); a(f"v_lshl_add_u32 v{T[8]}, v{T[6]}, 10, v{T[8]}")
        a(f"s_lshl_b32 s{sT[5]}, s{sWS}, 7"); a(f"s_add_u32 s{sT[5]}, s{sT[5]}, s{sT[2]}"); a(f"s_mul_i32 s{sT[3]}, s{sXH}, 3072"); a(f"s_add_u32 s{sT[5]}, s{sT[5]}, s{sT[3]}")
        a("s_waitcnt lgkmcnt(0)")
        self.stamp("karg")
        pf = self.opts.get("pf", 1)
        def pfl(lo):
            if not pf or not lo: return
            a(f"s_mov_b64 exec, {lo}")
            self.vmop(f"buffer_load_dword v{vJ}, v{vPF}, {sr(sV,4)}, s{sT[6]} offen", "pf")
            self.vmop(f"buffer_load_dword v{vJ}, v{vPF}, {sr(sU,4)}, s{sT[6]} offen", "pf")
            a("s_mov_b64 exec, -1")
        self.pfl = pfl
        masks = [int(m, 16) for m in str(self.opts.get("pfm", "f,fffff0")).split(",")]
        self.pfmasks = masks
        self.srd(sX0, sKA+0, 4096*1024, 3072)
        self.vmop(f"buffer_load_dwordx4 v{vV[0]}, {sr(sX0,4)}, s{sT[7]} offen lds", "x0")
        self.vmop(f"buffer_load_dwordx4 v{vV[1]}, {sr(sX0,4)}, s{sT[7]} offen offset:1024 lds", "x0")
        self.srd(sV, sKA+4, 6*131072, 3072)
        self.srd(sU, sKA+2, 6*131072, 3072)
        pfl(masks[0])
        self.srd(sB, sKA+6, 6*1024)
        self.srd(sD, sKA+10, 256)
        a("s_mov_b64 exec, 0xffffff")
        self.vmop(f"buffer_load_dwordx4 {vr(TM+4,4)}, v{T[8]}, {sr(sB,4)}, s{sT[5]} offen", "bias")
        a("s_mov_b64 exec, 1")
        self.vmop(f"buffer_load_ubyte v{vJ}, v{vT[2]}, {sr(sD,4)}, 0 offen", "touch")
        a("s_mov_b64 exec, -1")
        self.srd(sO, sKA+8, 4096*1024)
        bt = self.opts.get("boxtouch", 1)
        a(f"v_and_b32 v{RX+1}, 3, v{vLANE}"); a(f"v_lshlrev_b32 v{RX+1}, 7, v{RX+1}")
        a(f"v_bfe_u32 v{RX}, v{vLANE}, 2, 1"); a(f"v_lshl_add_u32 v{RX+1}, v{RX}, 10, v{RX+1}")
        a(f"v_bfe_u32 v{RX}, v{vLANE}, 3, 1"); a(f"v_lshl_add_u32 v{RX+1}, v{RX}, {12 if bt == 5 else 14}, v{RX+1}")
        if bt == 5: a(f"v_bfe_u32 v{RX}, v{vLANE}, 4, 1"); a(f"v_lshl_add_u32 v{RX+1}, v{RX}, 14, v{RX+1}")
        def box(m):
            a(f"s_mov_b64 exec, {m}")
            self.vmop(f"buffer_load_dword v{vJ}, v{RX+1}, {sr(sO,4)}, s{sMY[0]} offen sc1", "bt")
            a("s_mov_b64 exec, -1")
        self.box = box
        if bt == 1: box(0xffff)
        if bt == 2: box(0xff)
        if self.opts.get("clrearly", 1):
            self.vmop(f"buffer_store_dwordx4 {vr(TM,4)}, v{vE}, {sr(sO,4)}, s{sMY[0]} offen", "clr")
        gm = int(str(self.opts.get("gm", "0")), 16)
        def gpf():
            if not gm: return
            a(f"s_lshl_b32 s{sT[0]}, s2, 2"); a(f"s_add_u32 s{sT[0]}, s{sT[0]}, s{sWS}"); a(f"s_lshl_b32 s{sT[0]}, s{sT[0]}, 7"); a(f"s_add_u32 s{sT[0]}, s{sT[0]}, 3072")
            a(f"v_lshlrev_b32 v{RX+2}, 17, v{vLANE}")
            a(f"s_mov_b64 exec, {gm}")
            a(f"s_cmp_lg_u32 s{sXH}, 0"); a("s_cbranch_scc1 L_gU")
            a(f"buffer_load_dword v{vJ}, v{RX+2}, {sr(sV,4)}, s{sT[0]} offen"); a("s_branch L_gD")
            self.lab("L_gU")
            self.vmop(f"buffer_load_dword v{vJ}, v{RX+2}, {sr(sU,4)}, s{sT[0]} offen", "gpf")
            self.lab("L_gD")
            a("s_mov_b64 exec, -1")
        if self.opts.get("gpos", 1) == 0: gpf()
        self.stamp("i_x0")
        a("s_barrier")
        a(f"s_lshl_b32 s{sT[4]}, s{sXH}, 13"); a(f"s_add_u32 s{sT[4]}, s{sT[4]}, s{sLB}")
        a(f"s_cmp_eq_u32 s{sXH}, 0")
        a(f"s_cselect_b32 s{sT[0]}, s{sVG[0]}, s{sVG[2]}"); a(f"s_cselect_b32 s{sT[1]}, s{sVG[1]}, s{sVG[3]}")
        def v0grp(k):
            a(f"s_add_u32 m0, s{sT[4]}, {k*4096}"); a("s_nop 0")
            for j in range(4):
                self.vmop(f"buffer_load_dwordx4 v{vV[j]}, {sr(sV,4)}, s{sT[k]} offen offset:{1024*j} lds", "V0")
                if (j & 1) and self.opts.get("pgap", 0): self.vmop(f"buffer_load_dword v{vJ}, off, {sr(sB,4)}, 0", "gap")
        v0grp(0)
        self.stamp("i_v0a")
        self.srd(sW, sKA+12, 8 << 20)
        self.srd(sE, sKA+8, 4096*1024)
        if self.opts.get("stag"):
            a(f"v_mov_b32 v{RX+2}, s{sSTAMP}"); a(f"s_lshl_b32 s90, s2, 2"); a("s_add_u32 s90, s90, 0x700000"); a(f"v_mov_b32 v{RX+3}, 0")
            a("s_mov_b64 exec, 1"); a(f"buffer_store_dword v{RX+2}, v{RX+3}, {sr(sW,4)}, s90 offen sc1"); a("s_mov_b64 exec, -1")
        a(f"s_getreg_b32 s{sXCC}, hwreg(HW_REG_XCC_ID)"); a(f"s_and_b32 s{sXCC}, s{sXCC}, 15"); a(f"s_or_b32 s{sXCC}, s{sXCC}, 16")
        a(f"s_and_b32 s{sT[0]}, s{sWS}, 1"); a(f"s_lshl_b32 s{sT[0]}, s{sT[0]}, 6"); a(f"v_xor_b32 v{T[4]}, s{sT[0]}, v{T[4]}")
        for j in range(4):
            a(f"v_add_u32 v{vU[j]}, {((j&1)*16 + (j>>1)*4)*256 - 1024*j + 3072}, v{T[4]}")
        a(f"s_lshl_b32 s{sT[0]}, s{sHF}, 16"); a(f"s_lshl_b32 s{sT[5]}, s{sWS}, 14"); a(f"s_add_u32 s{sT[0]}, s{sT[0]}, s{sT[5]}")
        for g in range(4):
            pp, P = g >> 1, g & 1
            a(f"s_xor_b32 s{sT[5]}, s{sWS}, {2*pp}"); a(f"s_and_b32 s{sT[5]}, s{sT[5]}, 2"); a(f"s_lshl_b32 s{sT[5]}, s{sT[5]}, 6")
            a(f"s_add_u32 s{sT[5]}, s{sT[5]}, {P*8192}"); a(f"s_add_u32 s{sUG[g]}, s{sT[0]}, s{sT[5]}")
        a(f"v_and_b32 v{T[1]}, 6, v{vLANE}"); a(f"v_xor_b32 v{T[2]}, v{T[1]}, v{T[0]}"); a(f"v_lshlrev_b32 v{T[2]}, 4, v{T[2]}")
        a(f"v_and_b32 v{T[1]}, 15, v{vLANE}"); a(f"v_lshl_add_u32 v{T[2]}, v{T[1]}, 7, v{T[2]}")
        a(f"v_add_u32 v{vA[0]}, s{sLB}, v{T[2]}"); a(f"v_xor_b32 v{vA[1]}, 64, v{vA[0]}")
        a(f"s_lshl_b32 s{sT[5]}, s{sWS}, 12"); a(f"s_lshl_b32 s{sT[0]}, s{sXH}, 11"); a(f"s_add_u32 s{sT[5]}, s{sT[5]}, s{sT[0]}"); a(f"s_add_u32 s{sT[5]}, s{sT[5]}, {XB}")
        a(f"v_add_u32 v{T[3]}, s{sT[5]}, v{T[2]}"); a(f"v_xor_b32 v{T[5]}, 64, v{T[3]}")
        a(f"v_lshlrev_b32 v{T[1]}, 4, v{vLANE}")
        a(f"v_add_u32 v{vXW}, s{sT[5]}, v{T[1]}")
        for g in range(1, 4): a(f"v_xor_b32 v{vXR[g]}, {g*4096}, v{vXW}")
        a(f"s_lshl_b32 s{sT[5]}, s{sWV}, 10"); a(f"s_add_u32 s{sT[5]}, s{sT[5]}, {HB}")
        a(f"v_add_u32 v{vHW}, s{sT[5]}, v{T[1]}")
        for g in range(1, 4): a(f"v_xor_b32 v{vHR[g]}, {g*1024}, v{vHW}")
        a(f"s_mul_i32 s{sT[5]}, s{sWS}, 1536"); a(f"s_add_u32 s{sT[5]}, s{sT[5]}, {BIASB}")
        a(f"v_lshlrev_b32 v{vBI}, 5, v{T[0]}"); a(f"v_add_u32 v{vBI}, s{sT[5]}, v{vBI}")
        a(f"s_mul_i32 s{sT[0]}, s{sXH}, 768"); a(f"s_add_u32 s{sT[5]}, s{sT[5]}, s{sT[0]}")
        a(f"v_lshlrev_b32 v{T[7]}, 5, v{T[7]}"); a(f"v_lshl_add_u32 v{T[7]}, v{T[6]}, 8, v{T[7]}"); a(f"v_add_u32 v{vT[0]}, s{sT[5]}, v{T[7]}")
        def xproc():
            self.wvm("x0")
            self.stamp("x0")
            for P in range(2):
                self.lgop(f"ds_read_b128 {vr(PK+4*P,4)}, v{T[5] if P else T[3]}", "x0r")
            self.wvm("bias")
            self.run(self.unpack(TM+8, TM+4, 4))
            self.wlg("x0r")
            for P in range(2):
                self.lgop(f"ds_write_b128 v{vXW}, {vr(PK+4*P,4)} offset:{P*1024}", "xw")
            a("s_mov_b64 exec, 0xffffff")
            self.lgop(f"ds_write_b128 v{vT[0]}, {vr(TM+8,4)}", "bw")
            self.lgop(f"ds_write_b128 v{vT[0]}, {vr(TM+12,4)} offset:16", "bw")
            a("s_mov_b64 exec, -1")
            self.run(self.unpack(X0F, PK, 8))
        xp = self.opts.get("xproc", 0)
        if xp == 0: xproc()
        v0grp(1)
        self.stamp("i_v0b")
        if not self.opts.get("clrearly", 1):
            self.vmop(f"buffer_store_dwordx4 {vr(TM,4)}, v{vE}, {sr(sO,4)}, s{sMY[0]} offen", "clr")
        if bt == 3: box(0xffff)
        if bt == 4: box(0xff)
        pfl(masks[1])
        if self.opts.get("gpos", 1) == 1: gpf()
        if xp == 1: xproc()
        self.wvm("clr")
        if bt == 6:
            a(f"s_cmp_eq_u32 s{sXH}, 0"); a("s_cbranch_scc1 L_noU0")
            n0 = len(self.vm)
            self.run(self.dma("U", 0, 0, "DDDD") + self.dma("U", 0, 1, "DDDD"))
            self.u0tags = self.vm[n0:]; del self.vm[n0:]
            self.lab("L_noU0")
        self.wvm("clr")
        a("s_barrier")
        self.stamp("issued")
        a(f"s_cmp_lg_u32 s{sWV}, 0"); a("s_cbranch_scc0 L_flag")
        self.lab("L_noflag")
        self.n_issued = len(self.vm)
        self.vmop(f"buffer_store_dwordx4 {vr(TM,4)}, v{vE}, {sr(sO,4)}, s{sMY[1]} offen", "clr1")
        if bt == 6: box(0xffff)
        if self.opts.get("gpos", 1) == 2: gpf()
        a(f"s_mov_b32 s{sSL}, s{sMY[0]}"); a(f"s_mov_b32 s{sTS}, {sum(t << i for i, t in enumerate(TAGS))}"); a(f"s_mov_b32 s{sTAG}, {TAGS[0]}")
        a(f"s_xor_b32 s{sT[3]}, s2, 8"); a(f"s_and_b32 s{sT[2]}, s{sT[3]}, 0xfc"); a(f"s_and_b32 s{sT[3]}, s{sT[3]}, 3"); a(f"s_lshl_b32 s{sT[3]}, s{sT[3]}, 3")
        a(f"s_cmp_lg_u32 s{sXH}, 0"); a("s_cbranch_scc1 L_progB")
        self.xl("L_flag")
        self.x(f"v_mov_b32 v{RX}, s2"); self.x(f"v_mov_b32 v{vT[1]}, s{sXCC}"); self.x("s_mov_b64 exec, 1")
        self.x(f"buffer_store_byte v{vT[1]}, v{RX}, {sr(sD,4)}, 0 offen"); self.x("s_mov_b64 exec, -1"); self.x("s_branch L_noflag")

    def late(self, step):
        a = self.a
        if self.opts.get("boxtouch", 1) == 5 and step == 0:
            a("s_mov_b64 exec, 0xffffffff")
            self.vmop(f"buffer_load_dword v{vJ}, v{RX+1}, {sr(sO,4)}, s{sMY[0]} offen sc1", "bt")
            a("s_mov_b64 exec, -1")
        lm = [int(m, 16) for m in str(self.opts.get("lm", "0")).split(",")]
        if step < len(lm) and lm[step]:
            a(f"s_mov_b64 exec, {lm[step]}")
            for off in (0, 2048):
                self.vmop(f"buffer_load_dword v{vJ}, v{vPF}, {sr(sV,4)}, s{sT[6]} offen offset:{off}", "pf")
                self.vmop(f"buffer_load_dword v{vJ}, v{vPF}, {sr(sU,4)}, s{sT[6]} offen offset:{off}", "pf")
            a("s_mov_b64 exec, -1")
    def clr1_flag(self):
        self.a(f"s_load_dword s{sT[1]}, {sr(sKA+10,2)}, s{sT[2]}")
    def bias_ops(self, l):
        return [lambda k=k: self.lgop(f"ds_read_b128 {vr(ACC2+4*k,4)}, v{vBI} offset:{(0 if self.dyn else l*256) + (k>>1)*128 + (k&1)*16}", "bias") for k in range(4)]
    def light1(self, kind, l, rd, lp, n1=None):
        d = self.dma(kind, l, 0) + self.dma(kind, l, 1)
        n1 = n1 or self.opts.get("n1", 8)
        self.carry = d[n1:]; d = d[:n1]
        pp = self.opts.get("pollat", 2); r0 = self.opts.get("rd1at", 0)
        rd = list(rd) + self.bias_ops(lp)
        per = self.opts.get("rd1per", 4)
        for k in range(8):
            if k == pp: self.poll(lp)
            if k < len(d): d[k]()
            if r0 <= k and (k - r0) % self.opts.get("dper", 1) == 0: self.run(rd[:per]); rd = rd[per:]
            self.stamp(f"l1{self.X}{lp}_{k}")
        if pp >= 8: self.poll(lp)
    def light2(self, kind, l, rd, lp):
        self.run(self.carry)
        d = self.dma(kind, l, 2) + self.dma(kind, l, 3) + [lambda: None] * 8
        p2 = self.opts.get("pre2", 3); rd = list(rd)
        if self.opts.get("l2mode", 0) == 1 or l >= L:
            m2 = self.opts.get("mid2", 1)
            self.run(d[:p2])
            self.check_post(lp, d[p2:p2+m2])
            self.run(rd[:4]); d[p2+m2](); self.run(rd[4:])
            self.wvm(f"{kind}{l}a")
            self.run(d[p2+m2+1:8])
            return
        self.run(d[:p2])
        self.run(rd[:4]); d[p2](); self.run(rd[4:]); d[p2+1]()
        self.stamp(f"pd{self.X}{lp}")
        self.check_post(lp, d[p2+2:p2+3])
        self.stamp(f"po{self.X}{lp}")
        self.wvm(f"{kind}{l}a")
        self.run(d[p2+3:8])
        self.stamp(f"en{self.X}{lp}")
    def progA(self):
        a = self.a
        self.wvm("V0"); self.stamp("v0l"); self.wvm("clr")
        self.bar("b0")
        self.prio(2)
        xr = self.x_reads(); rv = [f for g in range(4) for f in self.rdV(g)]
        self.run(rv[0:4]); self.run(xr[0:2]); self.run(rv[4:8]); self.run(xr[2:4])
        q = rv[8:12] + xr[4:6] + rv[12:16]
        for ks in range(8):
            self.wlg(f"rV{ks>>1}_{ks&1}")
            if ks >= 2: self.wlg(f"x{ks}")
            self.mf1(ks, [q[0:1], q[1:2]]); q = q[2:]
            if ks == self.opts.get("flagat", 2): self.clr1_flag()
            if ks == self.opts.get("lateat", 3): self.late(0)
        self.send(0)
        self.run(self.unpack(XF, PK, 8))
        self.prio(0)
        self.bar("b1")
        self.light1("V", 1, self.rdU(0) + self.rdU(1), 0, 8)
        self.bar("b1x")
        self.run(self.rdU(2))
        self.check_post(0, [])
        self.run(self.rdU(3))
        self.wvm("V1a")
        self.bar("b2")
        self.a(f"s_mov_b32 s{sLOFF}, {2*131072}"); self.a(f"v_add_u32 v{vBI}, 256, v{vBI}")
        self.rounds(self.roundA)
    def rounds(self, body):
        self.dyn = True
        if not self.opts.get("loop", 1):
            for l in range(L): body(l, None)
            return
        u = self.X
        self.a(f"s_mov_b32 s{sIT}, 4")
        keep = self.o; self.o = []; self.emit_ool = False
        body(0, None)
        self.o = keep; self.emit_ool = True
        if self.opts.get("loopalign", 1): self.o.append("    .p2align 6")
        self.lab(f"L_loop{u}")
        body(1, f"L_loop{u}")
        keep = self.o; self.o = []; self.emit_ool = False
        body(2, None); body(3, None)
        self.o = keep; self.emit_ool = True
        body(4, None); body(5, None)
    def adv(self, back):
        self.a(f"s_add_u32 s{sLOFF}, s{sLOFF}, 131072"); self.a(f"v_add_u32 v{vBI}, 256, v{vBI}")
        if back: self.a(f"s_sub_u32 s{sIT}, s{sIT}, 1"); self.a(f"s_cmp_lg_u32 s{sIT}, 0")
    def roundA(self, l, back):
        last = l == L-1
        self.c(f"==== A round {l} phase 0: G2 ====")
        self.prio(2)
        ev = self.opts.get("earlyv", 8)
        self.g2_phase(l, early=(None if last else (self.rdV(0) + self.rdV(1))[:ev]))
        if last:
            self.final_store(bar=True); return
        self.wvm(f"V{l+1}b")
        self.stamp(f"g2g0{l}")
        self.bar(f"A0{l}")
        self.c(f"==== A round {l} phase 1: G1 ====")
        self.g1_phase(l+1, jitV=True)
        self.prio(0)
        self.bar(f"A1{l}")
        self.c(f"==== A round {l} phase 2 ====")
        self.light1("V", l+2, self.rdU(0) + self.rdU(1), l+1)
        self.bar(f"A2{l}")
        self.c(f"==== A round {l} phase 3 ====")
        self.light2("V", l+2, self.rdU(2) + self.rdU(3), l+1)
        if l == L-2: self.final_addr()
        self.wlg0()
        self.adv(back)
        self.bar(f"A3{l}")
        if back: self.a(f"s_cbranch_scc1 {back}")

    def progB(self):
        self.lab("L_progB")
        if self.opts.get("boxtouch", 1) == 6:
            self.vm[self.n_issued:self.n_issued] = self.u0tags
        else:
            self.run(self.dma("U", 0, 0) + self.dma("U", 0, 1))
        self.wvm("V0"); self.stamp("v0l"); self.wvm("clr")
        self.bar("b0")
        d = self.dma("U", 0, 2) + self.dma("U", 0, 3)
        rv = [f for g in range(4) for f in self.rdV(g)]
        self.run(d[:4])
        for k in range(4):
            self.run(rv[4*k:4*k+4]); d[4+k]()
        self.wvm("U0a")
        self.bar("b1")
        self.prio(2)
        self.clr1_flag()
        self.g1_phase(0, extra=self.rdU(0) + self.rdU(1))
        self.prio(0)
        self.wvm("U0b")
        self.bar("b1x")
        self.mix(self.dma("V", 1, 2) + self.dma("V", 1, 3), self.rdU(2) + self.rdU(3))
        self.bar("b2")
        self.a(f"s_mov_b32 s{sLOFF}, 131072")
        self.rounds(self.roundB)
    def roundB(self, l, back):
        last = l == L-1
        self.c(f"==== B round {l} phase 0 ====")
        if not last:
            n0 = len(self.vm)
            self.light1("U", l+1, self.rdV(0) + self.rdV(1), l)
            self.a(f"s_waitcnt vmcnt({len(self.vm) - n0})"); self.vmdone = max(self.vmdone, n0)
            self.bar(f"B0{l}")
            self.c(f"==== B round {l} phase 1 ====")
            self.light2("U", l+1, self.rdV(2) + self.rdV(3), l)
        else:
            self.poll(l); self.bias_rd(l); self.check_post(l, [])
        self.bar(f"B1{l}")
        self.c(f"==== B round {l} phase 2: G2 ====")
        self.prio(2)
        if last:
            self.g2_phase(l); self.final_store(); return
        self.g2_phase(l, mid=self.rdU(0), late=self.rdU(1))
        self.wvm(f"U{l+1}b")
        self.bar(f"B2{l}")
        self.c(f"==== B round {l} phase 3: G1 ====")
        self.g1_phase(l+1, extra=self.rdU(2) + self.rdU(3))
        if l == L-2: self.final_addr()
        self.prio(0)
        self.wlg0()
        self.adv(back)
        self.bar(f"B3{l}")
        if back: self.a(f"s_cbranch_scc1 {back}")

    def final_addr(self):
        a = self.a; t = [RX, RX+1, RX+2]
        a(f"v_and_b32 v{t[0]}, 15, v{vLANE}"); a(f"v_lshrrev_b32 v{t[1]}, 4, v{vLANE}")
        a(f"v_and_b32 v{t[2]}, 7, v{t[0]}"); a(f"v_xor_b32 v{t[2]}, v{t[2]}, v{t[1]}"); a(f"v_lshlrev_b32 v{t[2]}, 4, v{t[2]}")
        a(f"v_lshl_add_u32 v{t[2]}, v{t[0]}, 7, v{t[2]}")
        a(f"v_and_b32 v{vT[0]}, 0xfffff800, v{vXW}"); a(f"v_add_u32 v{vT[0]}, v{vT[0]}, v{t[2]}"); a(f"v_xor_b32 v{vT[1]}, 64, v{vT[0]}")
        a(f"v_lshrrev_b32 v{t[0]}, 3, v{vLANE}"); a(f"v_xor_b32 v{t[1]}, v{t[0]}, v{vLANE}"); a(f"v_and_b32 v{t[1]}, 7, v{t[1]}")
        a(f"v_lshlrev_b32 v{t[1]}, 4, v{t[1]}")
        a(f"v_and_b32 v{t[2]}, 4, v{t[0]}"); a(f"v_add_u32 v{t[0]}, v{t[0]}, v{t[2]}")
        a(f"v_lshl_add_u32 v{vT[2]}, v{t[0]}, 10, v{t[1]}")

    def final_store(self, bar=False):
        a = self.a; D = XF
        for m in range(2):
            self.lgop(f"ds_read_b128 {vr(D+4*m,4)}, v{vXW} offset:{m*1024}", f"fo{m}")
        fl = self.opts.get("outflags", "") if self.X else self.opts.get("outflagsA", self.opts.get("outflags", ""))
        for m in range(2):
            a(f"s_add_u32 s{sT[m]}, s{sT[7]}, {m*16384}")
            self.wlg(f"fo{m}")
            self.vmop(f"buffer_store_dwordx4 {vr(D+4*m,4)}, v{vT[2]}, {sr(sO,4)}, s{sT[m]} offen {fl}", "out")
        if bar and self.opts.get("junk"):
            for m in range(4):
                a(f"s_add_u32 s{sT[2]}, s{sMY[0]}, {m*4096 if m < 2 else 16384 + (m-2)*4096}")
                a(f"buffer_store_dwordx4 {vr(D,4)}, v{vE}, {sr(sW,4)}, s{sT[2]} offen")
        if bar: a("s_barrier")
        if self.opts.get("stag"):
            u = self.X
            a("s_waitcnt vmcnt(0)")
            a(f"s_add_u32 s4, s{sKA+12}, 0x700000"); a(f"s_addc_u32 s5, s{sKA+13}, 0")
            a("s_load_dwordx8 s[84:91], s[4:5], 0"); a("s_memrealtime s[94:95]"); a("s_waitcnt lgkmcnt(0)")
            a("s_mov_b32 s92, 0")
            for i in range(8):
                a(f"s_sub_u32 s93, s{sSTAMP}, s{84+i}"); a("s_cmp_lt_u32 s93, 3000"); a("s_cselect_b32 s93, s93, 0"); a("s_max_u32 s92, s92, s93")
            self.lab(f"L_echo{u}")
            a("s_sleep 1"); a("s_memrealtime s[96:97]"); a("s_waitcnt lgkmcnt(0)"); a("s_sub_u32 s93, s96, s94")
            a("s_cmp_lt_u32 s93, s92"); a(f"s_cbranch_scc1 L_echo{u}")
        elif self.opts.get("echo"):
            u = self.X
            a("s_waitcnt vmcnt(0)"); self.stamp("fin")
            a("s_memtime s[90:91]"); a("s_waitcnt lgkmcnt(0)")
            a(f"s_sub_u32 s92, s{sSTAMP+2}, s{sSTAMP}")
            self.lab(f"L_echo{u}")
            a("s_sleep 1"); a("s_memtime s[94:95]"); a("s_waitcnt lgkmcnt(0)"); a("s_sub_u32 s93, s94, s90")
            a("s_cmp_lt_u32 s93, s92"); a(f"s_cbranch_scc1 L_echo{u}")
        elif self.prof:
            a("s_waitcnt vmcnt(0)")
            self.stamp("fin"); self.stamp("rt1")
            a("s_waitcnt lgkmcnt(0)")
            a(f"v_mov_b32 v{RX}, 0")
            for i in range(len(self.prof)): a(f"v_writelane_b32 v{RX}, s{sSTAMP+2*i}, {i}")
            a(f"s_lshl_b32 s{sT[0]}, s2, 3"); a(f"s_add_u32 s{sT[0]}, s{sT[0]}, s{sWV}"); a(f"s_lshl_b32 s{sT[0]}, s{sT[0]}, 8")
            a(f"s_add_u32 s{sT[0]}, s{sT[0]}, {6<<20}")
            a(f"v_lshlrev_b32 v{vT[0]}, 2, v{vLANE}")
            a(f"buffer_store_dword v{RX}, v{vT[0]}, {sr(sW,4)}, s{sT[0]} offen")
        for i in range(self.opts.get("delay", 0)): a("s_sleep 125")
        a("s_endpgm")

    def handshake(self):
        a = self.a; x = self.x; P = XF; u = self.X
        self.c("handshake: the partner's inbox is cleared; does it share this XCD?")
        a(f"s_mov_b32 s{sCNT}, 0"); a(f"s_mov_b32 s{sMODE}, 1")
        self.wvm("clr1")
        a("s_waitcnt lgkmcnt(0)"); self.lgdone = len(self.lg)
        a(f"s_lshr_b32 s{sT[0]}, s{sT[1]}, s{sT[3]}"); a(f"s_and_b32 s{sT[0]}, s{sT[0]}, 0xff")
        a(f"s_cmp_eq_u32 s{sT[0]}, s{sXCC}"); a(f"s_cbranch_scc0 L_hs_fast{u}")
        self.lab(f"L_hs_done{u}")
        self.rec("hscnt", f"s{sCNT}"); self.rec("mode", f"s{sMODE}")
        self.xl(f"L_hs_fast{u}")
        x(f"buffer_load_ubyte v{vT[1]}, v{vT[2]}, {sr(sD,4)}, 0 offen sc1")
        x("s_waitcnt vmcnt(0)")
        x(f"v_readfirstlane_b32 s{sT[0]}, v{vT[1]}")
        x(f"s_cmp_eq_u32 s{sT[0]}, s{sXCC}"); x(f"s_cbranch_scc1 L_hs_done{u}")
        x(f"s_add_u32 s{sCNT}, s{sCNT}, 1"); x(f"s_cmp_lt_u32 s{sCNT}, {self.opts.get('fastpolls', 8)}"); x(f"s_cbranch_scc1 L_hs_fast{u}")
        for r in range(4): x(f"v_mov_b32 v{P+4+r}, 0")
        for sl in range(2):
            x(f"buffer_store_dwordx4 {vr(P+4,4)}, v{vE}, {sr(sW,4)}, s{sMY[sl]} offen sc1")
        x(f"s_lshl_b32 s{sT[1]}, s2, 3"); x(f"s_add_u32 s{sT[1]}, s{sT[1]}, s{sWV}"); x(f"s_lshl_b32 s{sT[1]}, s{sT[1]}, 7")
        x(f"s_add_u32 s{sT[1]}, s{sT[1]}, {4<<20}")
        x(f"s_xor_b32 s{sT[2]}, s{sT[1]}, {8*8*128}")
        x(f"v_mov_b32 v{P+2}, 0")
        x("s_mov_b64 exec, 1")
        x(f"buffer_load_dwordx4 {vr(P+8,4)}, v{P+2}, {sr(sW,4)}, s{sT[2]} offen sc1")
        x("s_waitcnt vmcnt(0)")
        x(f"v_readfirstlane_b32 s{sT[3]}, v{P+10}")
        x(f"s_add_u32 s{sT[3]}, s{sT[3]}, 1")
        x(f"v_mov_b32 v{P+3}, s{sT[3]}")
        x(f"buffer_store_dword v{P+3}, v{P+2}, {sr(sW,4)}, s{sT[1]} offen sc1")
        x("s_waitcnt vmcnt(0)")
        x(f"s_mov_b32 s{sCNT}, 0")
        self.xl(f"L_hs_slow{u}")
        x(f"buffer_load_ubyte v{vT[1]}, v{vT[2]}, {sr(sD,4)}, 0 offen sc1")
        x(f"buffer_load_dwordx4 {vr(P+8,4)}, v{P+2}, {sr(sW,4)}, s{sT[2]} offen sc1")
        x("s_waitcnt vmcnt(0)")
        x(f"v_readfirstlane_b32 s{sT[0]}, v{vT[1]}")
        x(f"v_readfirstlane_b32 s{sT[5]}, v{P+8}")
        x(f"v_readfirstlane_b32 s{sT[4]}, v{P+10}")
        x(f"v_readfirstlane_b32 s{sMODE}, v{P+11}")
        x(f"s_cmp_eq_u32 s{sT[0]}, s{sXCC}"); x(f"s_cbranch_scc1 L_hs_same{u}")
        x(f"v_mov_b32 v{P+12}, s{sT[5]}"); x(f"v_mov_b32 v{P+13}, s{sXCC}")
        x(f"buffer_store_dwordx2 {vr(P+12,2)}, v{P+2}, {sr(sW,4)}, s{sT[1]} offen offset:8 sc1")
        x(f"s_add_u32 s{sCNT}, s{sCNT}, 1"); x(f"s_cmp_gt_u32 s{sCNT}, 0x200000"); x(f"s_cbranch_scc1 L_hs_same{u}")
        x(f"s_cmp_eq_u32 s{sT[4]}, s{sT[3]}"); x(f"s_cbranch_scc0 L_hs_slow{u}")
        x(f"s_cmp_eq_u32 s{sMODE}, s{sXCC}"); x(f"s_cbranch_scc1 L_hs_same{u}")
        x(f"s_mov_b32 s{sMODE}, 0")
        x(f"s_mov_b32 s{sE}, s{sKA+12}"); x(f"s_mov_b32 s{sE+1}, s{sKA+13}")
        x("s_mov_b64 exec, -1")
        x(f"s_branch L_hs_done{u}")
        self.xl(f"L_hs_same{u}")
        x(f"s_mov_b32 s{sMODE}, 1")
        x("s_mov_b64 exec, -1")
        x(f"s_branch L_hs_done{u}")

    def build(self):
        hdr = [f"; @launch grid=(256,1,1) block=(512,1,1) lds={LDS_BYTES}",
               '.amdgcn_target "amdgcn-amd-amdhsa--gfx950"', ".text", f".globl {KN}", ".p2align 8",
               f".type {KN},@function", f"{KN}:"]
        self.prologue()
        A = self.fork(0); A.progA()
        B = self.fork(1); B.progB()
        nb = lambda g: sum(1 for s in g.o if s.strip() == "s_barrier")
        assert nb(A) == nb(B), (nb(A), nb(B))
        assert NV + NA <= 256
        ftr = [f".set CODE_BYTES, L_end - {KN}", '.section .rodata,"a"', ".p2align 6", f".amdhsa_kernel {KN}",
               f"  .amdhsa_next_free_vgpr {NV+NA}", "  .amdhsa_next_free_sgpr 102", f"  .amdhsa_accum_offset {NV}",
               "  .amdhsa_group_segment_fixed_size 0", "  .amdhsa_kernarg_size 56", "  .amdhsa_user_sgpr_count 2",
               "  .amdhsa_user_sgpr_kernarg_segment_ptr 1", "  .amdhsa_system_sgpr_workgroup_id_x 1",
               "  .amdhsa_float_denorm_mode_32 3", ".end_amdhsa_kernel"]
        log = []
        m1, n1 = fix_hazards(self.o + A.o, log)
        m2, n2 = fix_hazards(B.o, log)
        ool, n3 = fix_hazards(self.ool)
        main = m1 + m2 + ["L_end:", "    s_endpgm"]
        wrap = lambda ls: "\n".join(hdr + ls + ool + ftr) + "\n"
        if self.opts.get("align", 1):
            main, nw, nn = align(main, wrap, self.opts.get("minrun", 99))
            sys.stderr.write(f"hazard nops {n1}+{n2}+{n3}, widened {nw}, align nops {nn}\n")
        if self.opts.get("hlog"):
            for e in log: sys.stderr.write(str(e) + "\n")
        return wrap(main)

if __name__ == "__main__":
    prof = None; opts = {}
    for x in sys.argv[1:]:
        if x.startswith("--prof="): prof = x[7:].split(",")
        elif x.startswith("--"):
            k, v = x[2:].split("="); opts[k] = int(v) if v.lstrip("-").isdigit() else v
    out = [x for x in sys.argv[1:] if not x.startswith("--")][0]
    g = Gen(prof, opts); txt = g.build()
    if prof: txt = txt + "; stamps: " + ",".join(prof) + "\n"
    open(out, "w").write(txt)
```

```python
import sys, copy
from asmlib import fix_hazards, align
KN = "standalone__cross_network_dcn_v2__recsys_kernel"
L = 6
XB = 131072; HB = 147456; BIASB = 155648; LDS_BYTES = 161792
TAGS = [1, 1, 0, 0, 1, 1]

vLANE = 1; vA = [2, 21]; vE = 3; vV = [4, 5, 6, 7]; vU = [8, 9, 10, 11]
vXW = 12; vXR = [None, 13, 14, 15]; vHW = 16; vHR = [None, 17, 18, 19]
vBI = 20; vT = [22, 23, 24, 25]; vJ = 0
ACC1 = 26; ACC2 = 34; XF = 50; X0F = 66; PK = 82; HP = 90; RX = 94; TM = ACC2; SP = HP; T4 = 98; vPF = 102
NV = 104
aV = 0; aU = 64; aX = 128; aH = 128; aS = 128; NS = 6; NA = 152
sX0 = 4; sV = 8; sU = 12; sO = 16; sE = 20; sD = 24; sB = 28; sW = 32
sKA = 36
sWV = 50; sHF = 51; sRB = 52; sXCC = 53; sMODE = 54
sVG = [55, 56, 57, 58]; sUG = [59, 60, 61, 62]; sSO = [63, 64]; sLB = 65
sMY = [66, 67]; sWS = 68; sXH = 69
sLOFF = 4; sSL = 5; sTS = 6; sTAG = 7; sIT = 3
sCNT = 70; sT = [71, 72, 73, 74, 75, 76, 77, 78]; sPTMP = 79
sSTAMP = 80

def vr(b, n): return f"v[{b}:{b+n-1}]"
def ar(b, n): return f"a[{b}:{b+n-1}]"
def sr(b, n): return f"s[{b}:{b+n-1}]"

class Gen:
    def __init__(self, prof=None, opts=None):
        self.o = []; self.ool = []; self.vm = []; self.lg = []; self.vmdone = 0; self.lgdone = 0
        self.prof = prof; self.opts = opts or {}; self.names = []
        self.pw = []; self.nso = 0; self.nst = 0; self.X = 0; self.dyn = False; self.emit_ool = True
        self.pat = self.opts.get("pat", "BBBB/DBDB/DDDB/DDDB"); self.lag = self.opts.get("lag", 4)
    def fork(self, X):
        g = copy.copy(self); g.o = []; g.vm = list(self.vm); g.lg = list(self.lg); g.pw = list(self.pw); g.X = X
        return g
    def a(self, s): self.o.append("    " + s)
    def x(self, s):
        if self.emit_ool: self.ool.append("    " + s)
    def xl(self, s):
        if self.emit_ool: self.ool.append(s + ":")
    def lab(self, s): self.o.append(s + ":")
    def c(self, s): self.o.append("    ; " + s)
    def vmop(self, s, tag): self.vm.append(tag); self.a(s)
    def lgop(self, s, tag): self.lg.append(tag); self.a(s)
    def _last(self, lst, tag):
        idx = [i for i, t in enumerate(lst) if t == tag]
        return idx[-1] if idx else None
    def wvm(self, tag):
        i = self._last(self.vm, tag)
        if i is not None: self.wvmi(i)
    def wvmi(self, i):
        if i < self.vmdone: return
        n = min(len(self.vm) - 1 - i, 63); self.vmdone = len(self.vm) - n
        self.a(f"s_waitcnt vmcnt({n})")
    def wlg(self, tag):
        i = self._last(self.lg, tag)
        if i is None or i < self.lgdone: return
        n = min(len(self.lg) - 1 - i, 15); self.lgdone = len(self.lg) - n
        self.a(f"s_waitcnt lgkmcnt({n})")
    def wlg0(self):
        if self.lgdone < len(self.lg): self.lgdone = len(self.lg); self.a("s_waitcnt lgkmcnt(0)")
    def bar(self, name=None):
        self.wlg0()
        if name: self.stamp(name + "a")
        self.a("s_barrier")
        if name: self.stamp(name + "b")
    def stamp(self, name):
        nm = name + "AB"[self.X] if False else name
        if self.prof and nm in self.prof:
            r = sSTAMP + 2 * self.prof.index(nm)
            assert r + 1 <= 101
            self.a(f"s_memrealtime s[{r}:{r+1}]" if nm.startswith("rt") else f"s_memtime s[{r}:{r+1}]")
    def rec(self, name, src):
        if self.prof and name in self.prof:
            self.a(f"s_mov_b32 s{sSTAMP + 2*self.prof.index(name)}, {src}")
    def prio(self, p):
        m = self.opts.get("prio", 1)
        if m == 1: self.a(f"s_setprio {p}")
        if m == 2: self.a(f"s_setprio {2-p}")
    def dma(self, kind, l, g, pat=None):
        if l >= L: return []
        if self.opts.get("dma") == "off" and l >= 2: return []
        pat = pat or self.pat.split("/")[g]
        so = sSO[self.nso & 1]; self.nso += 1
        base, sg, vv, srd = (0, sVG, vV, sV) if kind == "V" else (16384, sUG, vU, sU)
        tag = f"{kind}{l}" + "ab"[g >> 1]
        items = []
        for j in range(4):
            def emit(j=j):
                while self.pw and len(self.vm) - self.pw[0][0] > self.lag: self.pw.pop(0)[1]()
                if j == 0:
                    self.a(f"s_add_u32 m0, s{sLB}, {base+g*4096}"); self.a(f"s_add_u32 s{so}, s{sg[g]}, s{sLOFF}" if self.dyn else f"s_add_u32 s{so}, s{sg[g]}, {l*131072}")
                if pat[j % len(pat)] in "DBC":
                    self.vmop(f"buffer_load_dwordx4 v{vv[j]}, {sr(srd,4)}, s{so} offen offset:{1024*j} lds", tag)
                    for q in range({"D": 0, "B": 1, "C": 2}[pat[j % len(pat)]]): self.vmop(f"buffer_load_dword v{vJ}, off, {sr(sB,4)}, 0", "gap")
            items.append(emit)
        return items
    def flush(self, keep3=False):
        while self.pw and not (keep3 and self.pw[0][2] == 3): self.pw.pop(0)[1]()
    def rdV(self, g):
        return [lambda j=j: self.lgop(f"ds_read_b128 {ar(aV+4*(4*g+j),4)}, v{vA[j>>1]} offset:{g*4096+(j&1)*2048}", f"rV{g}_{j>>1}") for j in range(4)]
    def rdU(self, g):
        return [lambda j=j: self.lgop(f"ds_read_b128 {ar(aU+4*(4*g+j),4)}, v{vA[j>>1]} offset:{16384+g*4096+(j&1)*2048}", f"rU{g}") for j in range(4)]
    def mf1(self, ks, fill=None):
        for ta in range(2):
            b = vr(PK + 4*ks, 4) if ks < 2 else ar(aX + 4*(ks-2), 4)
            d = vr(ACC1 + 4*ta, 4)
            self.a(f"v_mfma_f32_16x16x32_bf16 {d}, {ar(aV+4*(2*ks+ta),4)}, {b}, {'0' if ks == 0 else d}")
            if fill: self.run(fill[ta])
    def mf2(self, P, kr, fill=None):
        for ta in range(2):
            b = vr(HP, 4) if kr == 0 else ar(aH + 4*(kr-1), 4)
            d = vr(ACC2 + 8*P + 4*ta, 4)
            idx = ((kr >> 1)*2 + P)*4 + (kr & 1)*2 + ta
            self.a(f"v_mfma_f32_16x16x32_bf16 {d}, {ar(aU+4*idx,4)}, {b}, {d}")
            if fill: self.run(fill[ta])
    def epi(self, P, l, pk=False):
        r = []
        if pk:
            for e in range(4):
                q = 8*P + 2*e
                r.append(lambda q=q: self.a(f"v_pk_fma_f32 {vr(ACC2+q,2)}, {vr(X0F+q,2)}, {vr(ACC2+q,2)}, {vr(XF+q,2)}"))
        else:
            for e in range(8):
                q = 8*P + e
                r.append(lambda q=q: self.a(f"v_fma_f32 v{ACC2+q}, v{X0F+q}, v{ACC2+q}, v{XF+q}"))
        for e in range(4):
            q = 8*P + 2*e
            r.append(lambda q=q: self.a(f"v_cvt_pk_bf16_f32 v{PK+q//2}, v{ACC2+q}, v{ACC2+q+1}"))
        if l < L-1: r.append(lambda: self.lgop(f"ds_write_b128 v{vXW}, {vr(PK+4*P,4)} offset:{P*1024}", "xw"))
        else: r.append(lambda: self.lgop(f"ds_write_b128 v{vT[P]}, {vr(PK+4*P,4)}", "xw"))
        return r
    def unpack(self, dst, src, n):
        r = []
        for i in range(n):
            r.append(lambda i=i: self.a(f"v_lshlrev_b32 v{dst+2*i}, 16, v{src+i}"))
            r.append(lambda i=i: self.a(f"v_and_b32 v{dst+2*i+1}, 0xffff0000, v{src+i}"))
        return r
    def bias_rd(self, l):
        for k in range(4):
            self.lgop(f"ds_read_b128 {vr(ACC2+4*k,4)}, v{vBI} offset:{(0 if self.dyn else l*256) + (k>>1)*128 + (k&1)*16}", "bias")
    def run(self, lst):
        for f in lst: f()
    def mix(self, *lists):
        lists = [list(x) for x in lists]
        while any(lists):
            for x in lists:
                if x: x.pop(0)()
    def srd(self, r, p, n, bias=0):
        if bias:
            self.a(f"s_sub_u32 s{r}, s{p}, {bias}"); self.a(f"s_subb_u32 s{r+1}, s{p+1}, 0")
        else:
            self.a(f"s_mov_b32 s{r}, s{p}"); self.a(f"s_mov_b32 s{r+1}, s{p+1}")
        self.a(f"s_mov_b32 s{r+2}, {n+bias}"); self.a(f"s_mov_b32 s{r+3}, 0x20000")
    def poll(self, l):
        self.vmop(f"buffer_load_dwordx4 {vr(RX,4)}, v{vE}, {sr(sE,4)}, s{sSL} offen sc1", f"poll{l}")
    def send(self, l, u=None):
        a = self.a; u = u if u is not None else f"{self.X}{l}"
        a(f"s_xor_b32 s{sPTMP}, s{sSL}, 512")
        for k in range(4): a(f"v_cvt_pk_bf16_f32 v{SP+k}, v{ACC1+2*k}, v{ACC1+2*k+1}")
        for k in range(4): a(f"v_and_or_b32 v{SP+k}, v{SP+k}, -2, s{sTAG}")
        if l == 0: self.handshake()
        self.stamp(f"snd{u}")
        a(f"s_cmp_eq_u32 s{sMODE}, 0"); a(f"s_cbranch_scc1 L_ss{u}")
        self.vmop(f"buffer_store_dwordx4 {vr(SP,4)}, v{vE}, {sr(sE,4)}, s{sPTMP} offen", "st")
        self.lab(f"L_sd{u}")
        self.xl(f"L_ss{u}")
        self.x(f"buffer_store_dwordx4 {vr(SP,4)}, v{vE}, {sr(sE,4)}, s{sPTMP} offen sc1")
        self.x("s_nop 1"); self.x(f"s_branch L_sd{u}")
    def chk_ops(self, l):
        R = RX; t0 = vT[3]
        return [f"v_xor_b32 v{t0}, s{sTAG}, v{R}"] + [f"v_bitop3_b32 v{t0}, v{R+k}, v{t0}, s{sTAG} bitop3:0xde" for k in (1, 2, 3)] + \
               [f"v_and_b32 v{t0}, 1, v{t0}", f"v_cmp_ne_u32 vcc, 0, v{t0}"]
    def next_msg(self):
        self.a(f"s_xor_b32 s{sSL}, s{sSL}, 16384"); self.a(f"s_lshr_b32 s{sTS}, s{sTS}, 1"); self.a(f"s_and_b32 s{sTAG}, s{sTS}, 1")
    def check_post(self, l, d=None):
        u = f"{self.X}{l}"; x = self.x; a = self.a
        self.wvm(f"poll{l}")
        self.stamp(f"chk{u}")
        if self.opts.get("dbgcnt"): a(f"s_mov_b32 s{sCNT}, 0")
        for s in self.chk_ops(l): a(s)
        a(f"s_cbranch_vccnz L_rt{u}")
        self.lab(f"L_got{u}")
        self.stamp(f"got{u}")
        if self.opts.get("dbgcnt"): self.rec(f"cnt{l}", f"s{sCNT}")
        self.xl(f"L_rt{u}")
        x(f"s_mov_b32 s{sCNT}, 0")
        self.xl(f"L_rl{u}")
        x(f"buffer_load_dwordx4 {vr(RX,4)}, v{vE}, {sr(sE,4)}, s{sSL} offen sc1")
        x(f"s_add_u32 s{sCNT}, s{sCNT}, 1"); x(f"s_cmp_gt_u32 s{sCNT}, 0x200000")
        x("s_waitcnt vmcnt(0)")
        x(f"s_cbranch_scc1 L_got{u}")
        for s in self.chk_ops(l): x(s)
        x(f"s_cbranch_vccnz L_rl{u}")
        x(f"s_branch L_got{u}")
        ops = []
        for h in range(2):
            ops += self.unpack(T4, RX+2*h, 2)
            if self.opts.get("pkadd", 0):
                for k in range(2): ops.append(lambda k=k, h=h: a(f"v_pk_add_f32 {vr(T4+2*k,2)}, {vr(T4+2*k,2)}, {vr(ACC1+4*h+2*k,2)}"))
            else:
                for k in range(4): ops.append(lambda k=k, h=h: a(f"v_add_f32 v{T4+k}, v{T4+k}, v{ACC1+4*h+k}"))
            for k in range(2): ops.append(lambda k=k, h=h: a(f"v_cvt_pk_bf16_f32 v{HP+2*h+k}, v{T4+2*k}, v{T4+2*k+1}"))
        ops.append(lambda: self.lgop(f"ds_write_b128 v{vHW}, {vr(HP,4)}", "hw"))
        ops.append(self.next_msg)
        if d is None:
            self.run(ops); self.bias_rd(l); return
        d = list(d); st = self.opts.get("vper", 10)
        while ops:
            self.run(ops[:st]); ops = ops[st:]
            if ops and d: d.pop(0)()
        self.run(d)
    def x_reads(self):
        return [lambda ks=ks: self.lgop(f"ds_read_b128 {ar(aX+4*(ks-2),4)}, v{vXR[ks>>1]} offset:{(ks&1)*1024}", f"x{ks}") for ks in range(2, 8)]
    def h_reads(self):
        for kr in range(1, 4):
            self.lgop(f"ds_read_b128 {ar(aH+4*(kr-1),4)}, v{vHR[kr]}", f"h{kr}")

    def g2_phase(self, l, early=None, mid=None, late=None):
        early = list(early or []); mid = list(mid or []); late = list(late or [])
        def take(q): return [q[0:1], q[1:2]]
        self.h_reads()
        self.mf2(0, 0, take(early)); self.mf2(1, 0, take(early[2:]))
        self.wlg("h1"); self.mf2(0, 1, take(early[4:]))
        self.wlg("h2"); self.mf2(0, 2, take(early[6:] + mid))
        self.wlg("h3"); self.mf2(0, 3, take(mid[2:]))
        self.flush()
        e0 = self.epi(0, l); e1 = self.epi(1, l, pk=self.opts.get("pkfma", 1))
        u = f"{self.X}{l}"
        self.stamp(f"g2a{u}")
        if self.opts.get("e0mix", 1):
            self.mf2(1, 1, [[], late[0:4]])
            self.mf2(1, 2, [[], e0[0:3]])
            self.stamp(f"g2b{u}")
            self.mf2(1, 3, [e0[3:6], e0[6:-1]])
        else:
            self.mf2(1, 1); self.mf2(1, 2, [late[0:2], late[2:4]])
            self.stamp(f"g2b{u}")
            self.mf2(1, 3, [e0[0:2], e0[2:-1]])
        self.stamp(f"g2c{u}")
        e0[-1]()
        self.stamp(f"g2d{u}")
        self.run(e1[:-1])
        self.stamp(f"g2e{u}")
        e1[-1]()
        self.stamp(f"g2f{u}")
    def g1_phase(self, l, jitV=False, extra=None):
        xr = self.x_reads(); extra = list(extra or [])
        if jitV:
            rv = self.rdV(2) + self.rdV(3)
            ev = self.opts.get("earlyv", 8)
            pre = (self.rdV(0) + self.rdV(1))[ev:]
            self.run(pre[:4]); self.run(xr[0:2]); self.run(pre[4:])
            q = [xr[2], rv[0], rv[1], xr[3], rv[2], rv[3], xr[4], rv[4], rv[5], xr[5], rv[6], rv[7]]
            for ks in range(8):
                self.wlg(f"rV{ks>>1}_{ks&1}")
                if ks >= 2: self.wlg(f"x{ks}")
                self.mf1(ks, [q[0:2], q[2:3]]); q = q[3:]
        else:
            self.run(xr)
            for ks in range(8):
                if ks >= 2: self.wlg(f"x{ks}")
                self.mf1(ks, [extra[0:1], extra[1:2]]); extra = extra[2:]
            self.run(extra)
        self.send(l)
        self.run(self.unpack(XF, PK, 8))

    def prologue(self):
        a = self.a; T = [X0F + i for i in range(10)]
        a(f"s_load_dwordx8 {sr(sKA,8)}, s[0:1], 0")
        a(f"s_load_dwordx4 {sr(sKA+8,4)}, s[0:1], 32")
        a(f"s_load_dwordx2 {sr(sKA+12,2)}, s[0:1], 48")
        a("s_cmp_ge_u32 s2, 256"); a("s_cbranch_scc1 L_end")
        self.stamp("start"); self.stamp("rt0")
        a(f"v_lshrrev_b32 v{T[0]}, 6, v0"); a(f"v_and_b32 v{vLANE}, 63, v0")
        a(f"s_lshr_b32 s{sT[0]}, s2, 3")
        a(f"v_readfirstlane_b32 s{sWV}, v{T[0]}")
        a(f"s_lshl_b32 s{sT[0]}, s{sT[0]}, 3"); a(f"s_add_u32 s{sT[6]}, s{sT[0]}, s{sWV}")
        if self.opts.get("codepf", 1):
            a(f"s_getpc_b64 {sr(sX0,2)}")
            a(f"s_and_b32 s{sX0}, s{sX0}, 0xffffff00")
            a(f"s_lshl_b32 s{sT[1]}, s{sT[6]}, 7"); a(f"v_mov_b32 v{T[1]}, s{sT[1]}")
            a(f"s_cmp_ge_u32 s{sT[1]}, CODE_BYTES"); a("s_cbranch_scc1 L_nocpf")
            a("s_mov_b64 exec, 1")
            a(f"global_load_dword v{vJ}, v{T[1]}, {sr(sX0,2)}")
            a("s_mov_b64 exec, -1")
            self.lab("L_nocpf")
        a(f"s_and_b32 s{sWS}, s{sWV}, 3"); a(f"s_lshr_b32 s{sXH}, s{sWV}, 2")
        a(f"v_lshrrev_b32 v{T[6]}, 2, v{vLANE}"); a(f"v_and_b32 v{T[7]}, 3, v{vLANE}")
        a(f"v_lshlrev_b32 v{T[9]}, 7, v{T[7]}"); a(f"v_lshl_add_u32 v{vPF}, v{T[6]}, 17, v{T[9]}")
        a(f"s_lshl_b32 s{sT[6]}, s{sT[6]}, 9"); a(f"s_add_u32 s{sT[6]}, s{sT[6]}, 3072")
        a(f"s_bfe_u32 s{sHF}, s2, 0x10003")
        a(f"s_lshr_b32 s{sT[0]}, s2, 4"); a(f"s_lshl_b32 s{sT[0]}, s{sT[0]}, 3"); a(f"s_and_b32 s{sRB}, s2, 7"); a(f"s_or_b32 s{sRB}, s{sRB}, s{sT[0]}")
        a(f"s_lshl_b32 s{sLB}, s{sWS}, 15")
        a(f"v_lshrrev_b32 v{T[0]}, 4, v{vLANE}")
        a(f"v_lshrrev_b32 v{T[1]}, 3, v{vLANE}"); a(f"v_and_b32 v{T[2]}, 6, v{T[1]}"); a(f"v_xor_b32 v{T[2]}, v{T[2]}, v{vLANE}")
        a(f"v_and_b32 v{T[2]}, 7, v{T[2]}"); a(f"v_lshlrev_b32 v{T[2]}, 4, v{T[2]}")
        a(f"v_and_b32 v{T[3]}, 4, v{T[1]}"); a(f"v_add_u32 v{T[1]}, v{T[1]}, v{T[3]}")
        a(f"v_lshl_add_u32 v{T[3]}, v{T[1]}, 10, v{T[2]}"); a(f"v_lshl_add_u32 v{T[4]}, v{T[1]}, 8, v{T[2]}")
        for j in range(4):
            a(f"v_add_u32 v{vV[j]}, {((j&1)*16 + (j>>1)*4)*1024 - 1024*j + 3072}, v{T[3]}")
        a(f"s_lshl_b32 s{sT[2]}, s{sHF}, 9"); a(f"s_add_u32 s{sT[3]}, s{sLB}, s{sT[2]}")
        a(f"s_lshl_b32 s{sT[4]}, s{sRB}, 15"); a(f"s_add_u32 s{sT[4]}, s{sT[4]}, s{sT[2]}")
        a(f"s_lshl_b32 s{sT[5]}, s{sXH}, 12"); a(f"s_add_u32 s{sT[4]}, s{sT[4]}, s{sT[5]}")
        a(f"s_lshl_b32 s{sT[5]}, s{sWS}, 7"); a(f"s_add_u32 s{sT[7]}, s{sT[4]}, s{sT[5]}")
        a(f"s_lshr_b32 s{sT[5]}, s{sWS}, 1"); a(f"s_lshl_b32 s{sT[5]}, s{sT[5]}, 13"); a(f"s_add_u32 s{sT[4]}, s{sT[4]}, s{sT[5]}")
        a(f"s_and_b32 s{sT[5]}, s{sWS}, 1"); a(f"s_lshl_b32 s{sT[5]}, s{sT[5]}, 11"); a(f"s_add_u32 s{sMY[0]}, s{sT[4]}, s{sT[5]}")
        a(f"s_add_u32 s{sMY[1]}, s{sMY[0]}, 16384")
        for g in range(4):
            a(f"s_xor_b32 s{sT[4]}, s{sWS}, {g}"); a(f"s_lshl_b32 s{sT[4]}, s{sT[4]}, 7"); a(f"s_add_u32 s{sVG[g]}, s{sT[3]}, s{sT[4]}")
        a(f"v_lshrrev_b32 v{T[8]}, 5, v{vLANE}"); a(f"v_and_b32 v{vE}, 31, v{vLANE}"); a(f"v_lshlrev_b32 v{vE}, 4, v{vE}")
        a(f"v_lshl_add_u32 v{vE}, v{T[8]}, 10, v{vE}")
        for r in range(4): a(f"v_mov_b32 v{TM+r}, 0")
        a(f"v_mov_b32 v{vT[2]}, s2"); a(f"v_xor_b32 v{vT[2]}, 8, v{vT[2]}")
        a(f"s_lshl_b32 s{sT[5]}, s{sWS}, 12"); a(f"s_lshl_b32 s{sT[4]}, s{sXH}, 11"); a(f"s_add_u32 s{sT[5]}, s{sT[5]}, s{sT[4]}")
        a(f"s_add_u32 m0, s{sT[5]}, {XB}")
        a(f"v_lshrrev_b32 v{T[6]}, 3, v{vLANE}"); a(f"v_and_b32 v{T[7]}, 7, v{vLANE}")
        a(f"v_lshlrev_b32 v{T[8]}, 4, v{T[7]}"); a(f"v_lshl_add_u32 v{T[8]}, v{T[6]}, 10, v{T[8]}")
        a(f"s_lshl_b32 s{sT[5]}, s{sWS}, 7"); a(f"s_add_u32 s{sT[5]}, s{sT[5]}, s{sT[2]}"); a(f"s_mul_i32 s{sT[3]}, s{sXH}, 3072"); a(f"s_add_u32 s{sT[5]}, s{sT[5]}, s{sT[3]}")
        a("s_waitcnt lgkmcnt(0)")
        self.stamp("karg")
        pf = self.opts.get("pf", 1)
        def pfl(lo):
            if not pf or not lo: return
            a(f"s_mov_b64 exec, {lo}")
            self.vmop(f"buffer_load_dword v{vJ}, v{vPF}, {sr(sV,4)}, s{sT[6]} offen", "pf")
            self.vmop(f"buffer_load_dword v{vJ}, v{vPF}, {sr(sU,4)}, s{sT[6]} offen", "pf")
            a("s_mov_b64 exec, -1")
        self.pfl = pfl
        masks = [int(m, 16) for m in str(self.opts.get("pfm", "f,0")).split(",")]
        self.pfmasks = masks
        self.srd(sX0, sKA+0, 4096*1024, 3072)
        self.vmop(f"buffer_load_dwordx4 v{vV[0]}, {sr(sX0,4)}, s{sT[7]} offen lds", "x0")
        self.vmop(f"buffer_load_dwordx4 v{vV[1]}, {sr(sX0,4)}, s{sT[7]} offen offset:1024 lds", "x0")
        self.srd(sV, sKA+4, 6*131072, 3072)
        self.srd(sU, sKA+2, 6*131072, 3072)
        pfl(masks[0])
        self.srd(sB, sKA+6, 6*1024)
        self.srd(sD, sKA+10, 256)
        a("s_mov_b64 exec, 0xffffff")
        self.vmop(f"buffer_load_dwordx4 {vr(TM+4,4)}, v{T[8]}, {sr(sB,4)}, s{sT[5]} offen", "bias")
        a("s_mov_b64 exec, 1")
        self.vmop(f"buffer_load_ubyte v{vJ}, v{vT[2]}, {sr(sD,4)}, 0 offen", "touch")
        a("s_mov_b64 exec, -1")
        self.srd(sO, sKA+8, 4096*1024)
        bt = self.opts.get("boxtouch", 6)
        a(f"v_and_b32 v{RX+1}, 3, v{vLANE}"); a(f"v_lshlrev_b32 v{RX+1}, 7, v{RX+1}")
        a(f"v_bfe_u32 v{RX}, v{vLANE}, 2, 1"); a(f"v_lshl_add_u32 v{RX+1}, v{RX}, 10, v{RX+1}")
        a(f"v_bfe_u32 v{RX}, v{vLANE}, 3, 1"); a(f"v_lshl_add_u32 v{RX+1}, v{RX}, {12 if bt == 5 else 14}, v{RX+1}")
        if bt == 5: a(f"v_bfe_u32 v{RX}, v{vLANE}, 4, 1"); a(f"v_lshl_add_u32 v{RX+1}, v{RX}, 14, v{RX+1}")
        def box(m):
            a(f"s_mov_b64 exec, {m}")
            self.vmop(f"buffer_load_dword v{vJ}, v{RX+1}, {sr(sO,4)}, s{sMY[0]} offen sc1", "bt")
            a("s_mov_b64 exec, -1")
        self.box = box
        if bt == 1: box(0xffff)
        if bt == 2: box(0xff)
        if self.opts.get("clrearly", 1):
            self.vmop(f"buffer_store_dwordx4 {vr(TM,4)}, v{vE}, {sr(sO,4)}, s{sMY[0]} offen", "clr")
        gm = int(str(self.opts.get("gm", "3e")), 16)
        def gpf():
            if not gm: return
            a(f"s_lshl_b32 s{sT[0]}, s2, 2"); a(f"s_add_u32 s{sT[0]}, s{sT[0]}, s{sWS}"); a(f"s_lshl_b32 s{sT[0]}, s{sT[0]}, 7"); a(f"s_add_u32 s{sT[0]}, s{sT[0]}, 3072")
            a(f"v_lshlrev_b32 v{RX+2}, 17, v{vLANE}")
            a(f"s_mov_b64 exec, {gm}")
            a(f"s_cmp_lg_u32 s{sXH}, 0"); a("s_cbranch_scc1 L_gU")
            a(f"buffer_load_dword v{vJ}, v{RX+2}, {sr(sV,4)}, s{sT[0]} offen"); a("s_branch L_gD")
            self.lab("L_gU")
            self.vmop(f"buffer_load_dword v{vJ}, v{RX+2}, {sr(sU,4)}, s{sT[0]} offen", "gpf")
            self.lab("L_gD")
            a("s_mov_b64 exec, -1")
        if self.opts.get("gpos", 0) == 0: gpf()
        self.stamp("i_x0")
        a("s_barrier")
        a(f"s_lshl_b32 s{sT[4]}, s{sXH}, 13"); a(f"s_add_u32 s{sT[4]}, s{sT[4]}, s{sLB}")
        a(f"s_cmp_eq_u32 s{sXH}, 0")
        a(f"s_cselect_b32 s{sT[0]}, s{sVG[0]}, s{sVG[2]}"); a(f"s_cselect_b32 s{sT[1]}, s{sVG[1]}, s{sVG[3]}")
        def v0grp(k):
            a(f"s_add_u32 m0, s{sT[4]}, {k*4096}"); a("s_nop 0")
            for j in range(4):
                self.vmop(f"buffer_load_dwordx4 v{vV[j]}, {sr(sV,4)}, s{sT[k]} offen offset:{1024*j} lds", "V0")
                if (j & 1) and self.opts.get("pgap", 0): self.vmop(f"buffer_load_dword v{vJ}, off, {sr(sB,4)}, 0", "gap")
        v0grp(0)
        self.stamp("i_v0a")
        self.srd(sW, sKA+12, 8 << 20)
        self.srd(sE, sKA+8, 4096*1024)
        if self.opts.get("stag"):
            a(f"v_mov_b32 v{RX+2}, s{sSTAMP}"); a(f"s_lshl_b32 s90, s2, 2"); a("s_add_u32 s90, s90, 0x700000"); a(f"v_mov_b32 v{RX+3}, 0")
            a("s_mov_b64 exec, 1"); a(f"buffer_store_dword v{RX+2}, v{RX+3}, {sr(sW,4)}, s90 offen sc1"); a("s_mov_b64 exec, -1")
        a(f"s_getreg_b32 s{sXCC}, hwreg(HW_REG_XCC_ID)"); a(f"s_and_b32 s{sXCC}, s{sXCC}, 15"); a(f"s_or_b32 s{sXCC}, s{sXCC}, 16")
        a(f"s_and_b32 s{sT[0]}, s{sWS}, 1"); a(f"s_lshl_b32 s{sT[0]}, s{sT[0]}, 6"); a(f"v_xor_b32 v{T[4]}, s{sT[0]}, v{T[4]}")
        for j in range(4):
            a(f"v_add_u32 v{vU[j]}, {((j&1)*16 + (j>>1)*4)*256 - 1024*j + 3072}, v{T[4]}")
        a(f"s_lshl_b32 s{sT[0]}, s{sHF}, 16"); a(f"s_lshl_b32 s{sT[5]}, s{sWS}, 14"); a(f"s_add_u32 s{sT[0]}, s{sT[0]}, s{sT[5]}")
        for g in range(4):
            pp, P = g >> 1, g & 1
            a(f"s_xor_b32 s{sT[5]}, s{sWS}, {2*pp}"); a(f"s_and_b32 s{sT[5]}, s{sT[5]}, 2"); a(f"s_lshl_b32 s{sT[5]}, s{sT[5]}, 6")
            a(f"s_add_u32 s{sT[5]}, s{sT[5]}, {P*8192}"); a(f"s_add_u32 s{sUG[g]}, s{sT[0]}, s{sT[5]}")
        a(f"v_and_b32 v{T[1]}, 6, v{vLANE}"); a(f"v_xor_b32 v{T[2]}, v{T[1]}, v{T[0]}"); a(f"v_lshlrev_b32 v{T[2]}, 4, v{T[2]}")
        a(f"v_and_b32 v{T[1]}, 15, v{vLANE}"); a(f"v_lshl_add_u32 v{T[2]}, v{T[1]}, 7, v{T[2]}")
        a(f"v_add_u32 v{vA[0]}, s{sLB}, v{T[2]}"); a(f"v_xor_b32 v{vA[1]}, 64, v{vA[0]}")
        a(f"s_lshl_b32 s{sT[5]}, s{sWS}, 12"); a(f"s_lshl_b32 s{sT[0]}, s{sXH}, 11"); a(f"s_add_u32 s{sT[5]}, s{sT[5]}, s{sT[0]}"); a(f"s_add_u32 s{sT[5]}, s{sT[5]}, {XB}")
        a(f"v_add_u32 v{T[3]}, s{sT[5]}, v{T[2]}"); a(f"v_xor_b32 v{T[5]}, 64, v{T[3]}")
        a(f"v_lshlrev_b32 v{T[1]}, 4, v{vLANE}")
        a(f"v_add_u32 v{vXW}, s{sT[5]}, v{T[1]}")
        for g in range(1, 4): a(f"v_xor_b32 v{vXR[g]}, {g*4096}, v{vXW}")
        a(f"s_lshl_b32 s{sT[5]}, s{sWV}, 10"); a(f"s_add_u32 s{sT[5]}, s{sT[5]}, {HB}")
        a(f"v_add_u32 v{vHW}, s{sT[5]}, v{T[1]}")
        for g in range(1, 4): a(f"v_xor_b32 v{vHR[g]}, {g*1024}, v{vHW}")
        a(f"s_mul_i32 s{sT[5]}, s{sWS}, 1536"); a(f"s_add_u32 s{sT[5]}, s{sT[5]}, {BIASB}")
        a(f"v_lshlrev_b32 v{vBI}, 5, v{T[0]}"); a(f"v_add_u32 v{vBI}, s{sT[5]}, v{vBI}")
        a(f"s_mul_i32 s{sT[0]}, s{sXH}, 768"); a(f"s_add_u32 s{sT[5]}, s{sT[5]}, s{sT[0]}")
        a(f"v_lshlrev_b32 v{T[7]}, 5, v{T[7]}"); a(f"v_lshl_add_u32 v{T[7]}, v{T[6]}, 8, v{T[7]}"); a(f"v_add_u32 v{vT[0]}, s{sT[5]}, v{T[7]}")
        def xproc():
            self.wvm("x0")
            self.stamp("x0")
            for P in range(2):
                self.lgop(f"ds_read_b128 {vr(PK+4*P,4)}, v{T[5] if P else T[3]}", "x0r")
            self.wvm("bias")
            self.run(self.unpack(TM+8, TM+4, 4))
            self.wlg("x0r")
            for P in range(2):
                self.lgop(f"ds_write_b128 v{vXW}, {vr(PK+4*P,4)} offset:{P*1024}", "xw")
            a("s_mov_b64 exec, 0xffffff")
            self.lgop(f"ds_write_b128 v{vT[0]}, {vr(TM+8,4)}", "bw")
            self.lgop(f"ds_write_b128 v{vT[0]}, {vr(TM+12,4)} offset:16", "bw")
            a("s_mov_b64 exec, -1")
            self.run(self.unpack(X0F, PK, 8))
        xp = self.opts.get("xproc", 0)
        if xp == 0: xproc()
        v0grp(1)
        self.stamp("i_v0b")
        if not self.opts.get("clrearly", 1):
            self.vmop(f"buffer_store_dwordx4 {vr(TM,4)}, v{vE}, {sr(sO,4)}, s{sMY[0]} offen", "clr")
        if bt == 3: box(0xffff)
        if bt == 4: box(0xff)
        pfl(masks[1])
        if self.opts.get("gpos", 0) == 1: gpf()
        if xp == 1: xproc()
        self.wvm("clr")
        if bt == 6:
            a(f"s_cmp_eq_u32 s{sXH}, 0"); a("s_cbranch_scc1 L_noU0")
            n0 = len(self.vm)
            self.run(self.dma("U", 0, 0, "DDDD") + self.dma("U", 0, 1, "DDDD"))
            self.u0tags = self.vm[n0:]; del self.vm[n0:]
            self.lab("L_noU0")
        self.wvm("clr")
        a("s_barrier")
        self.stamp("issued")
        a(f"s_cmp_lg_u32 s{sWV}, 0"); a("s_cbranch_scc0 L_flag")
        self.lab("L_noflag")
        self.n_issued = len(self.vm)
        self.vmop(f"buffer_store_dwordx4 {vr(TM,4)}, v{vE}, {sr(sO,4)}, s{sMY[1]} offen", "clr1")
        if bt == 6: box(0xffff)
        if self.opts.get("gpos", 0) == 2: gpf()
        a(f"s_mov_b32 s{sSL}, s{sMY[0]}"); a(f"s_mov_b32 s{sTS}, {sum(t << i for i, t in enumerate(TAGS))}"); a(f"s_mov_b32 s{sTAG}, {TAGS[0]}")
        a(f"s_xor_b32 s{sT[3]}, s2, 8"); a(f"s_and_b32 s{sT[2]}, s{sT[3]}, 0xfc"); a(f"s_and_b32 s{sT[3]}, s{sT[3]}, 3"); a(f"s_lshl_b32 s{sT[3]}, s{sT[3]}, 3")
        a(f"s_cmp_lg_u32 s{sXH}, 0"); a("s_cbranch_scc1 L_progB")
        self.xl("L_flag")
        self.x(f"v_mov_b32 v{RX}, s2"); self.x(f"v_mov_b32 v{vT[1]}, s{sXCC}"); self.x("s_mov_b64 exec, 1")
        self.x(f"buffer_store_byte v{vT[1]}, v{RX}, {sr(sD,4)}, 0 offen"); self.x("s_mov_b64 exec, -1"); self.x("s_branch L_noflag")

    def late(self, step):
        a = self.a
        if self.opts.get("boxtouch", 6) == 5 and step == 0:
            a("s_mov_b64 exec, 0xffffffff")
            self.vmop(f"buffer_load_dword v{vJ}, v{RX+1}, {sr(sO,4)}, s{sMY[0]} offen sc1", "bt")
            a("s_mov_b64 exec, -1")
        lm = [int(m, 16) for m in str(self.opts.get("lm", "0")).split(",")]
        if step < len(lm) and lm[step]:
            a(f"s_mov_b64 exec, {lm[step]}")
            for off in (0, 2048):
                self.vmop(f"buffer_load_dword v{vJ}, v{vPF}, {sr(sV,4)}, s{sT[6]} offen offset:{off}", "pf")
                self.vmop(f"buffer_load_dword v{vJ}, v{vPF}, {sr(sU,4)}, s{sT[6]} offen offset:{off}", "pf")
            a("s_mov_b64 exec, -1")
    def clr1_flag(self):
        self.a(f"s_load_dword s{sT[1]}, {sr(sKA+10,2)}, s{sT[2]}")
    def bias_ops(self, l):
        return [lambda k=k: self.lgop(f"ds_read_b128 {vr(ACC2+4*k,4)}, v{vBI} offset:{(0 if self.dyn else l*256) + (k>>1)*128 + (k&1)*16}", "bias") for k in range(4)]
    def light1(self, kind, l, rd, lp, n1=None):
        d = self.dma(kind, l, 0) + self.dma(kind, l, 1)
        n1 = n1 or self.opts.get("n1", 8)
        self.carry = d[n1:]; d = d[:n1]
        pp = self.opts.get("pollat", 2); r0 = self.opts.get("rd1at", 0)
        rd = list(rd) + self.bias_ops(lp)
        per = self.opts.get("rd1per", 4)
        for k in range(8):
            if k == pp: self.poll(lp)
            if k < len(d): d[k]()
            if r0 <= k and (k - r0) % self.opts.get("dper", 1) == 0: self.run(rd[:per]); rd = rd[per:]
            self.stamp(f"l1{self.X}{lp}_{k}")
        if pp >= 8: self.poll(lp)
    def light2(self, kind, l, rd, lp):
        self.run(self.carry)
        d = self.dma(kind, l, 2) + self.dma(kind, l, 3) + [lambda: None] * 8
        p2 = self.opts.get("pre2", 3); rd = list(rd)
        if self.opts.get("l2mode", 0) == 1 or l >= L:
            m2 = self.opts.get("mid2", 1)
            self.run(d[:p2])
            self.check_post(lp, d[p2:p2+m2])
            self.run(rd[:4]); d[p2+m2](); self.run(rd[4:])
            self.wvm(f"{kind}{l}a")
            self.run(d[p2+m2+1:8])
            return
        self.run(d[:p2])
        self.run(rd[:4]); d[p2](); self.run(rd[4:]); d[p2+1]()
        self.stamp(f"pd{self.X}{lp}")
        self.check_post(lp, d[p2+2:p2+3])
        self.stamp(f"po{self.X}{lp}")
        self.wvm(f"{kind}{l}a")
        self.run(d[p2+3:8])
        self.stamp(f"en{self.X}{lp}")
    def progA(self):
        a = self.a
        self.wvm("V0"); self.stamp("v0l"); self.wvm("clr")
        self.bar("b0")
        self.prio(2)
        xr = self.x_reads(); rv = [f for g in range(4) for f in self.rdV(g)]
        self.run(rv[0:4]); self.run(xr[0:2]); self.run(rv[4:8]); self.run(xr[2:4])
        q = rv[8:12] + xr[4:6] + rv[12:16]
        for ks in range(8):
            self.wlg(f"rV{ks>>1}_{ks&1}")
            if ks >= 2: self.wlg(f"x{ks}")
            self.mf1(ks, [q[0:1], q[1:2]]); q = q[2:]
            if ks == self.opts.get("flagat", 2): self.clr1_flag()
            if ks == self.opts.get("lateat", 3): self.late(0)
        self.send(0)
        self.run(self.unpack(XF, PK, 8))
        self.prio(0)
        self.bar("b1")
        self.light1("V", 1, self.rdU(0) + self.rdU(1), 0, 8)
        self.bar("b1x")
        self.run(self.rdU(2))
        self.check_post(0, [])
        self.run(self.rdU(3))
        self.wvm("V1a")
        self.bar("b2")
        self.a(f"s_mov_b32 s{sLOFF}, {2*131072}"); self.a(f"v_add_u32 v{vBI}, 256, v{vBI}")
        self.rounds(self.roundA)
    def rounds(self, body):
        self.dyn = True
        if not self.opts.get("loop", 1):
            for l in range(L): body(l, None)
            return
        u = self.X
        self.a(f"s_mov_b32 s{sIT}, 4")
        keep = self.o; self.o = []; self.emit_ool = False
        body(0, None)
        self.o = keep; self.emit_ool = True
        if self.opts.get("loopalign", 1): self.o.append("    .p2align 6")
        self.lab(f"L_loop{u}")
        body(1, f"L_loop{u}")
        keep = self.o; self.o = []; self.emit_ool = False
        body(2, None); body(3, None)
        self.o = keep; self.emit_ool = True
        body(4, None); body(5, None)
    def adv(self, back):
        self.a(f"s_add_u32 s{sLOFF}, s{sLOFF}, 131072"); self.a(f"v_add_u32 v{vBI}, 256, v{vBI}")
        if back: self.a(f"s_sub_u32 s{sIT}, s{sIT}, 1"); self.a(f"s_cmp_lg_u32 s{sIT}, 0")
    def roundA(self, l, back):
        last = l == L-1
        self.c(f"==== A round {l} phase 0: G2 ====")
        self.prio(2)
        ev = self.opts.get("earlyv", 8)
        self.g2_phase(l, early=(None if last else (self.rdV(0) + self.rdV(1))[:ev]))
        if last:
            self.final_store(bar=True); return
        self.wvm(f"V{l+1}b")
        self.stamp(f"g2g0{l}")
        self.bar(f"A0{l}")
        self.c(f"==== A round {l} phase 1: G1 ====")
        self.g1_phase(l+1, jitV=True)
        self.prio(0)
        self.bar(f"A1{l}")
        self.c(f"==== A round {l} phase 2 ====")
        self.light1("V", l+2, self.rdU(0) + self.rdU(1), l+1)
        self.bar(f"A2{l}")
        self.c(f"==== A round {l} phase 3 ====")
        self.light2("V", l+2, self.rdU(2) + self.rdU(3), l+1)
        if l == L-2: self.final_addr()
        self.wlg0()
        self.adv(back)
        self.bar(f"A3{l}")
        if back: self.a(f"s_cbranch_scc1 {back}")

    def progB(self):
        self.lab("L_progB")
        if self.opts.get("boxtouch", 6) == 6:
            self.vm[self.n_issued:self.n_issued] = self.u0tags
        else:
            self.run(self.dma("U", 0, 0) + self.dma("U", 0, 1))
        self.wvm("V0"); self.stamp("v0l"); self.wvm("clr")
        self.bar("b0")
        d = self.dma("U", 0, 2) + self.dma("U", 0, 3)
        rv = [f for g in range(4) for f in self.rdV(g)]
        self.run(d[:4])
        for k in range(4):
            self.run(rv[4*k:4*k+4]); d[4+k]()
        self.wvm("U0a")
        self.bar("b1")
        self.prio(2)
        self.clr1_flag()
        self.g1_phase(0, extra=self.rdU(0) + self.rdU(1))
        self.prio(0)
        self.wvm("U0b")
        self.bar("b1x")
        self.mix(self.dma("V", 1, 2) + self.dma("V", 1, 3), self.rdU(2) + self.rdU(3))
        self.bar("b2")
        self.a(f"s_mov_b32 s{sLOFF}, 131072")
        self.rounds(self.roundB)
    def roundB(self, l, back):
        last = l == L-1
        self.c(f"==== B round {l} phase 0 ====")
        if not last:
            n0 = len(self.vm)
            self.light1("U", l+1, self.rdV(0) + self.rdV(1), l)
            self.a(f"s_waitcnt vmcnt({len(self.vm) - n0})"); self.vmdone = max(self.vmdone, n0)
            self.bar(f"B0{l}")
            self.c(f"==== B round {l} phase 1 ====")
            self.light2("U", l+1, self.rdV(2) + self.rdV(3), l)
        else:
            self.poll(l); self.bias_rd(l); self.check_post(l, [])
        self.bar(f"B1{l}")
        self.c(f"==== B round {l} phase 2: G2 ====")
        self.prio(2)
        if last:
            self.g2_phase(l); self.final_store(); return
        self.g2_phase(l, mid=self.rdU(0), late=self.rdU(1))
        self.wvm(f"U{l+1}b")
        self.bar(f"B2{l}")
        self.c(f"==== B round {l} phase 3: G1 ====")
        self.g1_phase(l+1, extra=self.rdU(2) + self.rdU(3))
        if l == L-2: self.final_addr()
        self.prio(0)
        self.wlg0()
        self.adv(back)
        self.bar(f"B3{l}")
        if back: self.a(f"s_cbranch_scc1 {back}")

    def final_addr(self):
        a = self.a; t = [RX, RX+1, RX+2]
        a(f"v_and_b32 v{t[0]}, 15, v{vLANE}"); a(f"v_lshrrev_b32 v{t[1]}, 4, v{vLANE}")
        a(f"v_and_b32 v{t[2]}, 7, v{t[0]}"); a(f"v_xor_b32 v{t[2]}, v{t[2]}, v{t[1]}"); a(f"v_lshlrev_b32 v{t[2]}, 4, v{t[2]}")
        a(f"v_lshl_add_u32 v{t[2]}, v{t[0]}, 7, v{t[2]}")
        a(f"v_and_b32 v{vT[0]}, 0xfffff800, v{vXW}"); a(f"v_add_u32 v{vT[0]}, v{vT[0]}, v{t[2]}"); a(f"v_xor_b32 v{vT[1]}, 64, v{vT[0]}")
        a(f"v_lshrrev_b32 v{t[0]}, 3, v{vLANE}"); a(f"v_xor_b32 v{t[1]}, v{t[0]}, v{vLANE}"); a(f"v_and_b32 v{t[1]}, 7, v{t[1]}")
        a(f"v_lshlrev_b32 v{t[1]}, 4, v{t[1]}")
        a(f"v_and_b32 v{t[2]}, 4, v{t[0]}"); a(f"v_add_u32 v{t[0]}, v{t[0]}, v{t[2]}")
        a(f"v_lshl_add_u32 v{vT[2]}, v{t[0]}, 10, v{t[1]}")

    def final_store(self, bar=False):
        a = self.a; D = XF
        for m in range(2):
            self.lgop(f"ds_read_b128 {vr(D+4*m,4)}, v{vXW} offset:{m*1024}", f"fo{m}")
        fl = self.opts.get("outflags", "") if self.X else self.opts.get("outflagsA", self.opts.get("outflags", ""))
        for m in range(2):
            a(f"s_add_u32 s{sT[m]}, s{sT[7]}, {m*16384}")
            self.wlg(f"fo{m}")
            self.vmop(f"buffer_store_dwordx4 {vr(D+4*m,4)}, v{vT[2]}, {sr(sO,4)}, s{sT[m]} offen {fl}", "out")
        if bar and self.opts.get("junk"):
            for m in range(4):
                a(f"s_add_u32 s{sT[2]}, s{sMY[0]}, {m*4096 if m < 2 else 16384 + (m-2)*4096}")
                a(f"buffer_store_dwordx4 {vr(D,4)}, v{vE}, {sr(sW,4)}, s{sT[2]} offen")
        if bar: a("s_barrier")
        if self.opts.get("stag"):
            u = self.X
            a("s_waitcnt vmcnt(0)")
            a(f"s_add_u32 s4, s{sKA+12}, 0x700000"); a(f"s_addc_u32 s5, s{sKA+13}, 0")
            a("s_load_dwordx8 s[84:91], s[4:5], 0"); a("s_memrealtime s[94:95]"); a("s_waitcnt lgkmcnt(0)")
            a("s_mov_b32 s92, 0")
            for i in range(8):
                a(f"s_sub_u32 s93, s{sSTAMP}, s{84+i}"); a("s_cmp_lt_u32 s93, 3000"); a("s_cselect_b32 s93, s93, 0"); a("s_max_u32 s92, s92, s93")
            self.lab(f"L_echo{u}")
            a("s_sleep 1"); a("s_memrealtime s[96:97]"); a("s_waitcnt lgkmcnt(0)"); a("s_sub_u32 s93, s96, s94")
            a("s_cmp_lt_u32 s93, s92"); a(f"s_cbranch_scc1 L_echo{u}")
        elif self.opts.get("echo"):
            u = self.X
            a("s_waitcnt vmcnt(0)"); self.stamp("fin")
            a("s_memtime s[90:91]"); a("s_waitcnt lgkmcnt(0)")
            a(f"s_sub_u32 s92, s{sSTAMP+2}, s{sSTAMP}")
            self.lab(f"L_echo{u}")
            a("s_sleep 1"); a("s_memtime s[94:95]"); a("s_waitcnt lgkmcnt(0)"); a("s_sub_u32 s93, s94, s90")
            a("s_cmp_lt_u32 s93, s92"); a(f"s_cbranch_scc1 L_echo{u}")
        elif self.prof:
            a("s_waitcnt vmcnt(0)")
            self.stamp("fin"); self.stamp("rt1")
            a("s_waitcnt lgkmcnt(0)")
            a(f"v_mov_b32 v{RX}, 0")
            for i in range(len(self.prof)): a(f"v_writelane_b32 v{RX}, s{sSTAMP+2*i}, {i}")
            a(f"s_lshl_b32 s{sT[0]}, s2, 3"); a(f"s_add_u32 s{sT[0]}, s{sT[0]}, s{sWV}"); a(f"s_lshl_b32 s{sT[0]}, s{sT[0]}, 8")
            a(f"s_add_u32 s{sT[0]}, s{sT[0]}, {6<<20}")
            a(f"v_lshlrev_b32 v{vT[0]}, 2, v{vLANE}")
            a(f"buffer_store_dword v{RX}, v{vT[0]}, {sr(sW,4)}, s{sT[0]} offen")
        for i in range(self.opts.get("delay", 0)): a("s_sleep 125")
        a("s_endpgm")

    def handshake(self):
        a = self.a; x = self.x; P = XF; u = self.X
        self.c("handshake: the partner's inbox is cleared; does it share this XCD?")
        a(f"s_mov_b32 s{sCNT}, 0"); a(f"s_mov_b32 s{sMODE}, 1")
        self.wvm("clr1")
        a("s_waitcnt lgkmcnt(0)"); self.lgdone = len(self.lg)
        a(f"s_lshr_b32 s{sT[0]}, s{sT[1]}, s{sT[3]}"); a(f"s_and_b32 s{sT[0]}, s{sT[0]}, 0xff")
        a(f"s_cmp_eq_u32 s{sT[0]}, s{sXCC}"); a(f"s_cbranch_scc0 L_hs_fast{u}")
        self.lab(f"L_hs_done{u}")
        self.rec("hscnt", f"s{sCNT}"); self.rec("mode", f"s{sMODE}")
        self.xl(f"L_hs_fast{u}")
        x(f"buffer_load_ubyte v{vT[1]}, v{vT[2]}, {sr(sD,4)}, 0 offen sc1")
        x("s_waitcnt vmcnt(0)")
        x(f"v_readfirstlane_b32 s{sT[0]}, v{vT[1]}")
        x(f"s_cmp_eq_u32 s{sT[0]}, s{sXCC}"); x(f"s_cbranch_scc1 L_hs_done{u}")
        x(f"s_add_u32 s{sCNT}, s{sCNT}, 1"); x(f"s_cmp_lt_u32 s{sCNT}, {self.opts.get('fastpolls', 8)}"); x(f"s_cbranch_scc1 L_hs_fast{u}")
        for r in range(4): x(f"v_mov_b32 v{P+4+r}, 0")
        for sl in range(2):
            x(f"buffer_store_dwordx4 {vr(P+4,4)}, v{vE}, {sr(sW,4)}, s{sMY[sl]} offen sc1")
        x(f"s_lshl_b32 s{sT[1]}, s2, 3"); x(f"s_add_u32 s{sT[1]}, s{sT[1]}, s{sWV}"); x(f"s_lshl_b32 s{sT[1]}, s{sT[1]}, 7")
        x(f"s_add_u32 s{sT[1]}, s{sT[1]}, {4<<20}")
        x(f"s_xor_b32 s{sT[2]}, s{sT[1]}, {8*8*128}")
        x(f"v_mov_b32 v{P+2}, 0")
        x("s_mov_b64 exec, 1")
        x(f"buffer_load_dwordx4 {vr(P+8,4)}, v{P+2}, {sr(sW,4)}, s{sT[2]} offen sc1")
        x("s_waitcnt vmcnt(0)")
        x(f"v_readfirstlane_b32 s{sT[3]}, v{P+10}")
        x(f"s_add_u32 s{sT[3]}, s{sT[3]}, 1")
        x(f"v_mov_b32 v{P+3}, s{sT[3]}")
        x(f"buffer_store_dword v{P+3}, v{P+2}, {sr(sW,4)}, s{sT[1]} offen sc1")
        x("s_waitcnt vmcnt(0)")
        x(f"s_mov_b32 s{sCNT}, 0")
        self.xl(f"L_hs_slow{u}")
        x(f"buffer_load_ubyte v{vT[1]}, v{vT[2]}, {sr(sD,4)}, 0 offen sc1")
        x(f"buffer_load_dwordx4 {vr(P+8,4)}, v{P+2}, {sr(sW,4)}, s{sT[2]} offen sc1")
        x("s_waitcnt vmcnt(0)")
        x(f"v_readfirstlane_b32 s{sT[0]}, v{vT[1]}")
        x(f"v_readfirstlane_b32 s{sT[5]}, v{P+8}")
        x(f"v_readfirstlane_b32 s{sT[4]}, v{P+10}")
        x(f"v_readfirstlane_b32 s{sMODE}, v{P+11}")
        x(f"s_cmp_eq_u32 s{sT[0]}, s{sXCC}"); x(f"s_cbranch_scc1 L_hs_same{u}")
        x(f"v_mov_b32 v{P+12}, s{sT[5]}"); x(f"v_mov_b32 v{P+13}, s{sXCC}")
        x(f"buffer_store_dwordx2 {vr(P+12,2)}, v{P+2}, {sr(sW,4)}, s{sT[1]} offen offset:8 sc1")
        x(f"s_add_u32 s{sCNT}, s{sCNT}, 1"); x(f"s_cmp_gt_u32 s{sCNT}, 0x200000"); x(f"s_cbranch_scc1 L_hs_same{u}")
        x(f"s_cmp_eq_u32 s{sT[4]}, s{sT[3]}"); x(f"s_cbranch_scc0 L_hs_slow{u}")
        x(f"s_cmp_eq_u32 s{sMODE}, s{sXCC}"); x(f"s_cbranch_scc1 L_hs_same{u}")
        x(f"s_mov_b32 s{sMODE}, 0")
        x(f"s_mov_b32 s{sE}, s{sKA+12}"); x(f"s_mov_b32 s{sE+1}, s{sKA+13}")
        x("s_mov_b64 exec, -1")
        x(f"s_branch L_hs_done{u}")
        self.xl(f"L_hs_same{u}")
        x(f"s_mov_b32 s{sMODE}, 1")
        x("s_mov_b64 exec, -1")
        x(f"s_branch L_hs_done{u}")

    def build(self):
        hdr = [f"; @launch grid=(256,1,1) block=(512,1,1) lds={LDS_BYTES}",
               '.amdgcn_target "amdgcn-amd-amdhsa--gfx950"', ".text", f".globl {KN}", ".p2align 8",
               f".type {KN},@function", f"{KN}:"]
        self.prologue()
        A = self.fork(0); A.progA()
        B = self.fork(1); B.progB()
        nb = lambda g: sum(1 for s in g.o if s.strip() == "s_barrier")
        assert nb(A) == nb(B), (nb(A), nb(B))
        assert NV + NA <= 256
        ftr = [f".set CODE_BYTES, L_end - {KN}", '.section .rodata,"a"', ".p2align 6", f".amdhsa_kernel {KN}",
               f"  .amdhsa_next_free_vgpr {NV+NA}", "  .amdhsa_next_free_sgpr 102", f"  .amdhsa_accum_offset {NV}",
               "  .amdhsa_group_segment_fixed_size 0", "  .amdhsa_kernarg_size 56", "  .amdhsa_user_sgpr_count 2",
               "  .amdhsa_user_sgpr_kernarg_segment_ptr 1", "  .amdhsa_system_sgpr_workgroup_id_x 1",
               "  .amdhsa_float_denorm_mode_32 3", ".end_amdhsa_kernel"]
        log = []
        m1, n1 = fix_hazards(self.o + A.o, log)
        m2, n2 = fix_hazards(B.o, log)
        ool, n3 = fix_hazards(self.ool)
        main = m1 + m2 + ["L_end:", "    s_endpgm"]
        wrap = lambda ls: "\n".join(hdr + ls + ool + ftr) + "\n"
        if self.opts.get("align", 1):
            main, nw, nn = align(main, wrap, self.opts.get("minrun", 99))
            sys.stderr.write(f"hazard nops {n1}+{n2}+{n3}, widened {nw}, align nops {nn}\n")
        if self.opts.get("hlog"):
            for e in log: sys.stderr.write(str(e) + "\n")
        return wrap(main)

if __name__ == "__main__":
    prof = None; opts = {}
    for x in sys.argv[1:]:
        if x.startswith("--prof="): prof = x[7:].split(",")
        elif x.startswith("--"):
            k, v = x[2:].split("="); opts[k] = int(v) if v.lstrip("-").isdigit() else v
    out = [x for x in sys.argv[1:] if not x.startswith("--")][0]
    g = Gen(prof, opts); txt = g.build()
    if prof: txt = txt + "; stamps: " + ",".join(prof) + "\n"
    open(out, "w").write(txt)
```

```python
import sys, copy
from asmlib import fix_hazards, align
KN = "standalone__cross_network_dcn_v2__recsys_kernel"
L = 6
XB = 131072; HB = 147456; BIASB = 155648; LDS_BYTES = 161792
TAGS = [1, 1, 0, 0, 1, 1]

vLANE = 1; vA = [2, 21]; vE = 3; vV = [4, 5, 6, 7]; vU = [8, 9, 10, 11]
vXW = 12; vXR = [None, 13, 14, 15]; vHW = 16; vHR = [None, 17, 18, 19]
vBI = 20; vT = [22, 23, 24, 25]; vJ = 0
ACC1 = 26; ACC2 = 34; XF = 50; X0F = 66; PK = 82; HP = 90; RX = 94; TM = ACC2; SP = HP; T4 = 98; vPF = 102
NV = 104
aV = 0; aU = 64; aX = 128; aH = 128; aS = 128; NS = 6; NA = 152
sX0 = 4; sV = 8; sU = 12; sO = 16; sE = 20; sD = 24; sB = 28; sW = 32
sKA = 36
sWV = 50; sHF = 51; sRB = 52; sXCC = 53; sMODE = 54
sVG = [55, 56, 57, 58]; sUG = [59, 60, 61, 62]; sSO = [63, 64]; sLB = 65
sMY = [66, 67]; sWS = 68; sXH = 69
sLOFF = 4; sSL = 5; sTS = 6; sTAG = 7; sIT = 3
sCNT = 70; sT = [71, 72, 73, 74, 75, 76, 77, 78]; sPTMP = 79
sSTAMP = 80

def vr(b, n): return f"v[{b}:{b+n-1}]"
def ar(b, n): return f"a[{b}:{b+n-1}]"
def sr(b, n): return f"s[{b}:{b+n-1}]"

class Gen:
    def __init__(self, prof=None, opts=None):
        self.o = []; self.ool = []; self.vm = []; self.lg = []; self.vmdone = 0; self.lgdone = 0
        self.prof = prof; self.opts = opts or {}; self.names = []
        self.pw = []; self.nso = 0; self.nst = 0; self.X = 0; self.dyn = False; self.emit_ool = True
        self.pat = self.opts.get("pat", "BBBB/DBDB/DDDB/DDDB"); self.lag = self.opts.get("lag", 4)
    def fork(self, X):
        g = copy.copy(self); g.o = []; g.vm = list(self.vm); g.lg = list(self.lg); g.pw = list(self.pw); g.X = X
        return g
    def a(self, s): self.o.append("    " + s)
    def x(self, s):
        if self.emit_ool: self.ool.append("    " + s)
    def xl(self, s):
        if self.emit_ool: self.ool.append(s + ":")
    def lab(self, s): self.o.append(s + ":")
    def c(self, s): self.o.append("    ; " + s)
    def vmop(self, s, tag): self.vm.append(tag); self.a(s)
    def lgop(self, s, tag): self.lg.append(tag); self.a(s)
    def _last(self, lst, tag):
        idx = [i for i, t in enumerate(lst) if t == tag]
        return idx[-1] if idx else None
    def wvm(self, tag):
        i = self._last(self.vm, tag)
        if i is not None: self.wvmi(i)
    def wvmi(self, i):
        if i < self.vmdone: return
        n = min(len(self.vm) - 1 - i, 63); self.vmdone = len(self.vm) - n
        self.a(f"s_waitcnt vmcnt({n})")
    def wlg(self, tag):
        i = self._last(self.lg, tag)
        if i is None or i < self.lgdone: return
        n = min(len(self.lg) - 1 - i, 15); self.lgdone = len(self.lg) - n
        self.a(f"s_waitcnt lgkmcnt({n})")
    def wlg0(self):
        if self.lgdone < len(self.lg): self.lgdone = len(self.lg); self.a("s_waitcnt lgkmcnt(0)")
    def bar(self, name=None):
        self.wlg0()
        if name: self.stamp(name + "a")
        self.a("s_barrier")
        if name: self.stamp(name + "b")
    def stamp(self, name):
        nm = name + "AB"[self.X] if False else name
        if self.prof and nm in self.prof:
            r = sSTAMP + 2 * self.prof.index(nm)
            assert r + 1 <= 101
            self.a(f"s_memrealtime s[{r}:{r+1}]" if nm.startswith("rt") else f"s_memtime s[{r}:{r+1}]")
    def rec(self, name, src):
        if self.prof and name in self.prof:
            self.a(f"s_mov_b32 s{sSTAMP + 2*self.prof.index(name)}, {src}")
    def prio(self, p):
        m = self.opts.get("prio", 1)
        if m == 1: self.a(f"s_setprio {p}")
        if m == 2: self.a(f"s_setprio {2-p}")
    def dma(self, kind, l, g, pat=None):
        if l >= L: return []
        if self.opts.get("dma") == "off" and l >= 2: return []
        pat = pat or self.pat.split("/")[g]
        so = sSO[self.nso & 1]; self.nso += 1
        base, sg, vv, srd = (0, sVG, vV, sV) if kind == "V" else (16384, sUG, vU, sU)
        tag = f"{kind}{l}" + "ab"[g >> 1]
        items = []
        for j in range(4):
            def emit(j=j):
                while self.pw and len(self.vm) - self.pw[0][0] > self.lag: self.pw.pop(0)[1]()
                if j == 0:
                    self.a(f"s_add_u32 m0, s{sLB}, {base+g*4096}"); self.a(f"s_add_u32 s{so}, s{sg[g]}, s{sLOFF}" if self.dyn else f"s_add_u32 s{so}, s{sg[g]}, {l*131072}")
                if pat[j % len(pat)] in "DBC":
                    self.vmop(f"buffer_load_dwordx4 v{vv[j]}, {sr(srd,4)}, s{so} offen offset:{1024*j} lds", tag)
                    for q in range({"D": 0, "B": 1, "C": 2}[pat[j % len(pat)]]): self.vmop(f"buffer_load_dword v{vJ}, off, {sr(sB,4)}, 0", "gap")
            items.append(emit)
        return items
    def flush(self, keep3=False):
        while self.pw and not (keep3 and self.pw[0][2] == 3): self.pw.pop(0)[1]()
    def rdV(self, g):
        return [lambda j=j: self.lgop(f"ds_read_b128 {ar(aV+4*(4*g+j),4)}, v{vA[j>>1]} offset:{g*4096+(j&1)*2048}", f"rV{g}_{j>>1}") for j in range(4)]
    def rdU(self, g):
        return [lambda j=j: self.lgop(f"ds_read_b128 {ar(aU+4*(4*g+j),4)}, v{vA[j>>1]} offset:{16384+g*4096+(j&1)*2048}", f"rU{g}") for j in range(4)]
    def mf1(self, ks, fill=None):
        for ta in range(2):
            b = vr(PK + 4*ks, 4) if ks < 2 else ar(aX + 4*(ks-2), 4)
            d = vr(ACC1 + 4*ta, 4)
            self.a(f"v_mfma_f32_16x16x32_bf16 {d}, {ar(aV+4*(2*ks+ta),4)}, {b}, {'0' if ks == 0 else d}")
            if fill: self.run(fill[ta])
    def mf2(self, P, kr, fill=None):
        for ta in range(2):
            b = vr(HP, 4) if kr == 0 else ar(aH + 4*(kr-1), 4)
            d = vr(ACC2 + 8*P + 4*ta, 4)
            idx = ((kr >> 1)*2 + P)*4 + (kr & 1)*2 + ta
            self.a(f"v_mfma_f32_16x16x32_bf16 {d}, {ar(aU+4*idx,4)}, {b}, {d}")
            if fill: self.run(fill[ta])
    def epi(self, P, l, pk=False):
        r = []
        if pk:
            for e in range(4):
                q = 8*P + 2*e
                r.append(lambda q=q: self.a(f"v_pk_fma_f32 {vr(ACC2+q,2)}, {vr(X0F+q,2)}, {vr(ACC2+q,2)}, {vr(XF+q,2)}"))
        else:
            for e in range(8):
                q = 8*P + e
                r.append(lambda q=q: self.a(f"v_fma_f32 v{ACC2+q}, v{X0F+q}, v{ACC2+q}, v{XF+q}"))
        for e in range(4):
            q = 8*P + 2*e
            r.append(lambda q=q: self.a(f"v_cvt_pk_bf16_f32 v{PK+q//2}, v{ACC2+q}, v{ACC2+q+1}"))
        if l < L-1: r.append(lambda: self.lgop(f"ds_write_b128 v{vXW}, {vr(PK+4*P,4)} offset:{P*1024}", "xw"))
        else: r.append(lambda: self.lgop(f"ds_write_b128 v{vT[P]}, {vr(PK+4*P,4)}", "xw"))
        return r
    def unpack(self, dst, src, n):
        r = []
        for i in range(n):
            r.append(lambda i=i: self.a(f"v_lshlrev_b32 v{dst+2*i}, 16, v{src+i}"))
            r.append(lambda i=i: self.a(f"v_and_b32 v{dst+2*i+1}, 0xffff0000, v{src+i}"))
        return r
    def bias_rd(self, l):
        for k in range(4):
            self.lgop(f"ds_read_b128 {vr(ACC2+4*k,4)}, v{vBI} offset:{(0 if self.dyn else l*256) + (k>>1)*128 + (k&1)*16}", "bias")
    def run(self, lst):
        for f in lst: f()
    def mix(self, *lists):
        lists = [list(x) for x in lists]
        while any(lists):
            for x in lists:
                if x: x.pop(0)()
    def srd(self, r, p, n, bias=0):
        if bias:
            self.a(f"s_sub_u32 s{r}, s{p}, {bias}"); self.a(f"s_subb_u32 s{r+1}, s{p+1}, 0")
        else:
            self.a(f"s_mov_b32 s{r}, s{p}"); self.a(f"s_mov_b32 s{r+1}, s{p+1}")
        self.a(f"s_mov_b32 s{r+2}, {n+bias}"); self.a(f"s_mov_b32 s{r+3}, 0x20000")
    def poll(self, l):
        self.vmop(f"buffer_load_dwordx4 {vr(RX,4)}, v{vE}, {sr(sE,4)}, s{sSL} offen sc1", f"poll{l}")
    def send(self, l, u=None):
        a = self.a; u = u if u is not None else f"{self.X}{l}"
        a(f"s_xor_b32 s{sPTMP}, s{sSL}, 512")
        for k in range(4): a(f"v_cvt_pk_bf16_f32 v{SP+k}, v{ACC1+2*k}, v{ACC1+2*k+1}")
        for k in range(4): a(f"v_and_or_b32 v{SP+k}, v{SP+k}, -2, s{sTAG}")
        if l == 0: self.handshake()
        self.stamp(f"snd{u}")
        a(f"s_cmp_eq_u32 s{sMODE}, 0"); a(f"s_cbranch_scc1 L_ss{u}")
        self.vmop(f"buffer_store_dwordx4 {vr(SP,4)}, v{vE}, {sr(sE,4)}, s{sPTMP} offen", "st")
        self.lab(f"L_sd{u}")
        self.xl(f"L_ss{u}")
        self.x(f"buffer_store_dwordx4 {vr(SP,4)}, v{vE}, {sr(sE,4)}, s{sPTMP} offen sc1")
        self.x("s_nop 1"); self.x(f"s_branch L_sd{u}")
    def chk_ops(self, l):
        R = RX; t0 = vT[3]
        return [f"v_xor_b32 v{t0}, s{sTAG}, v{R}"] + [f"v_bitop3_b32 v{t0}, v{R+k}, v{t0}, s{sTAG} bitop3:0xde" for k in (1, 2, 3)] + \
               [f"v_and_b32 v{t0}, 1, v{t0}", f"v_cmp_ne_u32 vcc, 0, v{t0}"]
    def next_msg(self):
        self.a(f"s_xor_b32 s{sSL}, s{sSL}, 16384"); self.a(f"s_lshr_b32 s{sTS}, s{sTS}, 1"); self.a(f"s_and_b32 s{sTAG}, s{sTS}, 1")
    def check_post(self, l, d=None):
        u = f"{self.X}{l}"; x = self.x; a = self.a
        self.wvm(f"poll{l}")
        self.stamp(f"chk{u}")
        if self.opts.get("dbgcnt"): a(f"s_mov_b32 s{sCNT}, 0")
        for s in self.chk_ops(l): a(s)
        a(f"s_cbranch_vccnz L_rt{u}")
        self.lab(f"L_got{u}")
        self.stamp(f"got{u}")
        if self.opts.get("dbgcnt"): self.rec(f"cnt{l}", f"s{sCNT}")
        self.xl(f"L_rt{u}")
        x(f"s_mov_b32 s{sCNT}, 0")
        self.xl(f"L_rl{u}")
        x(f"buffer_load_dwordx4 {vr(RX,4)}, v{vE}, {sr(sE,4)}, s{sSL} offen sc1")
        if "retrydelay" in self.opts: x("s_add_u32 s96, s96, 1")
        x(f"s_add_u32 s{sCNT}, s{sCNT}, 1"); x(f"s_cmp_gt_u32 s{sCNT}, 0x200000")
        x("s_waitcnt vmcnt(0)")
        x(f"s_cbranch_scc1 L_got{u}")
        for s in self.chk_ops(l): x(s)
        x(f"s_cbranch_vccnz L_rl{u}")
        x(f"s_branch L_got{u}")
        ops = []
        for h in range(2):
            ops += self.unpack(T4, RX+2*h, 2)
            if self.opts.get("pkadd", 0):
                for k in range(2): ops.append(lambda k=k, h=h: a(f"v_pk_add_f32 {vr(T4+2*k,2)}, {vr(T4+2*k,2)}, {vr(ACC1+4*h+2*k,2)}"))
            else:
                for k in range(4): ops.append(lambda k=k, h=h: a(f"v_add_f32 v{T4+k}, v{T4+k}, v{ACC1+4*h+k}"))
            for k in range(2): ops.append(lambda k=k, h=h: a(f"v_cvt_pk_bf16_f32 v{HP+2*h+k}, v{T4+2*k}, v{T4+2*k+1}"))
        ops.append(lambda: self.lgop(f"ds_write_b128 v{vHW}, {vr(HP,4)}", "hw"))
        ops.append(self.next_msg)
        if d is None:
            self.run(ops); self.bias_rd(l); return
        d = list(d); st = self.opts.get("vper", 10)
        while ops:
            self.run(ops[:st]); ops = ops[st:]
            if ops and d: d.pop(0)()
        self.run(d)
    def x_reads(self):
        return [lambda ks=ks: self.lgop(f"ds_read_b128 {ar(aX+4*(ks-2),4)}, v{vXR[ks>>1]} offset:{(ks&1)*1024}", f"x{ks}") for ks in range(2, 8)]
    def h_reads(self):
        for kr in range(1, 4):
            self.lgop(f"ds_read_b128 {ar(aH+4*(kr-1),4)}, v{vHR[kr]}", f"h{kr}")

    def g2_phase(self, l, early=None, mid=None, late=None):
        early = list(early or []); mid = list(mid or []); late = list(late or [])
        def take(q): return [q[0:1], q[1:2]]
        self.h_reads()
        self.mf2(0, 0, take(early)); self.mf2(1, 0, take(early[2:]))
        self.wlg("h1"); self.mf2(0, 1, take(early[4:]))
        self.wlg("h2"); self.mf2(0, 2, take(early[6:] + mid))
        self.wlg("h3"); self.mf2(0, 3, take(mid[2:]))
        self.flush()
        e0 = self.epi(0, l); e1 = self.epi(1, l, pk=self.opts.get("pkfma", 1))
        u = f"{self.X}{l}"
        self.stamp(f"g2a{u}")
        if self.opts.get("e0mix", 1):
            self.mf2(1, 1, [[], late[0:4]])
            self.mf2(1, 2, [[], e0[0:3]])
            self.stamp(f"g2b{u}")
            self.mf2(1, 3, [e0[3:6], e0[6:-1]])
        else:
            self.mf2(1, 1); self.mf2(1, 2, [late[0:2], late[2:4]])
            self.stamp(f"g2b{u}")
            self.mf2(1, 3, [e0[0:2], e0[2:-1]])
        self.stamp(f"g2c{u}")
        e0[-1]()
        self.stamp(f"g2d{u}")
        self.run(e1[:-1])
        self.stamp(f"g2e{u}")
        e1[-1]()
        self.stamp(f"g2f{u}")
    def g1_phase(self, l, jitV=False, extra=None):
        xr = self.x_reads(); extra = list(extra or [])
        if jitV:
            rv = self.rdV(2) + self.rdV(3)
            ev = self.opts.get("earlyv", 8)
            pre = (self.rdV(0) + self.rdV(1))[ev:]
            self.run(pre[:4]); self.run(xr[0:2]); self.run(pre[4:])
            q = [xr[2], rv[0], rv[1], xr[3], rv[2], rv[3], xr[4], rv[4], rv[5], xr[5], rv[6], rv[7]]
            for ks in range(8):
                self.wlg(f"rV{ks>>1}_{ks&1}")
                if ks >= 2: self.wlg(f"x{ks}")
                self.mf1(ks, [q[0:2], q[2:3]]); q = q[3:]
        else:
            self.run(xr)
            for ks in range(8):
                if ks >= 2: self.wlg(f"x{ks}")
                self.mf1(ks, [extra[0:1], extra[1:2]]); extra = extra[2:]
            self.run(extra)
        self.send(l)
        self.run(self.unpack(XF, PK, 8))

    def prologue(self):
        a = self.a; T = [X0F + i for i in range(10)]
        a(f"s_load_dwordx8 {sr(sKA,8)}, s[0:1], 0")
        a(f"s_load_dwordx4 {sr(sKA+8,4)}, s[0:1], 32")
        a(f"s_load_dwordx2 {sr(sKA+12,2)}, s[0:1], 48")
        a("s_cmp_ge_u32 s2, 256"); a("s_cbranch_scc1 L_end")
        self.stamp("start"); self.stamp("rt0")
        a(f"v_lshrrev_b32 v{T[0]}, 6, v0"); a(f"v_and_b32 v{vLANE}, 63, v0")
        a(f"s_lshr_b32 s{sT[0]}, s2, 3")
        a(f"v_readfirstlane_b32 s{sWV}, v{T[0]}")
        a(f"s_lshl_b32 s{sT[0]}, s{sT[0]}, 3"); a(f"s_add_u32 s{sT[6]}, s{sT[0]}, s{sWV}")
        if self.opts.get("codepf", 1):
            a(f"s_getpc_b64 {sr(sX0,2)}")
            a(f"s_and_b32 s{sX0}, s{sX0}, 0xffffff00")
            a(f"s_lshl_b32 s{sT[1]}, s{sT[6]}, 7"); a(f"v_mov_b32 v{T[1]}, s{sT[1]}")
            a(f"s_cmp_ge_u32 s{sT[1]}, CODE_BYTES"); a("s_cbranch_scc1 L_nocpf")
            a("s_mov_b64 exec, 1")
            a(f"global_load_dword v{vJ}, v{T[1]}, {sr(sX0,2)}")
            a("s_mov_b64 exec, -1")
            self.lab("L_nocpf")
        a(f"s_and_b32 s{sWS}, s{sWV}, 3"); a(f"s_lshr_b32 s{sXH}, s{sWV}, 2")
        a(f"v_lshrrev_b32 v{T[6]}, 2, v{vLANE}"); a(f"v_and_b32 v{T[7]}, 3, v{vLANE}")
        a(f"v_lshlrev_b32 v{T[9]}, 7, v{T[7]}"); a(f"v_lshl_add_u32 v{vPF}, v{T[6]}, 17, v{T[9]}")
        a(f"s_lshl_b32 s{sT[6]}, s{sT[6]}, 9"); a(f"s_add_u32 s{sT[6]}, s{sT[6]}, 3072")
        a(f"s_bfe_u32 s{sHF}, s2, 0x10003")
        a(f"s_lshr_b32 s{sT[0]}, s2, 4"); a(f"s_lshl_b32 s{sT[0]}, s{sT[0]}, 3"); a(f"s_and_b32 s{sRB}, s2, 7"); a(f"s_or_b32 s{sRB}, s{sRB}, s{sT[0]}")
        a(f"s_lshl_b32 s{sLB}, s{sWS}, 15")
        a(f"v_lshrrev_b32 v{T[0]}, 4, v{vLANE}")
        a(f"v_lshrrev_b32 v{T[1]}, 3, v{vLANE}"); a(f"v_and_b32 v{T[2]}, 6, v{T[1]}"); a(f"v_xor_b32 v{T[2]}, v{T[2]}, v{vLANE}")
        a(f"v_and_b32 v{T[2]}, 7, v{T[2]}"); a(f"v_lshlrev_b32 v{T[2]}, 4, v{T[2]}")
        a(f"v_and_b32 v{T[3]}, 4, v{T[1]}"); a(f"v_add_u32 v{T[1]}, v{T[1]}, v{T[3]}")
        a(f"v_lshl_add_u32 v{T[3]}, v{T[1]}, 10, v{T[2]}"); a(f"v_lshl_add_u32 v{T[4]}, v{T[1]}, 8, v{T[2]}")
        for j in range(4):
            a(f"v_add_u32 v{vV[j]}, {((j&1)*16 + (j>>1)*4)*1024 - 1024*j + 3072}, v{T[3]}")
        a(f"s_lshl_b32 s{sT[2]}, s{sHF}, 9"); a(f"s_add_u32 s{sT[3]}, s{sLB}, s{sT[2]}")
        a(f"s_lshl_b32 s{sT[4]}, s{sRB}, 15"); a(f"s_add_u32 s{sT[4]}, s{sT[4]}, s{sT[2]}")
        a(f"s_lshl_b32 s{sT[5]}, s{sXH}, 12"); a(f"s_add_u32 s{sT[4]}, s{sT[4]}, s{sT[5]}")
        a(f"s_lshl_b32 s{sT[5]}, s{sWS}, 7"); a(f"s_add_u32 s{sT[7]}, s{sT[4]}, s{sT[5]}")
        a(f"s_lshr_b32 s{sT[5]}, s{sWS}, 1"); a(f"s_lshl_b32 s{sT[5]}, s{sT[5]}, 13"); a(f"s_add_u32 s{sT[4]}, s{sT[4]}, s{sT[5]}")
        a(f"s_and_b32 s{sT[5]}, s{sWS}, 1"); a(f"s_lshl_b32 s{sT[5]}, s{sT[5]}, 11"); a(f"s_add_u32 s{sMY[0]}, s{sT[4]}, s{sT[5]}")
        a(f"s_add_u32 s{sMY[1]}, s{sMY[0]}, 16384")
        for g in range(4):
            a(f"s_xor_b32 s{sT[4]}, s{sWS}, {g}"); a(f"s_lshl_b32 s{sT[4]}, s{sT[4]}, 7"); a(f"s_add_u32 s{sVG[g]}, s{sT[3]}, s{sT[4]}")
        a(f"v_lshrrev_b32 v{T[8]}, 5, v{vLANE}"); a(f"v_and_b32 v{vE}, 31, v{vLANE}"); a(f"v_lshlrev_b32 v{vE}, 4, v{vE}")
        a(f"v_lshl_add_u32 v{vE}, v{T[8]}, 10, v{vE}")
        for r in range(4): a(f"v_mov_b32 v{TM+r}, 0")
        a(f"v_mov_b32 v{vT[2]}, s2"); a(f"v_xor_b32 v{vT[2]}, 8, v{vT[2]}")
        a(f"s_lshl_b32 s{sT[5]}, s{sWS}, 12"); a(f"s_lshl_b32 s{sT[4]}, s{sXH}, 11"); a(f"s_add_u32 s{sT[5]}, s{sT[5]}, s{sT[4]}")
        a(f"s_add_u32 m0, s{sT[5]}, {XB}")
        a(f"v_lshrrev_b32 v{T[6]}, 3, v{vLANE}"); a(f"v_and_b32 v{T[7]}, 7, v{vLANE}")
        a(f"v_lshlrev_b32 v{T[8]}, 4, v{T[7]}"); a(f"v_lshl_add_u32 v{T[8]}, v{T[6]}, 10, v{T[8]}")
        a(f"s_lshl_b32 s{sT[5]}, s{sWS}, 7"); a(f"s_add_u32 s{sT[5]}, s{sT[5]}, s{sT[2]}"); a(f"s_mul_i32 s{sT[3]}, s{sXH}, 3072"); a(f"s_add_u32 s{sT[5]}, s{sT[5]}, s{sT[3]}")
        a("s_waitcnt lgkmcnt(0)")
        self.stamp("karg")
        pf = self.opts.get("pf", 1)
        def pfl(lo):
            if not pf or not lo: return
            a(f"s_mov_b64 exec, {lo}")
            self.vmop(f"buffer_load_dword v{vJ}, v{vPF}, {sr(sV,4)}, s{sT[6]} offen", "pf")
            self.vmop(f"buffer_load_dword v{vJ}, v{vPF}, {sr(sU,4)}, s{sT[6]} offen", "pf")
            a("s_mov_b64 exec, -1")
        self.pfl = pfl
        masks = [int(m, 16) for m in str(self.opts.get("pfm", "f,0")).split(",")]
        self.pfmasks = masks
        self.srd(sX0, sKA+0, 4096*1024, 3072)
        self.vmop(f"buffer_load_dwordx4 v{vV[0]}, {sr(sX0,4)}, s{sT[7]} offen lds", "x0")
        self.vmop(f"buffer_load_dwordx4 v{vV[1]}, {sr(sX0,4)}, s{sT[7]} offen offset:1024 lds", "x0")
        self.srd(sV, sKA+4, 6*131072, 3072)
        self.srd(sU, sKA+2, 6*131072, 3072)
        pfl(masks[0])
        self.srd(sB, sKA+6, 6*1024)
        self.srd(sD, sKA+10, 256)
        a("s_mov_b64 exec, 0xffffff")
        self.vmop(f"buffer_load_dwordx4 {vr(TM+4,4)}, v{T[8]}, {sr(sB,4)}, s{sT[5]} offen", "bias")
        a("s_mov_b64 exec, 1")
        self.vmop(f"buffer_load_ubyte v{vJ}, v{vT[2]}, {sr(sD,4)}, 0 offen", "touch")
        a("s_mov_b64 exec, -1")
        self.srd(sO, sKA+8, 4096*1024)
        bt = self.opts.get("boxtouch", 6)
        a(f"v_and_b32 v{RX+1}, 3, v{vLANE}"); a(f"v_lshlrev_b32 v{RX+1}, 7, v{RX+1}")
        a(f"v_bfe_u32 v{RX}, v{vLANE}, 2, 1"); a(f"v_lshl_add_u32 v{RX+1}, v{RX}, 10, v{RX+1}")
        a(f"v_bfe_u32 v{RX}, v{vLANE}, 3, 1"); a(f"v_lshl_add_u32 v{RX+1}, v{RX}, {12 if bt == 5 else 14}, v{RX+1}")
        if bt == 5: a(f"v_bfe_u32 v{RX}, v{vLANE}, 4, 1"); a(f"v_lshl_add_u32 v{RX+1}, v{RX}, 14, v{RX+1}")
        def box(m):
            a(f"s_mov_b64 exec, {m}")
            self.vmop(f"buffer_load_dword v{vJ}, v{RX+1}, {sr(sO,4)}, s{sMY[0]} offen sc1", "bt")
            a("s_mov_b64 exec, -1")
        self.box = box
        if bt == 1: box(0xffff)
        if bt == 2: box(0xff)
        if self.opts.get("clrearly", 1):
            self.vmop(f"buffer_store_dwordx4 {vr(TM,4)}, v{vE}, {sr(sO,4)}, s{sMY[0]} offen", "clr")
        gm = int(str(self.opts.get("gm", "3e")), 16)
        def gpf():
            if not gm: return
            a(f"s_lshl_b32 s{sT[0]}, s2, 2"); a(f"s_add_u32 s{sT[0]}, s{sT[0]}, s{sWS}"); a(f"s_lshl_b32 s{sT[0]}, s{sT[0]}, 7"); a(f"s_add_u32 s{sT[0]}, s{sT[0]}, 3072")
            a(f"v_lshlrev_b32 v{RX+2}, 17, v{vLANE}")
            a(f"s_mov_b64 exec, {gm}")
            a(f"s_cmp_lg_u32 s{sXH}, 0"); a("s_cbranch_scc1 L_gU")
            a(f"buffer_load_dword v{vJ}, v{RX+2}, {sr(sV,4)}, s{sT[0]} offen"); a("s_branch L_gD")
            self.lab("L_gU")
            self.vmop(f"buffer_load_dword v{vJ}, v{RX+2}, {sr(sU,4)}, s{sT[0]} offen", "gpf")
            self.lab("L_gD")
            a("s_mov_b64 exec, -1")
        if self.opts.get("gpos", 0) == 0: gpf()
        self.stamp("i_x0")
        a("s_barrier")
        a(f"s_lshl_b32 s{sT[4]}, s{sXH}, 13"); a(f"s_add_u32 s{sT[4]}, s{sT[4]}, s{sLB}")
        a(f"s_cmp_eq_u32 s{sXH}, 0")
        a(f"s_cselect_b32 s{sT[0]}, s{sVG[0]}, s{sVG[2]}"); a(f"s_cselect_b32 s{sT[1]}, s{sVG[1]}, s{sVG[3]}")
        def v0grp(k):
            a(f"s_add_u32 m0, s{sT[4]}, {k*4096}"); a("s_nop 0")
            for j in range(4):
                self.vmop(f"buffer_load_dwordx4 v{vV[j]}, {sr(sV,4)}, s{sT[k]} offen offset:{1024*j} lds", "V0")
                if (j & 1) and self.opts.get("pgap", 0): self.vmop(f"buffer_load_dword v{vJ}, off, {sr(sB,4)}, 0", "gap")
        v0grp(0)
        self.stamp("i_v0a")
        self.srd(sW, sKA+12, 8 << 20)
        self.srd(sE, sKA+8, 4096*1024)
        if self.opts.get("stag"):
            a(f"v_mov_b32 v{RX+2}, s{sSTAMP}"); a(f"s_lshl_b32 s90, s2, 2"); a("s_add_u32 s90, s90, 0x700000"); a(f"v_mov_b32 v{RX+3}, 0")
            a("s_mov_b64 exec, 1"); a(f"buffer_store_dword v{RX+2}, v{RX+3}, {sr(sW,4)}, s90 offen sc1"); a("s_mov_b64 exec, -1")
        a(f"s_getreg_b32 s{sXCC}, hwreg(HW_REG_XCC_ID)"); a(f"s_and_b32 s{sXCC}, s{sXCC}, 15"); a(f"s_or_b32 s{sXCC}, s{sXCC}, 16")
        a(f"s_and_b32 s{sT[0]}, s{sWS}, 1"); a(f"s_lshl_b32 s{sT[0]}, s{sT[0]}, 6"); a(f"v_xor_b32 v{T[4]}, s{sT[0]}, v{T[4]}")
        for j in range(4):
            a(f"v_add_u32 v{vU[j]}, {((j&1)*16 + (j>>1)*4)*256 - 1024*j + 3072}, v{T[4]}")
        a(f"s_lshl_b32 s{sT[0]}, s{sHF}, 16"); a(f"s_lshl_b32 s{sT[5]}, s{sWS}, 14"); a(f"s_add_u32 s{sT[0]}, s{sT[0]}, s{sT[5]}")
        for g in range(4):
            pp, P = g >> 1, g & 1
            a(f"s_xor_b32 s{sT[5]}, s{sWS}, {2*pp}"); a(f"s_and_b32 s{sT[5]}, s{sT[5]}, 2"); a(f"s_lshl_b32 s{sT[5]}, s{sT[5]}, 6")
            a(f"s_add_u32 s{sT[5]}, s{sT[5]}, {P*8192}"); a(f"s_add_u32 s{sUG[g]}, s{sT[0]}, s{sT[5]}")
        a(f"v_and_b32 v{T[1]}, 6, v{vLANE}"); a(f"v_xor_b32 v{T[2]}, v{T[1]}, v{T[0]}"); a(f"v_lshlrev_b32 v{T[2]}, 4, v{T[2]}")
        a(f"v_and_b32 v{T[1]}, 15, v{vLANE}"); a(f"v_lshl_add_u32 v{T[2]}, v{T[1]}, 7, v{T[2]}")
        a(f"v_add_u32 v{vA[0]}, s{sLB}, v{T[2]}"); a(f"v_xor_b32 v{vA[1]}, 64, v{vA[0]}")
        a(f"s_lshl_b32 s{sT[5]}, s{sWS}, 12"); a(f"s_lshl_b32 s{sT[0]}, s{sXH}, 11"); a(f"s_add_u32 s{sT[5]}, s{sT[5]}, s{sT[0]}"); a(f"s_add_u32 s{sT[5]}, s{sT[5]}, {XB}")
        a(f"v_add_u32 v{T[3]}, s{sT[5]}, v{T[2]}"); a(f"v_xor_b32 v{T[5]}, 64, v{T[3]}")
        a(f"v_lshlrev_b32 v{T[1]}, 4, v{vLANE}")
        a(f"v_add_u32 v{vXW}, s{sT[5]}, v{T[1]}")
        for g in range(1, 4): a(f"v_xor_b32 v{vXR[g]}, {g*4096}, v{vXW}")
        a(f"s_lshl_b32 s{sT[5]}, s{sWV}, 10"); a(f"s_add_u32 s{sT[5]}, s{sT[5]}, {HB}")
        a(f"v_add_u32 v{vHW}, s{sT[5]}, v{T[1]}")
        for g in range(1, 4): a(f"v_xor_b32 v{vHR[g]}, {g*1024}, v{vHW}")
        a(f"s_mul_i32 s{sT[5]}, s{sWS}, 1536"); a(f"s_add_u32 s{sT[5]}, s{sT[5]}, {BIASB}")
        a(f"v_lshlrev_b32 v{vBI}, 5, v{T[0]}"); a(f"v_add_u32 v{vBI}, s{sT[5]}, v{vBI}")
        a(f"s_mul_i32 s{sT[0]}, s{sXH}, 768"); a(f"s_add_u32 s{sT[5]}, s{sT[5]}, s{sT[0]}")
        a(f"v_lshlrev_b32 v{T[7]}, 5, v{T[7]}"); a(f"v_lshl_add_u32 v{T[7]}, v{T[6]}, 8, v{T[7]}"); a(f"v_add_u32 v{vT[0]}, s{sT[5]}, v{T[7]}")
        def xproc():
            self.wvm("x0")
            self.stamp("x0")
            for P in range(2):
                self.lgop(f"ds_read_b128 {vr(PK+4*P,4)}, v{T[5] if P else T[3]}", "x0r")
            self.wvm("bias")
            self.run(self.unpack(TM+8, TM+4, 4))
            self.wlg("x0r")
            for P in range(2):
                self.lgop(f"ds_write_b128 v{vXW}, {vr(PK+4*P,4)} offset:{P*1024}", "xw")
            a("s_mov_b64 exec, 0xffffff")
            self.lgop(f"ds_write_b128 v{vT[0]}, {vr(TM+8,4)}", "bw")
            self.lgop(f"ds_write_b128 v{vT[0]}, {vr(TM+12,4)} offset:16", "bw")
            a("s_mov_b64 exec, -1")
            self.run(self.unpack(X0F, PK, 8))
        xp = self.opts.get("xproc", 0)
        if xp == 0: xproc()
        v0grp(1)
        self.stamp("i_v0b")
        if not self.opts.get("clrearly", 1):
            self.vmop(f"buffer_store_dwordx4 {vr(TM,4)}, v{vE}, {sr(sO,4)}, s{sMY[0]} offen", "clr")
        if bt == 3: box(0xffff)
        if bt == 4: box(0xff)
        pfl(masks[1])
        if self.opts.get("gpos", 0) == 1: gpf()
        if xp == 1: xproc()
        self.wvm("clr")
        if bt == 6:
            a(f"s_cmp_eq_u32 s{sXH}, 0"); a("s_cbranch_scc1 L_noU0")
            n0 = len(self.vm)
            self.run(self.dma("U", 0, 0, "DDDD") + self.dma("U", 0, 1, "DDDD"))
            self.u0tags = self.vm[n0:]; del self.vm[n0:]
            self.lab("L_noU0")
        self.wvm("clr")
        a("s_barrier")
        self.stamp("issued")
        a(f"s_cmp_lg_u32 s{sWV}, 0"); a("s_cbranch_scc0 L_flag")
        self.lab("L_noflag")
        self.n_issued = len(self.vm)
        self.vmop(f"buffer_store_dwordx4 {vr(TM,4)}, v{vE}, {sr(sO,4)}, s{sMY[1]} offen", "clr1")
        if bt == 6: box(0xffff)
        if self.opts.get("gpos", 0) == 2: gpf()
        if "retrydelay" in self.opts: a("s_mov_b32 s96, 0")
        a(f"s_mov_b32 s{sSL}, s{sMY[0]}"); a(f"s_mov_b32 s{sTS}, {sum(t << i for i, t in enumerate(TAGS))}"); a(f"s_mov_b32 s{sTAG}, {TAGS[0]}")
        a(f"s_xor_b32 s{sT[3]}, s2, 8"); a(f"s_and_b32 s{sT[2]}, s{sT[3]}, 0xfc"); a(f"s_and_b32 s{sT[3]}, s{sT[3]}, 3"); a(f"s_lshl_b32 s{sT[3]}, s{sT[3]}, 3")
        a(f"s_cmp_lg_u32 s{sXH}, 0"); a("s_cbranch_scc1 L_progB")
        self.xl("L_flag")
        self.x(f"v_mov_b32 v{RX}, s2"); self.x(f"v_mov_b32 v{vT[1]}, s{sXCC}"); self.x("s_mov_b64 exec, 1")
        self.x(f"buffer_store_byte v{vT[1]}, v{RX}, {sr(sD,4)}, 0 offen"); self.x("s_mov_b64 exec, -1"); self.x("s_branch L_noflag")

    def late(self, step):
        a = self.a
        if self.opts.get("boxtouch", 6) == 5 and step == 0:
            a("s_mov_b64 exec, 0xffffffff")
            self.vmop(f"buffer_load_dword v{vJ}, v{RX+1}, {sr(sO,4)}, s{sMY[0]} offen sc1", "bt")
            a("s_mov_b64 exec, -1")
        lm = [int(m, 16) for m in str(self.opts.get("lm", "0")).split(",")]
        if step < len(lm) and lm[step]:
            a(f"s_mov_b64 exec, {lm[step]}")
            for off in (0, 2048):
                self.vmop(f"buffer_load_dword v{vJ}, v{vPF}, {sr(sV,4)}, s{sT[6]} offen offset:{off}", "pf")
                self.vmop(f"buffer_load_dword v{vJ}, v{vPF}, {sr(sU,4)}, s{sT[6]} offen offset:{off}", "pf")
            a("s_mov_b64 exec, -1")
    def clr1_flag(self):
        self.a(f"s_load_dword s{sT[1]}, {sr(sKA+10,2)}, s{sT[2]}")
    def bias_ops(self, l):
        return [lambda k=k: self.lgop(f"ds_read_b128 {vr(ACC2+4*k,4)}, v{vBI} offset:{(0 if self.dyn else l*256) + (k>>1)*128 + (k&1)*16}", "bias") for k in range(4)]
    def light1(self, kind, l, rd, lp, n1=None):
        d = self.dma(kind, l, 0) + self.dma(kind, l, 1)
        n1 = n1 or self.opts.get("n1", 8)
        self.carry = d[n1:]; d = d[:n1]
        pp = self.opts.get("pollat", 2); r0 = self.opts.get("rd1at", 0)
        rd = list(rd) + self.bias_ops(lp)
        per = self.opts.get("rd1per", 4)
        for k in range(8):
            if k == pp: self.poll(lp)
            if k < len(d): d[k]()
            if r0 <= k and (k - r0) % self.opts.get("dper", 1) == 0: self.run(rd[:per]); rd = rd[per:]
            self.stamp(f"l1{self.X}{lp}_{k}")
        if pp >= 8: self.poll(lp)
    def light2(self, kind, l, rd, lp):
        self.run(self.carry)
        d = self.dma(kind, l, 2) + self.dma(kind, l, 3) + [lambda: None] * 8
        p2 = self.opts.get("pre2", 3); rd = list(rd)
        if self.opts.get("l2mode", 0) == 1 or l >= L:
            m2 = self.opts.get("mid2", 1)
            self.run(d[:p2])
            self.check_post(lp, d[p2:p2+m2])
            self.run(rd[:4]); d[p2+m2](); self.run(rd[4:])
            self.wvm(f"{kind}{l}a")
            self.run(d[p2+m2+1:8])
            return
        self.run(d[:p2])
        self.run(rd[:4]); d[p2](); self.run(rd[4:]); d[p2+1]()
        self.stamp(f"pd{self.X}{lp}")
        self.check_post(lp, d[p2+2:p2+3])
        self.stamp(f"po{self.X}{lp}")
        self.wvm(f"{kind}{l}a")
        self.run(d[p2+3:8])
        self.stamp(f"en{self.X}{lp}")
    def progA(self):
        a = self.a
        self.wvm("V0"); self.stamp("v0l"); self.wvm("clr")
        self.bar("b0")
        self.prio(2)
        xr = self.x_reads(); rv = [f for g in range(4) for f in self.rdV(g)]
        self.run(rv[0:4]); self.run(xr[0:2]); self.run(rv[4:8]); self.run(xr[2:4])
        q = rv[8:12] + xr[4:6] + rv[12:16]
        for ks in range(8):
            self.wlg(f"rV{ks>>1}_{ks&1}")
            if ks >= 2: self.wlg(f"x{ks}")
            self.mf1(ks, [q[0:1], q[1:2]]); q = q[2:]
            if ks == self.opts.get("flagat", 2): self.clr1_flag()
            if ks == self.opts.get("lateat", 3): self.late(0)
        self.send(0)
        self.run(self.unpack(XF, PK, 8))
        self.prio(0)
        self.bar("b1")
        self.light1("V", 1, self.rdU(0) + self.rdU(1), 0, 8)
        self.bar("b1x")
        self.run(self.rdU(2))
        self.check_post(0, [])
        self.run(self.rdU(3))
        self.wvm("V1a")
        self.bar("b2")
        self.a(f"s_mov_b32 s{sLOFF}, {2*131072}"); self.a(f"v_add_u32 v{vBI}, 256, v{vBI}")
        self.rounds(self.roundA)
    def rounds(self, body):
        self.dyn = True
        if not self.opts.get("loop", 1):
            for l in range(L): body(l, None)
            return
        u = self.X
        self.a(f"s_mov_b32 s{sIT}, 4")
        keep = self.o; self.o = []; self.emit_ool = False
        body(0, None)
        self.o = keep; self.emit_ool = True
        if self.opts.get("loopalign", 1): self.o.append("    .p2align 6")
        self.lab(f"L_loop{u}")
        body(1, f"L_loop{u}")
        keep = self.o; self.o = []; self.emit_ool = False
        body(2, None); body(3, None)
        self.o = keep; self.emit_ool = True
        body(4, None); body(5, None)
    def adv(self, back):
        self.a(f"s_add_u32 s{sLOFF}, s{sLOFF}, 131072"); self.a(f"v_add_u32 v{vBI}, 256, v{vBI}")
        if back: self.a(f"s_sub_u32 s{sIT}, s{sIT}, 1"); self.a(f"s_cmp_lg_u32 s{sIT}, 0")
    def roundA(self, l, back):
        last = l == L-1
        self.c(f"==== A round {l} phase 0: G2 ====")
        self.prio(2)
        ev = self.opts.get("earlyv", 8)
        self.g2_phase(l, early=(None if last else (self.rdV(0) + self.rdV(1))[:ev]))
        if last:
            self.final_store(bar=True); return
        self.wvm(f"V{l+1}b")
        self.stamp(f"g2g0{l}")
        self.bar(f"A0{l}")
        self.c(f"==== A round {l} phase 1: G1 ====")
        self.g1_phase(l+1, jitV=True)
        self.prio(0)
        self.bar(f"A1{l}")
        self.c(f"==== A round {l} phase 2 ====")
        self.light1("V", l+2, self.rdU(0) + self.rdU(1), l+1)
        self.bar(f"A2{l}")
        self.c(f"==== A round {l} phase 3 ====")
        self.light2("V", l+2, self.rdU(2) + self.rdU(3), l+1)
        if l == L-2: self.final_addr()
        self.wlg0()
        self.adv(back)
        self.bar(f"A3{l}")
        if back: self.a(f"s_cbranch_scc1 {back}")

    def progB(self):
        self.lab("L_progB")
        if self.opts.get("boxtouch", 6) == 6:
            self.vm[self.n_issued:self.n_issued] = self.u0tags
        else:
            self.run(self.dma("U", 0, 0) + self.dma("U", 0, 1))
        self.wvm("V0"); self.stamp("v0l"); self.wvm("clr")
        self.bar("b0")
        d = self.dma("U", 0, 2) + self.dma("U", 0, 3)
        rv = [f for g in range(4) for f in self.rdV(g)]
        self.run(d[:4])
        for k in range(4):
            self.run(rv[4*k:4*k+4]); d[4+k]()
        self.wvm("U0a")
        self.bar("b1")
        self.prio(2)
        self.clr1_flag()
        self.g1_phase(0, extra=self.rdU(0) + self.rdU(1))
        self.prio(0)
        self.wvm("U0b")
        self.bar("b1x")
        self.mix(self.dma("V", 1, 2) + self.dma("V", 1, 3), self.rdU(2) + self.rdU(3))
        self.bar("b2")
        self.a(f"s_mov_b32 s{sLOFF}, 131072")
        self.rounds(self.roundB)
    def roundB(self, l, back):
        last = l == L-1
        self.c(f"==== B round {l} phase 0 ====")
        if not last:
            n0 = len(self.vm)
            self.light1("U", l+1, self.rdV(0) + self.rdV(1), l)
            self.a(f"s_waitcnt vmcnt({len(self.vm) - n0})"); self.vmdone = max(self.vmdone, n0)
            self.bar(f"B0{l}")
            self.c(f"==== B round {l} phase 1 ====")
            self.light2("U", l+1, self.rdV(2) + self.rdV(3), l)
        else:
            self.poll(l); self.bias_rd(l); self.check_post(l, [])
        self.bar(f"B1{l}")
        self.c(f"==== B round {l} phase 2: G2 ====")
        self.prio(2)
        if last:
            self.g2_phase(l); self.final_store(); return
        self.g2_phase(l, mid=self.rdU(0), late=self.rdU(1))
        self.wvm(f"U{l+1}b")
        self.bar(f"B2{l}")
        self.c(f"==== B round {l} phase 3: G1 ====")
        self.g1_phase(l+1, extra=self.rdU(2) + self.rdU(3))
        if l == L-2: self.final_addr()
        self.prio(0)
        self.wlg0()
        self.adv(back)
        self.bar(f"B3{l}")
        if back: self.a(f"s_cbranch_scc1 {back}")

    def final_addr(self):
        a = self.a; t = [RX, RX+1, RX+2]
        a(f"v_and_b32 v{t[0]}, 15, v{vLANE}"); a(f"v_lshrrev_b32 v{t[1]}, 4, v{vLANE}")
        a(f"v_and_b32 v{t[2]}, 7, v{t[0]}"); a(f"v_xor_b32 v{t[2]}, v{t[2]}, v{t[1]}"); a(f"v_lshlrev_b32 v{t[2]}, 4, v{t[2]}")
        a(f"v_lshl_add_u32 v{t[2]}, v{t[0]}, 7, v{t[2]}")
        a(f"v_and_b32 v{vT[0]}, 0xfffff800, v{vXW}"); a(f"v_add_u32 v{vT[0]}, v{vT[0]}, v{t[2]}"); a(f"v_xor_b32 v{vT[1]}, 64, v{vT[0]}")
        a(f"v_lshrrev_b32 v{t[0]}, 3, v{vLANE}"); a(f"v_xor_b32 v{t[1]}, v{t[0]}, v{vLANE}"); a(f"v_and_b32 v{t[1]}, 7, v{t[1]}")
        a(f"v_lshlrev_b32 v{t[1]}, 4, v{t[1]}")
        a(f"v_and_b32 v{t[2]}, 4, v{t[0]}"); a(f"v_add_u32 v{t[0]}, v{t[0]}, v{t[2]}")
        a(f"v_lshl_add_u32 v{vT[2]}, v{t[0]}, 10, v{t[1]}")

    def final_store(self, bar=False):
        a = self.a; D = XF
        for m in range(2):
            self.lgop(f"ds_read_b128 {vr(D+4*m,4)}, v{vXW} offset:{m*1024}", f"fo{m}")
        fl = self.opts.get("outflags", "") if self.X else self.opts.get("outflagsA", self.opts.get("outflags", ""))
        for m in range(2):
            a(f"s_add_u32 s{sT[m]}, s{sT[7]}, {m*16384}")
            self.wlg(f"fo{m}")
            self.vmop(f"buffer_store_dwordx4 {vr(D+4*m,4)}, v{vT[2]}, {sr(sO,4)}, s{sT[m]} offen {fl}", "out")
        if bar and self.opts.get("junk"):
            for m in range(4):
                a(f"s_add_u32 s{sT[2]}, s{sMY[0]}, {m*4096 if m < 2 else 16384 + (m-2)*4096}")
                a(f"buffer_store_dwordx4 {vr(D,4)}, v{vE}, {sr(sW,4)}, s{sT[2]} offen")
        if bar: a("s_barrier")
        if self.opts.get("stag"):
            u = self.X
            a("s_waitcnt vmcnt(0)")
            a(f"s_add_u32 s4, s{sKA+12}, 0x700000"); a(f"s_addc_u32 s5, s{sKA+13}, 0")
            a("s_load_dwordx8 s[84:91], s[4:5], 0"); a("s_memrealtime s[94:95]"); a("s_waitcnt lgkmcnt(0)")
            a("s_mov_b32 s92, 0")
            for i in range(8):
                a(f"s_sub_u32 s93, s{sSTAMP}, s{84+i}"); a("s_cmp_lt_u32 s93, 3000"); a("s_cselect_b32 s93, s93, 0"); a("s_max_u32 s92, s92, s93")
            self.lab(f"L_echo{u}")
            a("s_sleep 1"); a("s_memrealtime s[96:97]"); a("s_waitcnt lgkmcnt(0)"); a("s_sub_u32 s93, s96, s94")
            a("s_cmp_lt_u32 s93, s92"); a(f"s_cbranch_scc1 L_echo{u}")
        elif self.opts.get("echo"):
            u = self.X
            a("s_waitcnt vmcnt(0)"); self.stamp("fin")
            a("s_memtime s[90:91]"); a("s_waitcnt lgkmcnt(0)")
            a(f"s_sub_u32 s92, s{sSTAMP+2}, s{sSTAMP}")
            self.lab(f"L_echo{u}")
            a("s_sleep 1"); a("s_memtime s[94:95]"); a("s_waitcnt lgkmcnt(0)"); a("s_sub_u32 s93, s94, s90")
            a("s_cmp_lt_u32 s93, s92"); a(f"s_cbranch_scc1 L_echo{u}")
        elif self.prof:
            a("s_waitcnt vmcnt(0)")
            self.stamp("fin"); self.stamp("rt1")
            a("s_waitcnt lgkmcnt(0)")
            a(f"v_mov_b32 v{RX}, 0")
            for i in range(len(self.prof)): a(f"v_writelane_b32 v{RX}, s{sSTAMP+2*i}, {i}")
            a(f"s_lshl_b32 s{sT[0]}, s2, 3"); a(f"s_add_u32 s{sT[0]}, s{sT[0]}, s{sWV}"); a(f"s_lshl_b32 s{sT[0]}, s{sT[0]}, 8")
            a(f"s_add_u32 s{sT[0]}, s{sT[0]}, {6<<20}")
            a(f"v_lshlrev_b32 v{vT[0]}, 2, v{vLANE}")
            a(f"buffer_store_dword v{RX}, v{vT[0]}, {sr(sW,4)}, s{sT[0]} offen")
        if "modedelay" in self.opts:
            a(f"s_cmp_lg_u32 s{sMODE}, {self.opts['modedelay']}"); a(f"s_cbranch_scc1 L_md{self.X}")
            for i in range(5): a("s_sleep 125")
            self.lab(f"L_md{self.X}")
        if "retrydelay" in self.opts:
            self.lab(f"L_rd{self.X}")
            a("s_cmp_eq_u32 s96, 0"); a(f"s_cbranch_scc1 L_re{self.X}"); a("s_sleep 32"); a("s_sub_u32 s96, s96, 1"); a(f"s_branch L_rd{self.X}")
            self.lab(f"L_re{self.X}")
        for i in range(self.opts.get("delay", 0)): a("s_sleep 125")
        a("s_endpgm")

    def handshake(self):
        a = self.a; x = self.x; P = XF; u = self.X
        self.c("handshake: the partner's inbox is cleared; does it share this XCD?")
        a(f"s_mov_b32 s{sCNT}, 0"); a(f"s_mov_b32 s{sMODE}, 1")
        self.wvm("clr1")
        a("s_waitcnt lgkmcnt(0)"); self.lgdone = len(self.lg)
        a(f"s_lshr_b32 s{sT[0]}, s{sT[1]}, s{sT[3]}"); a(f"s_and_b32 s{sT[0]}, s{sT[0]}, 0xff")
        a(f"s_cmp_eq_u32 s{sT[0]}, s{sXCC}"); a(f"s_cbranch_scc0 L_hs_fast{u}")
        self.lab(f"L_hs_done{u}")
        self.rec("hscnt", f"s{sCNT}"); self.rec("mode", f"s{sMODE}")
        self.xl(f"L_hs_fast{u}")
        x(f"buffer_load_ubyte v{vT[1]}, v{vT[2]}, {sr(sD,4)}, 0 offen sc1")
        x("s_waitcnt vmcnt(0)")
        x(f"v_readfirstlane_b32 s{sT[0]}, v{vT[1]}")
        x(f"s_cmp_eq_u32 s{sT[0]}, s{sXCC}"); x(f"s_cbranch_scc1 L_hs_done{u}")
        x(f"s_add_u32 s{sCNT}, s{sCNT}, 1"); x(f"s_cmp_lt_u32 s{sCNT}, {self.opts.get('fastpolls', 8)}"); x(f"s_cbranch_scc1 L_hs_fast{u}")
        for r in range(4): x(f"v_mov_b32 v{P+4+r}, 0")
        for sl in range(2):
            x(f"buffer_store_dwordx4 {vr(P+4,4)}, v{vE}, {sr(sW,4)}, s{sMY[sl]} offen sc1")
        x(f"s_lshl_b32 s{sT[1]}, s2, 3"); x(f"s_add_u32 s{sT[1]}, s{sT[1]}, s{sWV}"); x(f"s_lshl_b32 s{sT[1]}, s{sT[1]}, 7")
        x(f"s_add_u32 s{sT[1]}, s{sT[1]}, {4<<20}")
        x(f"s_xor_b32 s{sT[2]}, s{sT[1]}, {8*8*128}")
        x(f"v_mov_b32 v{P+2}, 0")
        x("s_mov_b64 exec, 1")
        x(f"buffer_load_dwordx4 {vr(P+8,4)}, v{P+2}, {sr(sW,4)}, s{sT[2]} offen sc1")
        x("s_waitcnt vmcnt(0)")
        x(f"v_readfirstlane_b32 s{sT[3]}, v{P+10}")
        x(f"s_add_u32 s{sT[3]}, s{sT[3]}, 1")
        x(f"v_mov_b32 v{P+3}, s{sT[3]}")
        x(f"buffer_store_dword v{P+3}, v{P+2}, {sr(sW,4)}, s{sT[1]} offen sc1")
        x("s_waitcnt vmcnt(0)")
        x(f"s_mov_b32 s{sCNT}, 0")
        self.xl(f"L_hs_slow{u}")
        x(f"buffer_load_ubyte v{vT[1]}, v{vT[2]}, {sr(sD,4)}, 0 offen sc1")
        x(f"buffer_load_dwordx4 {vr(P+8,4)}, v{P+2}, {sr(sW,4)}, s{sT[2]} offen sc1")
        x("s_waitcnt vmcnt(0)")
        x(f"v_readfirstlane_b32 s{sT[0]}, v{vT[1]}")
        x(f"v_readfirstlane_b32 s{sT[5]}, v{P+8}")
        x(f"v_readfirstlane_b32 s{sT[4]}, v{P+10}")
        x(f"v_readfirstlane_b32 s{sMODE}, v{P+11}")
        x(f"s_cmp_eq_u32 s{sT[0]}, s{sXCC}"); x(f"s_cbranch_scc1 L_hs_same{u}")
        x(f"v_mov_b32 v{P+12}, s{sT[5]}"); x(f"v_mov_b32 v{P+13}, s{sXCC}")
        x(f"buffer_store_dwordx2 {vr(P+12,2)}, v{P+2}, {sr(sW,4)}, s{sT[1]} offen offset:8 sc1")
        x(f"s_add_u32 s{sCNT}, s{sCNT}, 1"); x(f"s_cmp_gt_u32 s{sCNT}, 0x200000"); x(f"s_cbranch_scc1 L_hs_same{u}")
        x(f"s_cmp_eq_u32 s{sT[4]}, s{sT[3]}"); x(f"s_cbranch_scc0 L_hs_slow{u}")
        x(f"s_cmp_eq_u32 s{sMODE}, s{sXCC}"); x(f"s_cbranch_scc1 L_hs_same{u}")
        x(f"s_mov_b32 s{sMODE}, 0")
        x(f"s_mov_b32 s{sE}, s{sKA+12}"); x(f"s_mov_b32 s{sE+1}, s{sKA+13}")
        x("s_mov_b64 exec, -1")
        x(f"s_branch L_hs_done{u}")
        self.xl(f"L_hs_same{u}")
        x(f"s_mov_b32 s{sMODE}, 1")
        x("s_mov_b64 exec, -1")
        x(f"s_branch L_hs_done{u}")

    def build(self):
        hdr = [f"; @launch grid=(256,1,1) block=(512,1,1) lds={LDS_BYTES}",
               '.amdgcn_target "amdgcn-amd-amdhsa--gfx950"', ".text", f".globl {KN}", ".p2align 8",
               f".type {KN},@function", f"{KN}:"]
        self.prologue()
        A = self.fork(0); A.progA()
        B = self.fork(1); B.progB()
        nb = lambda g: sum(1 for s in g.o if s.strip() == "s_barrier")
        assert nb(A) == nb(B), (nb(A), nb(B))
        assert NV + NA <= 256
        ftr = [f".set CODE_BYTES, L_end - {KN}", '.section .rodata,"a"', ".p2align 6", f".amdhsa_kernel {KN}",
               f"  .amdhsa_next_free_vgpr {NV+NA}", "  .amdhsa_next_free_sgpr 102", f"  .amdhsa_accum_offset {NV}",
               "  .amdhsa_group_segment_fixed_size 0", "  .amdhsa_kernarg_size 56", "  .amdhsa_user_sgpr_count 2",
               "  .amdhsa_user_sgpr_kernarg_segment_ptr 1", "  .amdhsa_system_sgpr_workgroup_id_x 1",
               "  .amdhsa_float_denorm_mode_32 3", ".end_amdhsa_kernel"]
        log = []
        m1, n1 = fix_hazards(self.o + A.o, log)
        m2, n2 = fix_hazards(B.o, log)
        ool, n3 = fix_hazards(self.ool)
        main = m1 + m2 + ["L_end:", "    s_endpgm"]
        wrap = lambda ls: "\n".join(hdr + ls + ool + ftr) + "\n"
        if self.opts.get("align", 1):
            main, nw, nn = align(main, wrap, self.opts.get("minrun", 99))
            sys.stderr.write(f"hazard nops {n1}+{n2}+{n3}, widened {nw}, align nops {nn}\n")
        if self.opts.get("hlog"):
            for e in log: sys.stderr.write(str(e) + "\n")
        return wrap(main)

if __name__ == "__main__":
    prof = None; opts = {}
    for x in sys.argv[1:]:
        if x.startswith("--prof="): prof = x[7:].split(",")
        elif x.startswith("--"):
            k, v = x[2:].split("="); opts[k] = int(v) if v.lstrip("-").isdigit() else v
    out = [x for x in sys.argv[1:] if not x.startswith("--")][0]
    g = Gen(prof, opts); txt = g.build()
    if prof: txt = txt + "; stamps: " + ",".join(prof) + "\n"
    open(out, "w").write(txt)
```

```python
import sys, copy
from asmlib import fix_hazards, align
KN = "standalone__cross_network_dcn_v2__recsys_kernel"
L = 6
XB = 131072; HB = 147456; BIASB = 155648; LDS_BYTES = 161792
TAGS = [1, 1, 0, 0, 1, 1]

vLANE = 1; vA = [2, 21]; vE = 3; vV = [4, 5, 6, 7]; vU = [8, 9, 10, 11]
vXW = 12; vXR = [None, 13, 14, 15]; vHW = 16; vHR = [None, 17, 18, 19]
vBI = 20; vT = [22, 23, 24, 25]; vJ = 0
ACC1 = 26; ACC2 = 34; XF = 50; X0F = 66; PK = 82; HP = 90; RX = 94; TM = ACC2; SP = HP; T4 = 98; vPF = 102
NV = 104
aV = 0; aU = 64; aX = 128; aH = 128; aS = 128; NS = 6; NA = 152
sX0 = 4; sV = 8; sU = 12; sO = 16; sE = 20; sD = 24; sB = 28; sW = 32
sKA = 36
sWV = 50; sHF = 51; sRB = 52; sXCC = 53; sMODE = 54
sVG = [55, 56, 57, 58]; sUG = [59, 60, 61, 62]; sSO = [63, 64]; sLB = 65
sMY = [66, 67]; sWS = 68; sXH = 69
sLOFF = 4; sSL = 5; sTS = 6; sTAG = 7; sIT = 3
sCNT = 70; sT = [71, 72, 73, 74, 75, 76, 77, 78]; sPTMP = 79
sSTAMP = 80

def vr(b, n): return f"v[{b}:{b+n-1}]"
def ar(b, n): return f"a[{b}:{b+n-1}]"
def sr(b, n): return f"s[{b}:{b+n-1}]"

class Gen:
    def __init__(self, prof=None, opts=None):
        self.o = []; self.ool = []; self.vm = []; self.lg = []; self.vmdone = 0; self.lgdone = 0
        self.prof = prof; self.opts = opts or {}; self.names = []
        self.pw = []; self.nso = 0; self.nst = 0; self.X = 0; self.dyn = False; self.emit_ool = True
        self.pat = self.opts.get("pat", "BBBB/DBDB/DDDB/DDDB"); self.lag = self.opts.get("lag", 4)
    def fork(self, X):
        g = copy.copy(self); g.o = []; g.vm = list(self.vm); g.lg = list(self.lg); g.pw = list(self.pw); g.X = X
        return g
    def a(self, s): self.o.append("    " + s)
    def x(self, s):
        if self.emit_ool: self.ool.append("    " + s)
    def xl(self, s):
        if self.emit_ool: self.ool.append(s + ":")
    def lab(self, s): self.o.append(s + ":")
    def c(self, s): self.o.append("    ; " + s)
    def vmop(self, s, tag): self.vm.append(tag); self.a(s)
    def lgop(self, s, tag): self.lg.append(tag); self.a(s)
    def _last(self, lst, tag):
        idx = [i for i, t in enumerate(lst) if t == tag]
        return idx[-1] if idx else None
    def wvm(self, tag):
        i = self._last(self.vm, tag)
        if i is not None: self.wvmi(i)
    def wvmi(self, i):
        if i < self.vmdone: return
        n = min(len(self.vm) - 1 - i, 63); self.vmdone = len(self.vm) - n
        self.a(f"s_waitcnt vmcnt({n})")
    def wlg(self, tag):
        i = self._last(self.lg, tag)
        if i is None or i < self.lgdone: return
        n = min(len(self.lg) - 1 - i, 15); self.lgdone = len(self.lg) - n
        self.a(f"s_waitcnt lgkmcnt({n})")
    def wlg0(self):
        if self.lgdone < len(self.lg): self.lgdone = len(self.lg); self.a("s_waitcnt lgkmcnt(0)")
    def bar(self, name=None):
        self.wlg0()
        if name: self.stamp(name + "a")
        self.a("s_barrier")
        if name: self.stamp(name + "b")
    def stamp(self, name):
        nm = name + "AB"[self.X] if False else name
        if self.prof and nm in self.prof:
            r = sSTAMP + 2 * self.prof.index(nm)
            assert r + 1 <= 101
            self.a(f"s_memrealtime s[{r}:{r+1}]" if nm.startswith("rt") else f"s_memtime s[{r}:{r+1}]")
    def rec(self, name, src):
        if self.prof and name in self.prof:
            self.a(f"s_mov_b32 s{sSTAMP + 2*self.prof.index(name)}, {src}")
    def prio(self, p):
        m = self.opts.get("prio", 1)
        if m == 1: self.a(f"s_setprio {p}")
        if m == 2: self.a(f"s_setprio {2-p}")
    def dma(self, kind, l, g, pat=None):
        if l >= L: return []
        if self.opts.get("dma") == "off" and l >= 2: return []
        pat = pat or self.pat.split("/")[g]
        so = sSO[self.nso & 1]; self.nso += 1
        base, sg, vv, srd = (0, sVG, vV, sV) if kind == "V" else (16384, sUG, vU, sU)
        tag = f"{kind}{l}" + "ab"[g >> 1]
        items = []
        for j in range(4):
            def emit(j=j):
                while self.pw and len(self.vm) - self.pw[0][0] > self.lag: self.pw.pop(0)[1]()
                if j == 0:
                    self.a(f"s_add_u32 m0, s{sLB}, {base+g*4096}"); self.a(f"s_add_u32 s{so}, s{sg[g]}, s{sLOFF}" if self.dyn else f"s_add_u32 s{so}, s{sg[g]}, {l*131072}")
                if pat[j % len(pat)] in "DBC":
                    self.vmop(f"buffer_load_dwordx4 v{vv[j]}, {sr(srd,4)}, s{so} offen offset:{1024*j} lds", tag)
                    for q in range({"D": 0, "B": 1, "C": 2}[pat[j % len(pat)]]): self.vmop(f"buffer_load_dword v{vJ}, off, {sr(sB,4)}, 0", "gap")
            items.append(emit)
        return items
    def flush(self, keep3=False):
        while self.pw and not (keep3 and self.pw[0][2] == 3): self.pw.pop(0)[1]()
    def rdV(self, g):
        return [lambda j=j: self.lgop(f"ds_read_b128 {ar(aV+4*(4*g+j),4)}, v{vA[j>>1]} offset:{g*4096+(j&1)*2048}", f"rV{g}_{j>>1}") for j in range(4)]
    def rdU(self, g):
        return [lambda j=j: self.lgop(f"ds_read_b128 {ar(aU+4*(4*g+j),4)}, v{vA[j>>1]} offset:{16384+g*4096+(j&1)*2048}", f"rU{g}") for j in range(4)]
    def mf1(self, ks, fill=None):
        for ta in range(2):
            b = vr(PK + 4*ks, 4) if ks < 2 else ar(aX + 4*(ks-2), 4)
            d = vr(ACC1 + 4*ta, 4)
            self.a(f"v_mfma_f32_16x16x32_bf16 {d}, {ar(aV+4*(2*ks+ta),4)}, {b}, {'0' if ks == 0 else d}")
            if fill: self.run(fill[ta])
    def mf2(self, P, kr, fill=None):
        for ta in range(2):
            b = vr(HP, 4) if kr == 0 else ar(aH + 4*(kr-1), 4)
            d = vr(ACC2 + 8*P + 4*ta, 4)
            idx = ((kr >> 1)*2 + P)*4 + (kr & 1)*2 + ta
            self.a(f"v_mfma_f32_16x16x32_bf16 {d}, {ar(aU+4*idx,4)}, {b}, {d}")
            if fill: self.run(fill[ta])
    def epi(self, P, l, pk=False):
        r = []
        if pk:
            for e in range(4):
                q = 8*P + 2*e
                r.append(lambda q=q: self.a(f"v_pk_fma_f32 {vr(ACC2+q,2)}, {vr(X0F+q,2)}, {vr(ACC2+q,2)}, {vr(XF+q,2)}"))
        else:
            for e in range(8):
                q = 8*P + e
                r.append(lambda q=q: self.a(f"v_fma_f32 v{ACC2+q}, v{X0F+q}, v{ACC2+q}, v{XF+q}"))
        for e in range(4):
            q = 8*P + 2*e
            r.append(lambda q=q: self.a(f"v_cvt_pk_bf16_f32 v{PK+q//2}, v{ACC2+q}, v{ACC2+q+1}"))
        if l < L-1: r.append(lambda: self.lgop(f"ds_write_b128 v{vXW}, {vr(PK+4*P,4)} offset:{P*1024}", "xw"))
        else: r.append(lambda: self.lgop(f"ds_write_b128 v{vT[P]}, {vr(PK+4*P,4)}", "xw"))
        return r
    def unpack(self, dst, src, n):
        r = []
        for i in range(n):
            r.append(lambda i=i: self.a(f"v_lshlrev_b32 v{dst+2*i}, 16, v{src+i}"))
            r.append(lambda i=i: self.a(f"v_and_b32 v{dst+2*i+1}, 0xffff0000, v{src+i}"))
        return r
    def bias_rd(self, l):
        for k in range(4):
            self.lgop(f"ds_read_b128 {vr(ACC2+4*k,4)}, v{vBI} offset:{(0 if self.dyn else l*256) + (k>>1)*128 + (k&1)*16}", "bias")
    def run(self, lst):
        for f in lst: f()
    def mix(self, *lists):
        lists = [list(x) for x in lists]
        while any(lists):
            for x in lists:
                if x: x.pop(0)()
    def srd(self, r, p, n, bias=0):
        if bias:
            self.a(f"s_sub_u32 s{r}, s{p}, {bias}"); self.a(f"s_subb_u32 s{r+1}, s{p+1}, 0")
        else:
            self.a(f"s_mov_b32 s{r}, s{p}"); self.a(f"s_mov_b32 s{r+1}, s{p+1}")
        self.a(f"s_mov_b32 s{r+2}, {n+bias}"); self.a(f"s_mov_b32 s{r+3}, 0x20000")
    def poll(self, l):
        self.vmop(f"buffer_load_dwordx4 {vr(RX,4)}, v{vE}, {sr(sE,4)}, s{sSL} offen sc1", f"poll{l}")
    def send(self, l, u=None):
        a = self.a; u = u if u is not None else f"{self.X}{l}"
        a(f"s_xor_b32 s{sPTMP}, s{sSL}, 512")
        for k in range(4): a(f"v_cvt_pk_bf16_f32 v{SP+k}, v{ACC1+2*k}, v{ACC1+2*k+1}")
        for k in range(4): a(f"v_and_or_b32 v{SP+k}, v{SP+k}, -2, s{sTAG}")
        if l == 0: self.handshake()
        self.stamp(f"snd{u}")
        a(f"s_cmp_eq_u32 s{sMODE}, 0"); a(f"s_cbranch_scc1 L_ss{u}")
        self.vmop(f"buffer_store_dwordx4 {vr(SP,4)}, v{vE}, {sr(sE,4)}, s{sPTMP} offen", "st")
        self.lab(f"L_sd{u}")
        self.xl(f"L_ss{u}")
        self.x(f"buffer_store_dwordx4 {vr(SP,4)}, v{vE}, {sr(sE,4)}, s{sPTMP} offen sc1")
        self.x("s_nop 1"); self.x(f"s_branch L_sd{u}")
    def chk_ops(self, l):
        R = RX; t0 = vT[3]
        return [f"v_xor_b32 v{t0}, s{sTAG}, v{R}"] + [f"v_bitop3_b32 v{t0}, v{R+k}, v{t0}, s{sTAG} bitop3:0xde" for k in (1, 2, 3)] + \
               [f"v_and_b32 v{t0}, 1, v{t0}", f"v_cmp_ne_u32 vcc, 0, v{t0}"]
    def next_msg(self):
        self.a(f"s_xor_b32 s{sSL}, s{sSL}, 16384"); self.a(f"s_lshr_b32 s{sTS}, s{sTS}, 1"); self.a(f"s_and_b32 s{sTAG}, s{sTS}, 1")
    def check_post(self, l, d=None):
        u = f"{self.X}{l}"; x = self.x; a = self.a
        self.wvm(f"poll{l}")
        self.stamp(f"chk{u}")
        if self.opts.get("dbgcnt"): a(f"s_mov_b32 s{sCNT}, 0")
        for s in self.chk_ops(l): a(s)
        a(f"s_cbranch_vccnz L_rt{u}")
        self.lab(f"L_got{u}")
        self.stamp(f"got{u}")
        if self.opts.get("dbgcnt"): self.rec(f"cnt{l}", f"s{sCNT}")
        self.xl(f"L_rt{u}")
        x(f"s_mov_b32 s{sCNT}, 0")
        self.xl(f"L_rl{u}")
        x(f"buffer_load_dwordx4 {vr(RX,4)}, v{vE}, {sr(sE,4)}, s{sSL} offen sc1")
        if "retrydelay" in self.opts: x("s_add_u32 s96, s96, 1")
        x(f"s_add_u32 s{sCNT}, s{sCNT}, 1"); x(f"s_cmp_gt_u32 s{sCNT}, 0x200000")
        x("s_waitcnt vmcnt(0)")
        x(f"s_cbranch_scc1 L_got{u}")
        for s in self.chk_ops(l): x(s)
        x(f"s_cbranch_vccnz L_rl{u}")
        x(f"s_branch L_got{u}")
        ops = []
        for h in range(2):
            ops += self.unpack(T4, RX+2*h, 2)
            if self.opts.get("pkadd", 0):
                for k in range(2): ops.append(lambda k=k, h=h: a(f"v_pk_add_f32 {vr(T4+2*k,2)}, {vr(T4+2*k,2)}, {vr(ACC1+4*h+2*k,2)}"))
            else:
                for k in range(4): ops.append(lambda k=k, h=h: a(f"v_add_f32 v{T4+k}, v{T4+k}, v{ACC1+4*h+k}"))
            for k in range(2): ops.append(lambda k=k, h=h: a(f"v_cvt_pk_bf16_f32 v{HP+2*h+k}, v{T4+2*k}, v{T4+2*k+1}"))
        ops.append(lambda: self.lgop(f"ds_write_b128 v{vHW}, {vr(HP,4)}", "hw"))
        ops.append(self.next_msg)
        if d is None:
            self.run(ops); self.bias_rd(l); return
        d = list(d); st = self.opts.get("vper", 10)
        while ops:
            self.run(ops[:st]); ops = ops[st:]
            if ops and d: d.pop(0)()
        self.run(d)
    def x_reads(self):
        return [lambda ks=ks: self.lgop(f"ds_read_b128 {ar(aX+4*(ks-2),4)}, v{vXR[ks>>1]} offset:{(ks&1)*1024}", f"x{ks}") for ks in range(2, 8)]
    def h_reads(self):
        for kr in range(1, 4):
            self.lgop(f"ds_read_b128 {ar(aH+4*(kr-1),4)}, v{vHR[kr]}", f"h{kr}")

    def g2_phase(self, l, early=None, mid=None, late=None):
        early = list(early or []); mid = list(mid or []); late = list(late or [])
        def take(q): return [q[0:1], q[1:2]]
        self.h_reads()
        self.mf2(0, 0, take(early)); self.mf2(1, 0, take(early[2:]))
        self.wlg("h1"); self.mf2(0, 1, take(early[4:]))
        self.wlg("h2"); self.mf2(0, 2, take(early[6:] + mid))
        self.wlg("h3"); self.mf2(0, 3, take(mid[2:]))
        self.flush()
        e0 = self.epi(0, l); e1 = self.epi(1, l, pk=self.opts.get("pkfma", 1))
        u = f"{self.X}{l}"
        self.stamp(f"g2a{u}")
        if self.opts.get("e0mix", 0):
            self.mf2(1, 1, [[], late[0:4]])
            self.mf2(1, 2, [[], e0[0:3]])
            self.stamp(f"g2b{u}")
            self.mf2(1, 3, [e0[3:6], e0[6:-1]])
        else:
            self.mf2(1, 1); self.mf2(1, 2, [late[0:2], late[2:4]])
            self.stamp(f"g2b{u}")
            self.mf2(1, 3, [e0[0:2], e0[2:-1]])
        self.stamp(f"g2c{u}")
        e0[-1]()
        self.stamp(f"g2d{u}")
        self.run(e1[:-1])
        self.stamp(f"g2e{u}")
        e1[-1]()
        self.stamp(f"g2f{u}")
    def g1_phase(self, l, jitV=False, extra=None):
        xr = self.x_reads(); extra = list(extra or [])
        if jitV:
            rv = self.rdV(2) + self.rdV(3)
            ev = self.opts.get("earlyv", 8)
            pre = (self.rdV(0) + self.rdV(1))[ev:]
            self.run(pre[:4]); self.run(xr[0:2]); self.run(pre[4:])
            q = [xr[2], rv[0], rv[1], xr[3], rv[2], rv[3], xr[4], rv[4], rv[5], xr[5], rv[6], rv[7]]
            for ks in range(8):
                self.wlg(f"rV{ks>>1}_{ks&1}")
                if ks >= 2: self.wlg(f"x{ks}")
                self.mf1(ks, [q[0:2], q[2:3]]); q = q[3:]
        else:
            self.run(xr)
            for ks in range(8):
                if ks >= 2: self.wlg(f"x{ks}")
                self.mf1(ks, [extra[0:1], extra[1:2]]); extra = extra[2:]
            self.run(extra)
        self.send(l)
        self.run(self.unpack(XF, PK, 8))

    def prologue(self):
        a = self.a; T = [X0F + i for i in range(10)]
        a(f"s_load_dwordx8 {sr(sKA,8)}, s[0:1], 0")
        a(f"s_load_dwordx4 {sr(sKA+8,4)}, s[0:1], 32")
        a(f"s_load_dwordx2 {sr(sKA+12,2)}, s[0:1], 48")
        a("s_cmp_ge_u32 s2, 256"); a("s_cbranch_scc1 L_end")
        self.stamp("start"); self.stamp("rt0")
        a(f"v_lshrrev_b32 v{T[0]}, 6, v0"); a(f"v_and_b32 v{vLANE}, 63, v0")
        if self.opts.get("codepf", 1):
            a(f"s_getpc_b64 {sr(sX0,2)}"); a(f"v_lshlrev_b32 v{T[1]}, 7, v0"); a(f"s_and_b32 s{sX0}, s{sX0}, 0xffffff00")
            a(f"v_cmp_gt_u32 vcc, CODE_BYTES, v{T[1]}")
            a(f"s_and_saveexec_b64 {sr(sX0+2,2)}, vcc"); a("s_cbranch_execz L_nocpf")
            a(f"global_load_dword v{vJ}, v{T[1]}, {sr(sX0,2)}")
            self.lab("L_nocpf")
            a("s_mov_b64 exec, -1")
        a(f"v_readfirstlane_b32 s{sWV}, v{T[0]}")
        a(f"v_lshrrev_b32 v{T[6]}, 3, v{vLANE}"); a(f"v_and_b32 v{T[2]}, 6, v{T[6]}"); a(f"v_xor_b32 v{T[2]}, v{T[2]}, v{vLANE}")
        a(f"v_and_b32 v{T[2]}, 7, v{T[2]}"); a(f"v_lshlrev_b32 v{T[2]}, 4, v{T[2]}")
        a(f"v_and_b32 v{T[3]}, 4, v{T[6]}"); a(f"v_add_u32 v{T[1]}, v{T[6]}, v{T[3]}")
        a(f"v_lshl_add_u32 v{T[3]}, v{T[1]}, 10, v{T[2]}")
        voff = lambda j: ((j&1)*16 + (j>>1)*4)
        for j in range(2): a(f"v_add_u32 v{vV[j]}, {voff(j)*1024 - 1024*j + 3072}, v{T[3]}")
        a(f"s_and_b32 s{sT[0]}, s2, 0xf0"); a(f"s_lshl_b32 s{sT[0]}, s{sT[0]}, 14"); a(f"s_and_b32 s{sT[1]}, s2, 7"); a(f"s_lshl_b32 s{sT[1]}, s{sT[1]}, 15")
        a(f"s_and_b32 s{sT[2]}, s2, 8"); a(f"s_lshl_b32 s{sT[2]}, s{sT[2]}, 6")
        a(f"s_and_b32 s{sWS}, s{sWV}, 3"); a(f"s_lshr_b32 s{sXH}, s{sWV}, 2")
        a(f"s_or_b32 s{sT[0]}, s{sT[0]}, s{sT[1]}"); a(f"s_lshl_b32 s{sT[1]}, s{sXH}, 12"); a(f"s_or_b32 s{sT[1]}, s{sT[1]}, s{sT[2]}")
        a(f"s_or_b32 s{sT[4]}, s{sT[0]}, s{sT[1]}")
        a(f"s_lshl_b32 s{sT[3]}, s{sWS}, 7"); a(f"s_add_u32 s{sT[7]}, s{sT[4]}, s{sT[3]}")
        a(f"s_lshl1_add_u32 s{sT[5]}, s{sWS}, s{sXH}"); a(f"s_lshl_b32 s{sT[5]}, s{sT[5]}, 11"); a(f"s_add_u32 s{sT[5]}, s{sT[5]}, {XB}")
        a(f"s_mov_b32 m0, s{sT[5]}")
        a(f"s_lshr_b32 s{sT[0]}, s2, 3"); a(f"s_lshl3_add_u32 s{sT[0]}, s{sT[0]}, s{sWV}"); a(f"s_lshl_b32 s{sT[0]}, s{sT[0]}, 9")
        a(f"s_lshl2_add_u32 s{sT[1]}, s2, s{sWS}"); a(f"s_lshl_b32 s{sT[1]}, s{sT[1]}, 7"); a(f"s_sub_u32 s{sT[1]}, s{sT[1]}, {3*131072}")
        a(f"v_lshl_add_u32 v{T[8]}, v{vLANE}, 7, s{sT[0]}"); a(f"v_lshl_add_u32 v{T[9]}, v{vLANE}, 17, s{sT[1]}")
        a(f"v_cmp_gt_u32 vcc, 4, v{vLANE}")
        a(f"s_cmp_eq_u32 s{sXH}, 0"); a(f"s_cselect_b32 s{sT[0]}, 0x1ff, 15"); a(f"s_cselect_b32 s{sT[1]}, 15, 0x1ff")
        a(f"v_cndmask_b32 v{T[8]}, v{T[9]}, v{T[8]}, vcc")
        a("s_waitcnt lgkmcnt(0)")
        self.stamp("karg")
        self.srd(sX0, sKA+0, 4096*1024, 3072)
        self.vmop(f"buffer_load_dwordx4 v{vV[0]}, {sr(sX0,4)}, s{sT[7]} offen lds", "x0")
        self.vmop(f"buffer_load_dwordx4 v{vV[1]}, {sr(sX0,4)}, s{sT[7]} offen offset:1024 lds", "x0")
        self.srd(sV, sKA+4, 6*131072, 3072)
        a("s_mov_b32 exec_hi, 0"); a(f"s_mov_b32 exec_lo, s{sT[0]}")
        self.vmop(f"buffer_load_dword v{vJ}, v{T[8]}, {sr(sV,4)}, 0 offen offset:3072", "pf")
        self.srd(sU, sKA+2, 6*131072, 3072)
        a(f"s_mov_b32 exec_lo, s{sT[1]}")
        self.vmop(f"buffer_load_dword v{vJ}, v{T[8]}, {sr(sU,4)}, 0 offen offset:3072", "pf")
        a("s_mov_b64 exec, -1")
        a(f"v_and_b32 v{T[7]}, 7, v{vLANE}"); a(f"v_lshlrev_b32 v{T[9]}, 4, v{T[7]}"); a(f"v_lshl_add_u32 v{T[9]}, v{T[6]}, 10, v{T[9]}")
        a(f"s_mul_i32 s{sT[0]}, s{sXH}, 3072"); a(f"s_add_u32 s{sT[0]}, s{sT[0]}, s{sT[3]}"); a(f"s_add_u32 s{sT[0]}, s{sT[0]}, s{sT[2]}")
        a(f"v_mov_b32 v{vT[2]}, s2"); a(f"v_xor_b32 v{vT[2]}, 8, v{vT[2]}")
        self.srd(sB, sKA+6, 6*1024)
        self.srd(sD, sKA+10, 256)
        a("s_mov_b64 exec, 0xffffff")
        self.vmop(f"buffer_load_dwordx4 {vr(TM+4,4)}, v{T[9]}, {sr(sB,4)}, s{sT[0]} offen", "bias")
        a("s_mov_b64 exec, 1")
        self.vmop(f"buffer_load_ubyte v{vJ}, v{vT[2]}, {sr(sD,4)}, 0 offen", "touch")
        a("s_mov_b64 exec, -1")
        a(f"s_lshr_b32 s{sT[0]}, s{sWS}, 1"); a(f"s_lshl_b32 s{sT[0]}, s{sT[0]}, 13"); a(f"s_add_u32 s{sT[4]}, s{sT[4]}, s{sT[0]}")
        a(f"s_and_b32 s{sT[6]}, s{sWS}, 1"); a(f"s_lshl_b32 s{sT[0]}, s{sT[6]}, 11"); a(f"s_add_u32 s{sMY[0]}, s{sT[4]}, s{sT[0]}")
        a(f"v_lshrrev_b32 v{T[8]}, 5, v{vLANE}"); a(f"v_and_b32 v{vE}, 31, v{vLANE}"); a(f"v_lshlrev_b32 v{vE}, 4, v{vE}")
        a(f"v_lshl_add_u32 v{vE}, v{T[8]}, 10, v{vE}")
        for r in range(4): a(f"v_mov_b32 v{TM+r}, 0")
        self.srd(sO, sKA+8, 4096*1024)
        self.vmop(f"buffer_store_dwordx4 {vr(TM,4)}, v{vE}, {sr(sO,4)}, s{sMY[0]} offen {self.opts.get('clrf', '')}", "clr")
        a(f"s_lshl_b32 s{sLB}, s{sWS}, 15"); a(f"s_add_u32 s{sT[3]}, s{sLB}, s{sT[2]}")
        for g in range(4):
            a(f"s_xor_b32 s{sT[4]}, s{sWS}, {g}"); a(f"s_lshl_b32 s{sT[4]}, s{sT[4]}, 7"); a(f"s_add_u32 s{sVG[g]}, s{sT[3]}, s{sT[4]}")
        for j in range(2, 4): a(f"v_add_u32 v{vV[j]}, {voff(j)*1024 - 1024*j + 3072}, v{T[3]}")
        a(f"s_lshl_b32 s{sT[4]}, s{sXH}, 13"); a(f"s_add_u32 s{sT[4]}, s{sT[4]}, s{sLB}")
        a(f"s_cmp_eq_u32 s{sXH}, 0")
        a(f"s_cselect_b32 s{sT[0]}, s{sVG[0]}, s{sVG[2]}"); a(f"s_cselect_b32 s{sT[1]}, s{sVG[1]}, s{sVG[3]}")
        self.stamp("i_x0")
        if not self.opts.get("noE", 1): a("s_barrier")
        def v0grp(k):
            a(f"s_add_u32 m0, s{sT[4]}, {k*4096}"); a("s_nop 0")
            for j in range(4):
                self.vmop(f"buffer_load_dwordx4 v{vV[j]}, {sr(sV,4)}, s{sT[k]} offen offset:{1024*j} lds", "V0")
        v0grp(0)
        v0grp(1)
        self.stamp("i_v0a")
        a(f"s_add_u32 s{sMY[1]}, s{sMY[0]}, 16384")
        self.srd(sW, sKA+12, 8 << 20)
        self.srd(sE, sKA+8, 4096*1024)
        a(f"s_getreg_b32 s{sXCC}, hwreg(HW_REG_XCC_ID)"); a(f"s_and_b32 s{sXCC}, s{sXCC}, 15"); a(f"s_or_b32 s{sXCC}, s{sXCC}, 16")
        a(f"v_lshl_add_u32 v{T[4]}, v{T[1]}, 8, v{T[2]}")
        a(f"s_lshl_b32 s{sT[0]}, s{sT[6]}, 6"); a(f"v_xor_b32 v{T[4]}, s{sT[0]}, v{T[4]}")
        for j in range(4):
            a(f"v_add_u32 v{vU[j]}, {voff(j)*256 - 1024*j + 3072}, v{T[4]}")
        a(f"s_lshl_b32 s{sT[0]}, s{sT[2]}, 7"); a(f"s_lshl_b32 s{sT[1]}, s{sWS}, 14"); a(f"s_add_u32 s{sT[0]}, s{sT[0]}, s{sT[1]}")
        a(f"s_and_b32 s{sT[1]}, s{sWS}, 2"); a(f"s_lshl_b32 s{sT[1]}, s{sT[1]}, 6"); a(f"s_add_u32 s{sUG[0]}, s{sT[0]}, s{sT[1]}")
        a(f"s_add_u32 s{sUG[1]}, s{sUG[0]}, 8192"); a(f"s_xor_b32 s{sUG[2]}, s{sUG[0]}, 128"); a(f"s_xor_b32 s{sUG[3]}, s{sUG[1]}, 128")
        if self.opts.get("pad", 0):
            a("s_mov_b64 exec, 0")
            for w in range(7):
                a(f"s_cmp_eq_u32 s{sWV}, {w}"); a(f"s_cbranch_scc1 L_pad{w>>2}_{w&3}")
            a("s_branch L_pad1_3")
            self.lab("L_warm_done")
            a("s_mov_b64 exec, -1")
            self.o.append("    ; PADSTART")
        self.stamp("warm")
        self.wvm("clr")
        a(f"v_lshrrev_b32 v{T[0]}, 4, v{vLANE}")
        a(f"v_and_b32 v{T[1]}, 6, v{vLANE}"); a(f"v_xor_b32 v{T[2]}, v{T[1]}, v{T[0]}"); a(f"v_lshlrev_b32 v{T[2]}, 4, v{T[2]}")
        a(f"v_and_b32 v{T[1]}, 15, v{vLANE}"); a(f"v_lshl_add_u32 v{T[2]}, v{T[1]}, 7, v{T[2]}")
        a(f"v_add_u32 v{T[3]}, s{sT[5]}, v{T[2]}"); a(f"v_xor_b32 v{T[5]}, 64, v{T[3]}")
        for P in range(2):
            self.lgop(f"ds_read_b128 {vr(PK+4*P,4)}, v{T[5] if P else T[3]}", "x0r")
        a(f"v_add_u32 v{vA[0]}, s{sLB}, v{T[2]}"); a(f"v_xor_b32 v{vA[1]}, 64, v{vA[0]}")
        a(f"v_lshlrev_b32 v{T[1]}, 4, v{vLANE}")
        a(f"v_add_u32 v{vXW}, s{sT[5]}, v{T[1]}")
        for g in range(1, 4): a(f"v_xor_b32 v{vXR[g]}, {g*4096}, v{vXW}")
        a(f"s_lshl_b32 s{sT[0]}, s{sWV}, 10"); a(f"s_add_u32 s{sT[0]}, s{sT[0]}, {HB}")
        a(f"v_add_u32 v{vHW}, s{sT[0]}, v{T[1]}")
        for g in range(1, 4): a(f"v_xor_b32 v{vHR[g]}, {g*1024}, v{vHW}")
        a(f"s_mul_i32 s{sT[0]}, s{sWS}, 1536"); a(f"s_add_u32 s{sT[0]}, s{sT[0]}, {BIASB}")
        a(f"v_lshl_add_u32 v{vBI}, v{T[0]}, 5, s{sT[0]}")
        a(f"s_mul_i32 s{sT[1]}, s{sXH}, 768"); a(f"s_add_u32 s{sT[0]}, s{sT[0]}, s{sT[1]}")
        a(f"v_lshlrev_b32 v{T[7]}, 5, v{T[7]}"); a(f"v_lshl_add_u32 v{T[7]}, v{T[6]}, 8, v{T[7]}"); a(f"v_add_u32 v{vT[0]}, s{sT[0]}, v{T[7]}")
        self.run(self.unpack(TM+8, TM+4, 4))
        a(f"v_and_b32 v{RX+1}, 3, v{vLANE}"); a(f"v_lshlrev_b32 v{RX+1}, 7, v{RX+1}")
        a(f"v_bfe_u32 v{RX}, v{vLANE}, 2, 1"); a(f"v_lshl_add_u32 v{RX+1}, v{RX}, 10, v{RX+1}")
        a(f"v_bfe_u32 v{RX}, v{vLANE}, 3, 1"); a(f"v_lshl_add_u32 v{RX+1}, v{RX}, 14, v{RX+1}")
        self.wlg("x0r")
        for P in range(2):
            self.lgop(f"ds_write_b128 v{vXW}, {vr(PK+4*P,4)} offset:{P*1024}", "xw")
        a("s_mov_b64 exec, 0xffffff")
        self.lgop(f"ds_write_b128 v{vT[0]}, {vr(TM+8,4)}", "bw")
        self.lgop(f"ds_write_b128 v{vT[0]}, {vr(TM+12,4)} offset:16", "bw")
        a("s_mov_b64 exec, -1")
        self.run(self.unpack(X0F, PK, 8))
        if "retrydelay" in self.opts: a("s_mov_b32 s96, 0")
        a(f"s_mov_b32 s{sSL}, s{sMY[0]}"); a(f"s_mov_b32 s{sTS}, {sum(t << i for i, t in enumerate(TAGS))}"); a(f"s_mov_b32 s{sTAG}, {TAGS[0]}")
        a(f"s_xor_b32 s{sT[3]}, s2, 8"); a(f"s_and_b32 s{sT[2]}, s{sT[3]}, 0xfc"); a(f"s_and_b32 s{sT[3]}, s{sT[3]}, 3"); a(f"s_lshl_b32 s{sT[3]}, s{sT[3]}, 3")
        self.stamp("issued")
        self.wvm("V0")
        self.bar("b0")
        a(f"s_cmp_lg_u32 s{sXH}, 0"); a("s_cbranch_scc1 L_progB")
        a(f"s_cmp_lg_u32 s{sWV}, 0"); a("s_cbranch_scc1 L_noflag")
        a(f"v_mov_b32 v{RX}, s2"); a(f"v_mov_b32 v{vT[1]}, s{sXCC}"); a("s_mov_b64 exec, 1")
        a(f"buffer_store_byte v{vT[1]}, v{RX}, {sr(sD,4)}, 0 offen"); a("s_mov_b64 exec, -1")
        self.lab("L_noflag")

    def box(self, m):
        if not m: return
        self.a(f"s_mov_b64 exec, {m}")
        self.vmop(f"buffer_load_dword v{vJ}, v{RX+1}, {sr(sO,4)}, s{sMY[0]} offen sc1", "bt")
        self.a("s_mov_b64 exec, -1")
    def clr1(self):
        self.vmop(f"buffer_store_dwordx4 {vr(TM,4)}, v{vE}, {sr(sO,4)}, s{sMY[1]} offen {self.opts.get('clrf', '')}", "clr1")
    def flag_ld(self):
        self.a(f"s_load_dword s{sT[1]}, {sr(sKA+10,2)}, s{sT[2]}")
    def bias_ops(self, l):
        return [lambda k=k: self.lgop(f"ds_read_b128 {vr(ACC2+4*k,4)}, v{vBI} offset:{(0 if self.dyn else l*256) + (k>>1)*128 + (k&1)*16}", "bias") for k in range(4)]
    def light1(self, kind, l, rd, lp, n1=None):
        d = self.dma(kind, l, 0) + self.dma(kind, l, 1)
        n1 = n1 or self.opts.get("n1", 8)
        self.carry = d[n1:]; d = d[:n1]
        pp = self.opts.get("pollat", 2); r0 = self.opts.get("rd1at", 0)
        rd = list(rd) + self.bias_ops(lp)
        per = self.opts.get("rd1per", 4)
        for k in range(8):
            if k == pp: self.poll(lp)
            if k < len(d): d[k]()
            if r0 <= k and (k - r0) % self.opts.get("dper", 1) == 0: self.run(rd[:per]); rd = rd[per:]
            self.stamp(f"l1{self.X}{lp}_{k}")
        if pp >= 8: self.poll(lp)
    def light2(self, kind, l, rd, lp):
        self.run(self.carry)
        d = self.dma(kind, l, 2) + self.dma(kind, l, 3) + [lambda: None] * 8
        p2 = self.opts.get("pre2", 3); rd = list(rd)
        if self.opts.get("l2mode", 0) == 1 or l >= L:
            m2 = self.opts.get("mid2", 1)
            self.run(d[:p2])
            self.check_post(lp, d[p2:p2+m2])
            self.run(rd[:4]); d[p2+m2](); self.run(rd[4:])
            self.wvm(f"{kind}{l}a")
            self.run(d[p2+m2+1:8])
            return
        self.run(d[:p2])
        self.run(rd[:4]); d[p2](); self.run(rd[4:]); d[p2+1]()
        self.stamp(f"pd{self.X}{lp}")
        self.check_post(lp, d[p2+2:p2+3])
        self.stamp(f"po{self.X}{lp}")
        self.wvm(f"{kind}{l}a")
        self.run(d[p2+3:8])
        self.stamp(f"en{self.X}{lp}")
    def progA(self):
        a = self.a
        bx = [int(m, 16) for m in str(self.opts.get("boxA", "0,ff,ff00,0")).split(",")]
        self.prio(2)
        self.clr1(); self.box(bx[0])
        xr = self.x_reads(); rv = [f for g in range(4) for f in self.rdV(g)]
        self.run(rv[0:4]); self.run(xr[0:2]); self.run(rv[4:8]); self.run(xr[2:4])
        q = rv[8:12] + xr[4:6] + rv[12:16]
        for ks in range(8):
            self.wlg(f"rV{ks>>1}_{ks&1}")
            if ks >= 2: self.wlg(f"x{ks}")
            self.mf1(ks, [q[0:1], q[1:2]]); q = q[2:]
            if ks == self.opts.get("flagat", 5): self.flag_ld()
        self.send(0)
        self.box(bx[1])
        self.run(self.unpack(XF, PK, 8))
        self.prio(0)
        self.bar("b1")
        self.light1("V", 1, self.rdU(0) + self.rdU(1), 0, 8)
        self.bar("b1x")
        self.run(self.rdU(2))
        self.check_post(0, [])
        self.run(self.rdU(3))
        self.wvm("V1a")
        self.bar("b2")
        self.a(f"s_mov_b32 s{sLOFF}, {2*131072}"); self.a(f"v_add_u32 v{vBI}, 256, v{vBI}")
        self.rounds(self.roundA)
    def rounds(self, body):
        self.dyn = True
        if not self.opts.get("loop", 1):
            for l in range(L): body(l, None)
            return
        u = self.X
        self.a(f"s_mov_b32 s{sIT}, 4")
        keep = self.o; self.o = []; self.emit_ool = False
        body(0, None)
        self.o = keep; self.emit_ool = True
        if self.opts.get("loopalign", 1): self.o.append("    .p2align 6")
        self.lab(f"L_loop{u}")
        body(1, f"L_loop{u}")
        keep = self.o; self.o = []; self.emit_ool = False
        body(2, None); body(3, None)
        self.o = keep; self.emit_ool = True
        body(4, None); body(5, None)
    def adv(self, back):
        self.a(f"s_add_u32 s{sLOFF}, s{sLOFF}, 131072"); self.a(f"v_add_u32 v{vBI}, 256, v{vBI}")
        if back: self.a(f"s_sub_u32 s{sIT}, s{sIT}, 1"); self.a(f"s_cmp_lg_u32 s{sIT}, 0")
    def roundA(self, l, back):
        last = l == L-1
        self.c(f"==== A round {l} phase 0: G2 ====")
        self.prio(2)
        ev = self.opts.get("earlyv", 8)
        self.g2_phase(l, early=(None if last else (self.rdV(0) + self.rdV(1))[:ev]))
        if last:
            self.final_store(bar=True); return
        self.wvm(f"V{l+1}b")
        self.stamp(f"g2g0{l}")
        self.bar(f"A0{l}")
        self.c(f"==== A round {l} phase 1: G1 ====")
        self.g1_phase(l+1, jitV=True)
        self.prio(0)
        self.bar(f"A1{l}")
        self.c(f"==== A round {l} phase 2 ====")
        self.light1("V", l+2, self.rdU(0) + self.rdU(1), l+1)
        self.bar(f"A2{l}")
        self.c(f"==== A round {l} phase 3 ====")
        self.light2("V", l+2, self.rdU(2) + self.rdU(3), l+1)
        if l == L-2: self.final_addr()
        self.wlg0()
        self.adv(back)
        self.bar(f"A3{l}")
        if back: self.a(f"s_cbranch_scc1 {back}")

    def progB(self):
        self.lab("L_progB")
        bx = [int(m, 16) for m in str(self.opts.get("boxB", "0,ffff,0")).split(",")]
        d = [f for g in range(4) for f in self.dma("U", 0, g, "DDDD")]
        rv = [f for g in range(4) for f in self.rdV(g)]
        self.run(d[:8]); self.clr1(); self.box(bx[0])
        for k in range(4):
            self.run(rv[4*k:4*k+4]); self.run(d[8+2*k:10+2*k])
        self.box(bx[1])
        self.wvm("U0a")
        self.bar("b1")
        self.prio(2)
        self.flag_ld()
        self.g1_phase(0, extra=self.rdU(0) + self.rdU(1))
        self.prio(0)
        self.wvm("U0b")
        self.box(bx[2])
        self.bar("b1x")
        self.mix(self.dma("V", 1, 2) + self.dma("V", 1, 3), self.rdU(2) + self.rdU(3))
        self.bar("b2")
        self.a(f"s_mov_b32 s{sLOFF}, 131072")
        self.rounds(self.roundB)
    def roundB(self, l, back):
        last = l == L-1
        self.c(f"==== B round {l} phase 0 ====")
        if not last:
            n0 = len(self.vm)
            self.light1("U", l+1, self.rdV(0) + self.rdV(1), l)
            self.a(f"s_waitcnt vmcnt({len(self.vm) - n0})"); self.vmdone = max(self.vmdone, n0)
            self.bar(f"B0{l}")
            self.c(f"==== B round {l} phase 1 ====")
            self.light2("U", l+1, self.rdV(2) + self.rdV(3), l)
        else:
            self.poll(l); self.bias_rd(l); self.check_post(l, [])
        self.bar(f"B1{l}")
        self.c(f"==== B round {l} phase 2: G2 ====")
        self.prio(2)
        if last:
            self.g2_phase(l); self.final_store(); return
        self.g2_phase(l, mid=self.rdU(0), late=self.rdU(1))
        self.wvm(f"U{l+1}b")
        self.bar(f"B2{l}")
        self.c(f"==== B round {l} phase 3: G1 ====")
        self.g1_phase(l+1, extra=self.rdU(2) + self.rdU(3))
        if l == L-2: self.final_addr()
        self.prio(0)
        self.wlg0()
        self.adv(back)
        self.bar(f"B3{l}")
        if back: self.a(f"s_cbranch_scc1 {back}")

    def final_addr(self):
        a = self.a; t = [RX, RX+1, RX+2]
        a(f"v_and_b32 v{t[0]}, 15, v{vLANE}"); a(f"v_lshrrev_b32 v{t[1]}, 4, v{vLANE}")
        a(f"v_and_b32 v{t[2]}, 7, v{t[0]}"); a(f"v_xor_b32 v{t[2]}, v{t[2]}, v{t[1]}"); a(f"v_lshlrev_b32 v{t[2]}, 4, v{t[2]}")
        a(f"v_lshl_add_u32 v{t[2]}, v{t[0]}, 7, v{t[2]}")
        a(f"v_and_b32 v{vT[0]}, 0xfffff800, v{vXW}"); a(f"v_add_u32 v{vT[0]}, v{vT[0]}, v{t[2]}"); a(f"v_xor_b32 v{vT[1]}, 64, v{vT[0]}")
        a(f"v_lshrrev_b32 v{t[0]}, 3, v{vLANE}"); a(f"v_xor_b32 v{t[1]}, v{t[0]}, v{vLANE}"); a(f"v_and_b32 v{t[1]}, 7, v{t[1]}")
        a(f"v_lshlrev_b32 v{t[1]}, 4, v{t[1]}")
        a(f"v_and_b32 v{t[2]}, 4, v{t[0]}"); a(f"v_add_u32 v{t[0]}, v{t[0]}, v{t[2]}")
        a(f"v_lshl_add_u32 v{vT[2]}, v{t[0]}, 10, v{t[1]}")

    def final_store(self, bar=False):
        a = self.a; D = XF
        for m in range(2):
            self.lgop(f"ds_read_b128 {vr(D+4*m,4)}, v{vXW} offset:{m*1024}", f"fo{m}")
        fl = self.opts.get("outflags", "") if self.X else self.opts.get("outflagsA", self.opts.get("outflags", ""))
        for m in range(2):
            a(f"s_add_u32 s{sT[m]}, s{sT[7]}, {m*16384}")
            self.wlg(f"fo{m}")
            self.vmop(f"buffer_store_dwordx4 {vr(D+4*m,4)}, v{vT[2]}, {sr(sO,4)}, s{sT[m]} offen {fl}", "out")
        if bar and self.opts.get("junk"):
            for m in range(4):
                a(f"s_add_u32 s{sT[2]}, s{sMY[0]}, {m*4096 if m < 2 else 16384 + (m-2)*4096}")
                a(f"buffer_store_dwordx4 {vr(D,4)}, v{vE}, {sr(sW,4)}, s{sT[2]} offen")
        if bar: a("s_barrier")
        if self.opts.get("stag"):
            u = self.X
            a("s_waitcnt vmcnt(0)")
            a(f"s_add_u32 s4, s{sKA+12}, 0x700000"); a(f"s_addc_u32 s5, s{sKA+13}, 0")
            a("s_load_dwordx8 s[84:91], s[4:5], 0"); a("s_memrealtime s[94:95]"); a("s_waitcnt lgkmcnt(0)")
            a("s_mov_b32 s92, 0")
            for i in range(8):
                a(f"s_sub_u32 s93, s{sSTAMP}, s{84+i}"); a("s_cmp_lt_u32 s93, 3000"); a("s_cselect_b32 s93, s93, 0"); a("s_max_u32 s92, s92, s93")
            self.lab(f"L_echo{u}")
            a("s_sleep 1"); a("s_memrealtime s[96:97]"); a("s_waitcnt lgkmcnt(0)"); a("s_sub_u32 s93, s96, s94")
            a("s_cmp_lt_u32 s93, s92"); a(f"s_cbranch_scc1 L_echo{u}")
        elif self.opts.get("echo"):
            u = self.X
            a("s_waitcnt vmcnt(0)"); self.stamp("fin")
            a("s_memtime s[90:91]"); a("s_waitcnt lgkmcnt(0)")
            a(f"s_sub_u32 s92, s{sSTAMP+2}, s{sSTAMP}")
            self.lab(f"L_echo{u}")
            a("s_sleep 1"); a("s_memtime s[94:95]"); a("s_waitcnt lgkmcnt(0)"); a("s_sub_u32 s93, s94, s90")
            a("s_cmp_lt_u32 s93, s92"); a(f"s_cbranch_scc1 L_echo{u}")
        elif self.prof:
            a("s_waitcnt vmcnt(0)")
            self.stamp("fin"); self.stamp("rt1")
            a("s_waitcnt lgkmcnt(0)")
            a(f"v_mov_b32 v{RX}, 0")
            for i in range(len(self.prof)): a(f"v_writelane_b32 v{RX}, s{sSTAMP+2*i}, {i}")
            a(f"s_lshl_b32 s{sT[0]}, s2, 3"); a(f"s_add_u32 s{sT[0]}, s{sT[0]}, s{sWV}"); a(f"s_lshl_b32 s{sT[0]}, s{sT[0]}, 8")
            a(f"s_add_u32 s{sT[0]}, s{sT[0]}, {6<<20}")
            a(f"v_lshlrev_b32 v{vT[0]}, 2, v{vLANE}")
            a(f"buffer_store_dword v{RX}, v{vT[0]}, {sr(sW,4)}, s{sT[0]} offen")
        if "modedelay" in self.opts:
            a(f"s_cmp_lg_u32 s{sMODE}, {self.opts['modedelay']}"); a(f"s_cbranch_scc1 L_md{self.X}")
            for i in range(5): a("s_sleep 125")
            self.lab(f"L_md{self.X}")
        if "retrydelay" in self.opts:
            self.lab(f"L_rd{self.X}")
            a("s_cmp_eq_u32 s96, 0"); a(f"s_cbranch_scc1 L_re{self.X}"); a("s_sleep 32"); a("s_sub_u32 s96, s96, 1"); a(f"s_branch L_rd{self.X}")
            self.lab(f"L_re{self.X}")
        for i in range(self.opts.get("delay", 0)): a("s_sleep 125")
        a("s_endpgm")

    def handshake(self):
        a = self.a; x = self.x; P = XF; u = self.X
        self.c("handshake: the partner's inbox is cleared; does it share this XCD?")
        a(f"s_mov_b32 s{sCNT}, 0"); a(f"s_mov_b32 s{sMODE}, 1")
        self.wvm("clr1")
        a("s_waitcnt lgkmcnt(0)"); self.lgdone = len(self.lg)
        a(f"s_lshr_b32 s{sT[0]}, s{sT[1]}, s{sT[3]}"); a(f"s_and_b32 s{sT[0]}, s{sT[0]}, 0xff")
        a(f"s_cmp_eq_u32 s{sT[0]}, s{sXCC}"); a(f"s_cbranch_scc0 L_hs_fast{u}")
        self.lab(f"L_hs_done{u}")
        self.rec("hscnt", f"s{sCNT}"); self.rec("mode", f"s{sMODE}")
        self.xl(f"L_hs_fast{u}")
        x(f"buffer_load_ubyte v{vT[1]}, v{vT[2]}, {sr(sD,4)}, 0 offen sc1")
        x("s_waitcnt vmcnt(0)")
        x(f"v_readfirstlane_b32 s{sT[0]}, v{vT[1]}")
        x(f"s_cmp_eq_u32 s{sT[0]}, s{sXCC}"); x(f"s_cbranch_scc1 L_hs_done{u}")
        x(f"s_add_u32 s{sCNT}, s{sCNT}, 1"); x(f"s_cmp_lt_u32 s{sCNT}, {self.opts.get('fastpolls', 8)}"); x(f"s_cbranch_scc1 L_hs_fast{u}")
        for r in range(4): x(f"v_mov_b32 v{P+4+r}, 0")
        for sl in range(2):
            x(f"buffer_store_dwordx4 {vr(P+4,4)}, v{vE}, {sr(sW,4)}, s{sMY[sl]} offen sc1")
        x(f"s_lshl_b32 s{sT[1]}, s2, 3"); x(f"s_add_u32 s{sT[1]}, s{sT[1]}, s{sWV}"); x(f"s_lshl_b32 s{sT[1]}, s{sT[1]}, 7")
        x(f"s_add_u32 s{sT[1]}, s{sT[1]}, {4<<20}")
        x(f"s_xor_b32 s{sT[2]}, s{sT[1]}, {8*8*128}")
        x(f"v_mov_b32 v{P+2}, 0")
        x("s_mov_b64 exec, 1")
        x(f"buffer_load_dwordx4 {vr(P+8,4)}, v{P+2}, {sr(sW,4)}, s{sT[2]} offen sc1")
        x("s_waitcnt vmcnt(0)")
        x(f"v_readfirstlane_b32 s{sT[3]}, v{P+10}")
        x(f"s_add_u32 s{sT[3]}, s{sT[3]}, 1")
        x(f"v_mov_b32 v{P+3}, s{sT[3]}")
        x(f"buffer_store_dword v{P+3}, v{P+2}, {sr(sW,4)}, s{sT[1]} offen sc1")
        x("s_waitcnt vmcnt(0)")
        x(f"s_mov_b32 s{sCNT}, 0")
        self.xl(f"L_hs_slow{u}")
        x(f"buffer_load_ubyte v{vT[1]}, v{vT[2]}, {sr(sD,4)}, 0 offen sc1")
        x(f"buffer_load_dwordx4 {vr(P+8,4)}, v{P+2}, {sr(sW,4)}, s{sT[2]} offen sc1")
        x("s_waitcnt vmcnt(0)")
        x(f"v_readfirstlane_b32 s{sT[0]}, v{vT[1]}")
        x(f"v_readfirstlane_b32 s{sT[5]}, v{P+8}")
        x(f"v_readfirstlane_b32 s{sT[4]}, v{P+10}")
        x(f"v_readfirstlane_b32 s{sMODE}, v{P+11}")
        x(f"s_cmp_eq_u32 s{sT[0]}, s{sXCC}"); x(f"s_cbranch_scc1 L_hs_same{u}")
        x(f"v_mov_b32 v{P+12}, s{sT[5]}"); x(f"v_mov_b32 v{P+13}, s{sXCC}")
        x(f"buffer_store_dwordx2 {vr(P+12,2)}, v{P+2}, {sr(sW,4)}, s{sT[1]} offen offset:8 sc1")
        x(f"s_add_u32 s{sCNT}, s{sCNT}, 1"); x(f"s_cmp_gt_u32 s{sCNT}, 0x200000"); x(f"s_cbranch_scc1 L_hs_same{u}")
        x(f"s_cmp_eq_u32 s{sT[4]}, s{sT[3]}"); x(f"s_cbranch_scc0 L_hs_slow{u}")
        x(f"s_cmp_eq_u32 s{sMODE}, s{sXCC}"); x(f"s_cbranch_scc1 L_hs_same{u}")
        x(f"s_mov_b32 s{sMODE}, 0")
        x(f"s_mov_b32 s{sE}, s{sKA+12}"); x(f"s_mov_b32 s{sE+1}, s{sKA+13}")
        x("s_mov_b64 exec, -1")
        x(f"s_branch L_hs_done{u}")
        self.xl(f"L_hs_same{u}")
        x(f"s_mov_b32 s{sMODE}, 1")
        x("s_mov_b64 exec, -1")
        x(f"s_branch L_hs_done{u}")

    def build(self):
        hdr = [f"; @launch grid=(256,1,1) block=(512,1,1) lds={LDS_BYTES}",
               '.amdgcn_target "amdgcn-amd-amdhsa--gfx950"', ".text", f".globl {KN}", ".p2align 8",
               f".type {KN},@function", f"{KN}:"]
        self.prologue()
        A = self.fork(0); A.progA()
        B = self.fork(1); B.progB()
        nb = lambda g: sum(1 for s in g.o if s.strip() == "s_barrier")
        assert nb(A) == nb(B), (nb(A), nb(B))
        assert NV + NA <= 256
        ftr = [f".set CODE_BYTES, L_end - {KN}", '.section .rodata,"a"', ".p2align 6", f".amdhsa_kernel {KN}",
               f"  .amdhsa_next_free_vgpr {NV+NA}", "  .amdhsa_next_free_sgpr 102", f"  .amdhsa_accum_offset {NV}",
               "  .amdhsa_group_segment_fixed_size 0", "  .amdhsa_kernarg_size 56", "  .amdhsa_user_sgpr_count 2",
               "  .amdhsa_user_sgpr_kernarg_segment_ptr 1", "  .amdhsa_system_sgpr_workgroup_id_x 1",
               "  .amdhsa_float_denorm_mode_32 3", ".end_amdhsa_kernel"]
        log = []
        m1, n1 = fix_hazards(self.o + A.o, log)
        m2, n2 = fix_hazards(B.o, log)
        ool, n3 = fix_hazards(self.ool)
        wrap = lambda ls: "\n".join(hdr + ls + ool + ftr) + "\n"
        sp = self.opts.get("pad", 0)
        if sp:
            from asmlib import sizes, parse
            def padded(lines, x, start, lim):
                dummy = [f"L_pad{a}_{b}:" for a in range(2) for b in range(4)]
                others = m2 if x == 0 else m1
                sz = iter(sizes(wrap([l for l in lines + others if not l.strip().startswith(".p2align")] + dummy + ["L_end:", "    s_endpgm"])))
                out = []; pos = []; acc = sp; on = not start; tot = 0
                for l in lines:
                    if start and start in l: on = True
                    if parse(l) is not None:
                        b = next(sz)
                        if on and acc >= sp and tot < lim:
                            pos.append(len(out)); out.append(None); acc = 4
                        acc += b
                        if on: tot += b
                    out.append(l)
                res = []; n = len(pos); k = 0
                for l in out:
                    if l is None:
                        res.append(f"L_pad{x}_{k}:"); res.append(f"    s_cbranch_execz " + (f"L_pad{x}_{k+4}" if k + 4 < n else "L_warm_done")); k += 1
                    else: res.append(l)
                return res
            lim = self.opts.get("padlim", 4000)
            m1, m2 = padded(m1, 0, "PADSTART", lim), padded(m2, 1, None, lim)
        main = m1 + m2 + ["L_end:", "    s_endpgm"]
        if self.opts.get("align", 1):
            main, nw, nn = align(main, wrap, self.opts.get("minrun", 99))
            sys.stderr.write(f"hazard nops {n1}+{n2}+{n3}, widened {nw}, align nops {nn}\n")
        if self.opts.get("hlog"):
            for e in log: sys.stderr.write(str(e) + "\n")
        return wrap(main)

if __name__ == "__main__":
    prof = None; opts = {}
    for x in sys.argv[1:]:
        if x.startswith("--prof="): prof = x[7:].split(",")
        elif x.startswith("--"):
            k, v = x[2:].split("="); opts[k] = int(v) if v.lstrip("-").isdigit() else v
    out = [x for x in sys.argv[1:] if not x.startswith("--")][0]
    g = Gen(prof, opts); txt = g.build()
    if prof: txt = txt + "; stamps: " + ",".join(prof) + "\n"
    open(out, "w").write(txt)
```

```python
import sys, copy
from asmlib import fix_hazards, align
KN = "standalone__cross_network_dcn_v2__recsys_kernel"
L = 6
XB = 131072; HB = 147456; BIASB = 155648; LDS_BYTES = 161792
TAGS = [1, 1, 0, 0, 1, 1]

vLANE = 1; vA = [2, 21]; vE = 3; vV = [4, 5, 6, 7]; vU = [8, 9, 10, 11]
vXW = 12; vXR = [None, 13, 14, 15]; vHW = 16; vHR = [None, 17, 18, 19]
vBI = 20; vT = [22, 23, 24, 25]; vJ = 0
ACC1 = 26; ACC2 = 34; XF = 50; X0F = 66; PK = 82; HP = 90; RX = 94; TM = ACC2; SP = HP; T4 = 98; vPF = 102
NV = 104
aV = 0; aU = 64; aX = 128; aH = 128; aS = 128; NS = 6; NA = 152
sX0 = 4; sV = 8; sU = 12; sO = 16; sE = 20; sD = 24; sB = 28; sW = 32
sKA = 36
sWV = 50; sHF = 51; sRB = 52; sXCC = 53; sMODE = 54
sVG = [55, 56, 57, 58]; sUG = [59, 60, 61, 62]; sSO = [63, 64]; sLB = 65
sMY = [66, 67]; sWS = 68; sXH = 69
sLOFF = 4; sSL = 5; sTS = 6; sTAG = 7; sIT = 3
sCNT = 70; sT = [71, 72, 73, 74, 75, 76, 77, 78]; sPTMP = 79
sSTAMP = 80

def vr(b, n): return f"v[{b}:{b+n-1}]"
def ar(b, n): return f"a[{b}:{b+n-1}]"
def sr(b, n): return f"s[{b}:{b+n-1}]"

class Gen:
    def __init__(self, prof=None, opts=None):
        self.o = []; self.ool = []; self.vm = []; self.lg = []; self.vmdone = 0; self.lgdone = 0
        self.prof = prof; self.opts = opts or {}; self.names = []
        self.pw = []; self.nso = 0; self.nst = 0; self.X = 0; self.dyn = False; self.emit_ool = True
        self.pat = self.opts.get("pat", "BBBB/DBDB/DDDB/DDDB"); self.lag = self.opts.get("lag", 4)
    def fork(self, X):
        g = copy.copy(self); g.o = []; g.vm = list(self.vm); g.lg = list(self.lg); g.pw = list(self.pw); g.X = X
        return g
    def a(self, s): self.o.append("    " + s)
    def x(self, s):
        if self.emit_ool: self.ool.append("    " + s)
    def xl(self, s):
        if self.emit_ool: self.ool.append(s + ":")
    def lab(self, s): self.o.append(s + ":")
    def c(self, s): self.o.append("    ; " + s)
    def vmop(self, s, tag): self.vm.append(tag); self.a(s)
    def lgop(self, s, tag): self.lg.append(tag); self.a(s)
    def _last(self, lst, tag):
        idx = [i for i, t in enumerate(lst) if t == tag]
        return idx[-1] if idx else None
    def wvm(self, tag):
        i = self._last(self.vm, tag)
        if i is not None: self.wvmi(i)
    def wvmi(self, i):
        if i < self.vmdone: return
        n = min(len(self.vm) - 1 - i, 63); self.vmdone = len(self.vm) - n
        self.a(f"s_waitcnt vmcnt({n})")
    def wlg(self, tag):
        i = self._last(self.lg, tag)
        if i is None or i < self.lgdone: return
        n = min(len(self.lg) - 1 - i, 15); self.lgdone = len(self.lg) - n
        self.a(f"s_waitcnt lgkmcnt({n})")
    def wlg0(self):
        if self.lgdone < len(self.lg): self.lgdone = len(self.lg); self.a("s_waitcnt lgkmcnt(0)")
    def bar(self, name=None):
        self.wlg0()
        if name: self.stamp(name + "a")
        self.a("s_barrier")
        if name: self.stamp(name + "b")
    def stamp(self, name):
        nm = name + "AB"[self.X] if False else name
        if self.prof and nm in self.prof:
            r = sSTAMP + 2 * self.prof.index(nm)
            assert r + 1 <= 101
            self.a(f"s_memrealtime s[{r}:{r+1}]" if nm.startswith("rt") else f"s_memtime s[{r}:{r+1}]")
    def rec(self, name, src):
        if self.prof and name in self.prof:
            self.a(f"s_mov_b32 s{sSTAMP + 2*self.prof.index(name)}, {src}")
    def prio(self, p):
        m = self.opts.get("prio", 1)
        if m == 1: self.a(f"s_setprio {p}")
        if m == 2: self.a(f"s_setprio {2-p}")
    def dma(self, kind, l, g, pat=None):
        if l >= L: return []
        if self.opts.get("dma") == "off" and l >= 2: return []
        pat = pat or self.pat.split("/")[g]
        so = sSO[self.nso & 1]; self.nso += 1
        base, sg, vv, srd = (0, sVG, vV, sV) if kind == "V" else (16384, sUG, vU, sU)
        tag = f"{kind}{l}" + "ab"[g >> 1]
        items = []
        for j in range(4):
            def emit(j=j):
                while self.pw and len(self.vm) - self.pw[0][0] > self.lag: self.pw.pop(0)[1]()
                if j == 0:
                    self.a(f"s_add_u32 m0, s{sLB}, {base+g*4096}"); self.a(f"s_add_u32 s{so}, s{sg[g]}, s{sLOFF}" if self.dyn else f"s_add_u32 s{so}, s{sg[g]}, {l*131072}")
                if pat[j % len(pat)] in "DBC":
                    self.vmop(f"buffer_load_dwordx4 v{vv[j]}, {sr(srd,4)}, s{so} offen offset:{1024*j} lds", tag)
                    for q in range({"D": 0, "B": 1, "C": 2}[pat[j % len(pat)]]): self.vmop(f"buffer_load_dword v{vJ}, off, {sr(sB,4)}, 0", "gap")
            items.append(emit)
        return items
    def flush(self, keep3=False):
        while self.pw and not (keep3 and self.pw[0][2] == 3): self.pw.pop(0)[1]()
    def rdV(self, g):
        return [lambda j=j: self.lgop(f"ds_read_b128 {ar(aV+4*(4*g+j),4)}, v{vA[j>>1]} offset:{g*4096+(j&1)*2048}", f"rV{g}_{j>>1}") for j in range(4)]
    def rdU(self, g):
        return [lambda j=j: self.lgop(f"ds_read_b128 {ar(aU+4*(4*g+j),4)}, v{vA[j>>1]} offset:{16384+g*4096+(j&1)*2048}", f"rU{g}") for j in range(4)]
    def mf1(self, ks, fill=None):
        for ta in range(2):
            b = vr(PK + 4*ks, 4) if ks < 2 else ar(aX + 4*(ks-2), 4)
            d = vr(ACC1 + 4*ta, 4)
            self.a(f"v_mfma_f32_16x16x32_bf16 {d}, {ar(aV+4*(2*ks+ta),4)}, {b}, {'0' if ks == 0 else d}")
            if fill: self.run(fill[ta])
    def mf2(self, P, kr, fill=None):
        for ta in range(2):
            b = vr(HP, 4) if kr == 0 else ar(aH + 4*(kr-1), 4)
            d = vr(ACC2 + 8*P + 4*ta, 4)
            idx = ((kr >> 1)*2 + P)*4 + (kr & 1)*2 + ta
            self.a(f"v_mfma_f32_16x16x32_bf16 {d}, {ar(aU+4*idx,4)}, {b}, {d}")
            if fill: self.run(fill[ta])
    def epi(self, P, l, pk=False):
        r = []
        if pk:
            for e in range(4):
                q = 8*P + 2*e
                r.append(lambda q=q: self.a(f"v_pk_fma_f32 {vr(ACC2+q,2)}, {vr(X0F+q,2)}, {vr(ACC2+q,2)}, {vr(XF+q,2)}"))
        else:
            for e in range(8):
                q = 8*P + e
                r.append(lambda q=q: self.a(f"v_fma_f32 v{ACC2+q}, v{X0F+q}, v{ACC2+q}, v{XF+q}"))
        for e in range(4):
            q = 8*P + 2*e
            r.append(lambda q=q: self.a(f"v_cvt_pk_bf16_f32 v{PK+q//2}, v{ACC2+q}, v{ACC2+q+1}"))
        if l < L-1: r.append(lambda: self.lgop(f"ds_write_b128 v{vXW}, {vr(PK+4*P,4)} offset:{P*1024}", "xw"))
        else: r.append(lambda: self.lgop(f"ds_write_b128 v{vT[P]}, {vr(PK+4*P,4)}", "xw"))
        return r
    def unpack(self, dst, src, n):
        r = []
        for i in range(n):
            r.append(lambda i=i: self.a(f"v_lshlrev_b32 v{dst+2*i}, 16, v{src+i}"))
            r.append(lambda i=i: self.a(f"v_and_b32 v{dst+2*i+1}, 0xffff0000, v{src+i}"))
        return r
    def bias_rd(self, l):
        for k in range(4):
            self.lgop(f"ds_read_b128 {vr(ACC2+4*k,4)}, v{vBI} offset:{(0 if self.dyn else l*256) + (k>>1)*128 + (k&1)*16}", "bias")
    def run(self, lst):
        for f in lst: f()
    def mix(self, *lists):
        lists = [list(x) for x in lists]
        while any(lists):
            for x in lists:
                if x: x.pop(0)()
    def srd(self, r, p, n, bias=0):
        if bias:
            self.a(f"s_sub_u32 s{r}, s{p}, {bias}"); self.a(f"s_subb_u32 s{r+1}, s{p+1}, 0")
        else:
            self.a(f"s_mov_b32 s{r}, s{p}"); self.a(f"s_mov_b32 s{r+1}, s{p+1}")
        self.a(f"s_mov_b32 s{r+2}, {n+bias}"); self.a(f"s_mov_b32 s{r+3}, 0x20000")
    def poll(self, l):
        self.vmop(f"buffer_load_dwordx4 {vr(RX,4)}, v{vE}, {sr(sE,4)}, s{sSL} offen sc1", f"poll{l}")
    def send(self, l, u=None):
        a = self.a; u = u if u is not None else f"{self.X}{l}"
        a(f"s_xor_b32 s{sPTMP}, s{sSL}, 512")
        for k in range(4): a(f"v_cvt_pk_bf16_f32 v{SP+k}, v{ACC1+2*k}, v{ACC1+2*k+1}")
        for k in range(4): a(f"v_and_or_b32 v{SP+k}, v{SP+k}, -2, s{sTAG}")
        if l == 0: self.handshake()
        self.stamp(f"snd{u}")
        a(f"s_cmp_eq_u32 s{sMODE}, 0"); a(f"s_cbranch_scc1 L_ss{u}")
        self.vmop(f"buffer_store_dwordx4 {vr(SP,4)}, v{vE}, {sr(sE,4)}, s{sPTMP} offen", "st")
        self.lab(f"L_sd{u}")
        self.xl(f"L_ss{u}")
        self.x(f"buffer_store_dwordx4 {vr(SP,4)}, v{vE}, {sr(sE,4)}, s{sPTMP} offen sc1")
        self.x("s_nop 1"); self.x(f"s_branch L_sd{u}")
    def chk_ops(self, l):
        R = RX; t0 = vT[3]
        return [f"v_xor_b32 v{t0}, s{sTAG}, v{R}"] + [f"v_bitop3_b32 v{t0}, v{R+k}, v{t0}, s{sTAG} bitop3:0xde" for k in (1, 2, 3)] + \
               [f"v_and_b32 v{t0}, 1, v{t0}", f"v_cmp_ne_u32 vcc, 0, v{t0}"]
    def next_msg(self):
        if not self.opts.get("one"): self.a(f"s_xor_b32 s{sSL}, s{sSL}, 16384")
        self.a(f"s_lshr_b32 s{sTS}, s{sTS}, 1"); self.a(f"s_and_b32 s{sTAG}, s{sTS}, 1")
    def check_post(self, l, d=None):
        u = f"{self.X}{l}"; x = self.x; a = self.a
        self.wvm(f"poll{l}")
        self.stamp(f"chk{u}")
        if self.opts.get("dbgcnt"): a(f"s_mov_b32 s{sCNT}, 0")
        for s in self.chk_ops(l): a(s)
        a(f"s_cbranch_vccnz L_rt{u}")
        self.lab(f"L_got{u}")
        self.stamp(f"got{u}")
        if self.opts.get("dbgcnt"): self.rec(f"cnt{l}", f"s{sCNT}")
        self.xl(f"L_rt{u}")
        x(f"s_mov_b32 s{sCNT}, 0")
        self.xl(f"L_rl{u}")
        x(f"buffer_load_dwordx4 {vr(RX,4)}, v{vE}, {sr(sE,4)}, s{sSL} offen sc1")
        if "retrydelay" in self.opts: x("s_add_u32 s96, s96, 1")
        x(f"s_add_u32 s{sCNT}, s{sCNT}, 1"); x(f"s_cmp_gt_u32 s{sCNT}, 0x200000")
        x("s_waitcnt vmcnt(0)")
        x(f"s_cbranch_scc1 L_got{u}")
        for s in self.chk_ops(l): x(s)
        x(f"s_cbranch_vccnz L_rl{u}")
        x(f"s_branch L_got{u}")
        ops = []
        for h in range(2):
            ops += self.unpack(T4, RX+2*h, 2)
            if self.opts.get("pkadd", 0):
                for k in range(2): ops.append(lambda k=k, h=h: a(f"v_pk_add_f32 {vr(T4+2*k,2)}, {vr(T4+2*k,2)}, {vr(ACC1+4*h+2*k,2)}"))
            else:
                for k in range(4): ops.append(lambda k=k, h=h: a(f"v_add_f32 v{T4+k}, v{T4+k}, v{ACC1+4*h+k}"))
            for k in range(2): ops.append(lambda k=k, h=h: a(f"v_cvt_pk_bf16_f32 v{HP+2*h+k}, v{T4+2*k}, v{T4+2*k+1}"))
        ops.append(lambda: self.lgop(f"ds_write_b128 v{vHW}, {vr(HP,4)}", "hw"))
        ops.append(self.next_msg)
        if d is None:
            self.run(ops); self.bias_rd(l); return
        d = list(d); st = self.opts.get("vper", 10)
        while ops:
            self.run(ops[:st]); ops = ops[st:]
            if ops and d: d.pop(0)()
        self.run(d)
    def x_reads(self):
        return [lambda ks=ks: self.lgop(f"ds_read_b128 {ar(aX+4*(ks-2),4)}, v{vXR[ks>>1]} offset:{(ks&1)*1024}", f"x{ks}") for ks in range(2, 8)]
    def h_reads(self):
        for kr in range(1, 4):
            self.lgop(f"ds_read_b128 {ar(aH+4*(kr-1),4)}, v{vHR[kr]}", f"h{kr}")

    def g2_phase(self, l, early=None, mid=None, late=None):
        early = list(early or []); mid = list(mid or []); late = list(late or [])
        def take(q): return [q[0:1], q[1:2]]
        self.h_reads()
        self.mf2(0, 0, take(early)); self.mf2(1, 0, take(early[2:]))
        self.wlg("h1"); self.mf2(0, 1, take(early[4:]))
        self.wlg("h2"); self.mf2(0, 2, take(early[6:] + mid))
        self.wlg("h3"); self.mf2(0, 3, take(mid[2:]))
        self.flush()
        e0 = self.epi(0, l); e1 = self.epi(1, l, pk=self.opts.get("pkfma", 1))
        u = f"{self.X}{l}"
        self.stamp(f"g2a{u}")
        if self.opts.get("e0mix", 0):
            self.mf2(1, 1, [[], late[0:4]])
            self.mf2(1, 2, [[], e0[0:3]])
            self.stamp(f"g2b{u}")
            self.mf2(1, 3, [e0[3:6], e0[6:-1]])
        else:
            self.mf2(1, 1); self.mf2(1, 2, [late[0:2], late[2:4]])
            self.stamp(f"g2b{u}")
            self.mf2(1, 3, [e0[0:2], e0[2:-1]])
        self.stamp(f"g2c{u}")
        e0[-1]()
        self.stamp(f"g2d{u}")
        self.run(e1[:-1])
        self.stamp(f"g2e{u}")
        e1[-1]()
        self.stamp(f"g2f{u}")
    def g1_phase(self, l, jitV=False, extra=None):
        xr = self.x_reads(); extra = list(extra or [])
        if jitV:
            rv = self.rdV(2) + self.rdV(3)
            ev = self.opts.get("earlyv", 8)
            pre = (self.rdV(0) + self.rdV(1))[ev:]
            self.run(pre[:4]); self.run(xr[0:2]); self.run(pre[4:])
            q = [xr[2], rv[0], rv[1], xr[3], rv[2], rv[3], xr[4], rv[4], rv[5], xr[5], rv[6], rv[7]]
            for ks in range(8):
                self.wlg(f"rV{ks>>1}_{ks&1}")
                if ks >= 2: self.wlg(f"x{ks}")
                self.mf1(ks, [q[0:2], q[2:3]]); q = q[3:]
        else:
            self.run(xr)
            for ks in range(8):
                if ks >= 2: self.wlg(f"x{ks}")
                self.mf1(ks, [extra[0:1], extra[1:2]]); extra = extra[2:]
            self.run(extra)
        self.send(l)
        self.run(self.unpack(XF, PK, 8))

    def prologue(self):
        a = self.a; T = [X0F + i for i in range(10)]
        a(f"s_load_dwordx8 {sr(sKA,8)}, s[0:1], 0")
        a(f"s_load_dwordx4 {sr(sKA+8,4)}, s[0:1], 32")
        a(f"s_load_dwordx2 {sr(sKA+12,2)}, s[0:1], 48")
        a("s_cmp_ge_u32 s2, 256"); a("s_cbranch_scc1 L_end")
        self.stamp("start"); self.stamp("rt0")
        a(f"v_lshrrev_b32 v{T[0]}, 6, v0"); a(f"v_and_b32 v{vLANE}, 63, v0")
        if self.opts.get("codepf", 1):
            a(f"s_getpc_b64 {sr(sX0,2)}"); a(f"v_lshlrev_b32 v{T[1]}, 7, v0"); a(f"s_and_b32 s{sX0}, s{sX0}, 0xffffff00")
            a(f"v_cmp_gt_u32 vcc, CODE_BYTES, v{T[1]}")
            a(f"s_and_saveexec_b64 {sr(sX0+2,2)}, vcc"); a("s_cbranch_execz L_nocpf")
            a(f"global_load_dword v{vJ}, v{T[1]}, {sr(sX0,2)}")
            self.lab("L_nocpf")
            a("s_mov_b64 exec, -1")
        a(f"v_readfirstlane_b32 s{sWV}, v{T[0]}")
        a(f"v_lshrrev_b32 v{T[6]}, 3, v{vLANE}"); a(f"v_and_b32 v{T[2]}, 6, v{T[6]}"); a(f"v_xor_b32 v{T[2]}, v{T[2]}, v{vLANE}")
        a(f"v_and_b32 v{T[2]}, 7, v{T[2]}"); a(f"v_lshlrev_b32 v{T[2]}, 4, v{T[2]}")
        a(f"v_and_b32 v{T[3]}, 4, v{T[6]}"); a(f"v_add_u32 v{T[1]}, v{T[6]}, v{T[3]}")
        a(f"v_lshl_add_u32 v{T[3]}, v{T[1]}, 10, v{T[2]}")
        voff = lambda j: ((j&1)*16 + (j>>1)*4)
        for j in range(2): a(f"v_add_u32 v{vV[j]}, {voff(j)*1024 - 1024*j + 3072}, v{T[3]}")
        a(f"s_and_b32 s{sT[0]}, s2, 0xf0"); a(f"s_lshl_b32 s{sT[0]}, s{sT[0]}, 14"); a(f"s_and_b32 s{sT[1]}, s2, 7"); a(f"s_lshl_b32 s{sT[1]}, s{sT[1]}, 15")
        a(f"s_and_b32 s{sT[2]}, s2, 8"); a(f"s_lshl_b32 s{sT[2]}, s{sT[2]}, 6")
        a(f"s_and_b32 s{sWS}, s{sWV}, 3"); a(f"s_lshr_b32 s{sXH}, s{sWV}, 2")
        a(f"s_or_b32 s{sT[0]}, s{sT[0]}, s{sT[1]}"); a(f"s_lshl_b32 s{sT[1]}, s{sXH}, 12"); a(f"s_or_b32 s{sT[1]}, s{sT[1]}, s{sT[2]}")
        a(f"s_or_b32 s{sT[4]}, s{sT[0]}, s{sT[1]}")
        a(f"s_lshl_b32 s{sT[3]}, s{sWS}, 7"); a(f"s_add_u32 s{sT[7]}, s{sT[4]}, s{sT[3]}")
        a(f"s_lshl1_add_u32 s{sT[5]}, s{sWS}, s{sXH}"); a(f"s_lshl_b32 s{sT[5]}, s{sT[5]}, 11"); a(f"s_add_u32 s{sT[5]}, s{sT[5]}, {XB}")
        a(f"s_mov_b32 m0, s{sT[5]}")
        a(f"s_lshr_b32 s{sT[0]}, s2, 3"); a(f"s_lshl3_add_u32 s{sT[0]}, s{sT[0]}, s{sWV}"); a(f"s_lshl_b32 s{sT[0]}, s{sT[0]}, 9")
        a(f"s_lshl2_add_u32 s{sT[1]}, s2, s{sWS}"); a(f"s_lshl_b32 s{sT[1]}, s{sT[1]}, 7"); a(f"s_sub_u32 s{sT[1]}, s{sT[1]}, {3*131072}")
        a(f"v_lshl_add_u32 v{T[8]}, v{vLANE}, 7, s{sT[0]}"); a(f"v_lshl_add_u32 v{T[9]}, v{vLANE}, 17, s{sT[1]}")
        a(f"v_cmp_gt_u32 vcc, 4, v{vLANE}")
        a(f"s_cmp_eq_u32 s{sXH}, 0"); a(f"s_cselect_b32 s{sT[0]}, 0x1ff, 15"); a(f"s_cselect_b32 s{sT[1]}, 15, 0x1ff")
        a(f"v_cndmask_b32 v{T[8]}, v{T[9]}, v{T[8]}, vcc")
        a("s_waitcnt lgkmcnt(0)")
        self.stamp("karg")
        self.srd(sX0, sKA+0, 4096*1024, 3072)
        self.vmop(f"buffer_load_dwordx4 v{vV[0]}, {sr(sX0,4)}, s{sT[7]} offen lds", "x0")
        self.vmop(f"buffer_load_dwordx4 v{vV[1]}, {sr(sX0,4)}, s{sT[7]} offen offset:1024 lds", "x0")
        self.srd(sV, sKA+4, 6*131072, 3072)
        a("s_mov_b32 exec_hi, 0"); a(f"s_mov_b32 exec_lo, s{sT[0]}")
        self.vmop(f"buffer_load_dword v{vJ}, v{T[8]}, {sr(sV,4)}, 0 offen offset:3072", "pf")
        self.srd(sU, sKA+2, 6*131072, 3072)
        a(f"s_mov_b32 exec_lo, s{sT[1]}")
        self.vmop(f"buffer_load_dword v{vJ}, v{T[8]}, {sr(sU,4)}, 0 offen offset:3072", "pf")
        a("s_mov_b64 exec, -1")
        a(f"v_and_b32 v{T[7]}, 7, v{vLANE}"); a(f"v_lshlrev_b32 v{T[9]}, 4, v{T[7]}"); a(f"v_lshl_add_u32 v{T[9]}, v{T[6]}, 10, v{T[9]}")
        a(f"s_mul_i32 s{sT[0]}, s{sXH}, 3072"); a(f"s_add_u32 s{sT[0]}, s{sT[0]}, s{sT[3]}"); a(f"s_add_u32 s{sT[0]}, s{sT[0]}, s{sT[2]}")
        a(f"v_mov_b32 v{vT[2]}, s2"); a(f"v_xor_b32 v{vT[2]}, 8, v{vT[2]}")
        self.srd(sB, sKA+6, 6*1024)
        self.srd(sD, sKA+10, 256)
        a("s_mov_b64 exec, 0xffffff")
        self.vmop(f"buffer_load_dwordx4 {vr(TM+4,4)}, v{T[9]}, {sr(sB,4)}, s{sT[0]} offen", "bias")
        a("s_mov_b64 exec, 1")
        self.vmop(f"buffer_load_ubyte v{vJ}, v{vT[2]}, {sr(sD,4)}, 0 offen", "touch")
        a("s_mov_b64 exec, -1")
        a(f"s_lshr_b32 s{sT[0]}, s{sWS}, 1"); a(f"s_lshl_b32 s{sT[0]}, s{sT[0]}, 13"); a(f"s_add_u32 s{sT[4]}, s{sT[4]}, s{sT[0]}")
        a(f"s_and_b32 s{sT[6]}, s{sWS}, 1"); a(f"s_lshl_b32 s{sT[0]}, s{sT[6]}, 11"); a(f"s_add_u32 s{sMY[0]}, s{sT[4]}, s{sT[0]}")
        a(f"v_lshrrev_b32 v{T[8]}, 5, v{vLANE}"); a(f"v_and_b32 v{vE}, 31, v{vLANE}"); a(f"v_lshlrev_b32 v{vE}, 4, v{vE}")
        a(f"v_lshl_add_u32 v{vE}, v{T[8]}, 10, v{vE}")
        for r in range(4): a(f"v_mov_b32 v{TM+r}, 0")
        self.srd(sO, sKA+8, 4096*1024)
        self.vmop(f"buffer_store_dwordx4 {vr(TM,4)}, v{vE}, {sr(sO,4)}, s{sMY[0]} offen {self.opts.get('clrf', 'sc1')}", "clr")
        a(f"s_add_u32 s{sMY[1]}, s{sMY[0]}, 16384")
        if self.opts.get("c1pos", 2) == 1: self.clr1(True)
        a(f"s_lshl_b32 s{sLB}, s{sWS}, 15"); a(f"s_add_u32 s{sT[3]}, s{sLB}, s{sT[2]}")
        for g in range(4):
            a(f"s_xor_b32 s{sT[4]}, s{sWS}, {g}"); a(f"s_lshl_b32 s{sT[4]}, s{sT[4]}, 7"); a(f"s_add_u32 s{sVG[g]}, s{sT[3]}, s{sT[4]}")
        for j in range(2, 4): a(f"v_add_u32 v{vV[j]}, {voff(j)*1024 - 1024*j + 3072}, v{T[3]}")
        a(f"s_lshl_b32 s{sT[4]}, s{sXH}, 13"); a(f"s_add_u32 s{sT[4]}, s{sT[4]}, s{sLB}")
        a(f"s_cmp_eq_u32 s{sXH}, 0")
        a(f"s_cselect_b32 s{sT[0]}, s{sVG[0]}, s{sVG[2]}"); a(f"s_cselect_b32 s{sT[1]}, s{sVG[1]}, s{sVG[3]}")
        self.stamp("i_x0")
        if not self.opts.get("noE", 1): a("s_barrier")
        def v0grp(k):
            a(f"s_add_u32 m0, s{sT[4]}, {k*4096}"); a("s_nop 0")
            for j in range(4):
                self.vmop(f"buffer_load_dwordx4 v{vV[j]}, {sr(sV,4)}, s{sT[k]} offen offset:{1024*j} lds", "V0")
        v0grp(0)
        v0grp(1)
        self.stamp("i_v0a")
        if self.opts.get("c1pos", 2) == 2: self.clr1(True)
        self.srd(sW, sKA+12, 8 << 20)
        self.srd(sE, sKA+8, 4096*1024)
        a(f"s_getreg_b32 s{sXCC}, hwreg(HW_REG_XCC_ID)"); a(f"s_and_b32 s{sXCC}, s{sXCC}, 15"); a(f"s_or_b32 s{sXCC}, s{sXCC}, 16")
        a(f"v_lshl_add_u32 v{T[4]}, v{T[1]}, 8, v{T[2]}")
        a(f"s_lshl_b32 s{sT[0]}, s{sT[6]}, 6"); a(f"v_xor_b32 v{T[4]}, s{sT[0]}, v{T[4]}")
        for j in range(4):
            a(f"v_add_u32 v{vU[j]}, {voff(j)*256 - 1024*j + 3072}, v{T[4]}")
        a(f"s_lshl_b32 s{sT[0]}, s{sT[2]}, 7"); a(f"s_lshl_b32 s{sT[1]}, s{sWS}, 14"); a(f"s_add_u32 s{sT[0]}, s{sT[0]}, s{sT[1]}")
        a(f"s_and_b32 s{sT[1]}, s{sWS}, 2"); a(f"s_lshl_b32 s{sT[1]}, s{sT[1]}, 6"); a(f"s_add_u32 s{sUG[0]}, s{sT[0]}, s{sT[1]}")
        a(f"s_add_u32 s{sUG[1]}, s{sUG[0]}, 8192"); a(f"s_xor_b32 s{sUG[2]}, s{sUG[0]}, 128"); a(f"s_xor_b32 s{sUG[3]}, s{sUG[1]}, 128")
        if self.opts.get("pad", 0):
            a("s_mov_b64 exec, 0")
            for w in range(7):
                a(f"s_cmp_eq_u32 s{sWV}, {w}"); a(f"s_cbranch_scc1 L_pad{w>>2}_{w&3}")
            a("s_branch L_pad1_3")
            self.lab("L_warm_done")
            a("s_mov_b64 exec, -1")
            self.o.append("    ; PADSTART")
        self.stamp("warm")
        self.wvm("bias" if self.opts.get("latec", 1) else "clr")
        a(f"v_lshrrev_b32 v{T[0]}, 4, v{vLANE}")
        a(f"v_and_b32 v{T[1]}, 6, v{vLANE}"); a(f"v_xor_b32 v{T[2]}, v{T[1]}, v{T[0]}"); a(f"v_lshlrev_b32 v{T[2]}, 4, v{T[2]}")
        a(f"v_and_b32 v{T[1]}, 15, v{vLANE}"); a(f"v_lshl_add_u32 v{T[2]}, v{T[1]}, 7, v{T[2]}")
        a(f"v_add_u32 v{T[3]}, s{sT[5]}, v{T[2]}"); a(f"v_xor_b32 v{T[5]}, 64, v{T[3]}")
        for P in range(2):
            self.lgop(f"ds_read_b128 {vr(PK+4*P,4)}, v{T[5] if P else T[3]}", "x0r")
        a(f"v_add_u32 v{vA[0]}, s{sLB}, v{T[2]}"); a(f"v_xor_b32 v{vA[1]}, 64, v{vA[0]}")
        a(f"v_lshlrev_b32 v{T[1]}, 4, v{vLANE}")
        a(f"v_add_u32 v{vXW}, s{sT[5]}, v{T[1]}")
        for g in range(1, 4): a(f"v_xor_b32 v{vXR[g]}, {g*4096}, v{vXW}")
        a(f"s_lshl_b32 s{sT[0]}, s{sWV}, 10"); a(f"s_add_u32 s{sT[0]}, s{sT[0]}, {HB}")
        a(f"v_add_u32 v{vHW}, s{sT[0]}, v{T[1]}")
        for g in range(1, 4): a(f"v_xor_b32 v{vHR[g]}, {g*1024}, v{vHW}")
        a(f"s_mul_i32 s{sT[0]}, s{sWS}, 1536"); a(f"s_add_u32 s{sT[0]}, s{sT[0]}, {BIASB}")
        a(f"v_lshl_add_u32 v{vBI}, v{T[0]}, 5, s{sT[0]}")
        a(f"s_mul_i32 s{sT[1]}, s{sXH}, 768"); a(f"s_add_u32 s{sT[0]}, s{sT[0]}, s{sT[1]}")
        a(f"v_lshlrev_b32 v{T[7]}, 5, v{T[7]}"); a(f"v_lshl_add_u32 v{T[7]}, v{T[6]}, 8, v{T[7]}"); a(f"v_add_u32 v{vT[0]}, s{sT[0]}, v{T[7]}")
        self.run(self.unpack(TM+8, TM+4, 4))
        a(f"v_and_b32 v{RX+1}, 3, v{vLANE}"); a(f"v_lshlrev_b32 v{RX+1}, 7, v{RX+1}")
        a(f"v_bfe_u32 v{RX}, v{vLANE}, 2, 1"); a(f"v_lshl_add_u32 v{RX+1}, v{RX}, 10, v{RX+1}")
        a(f"v_bfe_u32 v{RX}, v{vLANE}, 3, 1"); a(f"v_lshl_add_u32 v{RX+1}, v{RX}, 14, v{RX+1}")
        self.wlg("x0r")
        for P in range(2):
            self.lgop(f"ds_write_b128 v{vXW}, {vr(PK+4*P,4)} offset:{P*1024}", "xw")
        a("s_mov_b64 exec, 0xffffff")
        self.lgop(f"ds_write_b128 v{vT[0]}, {vr(TM+8,4)}", "bw")
        self.lgop(f"ds_write_b128 v{vT[0]}, {vr(TM+12,4)} offset:16", "bw")
        a("s_mov_b64 exec, -1")
        self.run(self.unpack(X0F, PK, 8))
        if "retrydelay" in self.opts: a("s_mov_b32 s96, 0")
        a(f"s_mov_b32 s{sSL}, s{sMY[0]}"); a(f"s_mov_b32 s{sTS}, {0x15 if self.opts.get('one') else sum(t << i for i, t in enumerate(TAGS))}"); a(f"s_mov_b32 s{sTAG}, {TAGS[0]}")
        a(f"s_xor_b32 s{sT[3]}, s2, 8"); a(f"s_and_b32 s{sT[2]}, s{sT[3]}, 0xfc"); a(f"s_and_b32 s{sT[3]}, s{sT[3]}, 3"); a(f"s_lshl_b32 s{sT[3]}, s{sT[3]}, 3")
        self.stamp("issued")
        self.wvm("V0"); self.wvm("clr")
        self.bar("b0")
        a(f"s_cmp_lg_u32 s{sXH}, 0"); a("s_cbranch_scc1 L_progB")
        a(f"s_cmp_lg_u32 s{sWV}, 0"); a("s_cbranch_scc1 L_noflag")
        a(f"v_mov_b32 v{RX}, s2"); a(f"v_mov_b32 v{vT[1]}, s{sXCC}"); a("s_mov_b64 exec, 1")
        a(f"buffer_store_byte v{vT[1]}, v{RX}, {sr(sD,4)}, 0 offen"); a("s_mov_b64 exec, -1")
        self.lab("L_noflag")

    def box(self, m):
        if not m: return
        self.a(f"s_mov_b64 exec, {m}")
        self.vmop(f"buffer_load_dword v{vJ}, v{RX+1}, {sr(sO,4)}, s{sMY[0]} offen sc1", "bt")
        self.a("s_mov_b64 exec, -1")
    def clr1(self, early=False):
        if early != (self.opts.get("c1pos", 2) != 0) or self.opts.get("one"): return
        self.vmop(f"buffer_store_dwordx4 {vr(TM,4)}, v{vE}, {sr(sO,4)}, s{sMY[1]} offen {self.opts.get('clrf', 'sc1')}", "clr1")
    def flag_ld(self):
        self.a(f"s_load_dword s{sT[1]}, {sr(sKA+10,2)}, s{sT[2]} glc")
    def bias_ops(self, l):
        return [lambda k=k: self.lgop(f"ds_read_b128 {vr(ACC2+4*k,4)}, v{vBI} offset:{(0 if self.dyn else l*256) + (k>>1)*128 + (k&1)*16}", "bias") for k in range(4)]
    def light1(self, kind, l, rd, lp, n1=None):
        d = self.dma(kind, l, 0) + self.dma(kind, l, 1)
        n1 = n1 or self.opts.get("n1", 8)
        self.carry = d[n1:]; d = d[:n1]
        pp = self.opts.get("pollat", 2); r0 = self.opts.get("rd1at", 0)
        rd = list(rd) + self.bias_ops(lp)
        per = self.opts.get("rd1per", 4)
        for k in range(8):
            if k == pp: self.poll(lp)
            if k < len(d): d[k]()
            if r0 <= k and (k - r0) % self.opts.get("dper", 1) == 0: self.run(rd[:per]); rd = rd[per:]
            self.stamp(f"l1{self.X}{lp}_{k}")
        if pp >= 8: self.poll(lp)
    def light2(self, kind, l, rd, lp):
        self.run(self.carry)
        d = self.dma(kind, l, 2) + self.dma(kind, l, 3) + [lambda: None] * 8
        p2 = self.opts.get("pre2", 3); rd = list(rd)
        if self.opts.get("l2mode", 0) == 1 or l >= L:
            m2 = self.opts.get("mid2", 1)
            self.run(d[:p2])
            self.check_post(lp, d[p2:p2+m2])
            self.run(rd[:4]); d[p2+m2](); self.run(rd[4:])
            self.wvm(f"{kind}{l}a")
            self.run(d[p2+m2+1:8])
            return
        self.run(d[:p2])
        self.run(rd[:4]); d[p2](); self.run(rd[4:]); d[p2+1]()
        self.stamp(f"pd{self.X}{lp}")
        self.check_post(lp, d[p2+2:p2+3])
        self.stamp(f"po{self.X}{lp}")
        self.wvm(f"{kind}{l}a")
        self.run(d[p2+3:8])
        self.stamp(f"en{self.X}{lp}")
    def progA(self):
        a = self.a
        bx = [int(m, 16) for m in str(self.opts.get("boxA", "0,0")).split(",")]
        self.prio(2)
        self.clr1(); self.box(bx[0])
        xr = self.x_reads(); rv = [f for g in range(4) for f in self.rdV(g)]
        self.run(rv[0:4]); self.run(xr[0:2]); self.run(rv[4:8]); self.run(xr[2:4])
        q = rv[8:12] + xr[4:6] + rv[12:16]
        for ks in range(8):
            self.wlg(f"rV{ks>>1}_{ks&1}")
            if ks >= 2: self.wlg(f"x{ks}")
            self.mf1(ks, [q[0:1], q[1:2]]); q = q[2:]
            if ks == self.opts.get("flagat", 5): self.flag_ld()
        self.send(0)
        self.box(bx[1])
        self.run(self.unpack(XF, PK, 8))
        self.prio(0)
        self.bar("b1")
        self.light1("V", 1, self.rdU(0) + self.rdU(1), 0, 8)
        self.bar("b1x")
        self.run(self.rdU(2))
        self.check_post(0, [])
        self.run(self.rdU(3))
        self.wvm("V1a")
        self.bar("b2")
        self.a(f"s_mov_b32 s{sLOFF}, {2*131072}"); self.a(f"v_add_u32 v{vBI}, 256, v{vBI}")
        self.rounds(self.roundA)
    def rounds(self, body):
        self.dyn = True
        if not self.opts.get("loop", 1):
            for l in range(L): body(l, None)
            return
        u = self.X
        self.a(f"s_mov_b32 s{sIT}, 4")
        keep = self.o; self.o = []; self.emit_ool = False
        body(0, None)
        self.o = keep; self.emit_ool = True
        if self.opts.get("loopalign", 1): self.o.append("    .p2align 6")
        self.lab(f"L_loop{u}")
        body(1, f"L_loop{u}")
        keep = self.o; self.o = []; self.emit_ool = False
        body(2, None); body(3, None)
        self.o = keep; self.emit_ool = True
        body(4, None); body(5, None)
    def adv(self, back):
        self.a(f"s_add_u32 s{sLOFF}, s{sLOFF}, 131072"); self.a(f"v_add_u32 v{vBI}, 256, v{vBI}")
        if back: self.a(f"s_sub_u32 s{sIT}, s{sIT}, 1"); self.a(f"s_cmp_lg_u32 s{sIT}, 0")
    def roundA(self, l, back):
        last = l == L-1
        self.c(f"==== A round {l} phase 0: G2 ====")
        self.prio(2)
        ev = self.opts.get("earlyv", 8)
        self.g2_phase(l, early=(None if last else (self.rdV(0) + self.rdV(1))[:ev]))
        if last:
            self.final_store(bar=True); return
        self.wvm(f"V{l+1}b")
        self.stamp(f"g2g0{l}")
        self.bar(f"A0{l}")
        self.c(f"==== A round {l} phase 1: G1 ====")
        self.g1_phase(l+1, jitV=True)
        self.prio(0)
        self.bar(f"A1{l}")
        self.c(f"==== A round {l} phase 2 ====")
        self.light1("V", l+2, self.rdU(0) + self.rdU(1), l+1)
        self.bar(f"A2{l}")
        self.c(f"==== A round {l} phase 3 ====")
        self.light2("V", l+2, self.rdU(2) + self.rdU(3), l+1)
        if l == L-2: self.final_addr()
        self.wlg0()
        self.adv(back)
        self.bar(f"A3{l}")
        if back: self.a(f"s_cbranch_scc1 {back}")

    def progB(self):
        self.lab("L_progB")
        bx = [int(m, 16) for m in str(self.opts.get("boxB", "0,0,0")).split(",")]
        d = [f for g in range(4) for f in self.dma("U", 0, g, "DDDD")]
        rv = [f for g in range(4) for f in self.rdV(g)]
        self.run(d[:8]); self.clr1(); self.box(bx[0])
        for k in range(4):
            self.run(rv[4*k:4*k+4]); self.run(d[8+2*k:10+2*k])
        self.box(bx[1])
        self.wvm("U0a")
        self.bar("b1")
        self.prio(2)
        self.flag_ld()
        self.g1_phase(0, extra=self.rdU(0) + self.rdU(1))
        self.prio(0)
        self.wvm("U0b")
        self.box(bx[2])
        self.bar("b1x")
        self.mix(self.dma("V", 1, 2) + self.dma("V", 1, 3), self.rdU(2) + self.rdU(3))
        self.bar("b2")
        self.a(f"s_mov_b32 s{sLOFF}, 131072")
        self.rounds(self.roundB)
    def roundB(self, l, back):
        last = l == L-1
        self.c(f"==== B round {l} phase 0 ====")
        if not last:
            n0 = len(self.vm)
            self.light1("U", l+1, self.rdV(0) + self.rdV(1), l)
            self.a(f"s_waitcnt vmcnt({len(self.vm) - n0})"); self.vmdone = max(self.vmdone, n0)
            self.bar(f"B0{l}")
            self.c(f"==== B round {l} phase 1 ====")
            self.light2("U", l+1, self.rdV(2) + self.rdV(3), l)
        else:
            self.poll(l); self.bias_rd(l); self.check_post(l, [])
        self.bar(f"B1{l}")
        self.c(f"==== B round {l} phase 2: G2 ====")
        self.prio(2)
        if last:
            self.g2_phase(l); self.final_store(); return
        self.g2_phase(l, mid=self.rdU(0), late=self.rdU(1))
        self.wvm(f"U{l+1}b")
        self.bar(f"B2{l}")
        self.c(f"==== B round {l} phase 3: G1 ====")
        self.g1_phase(l+1, extra=self.rdU(2) + self.rdU(3))
        if l == L-2: self.final_addr()
        self.prio(0)
        self.wlg0()
        self.adv(back)
        self.bar(f"B3{l}")
        if back: self.a(f"s_cbranch_scc1 {back}")

    def final_addr(self):
        a = self.a; t = [RX, RX+1, RX+2]
        a(f"v_and_b32 v{t[0]}, 15, v{vLANE}"); a(f"v_lshrrev_b32 v{t[1]}, 4, v{vLANE}")
        a(f"v_and_b32 v{t[2]}, 7, v{t[0]}"); a(f"v_xor_b32 v{t[2]}, v{t[2]}, v{t[1]}"); a(f"v_lshlrev_b32 v{t[2]}, 4, v{t[2]}")
        a(f"v_lshl_add_u32 v{t[2]}, v{t[0]}, 7, v{t[2]}")
        a(f"v_and_b32 v{vT[0]}, 0xfffff800, v{vXW}"); a(f"v_add_u32 v{vT[0]}, v{vT[0]}, v{t[2]}"); a(f"v_xor_b32 v{vT[1]}, 64, v{vT[0]}")
        a(f"v_lshrrev_b32 v{t[0]}, 3, v{vLANE}"); a(f"v_xor_b32 v{t[1]}, v{t[0]}, v{vLANE}"); a(f"v_and_b32 v{t[1]}, 7, v{t[1]}")
        a(f"v_lshlrev_b32 v{t[1]}, 4, v{t[1]}")
        a(f"v_and_b32 v{t[2]}, 4, v{t[0]}"); a(f"v_add_u32 v{t[0]}, v{t[0]}, v{t[2]}")
        a(f"v_lshl_add_u32 v{vT[2]}, v{t[0]}, 10, v{t[1]}")

    def final_store(self, bar=False):
        a = self.a; D = XF
        for m in range(2):
            self.lgop(f"ds_read_b128 {vr(D+4*m,4)}, v{vXW} offset:{m*1024}", f"fo{m}")
        fl = self.opts.get("outflags", "") if self.X else self.opts.get("outflagsA", self.opts.get("outflags", ""))
        for m in range(2):
            a(f"s_add_u32 s{sT[m]}, s{sT[7]}, {m*16384}")
            self.wlg(f"fo{m}")
            self.vmop(f"buffer_store_dwordx4 {vr(D+4*m,4)}, v{vT[2]}, {sr(sO,4)}, s{sT[m]} offen {fl}", "out")
        if bar and self.opts.get("junk"):
            for m in range(4):
                a(f"s_add_u32 s{sT[2]}, s{sMY[0]}, {m*4096 if m < 2 else 16384 + (m-2)*4096}")
                a(f"buffer_store_dwordx4 {vr(D,4)}, v{vE}, {sr(sW,4)}, s{sT[2]} offen")
        if bar: a("s_barrier")
        if self.opts.get("stag"):
            u = self.X
            a("s_waitcnt vmcnt(0)")
            a(f"s_add_u32 s4, s{sKA+12}, 0x700000"); a(f"s_addc_u32 s5, s{sKA+13}, 0")
            a("s_load_dwordx8 s[84:91], s[4:5], 0"); a("s_memrealtime s[94:95]"); a("s_waitcnt lgkmcnt(0)")
            a("s_mov_b32 s92, 0")
            for i in range(8):
                a(f"s_sub_u32 s93, s{sSTAMP}, s{84+i}"); a("s_cmp_lt_u32 s93, 3000"); a("s_cselect_b32 s93, s93, 0"); a("s_max_u32 s92, s92, s93")
            self.lab(f"L_echo{u}")
            a("s_sleep 1"); a("s_memrealtime s[96:97]"); a("s_waitcnt lgkmcnt(0)"); a("s_sub_u32 s93, s96, s94")
            a("s_cmp_lt_u32 s93, s92"); a(f"s_cbranch_scc1 L_echo{u}")
        elif self.opts.get("echo"):
            u = self.X
            a("s_waitcnt vmcnt(0)"); self.stamp("fin")
            a("s_memtime s[90:91]"); a("s_waitcnt lgkmcnt(0)")
            a(f"s_sub_u32 s92, s{sSTAMP+2}, s{sSTAMP}")
            self.lab(f"L_echo{u}")
            a("s_sleep 1"); a("s_memtime s[94:95]"); a("s_waitcnt lgkmcnt(0)"); a("s_sub_u32 s93, s94, s90")
            a("s_cmp_lt_u32 s93, s92"); a(f"s_cbranch_scc1 L_echo{u}")
        elif self.prof:
            a("s_waitcnt vmcnt(0)")
            self.stamp("fin"); self.stamp("rt1")
            a("s_waitcnt lgkmcnt(0)")
            a(f"v_mov_b32 v{RX}, 0")
            for i in range(len(self.prof)): a(f"v_writelane_b32 v{RX}, s{sSTAMP+2*i}, {i}")
            a(f"s_lshl_b32 s{sT[0]}, s2, 3"); a(f"s_add_u32 s{sT[0]}, s{sT[0]}, s{sWV}"); a(f"s_lshl_b32 s{sT[0]}, s{sT[0]}, 8")
            a(f"s_add_u32 s{sT[0]}, s{sT[0]}, {6<<20}")
            a(f"v_lshlrev_b32 v{vT[0]}, 2, v{vLANE}")
            a(f"buffer_store_dword v{RX}, v{vT[0]}, {sr(sW,4)}, s{sT[0]} offen")
        if "modedelay" in self.opts:
            a(f"s_cmp_lg_u32 s{sMODE}, {self.opts['modedelay']}"); a(f"s_cbranch_scc1 L_md{self.X}")
            for i in range(5): a("s_sleep 125")
            self.lab(f"L_md{self.X}")
        if "retrydelay" in self.opts:
            self.lab(f"L_rd{self.X}")
            a("s_cmp_eq_u32 s96, 0"); a(f"s_cbranch_scc1 L_re{self.X}"); a("s_sleep 32"); a("s_sub_u32 s96, s96, 1"); a(f"s_branch L_rd{self.X}")
            self.lab(f"L_re{self.X}")
        for i in range(self.opts.get("delay", 0)): a("s_sleep 125")
        a("s_endpgm")

    def handshake(self):
        a = self.a; x = self.x; P = XF; u = self.X
        self.c("handshake: the partner's inbox is cleared; does it share this XCD?")
        a(f"s_mov_b32 s{sCNT}, 0"); a(f"s_mov_b32 s{sMODE}, 1")
        self.wvm("clr1")
        a("s_waitcnt lgkmcnt(0)"); self.lgdone = len(self.lg)
        a(f"s_lshr_b32 s{sT[0]}, s{sT[1]}, s{sT[3]}"); a(f"s_and_b32 s{sT[0]}, s{sT[0]}, 0xff")
        a(f"s_cmp_eq_u32 s{sT[0]}, s{sXCC}"); a(f"s_cbranch_scc0 L_hs_fast{u}")
        self.lab(f"L_hs_done{u}")
        self.rec("hscnt", f"s{sCNT}"); self.rec("mode", f"s{sMODE}")
        self.xl(f"L_hs_fast{u}")
        x(f"buffer_load_ubyte v{vT[1]}, v{vT[2]}, {sr(sD,4)}, 0 offen sc1")
        x("s_waitcnt vmcnt(0)")
        x(f"v_readfirstlane_b32 s{sT[0]}, v{vT[1]}")
        x(f"s_cmp_eq_u32 s{sT[0]}, s{sXCC}"); x(f"s_cbranch_scc1 L_hs_done{u}")
        x(f"s_add_u32 s{sCNT}, s{sCNT}, 1"); x(f"s_cmp_lt_u32 s{sCNT}, {self.opts.get('fastpolls', 8)}"); x(f"s_cbranch_scc1 L_hs_fast{u}")
        for r in range(4): x(f"v_mov_b32 v{P+4+r}, 0")
        for sl in range(2):
            x(f"buffer_store_dwordx4 {vr(P+4,4)}, v{vE}, {sr(sW,4)}, s{sMY[sl]} offen sc1")
        x(f"s_lshl_b32 s{sT[1]}, s2, 3"); x(f"s_add_u32 s{sT[1]}, s{sT[1]}, s{sWV}"); x(f"s_lshl_b32 s{sT[1]}, s{sT[1]}, 7")
        x(f"s_add_u32 s{sT[1]}, s{sT[1]}, {4<<20}")
        x(f"s_xor_b32 s{sT[2]}, s{sT[1]}, {8*8*128}")
        x(f"v_mov_b32 v{P+2}, 0")
        x("s_mov_b64 exec, 1")
        x(f"buffer_load_dwordx4 {vr(P+8,4)}, v{P+2}, {sr(sW,4)}, s{sT[2]} offen sc1")
        x("s_waitcnt vmcnt(0)")
        x(f"v_readfirstlane_b32 s{sT[3]}, v{P+10}")
        x(f"s_add_u32 s{sT[3]}, s{sT[3]}, 1")
        x(f"v_mov_b32 v{P+3}, s{sT[3]}")
        x(f"buffer_store_dword v{P+3}, v{P+2}, {sr(sW,4)}, s{sT[1]} offen sc1")
        x("s_waitcnt vmcnt(0)")
        x(f"s_mov_b32 s{sCNT}, 0")
        self.xl(f"L_hs_slow{u}")
        x(f"buffer_load_ubyte v{vT[1]}, v{vT[2]}, {sr(sD,4)}, 0 offen sc1")
        x(f"buffer_load_dwordx4 {vr(P+8,4)}, v{P+2}, {sr(sW,4)}, s{sT[2]} offen sc1")
        x("s_waitcnt vmcnt(0)")
        x(f"v_readfirstlane_b32 s{sT[0]}, v{vT[1]}")
        x(f"v_readfirstlane_b32 s{sT[5]}, v{P+8}")
        x(f"v_readfirstlane_b32 s{sT[4]}, v{P+10}")
        x(f"v_readfirstlane_b32 s{sMODE}, v{P+11}")
        x(f"s_cmp_eq_u32 s{sT[0]}, s{sXCC}"); x(f"s_cbranch_scc1 L_hs_same{u}")
        x(f"v_mov_b32 v{P+12}, s{sT[5]}"); x(f"v_mov_b32 v{P+13}, s{sXCC}")
        x(f"buffer_store_dwordx2 {vr(P+12,2)}, v{P+2}, {sr(sW,4)}, s{sT[1]} offen offset:8 sc1")
        x(f"s_add_u32 s{sCNT}, s{sCNT}, 1"); x(f"s_cmp_gt_u32 s{sCNT}, 0x200000"); x(f"s_cbranch_scc1 L_hs_same{u}")
        x(f"s_cmp_eq_u32 s{sT[4]}, s{sT[3]}"); x(f"s_cbranch_scc0 L_hs_slow{u}")
        x(f"s_cmp_eq_u32 s{sMODE}, s{sXCC}"); x(f"s_cbranch_scc1 L_hs_same{u}")
        x(f"s_mov_b32 s{sMODE}, 0")
        x(f"s_mov_b32 s{sE}, s{sKA+12}"); x(f"s_mov_b32 s{sE+1}, s{sKA+13}")
        x("s_mov_b64 exec, -1")
        x(f"s_branch L_hs_done{u}")
        self.xl(f"L_hs_same{u}")
        x(f"s_mov_b32 s{sMODE}, 1")
        x("s_mov_b64 exec, -1")
        x(f"s_branch L_hs_done{u}")

    def build(self):
        hdr = [f"; @launch grid=(256,1,1) block=(512,1,1) lds={LDS_BYTES}",
               '.amdgcn_target "amdgcn-amd-amdhsa--gfx950"', ".text", f".globl {KN}", ".p2align 8",
               f".type {KN},@function", f"{KN}:"]
        self.prologue()
        A = self.fork(0); A.progA()
        B = self.fork(1); B.progB()
        nb = lambda g: sum(1 for s in g.o if s.strip() == "s_barrier")
        assert nb(A) == nb(B), (nb(A), nb(B))
        assert NV + NA <= 256
        ftr = [f".set CODE_BYTES, L_end - {KN}", '.section .rodata,"a"', ".p2align 6", f".amdhsa_kernel {KN}",
               f"  .amdhsa_next_free_vgpr {NV+NA}", "  .amdhsa_next_free_sgpr 102", f"  .amdhsa_accum_offset {NV}",
               "  .amdhsa_group_segment_fixed_size 0", "  .amdhsa_kernarg_size 56", "  .amdhsa_user_sgpr_count 2",
               "  .amdhsa_user_sgpr_kernarg_segment_ptr 1", "  .amdhsa_system_sgpr_workgroup_id_x 1",
               "  .amdhsa_float_denorm_mode_32 3", ".end_amdhsa_kernel"]
        log = []
        m1, n1 = fix_hazards(self.o + A.o, log)
        m2, n2 = fix_hazards(B.o, log)
        ool, n3 = fix_hazards(self.ool)
        wrap = lambda ls: "\n".join(hdr + ls + ool + ftr) + "\n"
        sp = self.opts.get("pad", 0)
        if sp:
            from asmlib import sizes, parse
            def padded(lines, x, start, lim):
                dummy = [f"L_pad{a}_{b}:" for a in range(2) for b in range(4)]
                others = m2 if x == 0 else m1
                sz = iter(sizes(wrap([l for l in lines + others if not l.strip().startswith(".p2align")] + dummy + ["L_end:", "    s_endpgm"])))
                out = []; pos = []; acc = sp; on = not start; tot = 0
                for l in lines:
                    if start and start in l: on = True
                    if parse(l) is not None:
                        b = next(sz)
                        if on and acc >= sp and tot < lim:
                            pos.append(len(out)); out.append(None); acc = 4
                        acc += b
                        if on: tot += b
                    out.append(l)
                res = []; n = len(pos); k = 0
                for l in out:
                    if l is None:
                        res.append(f"L_pad{x}_{k}:"); res.append(f"    s_cbranch_execz " + (f"L_pad{x}_{k+4}" if k + 4 < n else "L_warm_done")); k += 1
                    else: res.append(l)
                return res
            lim = self.opts.get("padlim", 4000)
            m1, m2 = padded(m1, 0, "PADSTART", lim), padded(m2, 1, None, lim)
        main = m1 + m2 + ["L_end:", "    s_endpgm"]
        if self.opts.get("align", 1):
            main, nw, nn = align(main, wrap, self.opts.get("minrun", 99))
            sys.stderr.write(f"hazard nops {n1}+{n2}+{n3}, widened {nw}, align nops {nn}\n")
        if self.opts.get("hlog"):
            for e in log: sys.stderr.write(str(e) + "\n")
        return wrap(main)

if __name__ == "__main__":
    prof = None; opts = {}
    for x in sys.argv[1:]:
        if x.startswith("--prof="): prof = x[7:].split(",")
        elif x.startswith("--"):
            k, v = x[2:].split("="); opts[k] = int(v) if v.lstrip("-").isdigit() else v
    out = [x for x in sys.argv[1:] if not x.startswith("--")][0]
    g = Gen(prof, opts); txt = g.build()
    if prof: txt = txt + "; stamps: " + ",".join(prof) + "\n"
    open(out, "w").write(txt)
```

```python
import sys, copy
from asmlib import fix_hazards, align
KN = "standalone__cross_network_dcn_v2__recsys_kernel"
L = 6
XB = 131072; HB = 147456; BIASB = 155648; LDS_BYTES = 161792
TAGS = [1, 1, 0, 0, 1, 1]

vLANE = 1; vA = [2, 21]; vE = 3; vV = [4, 5, 6, 7]; vU = [8, 9, 10, 11]
vXW = 12; vXR = [None, 13, 14, 15]; vHW = 16; vHR = [None, 17, 18, 19]
vBI = 20; vT = [22, 23, 24, 25]; vJ = 0
ACC1 = 26; ACC2 = 34; XF = 50; X0F = 66; PK = 82; HP = 90; RX = 94; TM = ACC2; SP = HP; T4 = 98; vPF = 102
NV = 104
aV = 0; aU = 64; aX = 128; aH = 128; aS = 128; NS = 6; NA = 152
sX0 = 4; sV = 8; sU = 12; sO = 16; sE = 20; sD = 24; sB = 28; sW = 32
sKA = 36
sWV = 50; sHF = 51; sRB = 52; sXCC = 53; sMODE = 54
sVG = [55, 56, 57, 58]; sUG = [59, 60, 61, 62]; sSO = [63, 64]; sLB = 65
sMY = [66, 67]; sWS = 68; sXH = 69
sLOFF = 4; sSL = 5; sTS = 6; sTAG = 7; sIT = 3
sCNT = 70; sT = [71, 72, 73, 74, 75, 76, 77, 78]; sPTMP = 79
sSTAMP = 80

def vr(b, n): return f"v[{b}:{b+n-1}]"
def ar(b, n): return f"a[{b}:{b+n-1}]"
def sr(b, n): return f"s[{b}:{b+n-1}]"

class Gen:
    def __init__(self, prof=None, opts=None):
        self.o = []; self.ool = []; self.vm = []; self.lg = []; self.vmdone = 0; self.lgdone = 0
        self.prof = prof; self.opts = opts or {}; self.names = []
        self.pw = []; self.nso = 0; self.nst = 0; self.X = 0; self.dyn = False; self.emit_ool = True
        self.pat = self.opts.get("pat", "BBBB/DBDB/DDDB/DDDB"); self.lag = self.opts.get("lag", 4)
    def fork(self, X):
        g = copy.copy(self); g.o = []; g.vm = list(self.vm); g.lg = list(self.lg); g.pw = list(self.pw); g.X = X
        return g
    def a(self, s): self.o.append("    " + s)
    def x(self, s):
        if self.emit_ool: self.ool.append("    " + s)
    def xl(self, s):
        if self.emit_ool: self.ool.append(s + ":")
    def lab(self, s): self.o.append(s + ":")
    def c(self, s): self.o.append("    ; " + s)
    def vmop(self, s, tag): self.vm.append(tag); self.a(s)
    def lgop(self, s, tag): self.lg.append(tag); self.a(s)
    def _last(self, lst, tag):
        idx = [i for i, t in enumerate(lst) if t == tag]
        return idx[-1] if idx else None
    def wvm(self, tag):
        i = self._last(self.vm, tag)
        if i is not None: self.wvmi(i)
    def wvmi(self, i):
        if i < self.vmdone: return
        n = min(len(self.vm) - 1 - i, 63); self.vmdone = len(self.vm) - n
        self.a(f"s_waitcnt vmcnt({n})")
    def wlg(self, tag):
        i = self._last(self.lg, tag)
        if i is None or i < self.lgdone: return
        n = min(len(self.lg) - 1 - i, 15); self.lgdone = len(self.lg) - n
        self.a(f"s_waitcnt lgkmcnt({n})")
    def wlg0(self):
        if self.lgdone < len(self.lg): self.lgdone = len(self.lg); self.a("s_waitcnt lgkmcnt(0)")
    def bar(self, name=None):
        self.wlg0()
        if name: self.stamp(name + "a")
        self.a("s_barrier")
        if name: self.stamp(name + "b")
    def stamp(self, name):
        nm = name + "AB"[self.X] if False else name
        if self.prof and nm in self.prof:
            r = sSTAMP + 2 * self.prof.index(nm)
            assert r + 1 <= 101
            self.a(f"s_memrealtime s[{r}:{r+1}]" if nm.startswith("rt") else f"s_memtime s[{r}:{r+1}]")
    def rec(self, name, src):
        if self.prof and name in self.prof:
            self.a(f"s_mov_b32 s{sSTAMP + 2*self.prof.index(name)}, {src}")
    def prio(self, p):
        m = self.opts.get("prio", 1)
        if m == 1: self.a(f"s_setprio {p}")
        if m == 2: self.a(f"s_setprio {2-p}")
    def dma(self, kind, l, g, pat=None):
        if l >= L: return []
        if self.opts.get("dma") == "off" and l >= 2: return []
        pat = pat or self.pat.split("/")[g]
        so = sSO[self.nso & 1]; self.nso += 1
        base, sg, vv, srd = (0, sVG, vV, sV) if kind == "V" else (16384, sUG, vU, sU)
        tag = f"{kind}{l}" + "ab"[g >> 1]
        items = []
        for j in range(4):
            def emit(j=j):
                while self.pw and len(self.vm) - self.pw[0][0] > self.lag: self.pw.pop(0)[1]()
                if j == 0:
                    self.a(f"s_add_u32 m0, s{sLB}, {base+g*4096}"); self.a(f"s_add_u32 s{so}, s{sg[g]}, s{sLOFF}" if self.dyn else f"s_add_u32 s{so}, s{sg[g]}, {l*131072}")
                if pat[j % len(pat)] in "DBC":
                    self.vmop(f"buffer_load_dwordx4 v{vv[j]}, {sr(srd,4)}, s{so} offen offset:{1024*j} lds", tag)
                    for q in range({"D": 0, "B": 1, "C": 2}[pat[j % len(pat)]]): self.vmop(f"buffer_load_dword v{vJ}, off, {sr(sB,4)}, 0", "gap")
            items.append(emit)
        return items
    def flush(self, keep3=False):
        while self.pw and not (keep3 and self.pw[0][2] == 3): self.pw.pop(0)[1]()
    def rdV(self, g):
        return [lambda j=j: self.lgop(f"ds_read_b128 {ar(aV+4*(4*g+j),4)}, v{vA[j>>1]} offset:{g*4096+(j&1)*2048}", f"rV{g}_{j>>1}") for j in range(4)]
    def rdU(self, g):
        return [lambda j=j: self.lgop(f"ds_read_b128 {ar(aU+4*(4*g+j),4)}, v{vA[j>>1]} offset:{16384+g*4096+(j&1)*2048}", f"rU{g}") for j in range(4)]
    def mf1(self, ks, fill=None):
        for ta in range(2):
            b = vr(PK + 4*ks, 4) if ks < 2 else ar(aX + 4*(ks-2), 4)
            d = vr(ACC1 + 4*ta, 4)
            self.a(f"v_mfma_f32_16x16x32_bf16 {d}, {ar(aV+4*(2*ks+ta),4)}, {b}, {'0' if ks == 0 else d}")
            if fill: self.run(fill[ta])
    def mf2(self, P, kr, fill=None):
        for ta in range(2):
            b = vr(HP, 4) if kr == 0 else ar(aH + 4*(kr-1), 4)
            d = vr(ACC2 + 8*P + 4*ta, 4)
            idx = ((kr >> 1)*2 + P)*4 + (kr & 1)*2 + ta
            self.a(f"v_mfma_f32_16x16x32_bf16 {d}, {ar(aU+4*idx,4)}, {b}, {d}")
            if fill: self.run(fill[ta])
    def epi(self, P, l, pk=False):
        r = []
        if pk:
            for e in range(4):
                q = 8*P + 2*e
                r.append(lambda q=q: self.a(f"v_pk_fma_f32 {vr(ACC2+q,2)}, {vr(X0F+q,2)}, {vr(ACC2+q,2)}, {vr(XF+q,2)}"))
        else:
            for e in range(8):
                q = 8*P + e
                r.append(lambda q=q: self.a(f"v_fma_f32 v{ACC2+q}, v{X0F+q}, v{ACC2+q}, v{XF+q}"))
        for e in range(4):
            q = 8*P + 2*e
            r.append(lambda q=q: self.a(f"v_cvt_pk_bf16_f32 v{PK+q//2}, v{ACC2+q}, v{ACC2+q+1}"))
        if l < L-1: r.append(lambda: self.lgop(f"ds_write_b128 v{vXW}, {vr(PK+4*P,4)} offset:{P*1024}", "xw"))
        else: r.append(lambda: self.lgop(f"ds_write_b128 v{vT[P]}, {vr(PK+4*P,4)}", "xw"))
        return r
    def unpack(self, dst, src, n):
        r = []
        for i in range(n):
            r.append(lambda i=i: self.a(f"v_lshlrev_b32 v{dst+2*i}, 16, v{src+i}"))
            r.append(lambda i=i: self.a(f"v_and_b32 v{dst+2*i+1}, 0xffff0000, v{src+i}"))
        return r
    def bias_rd(self, l):
        for k in range(4):
            self.lgop(f"ds_read_b128 {vr(ACC2+4*k,4)}, v{vBI} offset:{(0 if self.dyn else l*256) + (k>>1)*128 + (k&1)*16}", "bias")
    def run(self, lst):
        for f in lst: f()
    def mix(self, *lists):
        lists = [list(x) for x in lists]
        while any(lists):
            for x in lists:
                if x: x.pop(0)()
    def srd(self, r, p, n, bias=0):
        if bias:
            self.a(f"s_sub_u32 s{r}, s{p}, {bias}"); self.a(f"s_subb_u32 s{r+1}, s{p+1}, 0")
        else:
            self.a(f"s_mov_b32 s{r}, s{p}"); self.a(f"s_mov_b32 s{r+1}, s{p+1}")
        self.a(f"s_mov_b32 s{r+2}, {n+bias}"); self.a(f"s_mov_b32 s{r+3}, 0x20000")
    def poll(self, l):
        self.vmop(f"buffer_load_dwordx4 {vr(RX,4)}, v{vE}, {sr(sE,4)}, s{sSL} offen sc1", f"poll{l}")
    def send(self, l, u=None):
        a = self.a; u = u if u is not None else f"{self.X}{l}"
        a(f"s_xor_b32 s{sPTMP}, s{sSL}, 512")
        for k in range(4): a(f"v_cvt_pk_bf16_f32 v{SP+k}, v{ACC1+2*k}, v{ACC1+2*k+1}")
        for k in range(4): a(f"v_and_or_b32 v{SP+k}, v{SP+k}, -2, s{sTAG}")
        if l == 0: self.handshake()
        self.stamp(f"snd{u}")
        a(f"s_cmp_eq_u32 s{sMODE}, 0"); a(f"s_cbranch_scc1 L_ss{u}")
        self.vmop(f"buffer_store_dwordx4 {vr(SP,4)}, v{vE}, {sr(sE,4)}, s{sPTMP} offen {self.opts.get('sendf', '')}", "st")
        self.lab(f"L_sd{u}")
        self.xl(f"L_ss{u}")
        self.x(f"buffer_store_dwordx4 {vr(SP,4)}, v{vE}, {sr(sE,4)}, s{sPTMP} offen sc1")
        self.x("s_nop 1"); self.x(f"s_branch L_sd{u}")
    def chk_ops(self, l):
        R = RX; t0 = vT[3]
        return [f"v_xor_b32 v{t0}, s{sTAG}, v{R}"] + [f"v_bitop3_b32 v{t0}, v{R+k}, v{t0}, s{sTAG} bitop3:0xde" for k in (1, 2, 3)] + \
               [f"v_and_b32 v{t0}, 1, v{t0}", f"v_cmp_ne_u32 vcc, 0, v{t0}"]
    def next_msg(self):
        if not self.opts.get("one"): self.a(f"s_xor_b32 s{sSL}, s{sSL}, 16384")
        self.a(f"s_lshr_b32 s{sTS}, s{sTS}, 1"); self.a(f"s_and_b32 s{sTAG}, s{sTS}, 1")
    def check_post(self, l, d=None):
        u = f"{self.X}{l}"; x = self.x; a = self.a
        self.wvm(f"poll{l}")
        self.stamp(f"chk{u}")
        if self.opts.get("dbgcnt"): a(f"s_mov_b32 s{sCNT}, 0")
        for s in self.chk_ops(l): a(s)
        a(f"s_cbranch_vccnz L_rt{u}")
        self.lab(f"L_got{u}")
        self.stamp(f"got{u}")
        if self.opts.get("dbgcnt"): self.rec(f"cnt{l}", f"s{sCNT}")
        self.xl(f"L_rt{u}")
        x(f"s_mov_b32 s{sCNT}, 0")
        self.xl(f"L_rl{u}")
        x(f"buffer_load_dwordx4 {vr(RX,4)}, v{vE}, {sr(sE,4)}, s{sSL} offen sc1")
        if "retrydelay" in self.opts: x("s_add_u32 s96, s96, 1")
        x(f"s_add_u32 s{sCNT}, s{sCNT}, 1"); x(f"s_cmp_gt_u32 s{sCNT}, 0x200000")
        x("s_waitcnt vmcnt(0)")
        x(f"s_cbranch_scc1 L_got{u}")
        for s in self.chk_ops(l): x(s)
        x(f"s_cbranch_vccnz L_rl{u}")
        x(f"s_branch L_got{u}")
        ops = []
        for h in range(2):
            ops += self.unpack(T4, RX+2*h, 2)
            if self.opts.get("pkadd", 0):
                for k in range(2): ops.append(lambda k=k, h=h: a(f"v_pk_add_f32 {vr(T4+2*k,2)}, {vr(T4+2*k,2)}, {vr(ACC1+4*h+2*k,2)}"))
            else:
                for k in range(4): ops.append(lambda k=k, h=h: a(f"v_add_f32 v{T4+k}, v{T4+k}, v{ACC1+4*h+k}"))
            for k in range(2): ops.append(lambda k=k, h=h: a(f"v_cvt_pk_bf16_f32 v{HP+2*h+k}, v{T4+2*k}, v{T4+2*k+1}"))
        ops.append(lambda: self.lgop(f"ds_write_b128 v{vHW}, {vr(HP,4)}", "hw"))
        ops.append(self.next_msg)
        if d is None:
            self.run(ops); self.bias_rd(l); return
        d = list(d); st = self.opts.get("vper", 10)
        while ops:
            self.run(ops[:st]); ops = ops[st:]
            if ops and d: d.pop(0)()
        self.run(d)
    def x_reads(self):
        return [lambda ks=ks: self.lgop(f"ds_read_b128 {ar(aX+4*(ks-2),4)}, v{vXR[ks>>1]} offset:{(ks&1)*1024}", f"x{ks}") for ks in range(2, 8)]
    def h_reads(self):
        for kr in range(1, 4):
            self.lgop(f"ds_read_b128 {ar(aH+4*(kr-1),4)}, v{vHR[kr]}", f"h{kr}")

    def g2_phase(self, l, early=None, mid=None, late=None):
        early = list(early or []); mid = list(mid or []); late = list(late or [])
        def take(q): return [q[0:1], q[1:2]]
        self.h_reads()
        self.mf2(0, 0, take(early)); self.mf2(1, 0, take(early[2:]))
        self.wlg("h1"); self.mf2(0, 1, take(early[4:]))
        self.wlg("h2"); self.mf2(0, 2, take(early[6:] + mid))
        self.wlg("h3"); self.mf2(0, 3, take(mid[2:]))
        self.flush()
        e0 = self.epi(0, l); e1 = self.epi(1, l, pk=self.opts.get("pkfma", 1))
        u = f"{self.X}{l}"
        self.stamp(f"g2a{u}")
        if self.opts.get("e0mix", 0):
            self.mf2(1, 1, [[], late[0:4]])
            self.mf2(1, 2, [[], e0[0:3]])
            self.stamp(f"g2b{u}")
            self.mf2(1, 3, [e0[3:6], e0[6:-1]])
        else:
            self.mf2(1, 1); self.mf2(1, 2, [late[0:2], late[2:4]])
            self.stamp(f"g2b{u}")
            self.mf2(1, 3, [e0[0:2], e0[2:-1]])
        self.stamp(f"g2c{u}")
        e0[-1]()
        self.stamp(f"g2d{u}")
        self.run(e1[:-1])
        self.stamp(f"g2e{u}")
        e1[-1]()
        self.stamp(f"g2f{u}")
    def g1_phase(self, l, jitV=False, extra=None):
        xr = self.x_reads(); extra = list(extra or [])
        if jitV:
            rv = self.rdV(2) + self.rdV(3)
            ev = self.opts.get("earlyv", 8)
            pre = (self.rdV(0) + self.rdV(1))[ev:]
            self.run(pre[:4]); self.run(xr[0:2]); self.run(pre[4:])
            q = [xr[2], rv[0], rv[1], xr[3], rv[2], rv[3], xr[4], rv[4], rv[5], xr[5], rv[6], rv[7]]
            for ks in range(8):
                self.wlg(f"rV{ks>>1}_{ks&1}")
                if ks >= 2: self.wlg(f"x{ks}")
                self.mf1(ks, [q[0:2], q[2:3]]); q = q[3:]
        else:
            self.run(xr)
            for ks in range(8):
                if ks >= 2: self.wlg(f"x{ks}")
                self.mf1(ks, [extra[0:1], extra[1:2]]); extra = extra[2:]
            self.run(extra)
        self.send(l)
        self.run(self.unpack(XF, PK, 8))

    def prologue(self):
        a = self.a; T = [X0F + i for i in range(10)]
        a(f"s_load_dwordx8 {sr(sKA,8)}, s[0:1], 0")
        a(f"s_load_dwordx4 {sr(sKA+8,4)}, s[0:1], 32")
        a(f"s_load_dwordx2 {sr(sKA+12,2)}, s[0:1], 48")
        a("s_cmp_ge_u32 s2, 256"); a("s_cbranch_scc1 L_end")
        self.stamp("start"); self.stamp("rt0")
        a(f"v_lshrrev_b32 v{T[0]}, 6, v0"); a(f"v_and_b32 v{vLANE}, 63, v0")
        if self.opts.get("codepf", 1):
            a(f"s_getpc_b64 {sr(sX0,2)}"); a(f"v_lshlrev_b32 v{T[1]}, 7, v0"); a(f"s_and_b32 s{sX0}, s{sX0}, 0xffffff00")
            a(f"v_cmp_gt_u32 vcc, CODE_BYTES, v{T[1]}")
            a(f"s_and_saveexec_b64 {sr(sX0+2,2)}, vcc"); a("s_cbranch_execz L_nocpf")
            a(f"global_load_dword v{vJ}, v{T[1]}, {sr(sX0,2)}")
            self.lab("L_nocpf")
            a("s_mov_b64 exec, -1")
        a(f"v_readfirstlane_b32 s{sWV}, v{T[0]}")
        a(f"v_lshrrev_b32 v{T[6]}, 3, v{vLANE}"); a(f"v_and_b32 v{T[2]}, 6, v{T[6]}"); a(f"v_xor_b32 v{T[2]}, v{T[2]}, v{vLANE}")
        a(f"v_and_b32 v{T[2]}, 7, v{T[2]}"); a(f"v_lshlrev_b32 v{T[2]}, 4, v{T[2]}")
        a(f"v_and_b32 v{T[3]}, 4, v{T[6]}"); a(f"v_add_u32 v{T[1]}, v{T[6]}, v{T[3]}")
        a(f"v_lshl_add_u32 v{T[3]}, v{T[1]}, 10, v{T[2]}")
        voff = lambda j: ((j&1)*16 + (j>>1)*4)
        for j in range(2): a(f"v_add_u32 v{vV[j]}, {voff(j)*1024 - 1024*j + 3072}, v{T[3]}")
        a(f"s_and_b32 s{sT[0]}, s2, 0xf0"); a(f"s_lshl_b32 s{sT[0]}, s{sT[0]}, 14"); a(f"s_and_b32 s{sT[1]}, s2, 7"); a(f"s_lshl_b32 s{sT[1]}, s{sT[1]}, 15")
        a(f"s_and_b32 s{sT[2]}, s2, 8"); a(f"s_lshl_b32 s{sT[2]}, s{sT[2]}, 6")
        a(f"s_and_b32 s{sWS}, s{sWV}, 3"); a(f"s_lshr_b32 s{sXH}, s{sWV}, 2")
        a(f"s_or_b32 s{sT[0]}, s{sT[0]}, s{sT[1]}"); a(f"s_lshl_b32 s{sT[1]}, s{sXH}, 12"); a(f"s_or_b32 s{sT[1]}, s{sT[1]}, s{sT[2]}")
        a(f"s_or_b32 s{sT[4]}, s{sT[0]}, s{sT[1]}")
        a(f"s_lshl_b32 s{sT[3]}, s{sWS}, 7"); a(f"s_add_u32 s{sT[7]}, s{sT[4]}, s{sT[3]}")
        a(f"s_lshl1_add_u32 s{sT[5]}, s{sWS}, s{sXH}"); a(f"s_lshl_b32 s{sT[5]}, s{sT[5]}, 11"); a(f"s_add_u32 s{sT[5]}, s{sT[5]}, {XB}")
        a(f"s_mov_b32 m0, s{sT[5]}")
        a(f"s_lshr_b32 s{sT[0]}, s2, 3"); a(f"s_lshl3_add_u32 s{sT[0]}, s{sT[0]}, s{sWV}"); a(f"s_lshl_b32 s{sT[0]}, s{sT[0]}, 9")
        a(f"s_lshl2_add_u32 s{sT[1]}, s2, s{sWS}"); a(f"s_lshl_b32 s{sT[1]}, s{sT[1]}, 7"); a(f"s_sub_u32 s{sT[1]}, s{sT[1]}, {3*131072}")
        a(f"v_lshl_add_u32 v{T[8]}, v{vLANE}, 7, s{sT[0]}"); a(f"v_lshl_add_u32 v{T[9]}, v{vLANE}, 17, s{sT[1]}")
        mk = [int(m, 16) for m in str(self.opts.get("mk", "1ff,f,f,1ff")).split(",")]
        a(f"v_cmp_gt_u32 vcc, 4, v{vLANE}")
        a(f"s_cmp_eq_u32 s{sXH}, 0"); a(f"s_cselect_b32 s{sT[0]}, {mk[0]}, {mk[1]}"); a(f"s_cselect_b32 s{sT[1]}, {mk[2]}, {mk[3]}")
        a(f"v_cndmask_b32 v{vPF}, v{T[9]}, v{T[8]}, vcc")
        a("s_waitcnt lgkmcnt(0)")
        self.stamp("karg")
        self.srd(sX0, sKA+0, 4096*1024, 3072)
        self.vmop(f"buffer_load_dwordx4 v{vV[0]}, {sr(sX0,4)}, s{sT[7]} offen lds", "x0")
        self.vmop(f"buffer_load_dwordx4 v{vV[1]}, {sr(sX0,4)}, s{sT[7]} offen offset:1024 lds", "x0")
        self.srd(sV, sKA+4, 6*131072, 3072)
        a("s_mov_b32 exec_hi, 0"); a(f"s_mov_b32 exec_lo, s{sT[0]}")
        self.vmop(f"buffer_load_dword v{vJ}, v{vPF}, {sr(sV,4)}, 0 offen offset:3072", "pf")
        self.srd(sU, sKA+2, 6*131072, 3072)
        a(f"s_mov_b32 exec_lo, s{sT[1]}")
        self.vmop(f"buffer_load_dword v{vJ}, v{vPF}, {sr(sU,4)}, 0 offen offset:3072", "pf")
        a("s_mov_b64 exec, -1")
        a(f"v_and_b32 v{T[7]}, 7, v{vLANE}"); a(f"v_lshlrev_b32 v{T[9]}, 4, v{T[7]}"); a(f"v_lshl_add_u32 v{T[9]}, v{T[6]}, 10, v{T[9]}")
        a(f"s_mul_i32 s{sT[0]}, s{sXH}, 3072"); a(f"s_add_u32 s{sT[0]}, s{sT[0]}, s{sT[3]}"); a(f"s_add_u32 s{sT[0]}, s{sT[0]}, s{sT[2]}")
        a(f"v_mov_b32 v{vT[2]}, s2"); a(f"v_xor_b32 v{vT[2]}, 8, v{vT[2]}")
        self.srd(sB, sKA+6, 6*1024)
        self.srd(sD, sKA+10, 256)
        a("s_mov_b64 exec, 0xffffff")
        self.vmop(f"buffer_load_dwordx4 {vr(TM+4,4)}, v{T[9]}, {sr(sB,4)}, s{sT[0]} offen", "bias")
        a("s_mov_b64 exec, 1")
        self.vmop(f"buffer_load_ubyte v{vJ}, v{vT[2]}, {sr(sD,4)}, 0 offen", "touch")
        a("s_mov_b64 exec, -1")
        a(f"s_lshr_b32 s{sT[0]}, s{sWS}, 1"); a(f"s_lshl_b32 s{sT[0]}, s{sT[0]}, 13"); a(f"s_add_u32 s{sT[4]}, s{sT[4]}, s{sT[0]}")
        a(f"s_and_b32 s{sT[6]}, s{sWS}, 1"); a(f"s_lshl_b32 s{sT[0]}, s{sT[6]}, 11"); a(f"s_add_u32 s{sMY[0]}, s{sT[4]}, s{sT[0]}")
        a(f"v_lshrrev_b32 v{T[8]}, 5, v{vLANE}"); a(f"v_and_b32 v{vE}, 31, v{vLANE}"); a(f"v_lshlrev_b32 v{vE}, 4, v{vE}")
        a(f"v_lshl_add_u32 v{vE}, v{T[8]}, 10, v{vE}")
        for r in range(4): a(f"v_mov_b32 v{TM+r}, 0")
        self.srd(sO, sKA+8, 4096*1024)
        self.vmop(f"buffer_store_dwordx4 {vr(TM,4)}, v{vE}, {sr(sO,4)}, s{sMY[0]} offen {self.opts.get('clrf', 'sc1')}", "clr")
        a(f"s_add_u32 s{sMY[1]}, s{sMY[0]}, 16384")
        if self.opts.get("c1pos", 2) == 1: self.clr1(True)
        a(f"s_lshl_b32 s{sLB}, s{sWS}, 15"); a(f"s_add_u32 s{sT[3]}, s{sLB}, s{sT[2]}")
        for g in range(4):
            a(f"s_xor_b32 s{sT[4]}, s{sWS}, {g}"); a(f"s_lshl_b32 s{sT[4]}, s{sT[4]}, 7"); a(f"s_add_u32 s{sVG[g]}, s{sT[3]}, s{sT[4]}")
        for j in range(2, 4): a(f"v_add_u32 v{vV[j]}, {voff(j)*1024 - 1024*j + 3072}, v{T[3]}")
        a(f"s_lshl_b32 s{sT[4]}, s{sXH}, 13"); a(f"s_add_u32 s{sT[4]}, s{sT[4]}, s{sLB}")
        a(f"s_cmp_eq_u32 s{sXH}, 0")
        a(f"s_cselect_b32 s{sT[0]}, s{sVG[0]}, s{sVG[2]}"); a(f"s_cselect_b32 s{sT[1]}, s{sVG[1]}, s{sVG[3]}")
        self.stamp("i_x0")
        if not self.opts.get("noE", 1): a("s_barrier")
        def v0grp(k):
            a(f"s_add_u32 m0, s{sT[4]}, {k*4096}"); a("s_nop 0")
            for j in range(4):
                self.vmop(f"buffer_load_dwordx4 v{vV[j]}, {sr(sV,4)}, s{sT[k]} offen offset:{1024*j} lds", "V0")
        v0grp(0)
        v0grp(1)
        self.stamp("i_v0a")
        a(f"v_mov_b32 v{vPF}, v{T[9] if False else vPF}") if False else None
        if self.opts.get("c1pos", 2) == 2: self.clr1(True)
        self.srd(sW, sKA+12, 8 << 20)
        self.srd(sE, sKA+8, 4096*1024)
        a(f"s_getreg_b32 s{sXCC}, hwreg(HW_REG_XCC_ID)"); a(f"s_and_b32 s{sXCC}, s{sXCC}, 15"); a(f"s_or_b32 s{sXCC}, s{sXCC}, 16")
        a(f"v_lshl_add_u32 v{T[4]}, v{T[1]}, 8, v{T[2]}")
        a(f"s_lshl_b32 s{sT[0]}, s{sT[6]}, 6"); a(f"v_xor_b32 v{T[4]}, s{sT[0]}, v{T[4]}")
        for j in range(4):
            a(f"v_add_u32 v{vU[j]}, {voff(j)*256 - 1024*j + 3072}, v{T[4]}")
        a(f"s_lshl_b32 s{sT[0]}, s{sT[2]}, 7"); a(f"s_lshl_b32 s{sT[1]}, s{sWS}, 14"); a(f"s_add_u32 s{sT[0]}, s{sT[0]}, s{sT[1]}")
        a(f"s_and_b32 s{sT[1]}, s{sWS}, 2"); a(f"s_lshl_b32 s{sT[1]}, s{sT[1]}, 6"); a(f"s_add_u32 s{sUG[0]}, s{sT[0]}, s{sT[1]}")
        a(f"s_add_u32 s{sUG[1]}, s{sUG[0]}, 8192"); a(f"s_xor_b32 s{sUG[2]}, s{sUG[0]}, 128"); a(f"s_xor_b32 s{sUG[3]}, s{sUG[1]}, 128")
        if self.opts.get("pad", 0):
            a("s_mov_b64 exec, 0")
            for w in range(7):
                a(f"s_cmp_eq_u32 s{sWV}, {w}"); a(f"s_cbranch_scc1 L_pad{w>>2}_{w&3}")
            a("s_branch L_pad1_3")
            self.lab("L_warm_done")
            a("s_mov_b64 exec, -1")
            self.o.append("    ; PADSTART")
        self.stamp("warm")
        self.wvm("bias" if self.opts.get("latec", 1) else "clr")
        self.stamp("x0")
        a(f"v_lshrrev_b32 v{T[0]}, 4, v{vLANE}")
        a(f"v_and_b32 v{T[1]}, 6, v{vLANE}"); a(f"v_xor_b32 v{T[2]}, v{T[1]}, v{T[0]}"); a(f"v_lshlrev_b32 v{T[2]}, 4, v{T[2]}")
        a(f"v_and_b32 v{T[1]}, 15, v{vLANE}"); a(f"v_lshl_add_u32 v{T[2]}, v{T[1]}, 7, v{T[2]}")
        a(f"v_add_u32 v{T[3]}, s{sT[5]}, v{T[2]}"); a(f"v_xor_b32 v{T[5]}, 64, v{T[3]}")
        for P in range(2):
            self.lgop(f"ds_read_b128 {vr(PK+4*P,4)}, v{T[5] if P else T[3]}", "x0r")
        a(f"v_add_u32 v{vA[0]}, s{sLB}, v{T[2]}"); a(f"v_xor_b32 v{vA[1]}, 64, v{vA[0]}")
        a(f"v_lshlrev_b32 v{T[1]}, 4, v{vLANE}")
        a(f"v_add_u32 v{vXW}, s{sT[5]}, v{T[1]}")
        for g in range(1, 4): a(f"v_xor_b32 v{vXR[g]}, {g*4096}, v{vXW}")
        a(f"s_lshl_b32 s{sT[0]}, s{sWV}, 10"); a(f"s_add_u32 s{sT[0]}, s{sT[0]}, {HB}")
        a(f"v_add_u32 v{vHW}, s{sT[0]}, v{T[1]}")
        for g in range(1, 4): a(f"v_xor_b32 v{vHR[g]}, {g*1024}, v{vHW}")
        a(f"s_mul_i32 s{sT[0]}, s{sWS}, 1536"); a(f"s_add_u32 s{sT[0]}, s{sT[0]}, {BIASB}")
        a(f"v_lshl_add_u32 v{vBI}, v{T[0]}, 5, s{sT[0]}")
        a(f"s_mul_i32 s{sT[1]}, s{sXH}, 768"); a(f"s_add_u32 s{sT[0]}, s{sT[0]}, s{sT[1]}")
        a(f"v_lshlrev_b32 v{T[7]}, 5, v{T[7]}"); a(f"v_lshl_add_u32 v{T[7]}, v{T[6]}, 8, v{T[7]}"); a(f"v_add_u32 v{vT[0]}, s{sT[0]}, v{T[7]}")
        self.run(self.unpack(TM+8, TM+4, 4))
        a(f"v_and_b32 v{RX+1}, 3, v{vLANE}"); a(f"v_lshlrev_b32 v{RX+1}, 7, v{RX+1}")
        a(f"v_bfe_u32 v{RX}, v{vLANE}, 2, 1"); a(f"v_lshl_add_u32 v{RX+1}, v{RX}, 10, v{RX+1}")
        a(f"v_bfe_u32 v{RX}, v{vLANE}, 3, 1"); a(f"v_lshl_add_u32 v{RX+1}, v{RX}, 14, v{RX+1}")
        self.wlg("x0r")
        for P in range(2):
            self.lgop(f"ds_write_b128 v{vXW}, {vr(PK+4*P,4)} offset:{P*1024}", "xw")
        a("s_mov_b64 exec, 0xffffff")
        self.lgop(f"ds_write_b128 v{vT[0]}, {vr(TM+8,4)}", "bw")
        self.lgop(f"ds_write_b128 v{vT[0]}, {vr(TM+12,4)} offset:16", "bw")
        a("s_mov_b64 exec, -1")
        self.run(self.unpack(X0F, PK, 8))
        if "retrydelay" in self.opts: a("s_mov_b32 s96, 0")
        a(f"s_mov_b32 s{sSL}, s{sMY[0]}"); a(f"s_mov_b32 s{sTS}, {0x15 if self.opts.get('one') else sum(t << i for i, t in enumerate(TAGS))}"); a(f"s_mov_b32 s{sTAG}, {TAGS[0]}")
        a(f"s_xor_b32 s{sT[3]}, s2, 8"); a(f"s_and_b32 s{sT[2]}, s{sT[3]}, 0xfc"); a(f"s_and_b32 s{sT[3]}, s{sT[3]}, 3"); a(f"s_lshl_b32 s{sT[3]}, s{sT[3]}, 3")
        self.stamp("issued")
        self.wvm("V0"); self.stamp("v0l"); self.wvm("clr")
        self.bar("b0")
        a(f"s_cmp_lg_u32 s{sXH}, 0"); a("s_cbranch_scc1 L_progB")
        a(f"s_cmp_lg_u32 s{sWV}, 0"); a("s_cbranch_scc1 L_noflag")
        a(f"v_mov_b32 v{RX}, s2"); a(f"v_mov_b32 v{vT[1]}, s{sXCC}"); a("s_mov_b64 exec, 1")
        a(f"buffer_store_byte v{vT[1]}, v{RX}, {sr(sD,4)}, 0 offen"); a("s_mov_b64 exec, -1")
        self.lab("L_noflag")

    def box(self, m):
        if not m: return
        self.a(f"s_mov_b64 exec, {m}")
        self.vmop(f"buffer_load_dword v{vJ}, v{RX+1}, {sr(sO,4)}, s{sMY[0]} offen sc1", "bt")
        self.a("s_mov_b64 exec, -1")
    def clr1(self, early=False):
        if early != (self.opts.get("c1pos", 2) != 0) or self.opts.get("one"): return
        self.vmop(f"buffer_store_dwordx4 {vr(TM,4)}, v{vE}, {sr(sO,4)}, s{sMY[1]} offen {self.opts.get('clrf', 'sc1')}", "clr1")
    def gt(self, where):
        m = [int(x, 16) for x in str(self.opts.get("gt", "0,0,0")).split(",")][where]
        if not m: return
        self.a(f"s_mov_b64 exec, {m}")
        self.vmop(f"buffer_load_dword v{vJ}, v{vPF}, {sr(sU if self.X else sV,4)}, 0 offen offset:3072", "pf")
        self.a("s_mov_b64 exec, -1")
    def flag_ld(self):
        self.a(f"s_load_dword s{sT[1]}, {sr(sKA+10,2)}, s{sT[2]}")
    def bias_ops(self, l):
        return [lambda k=k: self.lgop(f"ds_read_b128 {vr(ACC2+4*k,4)}, v{vBI} offset:{(0 if self.dyn else l*256) + (k>>1)*128 + (k&1)*16}", "bias") for k in range(4)]
    def light1(self, kind, l, rd, lp, n1=None):
        d = self.dma(kind, l, 0) + self.dma(kind, l, 1)
        n1 = n1 or self.opts.get("n1", 8)
        self.carry = d[n1:]; d = d[:n1]
        pp = self.opts.get("pollat", 2); r0 = self.opts.get("rd1at", 0)
        rd = list(rd) + self.bias_ops(lp)
        per = self.opts.get("rd1per", 4)
        for k in range(8):
            if k == pp: self.poll(lp)
            if k < len(d): d[k]()
            if r0 <= k and (k - r0) % self.opts.get("dper", 1) == 0: self.run(rd[:per]); rd = rd[per:]
            self.stamp(f"l1{self.X}{lp}_{k}")
        if pp >= 8: self.poll(lp)
    def light2(self, kind, l, rd, lp):
        self.run(self.carry)
        d = self.dma(kind, l, 2) + self.dma(kind, l, 3) + [lambda: None] * 8
        p2 = self.opts.get("pre2", 3); rd = list(rd)
        if self.opts.get("l2mode", 0) == 1 or l >= L:
            m2 = self.opts.get("mid2", 1)
            self.run(d[:p2])
            self.check_post(lp, d[p2:p2+m2])
            self.run(rd[:4]); d[p2+m2](); self.run(rd[4:])
            self.wvm(f"{kind}{l}a")
            self.run(d[p2+m2+1:8])
            return
        self.run(d[:p2])
        self.run(rd[:4]); d[p2](); self.run(rd[4:]); d[p2+1]()
        self.stamp(f"pd{self.X}{lp}")
        self.check_post(lp, d[p2+2:p2+3])
        self.stamp(f"po{self.X}{lp}")
        self.wvm(f"{kind}{l}a")
        self.run(d[p2+3:8])
        self.stamp(f"en{self.X}{lp}")
    def progA(self):
        a = self.a
        bx = [int(m, 16) for m in str(self.opts.get("boxA", "0,0")).split(",")]
        self.prio(2)
        self.clr1(); self.box(bx[0])
        xr = self.x_reads(); rv = [f for g in range(4) for f in self.rdV(g)]
        self.run(rv[0:4]); self.run(xr[0:2]); self.run(rv[4:8]); self.run(xr[2:4])
        q = rv[8:12] + xr[4:6] + rv[12:16]
        for ks in range(8):
            self.wlg(f"rV{ks>>1}_{ks&1}")
            if ks >= 2: self.wlg(f"x{ks}")
            self.mf1(ks, [q[0:1], q[1:2]]); q = q[2:]
            if ks == self.opts.get("flagat", 5): self.flag_ld()
        self.send(0)
        self.box(bx[1]); self.gt(0)
        self.run(self.unpack(XF, PK, 8))
        self.prio(0)
        self.bar("b1")
        self.light1("V", 1, self.rdU(0) + self.rdU(1), 0, 8)
        self.bar("b1x")
        self.run(self.rdU(2))
        self.check_post(0, [])
        self.run(self.rdU(3))
        self.wvm("V1a")
        self.gt(1)
        self.bar("b2")
        self.a(f"s_mov_b32 s{sLOFF}, {2*131072}"); self.a(f"v_add_u32 v{vBI}, 256, v{vBI}")
        self.rounds(self.roundA)
    def rounds(self, body):
        self.dyn = True
        if not self.opts.get("loop", 1):
            for l in range(L): body(l, None)
            return
        u = self.X
        self.a(f"s_mov_b32 s{sIT}, 4")
        keep = self.o; self.o = []; self.emit_ool = False
        body(0, None)
        self.o = keep; self.emit_ool = True
        if self.opts.get("loopalign", 1): self.o.append("    .p2align 6")
        self.lab(f"L_loop{u}")
        body(1, f"L_loop{u}")
        keep = self.o; self.o = []; self.emit_ool = False
        body(2, None); body(3, None)
        self.o = keep; self.emit_ool = True
        body(4, None); body(5, None)
    def adv(self, back):
        self.a(f"s_add_u32 s{sLOFF}, s{sLOFF}, 131072"); self.a(f"v_add_u32 v{vBI}, 256, v{vBI}")
        if back: self.a(f"s_sub_u32 s{sIT}, s{sIT}, 1"); self.a(f"s_cmp_lg_u32 s{sIT}, 0")
    def roundA(self, l, back):
        last = l == L-1
        self.c(f"==== A round {l} phase 0: G2 ====")
        self.prio(2)
        ev = self.opts.get("earlyv", 8)
        self.g2_phase(l, early=(None if last else (self.rdV(0) + self.rdV(1))[:ev]))
        if last:
            self.final_store(bar=True); return
        self.wvm(f"V{l+1}b")
        self.stamp(f"g2g0{l}")
        self.bar(f"A0{l}")
        self.c(f"==== A round {l} phase 1: G1 ====")
        self.g1_phase(l+1, jitV=True)
        self.prio(0)
        self.bar(f"A1{l}")
        self.c(f"==== A round {l} phase 2 ====")
        self.light1("V", l+2, self.rdU(0) + self.rdU(1), l+1)
        self.bar(f"A2{l}")
        self.c(f"==== A round {l} phase 3 ====")
        self.light2("V", l+2, self.rdU(2) + self.rdU(3), l+1)
        if l == L-2: self.final_addr()
        self.wlg0()
        self.adv(back)
        self.bar(f"A3{l}")
        if back: self.a(f"s_cbranch_scc1 {back}")

    def progB(self):
        self.lab("L_progB")
        bx = [int(m, 16) for m in str(self.opts.get("boxB", "0,0,0")).split(",")]
        d = [f for g in range(4) for f in self.dma("U", 0, g, "DDDD")]
        rv = [f for g in range(4) for f in self.rdV(g)]
        self.run(d[:8]); self.clr1(); self.box(bx[0])
        for k in range(4):
            self.run(rv[4*k:4*k+4]); self.run(d[8+2*k:10+2*k])
        self.box(bx[1]); self.gt(0)
        self.wvm("U0a")
        self.bar("b1")
        self.prio(2)
        self.flag_ld()
        self.g1_phase(0, extra=self.rdU(0) + self.rdU(1))
        self.prio(0)
        self.wvm("U0b")
        self.box(bx[2])
        self.bar("b1x")
        self.mix(self.dma("V", 1, 2) + self.dma("V", 1, 3), self.rdU(2) + self.rdU(3))
        self.gt(1)
        self.bar("b2")
        self.a(f"s_mov_b32 s{sLOFF}, 131072")
        self.rounds(self.roundB)
    def roundB(self, l, back):
        last = l == L-1
        self.c(f"==== B round {l} phase 0 ====")
        if not last:
            n0 = len(self.vm)
            self.light1("U", l+1, self.rdV(0) + self.rdV(1), l)
            self.a(f"s_waitcnt vmcnt({len(self.vm) - n0})"); self.vmdone = max(self.vmdone, n0)
            self.bar(f"B0{l}")
            self.c(f"==== B round {l} phase 1 ====")
            self.light2("U", l+1, self.rdV(2) + self.rdV(3), l)
        else:
            if not self.opts.get("lastpoll", 0): self.poll(l)
            if self.opts.get("lastpoll", 0) < 2: self.bias_rd(l)
            self.check_post(l, [])
        self.bar(f"B1{l}")
        self.c(f"==== B round {l} phase 2: G2 ====")
        self.prio(2)
        if last:
            self.g2_phase(l); self.final_store(); return
        self.g2_phase(l, mid=self.rdU(0), late=self.rdU(1))
        self.wvm(f"U{l+1}b")
        self.bar(f"B2{l}")
        self.c(f"==== B round {l} phase 3: G1 ====")
        self.g1_phase(l+1, extra=self.rdU(2) + self.rdU(3))
        if l == L-2: self.final_addr()
        self.prio(0)
        self.wlg0()
        self.adv(back)
        if l == L-2 and self.opts.get("lastpoll", 0) == 2: self.bias_rd(l+1)
        if l == L-2 and self.opts.get("lastpoll", 0): self.poll(l+1)
        self.bar(f"B3{l}")
        if back: self.a(f"s_cbranch_scc1 {back}")

    def final_addr(self):
        a = self.a; t = [RX, RX+1, RX+2]
        a(f"v_and_b32 v{t[0]}, 15, v{vLANE}"); a(f"v_lshrrev_b32 v{t[1]}, 4, v{vLANE}")
        a(f"v_and_b32 v{t[2]}, 7, v{t[0]}"); a(f"v_xor_b32 v{t[2]}, v{t[2]}, v{t[1]}"); a(f"v_lshlrev_b32 v{t[2]}, 4, v{t[2]}")
        a(f"v_lshl_add_u32 v{t[2]}, v{t[0]}, 7, v{t[2]}")
        a(f"v_and_b32 v{vT[0]}, 0xfffff800, v{vXW}"); a(f"v_add_u32 v{vT[0]}, v{vT[0]}, v{t[2]}"); a(f"v_xor_b32 v{vT[1]}, 64, v{vT[0]}")
        a(f"v_lshrrev_b32 v{t[0]}, 3, v{vLANE}"); a(f"v_xor_b32 v{t[1]}, v{t[0]}, v{vLANE}"); a(f"v_and_b32 v{t[1]}, 7, v{t[1]}")
        a(f"v_lshlrev_b32 v{t[1]}, 4, v{t[1]}")
        a(f"v_and_b32 v{t[2]}, 4, v{t[0]}"); a(f"v_add_u32 v{t[0]}, v{t[0]}, v{t[2]}")
        a(f"v_lshl_add_u32 v{vT[2]}, v{t[0]}, 10, v{t[1]}")

    def final_store(self, bar=False):
        a = self.a; D = XF
        for m in range(2):
            self.lgop(f"ds_read_b128 {vr(D+4*m,4)}, v{vXW} offset:{m*1024}", f"fo{m}")
        fl = self.opts.get("outflags", "") if self.X else self.opts.get("outflagsA", self.opts.get("outflags", ""))
        for m in range(2):
            a(f"s_add_u32 s{sT[m]}, s{sT[7]}, {m*16384}")
            self.wlg(f"fo{m}")
            self.vmop(f"buffer_store_dwordx4 {vr(D+4*m,4)}, v{vT[2]}, {sr(sO,4)}, s{sT[m]} offen {fl}", "out")
        if bar and self.opts.get("junk"):
            for m in range(4):
                a(f"s_add_u32 s{sT[2]}, s{sMY[0]}, {m*4096 if m < 2 else 16384 + (m-2)*4096}")
                a(f"buffer_store_dwordx4 {vr(D,4)}, v{vE}, {sr(sW,4)}, s{sT[2]} offen")
        if bar: a("s_barrier")
        if self.opts.get("stag"):
            u = self.X
            a("s_waitcnt vmcnt(0)")
            a(f"s_add_u32 s4, s{sKA+12}, 0x700000"); a(f"s_addc_u32 s5, s{sKA+13}, 0")
            a("s_load_dwordx8 s[84:91], s[4:5], 0"); a("s_memrealtime s[94:95]"); a("s_waitcnt lgkmcnt(0)")
            a("s_mov_b32 s92, 0")
            for i in range(8):
                a(f"s_sub_u32 s93, s{sSTAMP}, s{84+i}"); a("s_cmp_lt_u32 s93, 3000"); a("s_cselect_b32 s93, s93, 0"); a("s_max_u32 s92, s92, s93")
            self.lab(f"L_echo{u}")
            a("s_sleep 1"); a("s_memrealtime s[96:97]"); a("s_waitcnt lgkmcnt(0)"); a("s_sub_u32 s93, s96, s94")
            a("s_cmp_lt_u32 s93, s92"); a(f"s_cbranch_scc1 L_echo{u}")
        elif self.opts.get("echo"):
            u = self.X
            a("s_waitcnt vmcnt(0)"); self.stamp("fin")
            a("s_memtime s[90:91]"); a("s_waitcnt lgkmcnt(0)")
            a(f"s_sub_u32 s92, s{sSTAMP+2}, s{sSTAMP}")
            self.lab(f"L_echo{u}")
            a("s_sleep 1"); a("s_memtime s[94:95]"); a("s_waitcnt lgkmcnt(0)"); a("s_sub_u32 s93, s94, s90")
            a("s_cmp_lt_u32 s93, s92"); a(f"s_cbranch_scc1 L_echo{u}")
        elif self.prof:
            a("s_waitcnt vmcnt(0)")
            self.stamp("fin"); self.stamp("rt1")
            a("s_waitcnt lgkmcnt(0)")
            a(f"v_mov_b32 v{RX}, 0")
            for i in range(len(self.prof)): a(f"v_writelane_b32 v{RX}, s{sSTAMP+2*i}, {i}")
            a(f"s_lshl_b32 s{sT[0]}, s2, 3"); a(f"s_add_u32 s{sT[0]}, s{sT[0]}, s{sWV}"); a(f"s_lshl_b32 s{sT[0]}, s{sT[0]}, 8")
            a(f"s_add_u32 s{sT[0]}, s{sT[0]}, {6<<20}")
            a(f"v_lshlrev_b32 v{vT[0]}, 2, v{vLANE}")
            a(f"buffer_store_dword v{RX}, v{vT[0]}, {sr(sW,4)}, s{sT[0]} offen")
        if "modedelay" in self.opts:
            a(f"s_cmp_lg_u32 s{sMODE}, {self.opts['modedelay']}"); a(f"s_cbranch_scc1 L_md{self.X}")
            for i in range(5): a("s_sleep 125")
            self.lab(f"L_md{self.X}")
        if "retrydelay" in self.opts:
            self.lab(f"L_rd{self.X}")
            a("s_cmp_eq_u32 s96, 0"); a(f"s_cbranch_scc1 L_re{self.X}"); a("s_sleep 32"); a("s_sub_u32 s96, s96, 1"); a(f"s_branch L_rd{self.X}")
            self.lab(f"L_re{self.X}")
        for i in range(self.opts.get("delay", 0)): a("s_sleep 125")
        a("s_endpgm")

    def handshake(self):
        a = self.a; x = self.x; P = XF; u = self.X
        self.c("handshake: the partner's inbox is cleared; does it share this XCD?")
        a(f"s_mov_b32 s{sCNT}, 0"); a(f"s_mov_b32 s{sMODE}, 1")
        self.wvm("clr1")
        a("s_waitcnt lgkmcnt(0)"); self.lgdone = len(self.lg)
        a(f"s_lshr_b32 s{sT[0]}, s{sT[1]}, s{sT[3]}"); a(f"s_and_b32 s{sT[0]}, s{sT[0]}, 0xff")
        a(f"s_cmp_eq_u32 s{sT[0]}, s{sXCC}"); a(f"s_cbranch_scc0 L_hs_fast{u}")
        self.lab(f"L_hs_done{u}")
        self.rec("hscnt", f"s{sCNT}"); self.rec("mode", f"s{sMODE}")
        self.xl(f"L_hs_fast{u}")
        x(f"buffer_load_ubyte v{vT[1]}, v{vT[2]}, {sr(sD,4)}, 0 offen sc1")
        x("s_waitcnt vmcnt(0)")
        x(f"v_readfirstlane_b32 s{sT[0]}, v{vT[1]}")
        x(f"s_cmp_eq_u32 s{sT[0]}, s{sXCC}"); x(f"s_cbranch_scc1 L_hs_done{u}")
        x(f"s_add_u32 s{sCNT}, s{sCNT}, 1"); x(f"s_cmp_lt_u32 s{sCNT}, {self.opts.get('fastpolls', 8)}"); x(f"s_cbranch_scc1 L_hs_fast{u}")
        for r in range(4): x(f"v_mov_b32 v{P+4+r}, 0")
        for sl in range(2):
            x(f"buffer_store_dwordx4 {vr(P+4,4)}, v{vE}, {sr(sW,4)}, s{sMY[sl]} offen sc1")
        x(f"s_lshl_b32 s{sT[1]}, s2, 3"); x(f"s_add_u32 s{sT[1]}, s{sT[1]}, s{sWV}"); x(f"s_lshl_b32 s{sT[1]}, s{sT[1]}, 7")
        x(f"s_add_u32 s{sT[1]}, s{sT[1]}, {4<<20}")
        x(f"s_xor_b32 s{sT[2]}, s{sT[1]}, {8*8*128}")
        x(f"v_mov_b32 v{P+2}, 0")
        x("s_mov_b64 exec, 1")
        x(f"buffer_load_dwordx4 {vr(P+8,4)}, v{P+2}, {sr(sW,4)}, s{sT[2]} offen sc1")
        x("s_waitcnt vmcnt(0)")
        x(f"v_readfirstlane_b32 s{sT[3]}, v{P+10}")
        x(f"s_add_u32 s{sT[3]}, s{sT[3]}, 1")
        x(f"v_mov_b32 v{P+3}, s{sT[3]}")
        x(f"buffer_store_dword v{P+3}, v{P+2}, {sr(sW,4)}, s{sT[1]} offen sc1")
        x("s_waitcnt vmcnt(0)")
        x(f"s_mov_b32 s{sCNT}, 0")
        self.xl(f"L_hs_slow{u}")
        x(f"buffer_load_ubyte v{vT[1]}, v{vT[2]}, {sr(sD,4)}, 0 offen sc1")
        x(f"buffer_load_dwordx4 {vr(P+8,4)}, v{P+2}, {sr(sW,4)}, s{sT[2]} offen sc1")
        x("s_waitcnt vmcnt(0)")
        x(f"v_readfirstlane_b32 s{sT[0]}, v{vT[1]}")
        x(f"v_readfirstlane_b32 s{sT[5]}, v{P+8}")
        x(f"v_readfirstlane_b32 s{sT[4]}, v{P+10}")
        x(f"v_readfirstlane_b32 s{sMODE}, v{P+11}")
        x(f"s_cmp_eq_u32 s{sT[0]}, s{sXCC}"); x(f"s_cbranch_scc1 L_hs_same{u}")
        x(f"v_mov_b32 v{P+12}, s{sT[5]}"); x(f"v_mov_b32 v{P+13}, s{sXCC}")
        x(f"buffer_store_dwordx2 {vr(P+12,2)}, v{P+2}, {sr(sW,4)}, s{sT[1]} offen offset:8 sc1")
        x(f"s_add_u32 s{sCNT}, s{sCNT}, 1"); x(f"s_cmp_gt_u32 s{sCNT}, 0x200000"); x(f"s_cbranch_scc1 L_hs_same{u}")
        x(f"s_cmp_eq_u32 s{sT[4]}, s{sT[3]}"); x(f"s_cbranch_scc0 L_hs_slow{u}")
        x(f"s_cmp_eq_u32 s{sMODE}, s{sXCC}"); x(f"s_cbranch_scc1 L_hs_same{u}")
        x(f"s_mov_b32 s{sMODE}, 0")
        x(f"s_mov_b32 s{sE}, s{sKA+12}"); x(f"s_mov_b32 s{sE+1}, s{sKA+13}")
        x("s_mov_b64 exec, -1")
        x(f"s_branch L_hs_done{u}")
        self.xl(f"L_hs_same{u}")
        x(f"s_mov_b32 s{sMODE}, 1")
        x("s_mov_b64 exec, -1")
        x(f"s_branch L_hs_done{u}")

    def build(self):
        hdr = [f"; @launch grid=(256,1,1) block=(512,1,1) lds={LDS_BYTES}",
               '.amdgcn_target "amdgcn-amd-amdhsa--gfx950"', ".text", f".globl {KN}", ".p2align 8",
               f".type {KN},@function", f"{KN}:"]
        self.prologue()
        A = self.fork(0); A.progA()
        B = self.fork(1); B.progB()
        nb = lambda g: sum(1 for s in g.o if s.strip() == "s_barrier")
        assert nb(A) == nb(B), (nb(A), nb(B))
        assert NV + NA <= 256
        ftr = [f".set CODE_BYTES, L_end - {KN}", '.section .rodata,"a"', ".p2align 6", f".amdhsa_kernel {KN}",
               f"  .amdhsa_next_free_vgpr {NV+NA}", "  .amdhsa_next_free_sgpr 102", f"  .amdhsa_accum_offset {NV}",
               "  .amdhsa_group_segment_fixed_size 0", "  .amdhsa_kernarg_size 56", "  .amdhsa_user_sgpr_count 2",
               "  .amdhsa_user_sgpr_kernarg_segment_ptr 1", "  .amdhsa_system_sgpr_workgroup_id_x 1",
               "  .amdhsa_float_denorm_mode_32 3", ".end_amdhsa_kernel"]
        log = []
        m1, n1 = fix_hazards(self.o + A.o, log)
        m2, n2 = fix_hazards(B.o, log)
        ool, n3 = fix_hazards(self.ool)
        wrap = lambda ls: "\n".join(hdr + ls + ool + ftr) + "\n"
        sp = self.opts.get("pad", 0)
        if sp:
            from asmlib import sizes, parse
            def padded(lines, x, start, lim):
                dummy = [f"L_pad{a}_{b}:" for a in range(2) for b in range(4)]
                others = m2 if x == 0 else m1
                sz = iter(sizes(wrap([l for l in lines + others if not l.strip().startswith(".p2align")] + dummy + ["L_end:", "    s_endpgm"])))
                out = []; pos = []; acc = sp; on = not start; tot = 0
                for l in lines:
                    if start and start in l: on = True
                    if parse(l) is not None:
                        b = next(sz)
                        if on and acc >= sp and tot < lim:
                            pos.append(len(out)); out.append(None); acc = 4
                        acc += b
                        if on: tot += b
                    out.append(l)
                res = []; n = len(pos); k = 0
                for l in out:
                    if l is None:
                        res.append(f"L_pad{x}_{k}:"); res.append(f"    s_cbranch_execz " + (f"L_pad{x}_{k+4}" if k + 4 < n else "L_warm_done")); k += 1
                    else: res.append(l)
                return res
            lim = self.opts.get("padlim", 4000)
            m1, m2 = padded(m1, 0, "PADSTART", lim), padded(m2, 1, None, lim)
        main = m1 + m2 + ["L_end:", "    s_endpgm"]
        if self.opts.get("align", 1):
            main, nw, nn = align(main, wrap, self.opts.get("minrun", 99))
            sys.stderr.write(f"hazard nops {n1}+{n2}+{n3}, widened {nw}, align nops {nn}\n")
        if self.opts.get("hlog"):
            for e in log: sys.stderr.write(str(e) + "\n")
        return wrap(main)

if __name__ == "__main__":
    prof = None; opts = {}
    for x in sys.argv[1:]:
        if x.startswith("--prof="): prof = x[7:].split(",")
        elif x.startswith("--"):
            k, v = x[2:].split("="); opts[k] = int(v) if v.lstrip("-").isdigit() else v
    out = [x for x in sys.argv[1:] if not x.startswith("--")][0]
    g = Gen(prof, opts); txt = g.build()
    if prof: txt = txt + "; stamps: " + ",".join(prof) + "\n"
    open(out, "w").write(txt)
```

```python
import sys, copy
from asmlib import fix_hazards, align
KN = "standalone__cross_network_dcn_v2__recsys_kernel"
L = 6
XB = 131072; HB = 147456; BIASB = 155648; LDS_BYTES = 161792
TAGS = [1, 1, 0, 0, 1, 1]

vLANE = 1; vA = [2, 21]; vE = 3; vV = [4, 5, 6, 7]; vU = [8, 9, 10, 11]
vXW = 12; vXR = [None, 13, 14, 15]; vHW = 16; vHR = [None, 17, 18, 19]
vBI = 20; vT = [22, 23, 24, 25]; vJ = 0
ACC1 = 26; ACC2 = 34; XF = 50; X0F = 66; PK = 82; HP = 90; RX = 94; TM = ACC2; SP = HP; T4 = 98; vPF = 102
NV = 104
aV = 0; aU = 64; aX = 128; aH = 128; aS = 128; NS = 6; NA = 152
sX0 = 4; sV = 8; sU = 12; sO = 16; sE = 20; sD = 24; sB = 28; sW = 32
sKA = 36
sWV = 50; sHF = 51; sRB = 52; sXCC = 53; sMODE = 54
sVG = [55, 56, 57, 58]; sUG = [59, 60, 61, 62]; sSO = [63, 64]; sLB = 65
sMY = [66, 67]; sWS = 68; sXH = 69
sLOFF = 4; sSL = 5; sTS = 6; sTAG = 7; sIT = 3
sCNT = 70; sT = [71, 72, 73, 74, 75, 76, 77, 78]; sPTMP = 79
sSTAMP = 80

def vr(b, n): return f"v[{b}:{b+n-1}]"
def ar(b, n): return f"a[{b}:{b+n-1}]"
def sr(b, n): return f"s[{b}:{b+n-1}]"

class Gen:
    def __init__(self, prof=None, opts=None):
        self.o = []; self.ool = []; self.vm = []; self.lg = []; self.vmdone = 0; self.lgdone = 0
        self.prof = prof; self.opts = opts or {}; self.names = []
        self.pw = []; self.nso = 0; self.nst = 0; self.X = 0; self.dyn = False; self.emit_ool = True
        self.pat = self.opts.get("pat", "BBBB/DDDD/DDDD/DDDB"); self.lag = self.opts.get("lag", 4)
    def fork(self, X):
        g = copy.copy(self); g.o = []; g.vm = [(t[1] if isinstance(t, tuple) else t) for t in self.vm if not isinstance(t, tuple) or t[0] == X]; g.lg = list(self.lg); g.pw = list(self.pw); g.X = X
        return g
    def a(self, s): self.o.append("    " + s)
    def x(self, s):
        if self.emit_ool: self.ool.append("    " + s)
    def xl(self, s):
        if self.emit_ool: self.ool.append(s + ":")
    def lab(self, s): self.o.append(s + ":")
    def c(self, s): self.o.append("    ; " + s)
    def vmop(self, s, tag): self.vm.append(tag); self.a(s)
    def lgop(self, s, tag): self.lg.append(tag); self.a(s)
    def _last(self, lst, tag):
        idx = [i for i, t in enumerate(lst) if t == tag]
        return idx[-1] if idx else None
    def wvm(self, tag):
        i = self._last(self.vm, tag)
        if i is not None: self.wvmi(i)
    def wvmi(self, i):
        if i < self.vmdone: return
        n = min(len(self.vm) - 1 - i, 63); self.vmdone = len(self.vm) - n
        self.a(f"s_waitcnt vmcnt({n})")
    def wlg(self, tag):
        i = self._last(self.lg, tag)
        if i is None or i < self.lgdone: return
        n = min(len(self.lg) - 1 - i, 15); self.lgdone = len(self.lg) - n
        self.a(f"s_waitcnt lgkmcnt({n})")
    def wlg0(self):
        if self.lgdone < len(self.lg): self.lgdone = len(self.lg); self.a("s_waitcnt lgkmcnt(0)")
    def bar(self, name=None):
        self.wlg0()
        if name: self.stamp(name + "a")
        self.a("s_barrier")
        if name: self.stamp(name + "b")
        self.jit()
    def jit(self):
        if "jitter" not in self.opts: return
        import random
        Gen.nj = getattr(Gen, "nj", 0) + 1
        r = random.Random(self.opts["jitter"] * 1000 + Gen.nj)
        for q in range(2):
            w = r.randrange(8); n = r.choice([2, 5, 12, 30]); lab = f"L_j{Gen.nj}_{q}"
            self.a("s_mov_b32 s97, scc"); self.a(f"s_and_b32 s96, s2, 3"); self.a(f"s_add_u32 s96, s96, s{sWV}"); self.a("s_and_b32 s96, s96, 7")
            self.a(f"s_cmp_lg_u32 s96, {w}"); self.a(f"s_cbranch_scc1 {lab}"); self.a(f"s_sleep {n}"); self.lab(lab)
            self.a("s_cmp_lg_u32 s97, 0")
    def stamp(self, name):
        nm = name + "AB"[self.X] if False else name
        if self.prof and nm in self.prof:
            r = sSTAMP + 2 * self.prof.index(nm)
            assert r + 1 <= 101
            self.a(f"s_memrealtime s[{r}:{r+1}]" if nm.startswith("rt") else f"s_memtime s[{r}:{r+1}]")
    def rec(self, name, src):
        if self.prof and name in self.prof:
            self.a(f"s_mov_b32 s{sSTAMP + 2*self.prof.index(name)}, {src}")
    def prio(self, p):
        m = self.opts.get("prio", 1)
        if m == 1: self.a(f"s_setprio {p}")
        if m == 2: self.a(f"s_setprio {2-p}")
    def dma(self, kind, l, g, pat=None):
        if l >= L: return []
        if self.opts.get("dma") == "off" and l >= 2: return []
        pat = pat or self.pat.split("/")[g]
        so = sSO[self.nso & 1]; self.nso += 1
        base, sg, vv, srd = (0, sVG, vV, sV) if kind == "V" else (16384, sUG, vU, sU)
        tag = f"{kind}{l}" + "ab"[g >> 1]
        items = []
        for j in range(4):
            def emit(j=j):
                while self.pw and len(self.vm) - self.pw[0][0] > self.lag: self.pw.pop(0)[1]()
                if j == 0:
                    self.a(f"s_add_u32 m0, s{sLB}, {base+g*4096}"); self.a(f"s_add_u32 s{so}, s{sg[g]}, s{sLOFF}" if self.dyn else f"s_add_u32 s{so}, s{sg[g]}, {l*131072}")
                if pat[j % len(pat)] in "DBCW":
                    self.vmop(f"buffer_load_dwordx4 v{vv[j]}, {sr(srd,4)}, s{so} offen offset:{1024*j} lds", tag)
                    for q in range({"D": 0, "B": 1, "C": 2, "W": 0}[pat[j % len(pat)]]): self.vmop(f"buffer_load_dword v{vJ}, off, {sr(sB,4)}, 0", "gap")
                    if pat[j % len(pat)] == "W": self.vmop(f"buffer_load_dwordx4 {vr(T4,4)}, v{vE}, {sr(sB,4)}, 0 offen", "gap")
            items.append(emit)
        return items
    def flush(self, keep3=False):
        while self.pw and not (keep3 and self.pw[0][2] == 3): self.pw.pop(0)[1]()
    def rdV(self, g):
        return [lambda j=j: self.lgop(f"ds_read_b128 {ar(aV+4*(4*g+j),4)}, v{vA[j>>1]} offset:{g*4096+(j&1)*2048}", f"rV{g}_{j>>1}") for j in range(4)]
    def rdU(self, g):
        return [lambda j=j: self.lgop(f"ds_read_b128 {ar(aU+4*(4*g+j),4)}, v{vA[j>>1]} offset:{16384+g*4096+(j&1)*2048}", f"rU{g}") for j in range(4)]
    def mf1(self, ks, fill=None):
        for ta in range(2):
            b = vr(PK + 4*ks, 4) if ks < 2 else ar(aX + 4*(ks-2), 4)
            d = vr(ACC1 + 4*ta, 4)
            self.a(f"v_mfma_f32_16x16x32_bf16 {d}, {ar(aV+4*(2*ks+ta),4)}, {b}, {'0' if ks == 0 else d}")
            if fill: self.run(fill[ta])
    def mf2(self, P, kr, fill=None):
        for ta in range(2):
            b = vr(HP, 4) if kr == 0 else ar(aH + 4*(kr-1), 4)
            d = vr(ACC2 + 8*P + 4*ta, 4)
            idx = ((kr >> 1)*2 + P)*4 + (kr & 1)*2 + ta
            self.a(f"v_mfma_f32_16x16x32_bf16 {d}, {ar(aU+4*idx,4)}, {b}, {d}")
            if fill: self.run(fill[ta])
    def epi(self, P, l, pk=False):
        r = []
        if pk:
            for e in range(4):
                q = 8*P + 2*e
                r.append(lambda q=q: self.a(f"v_pk_fma_f32 {vr(ACC2+q,2)}, {vr(X0F+q,2)}, {vr(ACC2+q,2)}, {vr(XF+q,2)}"))
        else:
            for e in range(8):
                q = 8*P + e
                r.append(lambda q=q: self.a(f"v_fma_f32 v{ACC2+q}, v{X0F+q}, v{ACC2+q}, v{XF+q}"))
        for e in range(4):
            q = 8*P + 2*e
            r.append(lambda q=q: self.a(f"v_cvt_pk_bf16_f32 v{PK+q//2}, v{ACC2+q}, v{ACC2+q+1}"))
        if l < L-1: r.append(lambda: self.lgop(f"ds_write_b128 v{vXW}, {vr(PK+4*P,4)} offset:{P*1024}", "xw"))
        else: r.append(lambda: self.lgop(f"ds_write_b128 v{vT[P]}, {vr(PK+4*P,4)}", "xw"))
        return r
    def unpack(self, dst, src, n):
        r = []
        for i in range(n):
            r.append(lambda i=i: self.a(f"v_lshlrev_b32 v{dst+2*i}, 16, v{src+i}"))
            r.append(lambda i=i: self.a(f"v_and_b32 v{dst+2*i+1}, 0xffff0000, v{src+i}"))
        return r
    def bias_rd(self, l):
        for k in range(4):
            self.lgop(f"ds_read_b128 {vr(ACC2+4*k,4)}, v{vBI} offset:{(0 if self.dyn else l*256) + (k>>1)*128 + (k&1)*16}", "bias")
    def run(self, lst):
        for f in lst: f()
    def mix(self, *lists):
        lists = [list(x) for x in lists]
        while any(lists):
            for x in lists:
                if x: x.pop(0)()
    def srd(self, r, p, n, bias=0):
        if bias:
            self.a(f"s_sub_u32 s{r}, s{p}, {bias}"); self.a(f"s_subb_u32 s{r+1}, s{p+1}, 0")
        else:
            self.a(f"s_mov_b32 s{r}, s{p}"); self.a(f"s_mov_b32 s{r+1}, s{p+1}")
        self.a(f"s_mov_b32 s{r+2}, {n+bias}"); self.a(f"s_mov_b32 s{r+3}, 0x20000")
    def poll(self, l):
        self.jit()
        self.vmop(f"buffer_load_dwordx4 {vr(RX,4)}, v{vE}, {sr(sE,4)}, s{sSL} offen sc1", f"poll{l}")
    def send(self, l, u=None):
        a = self.a; u = u if u is not None else f"{self.X}{l}"
        a(f"s_xor_b32 s{sPTMP}, s{sSL}, 512")
        for k in range(4): a(f"v_cvt_pk_bf16_f32 v{SP+k}, v{ACC1+2*k}, v{ACC1+2*k+1}")
        for k in range(4): a(f"v_and_or_b32 v{SP+k}, v{SP+k}, -2, s{sTAG}")
        if l == 0: self.handshake()
        self.jit()
        self.stamp(f"snd{u}")
        a(f"s_cmp_eq_u32 s{sMODE}, 0"); a(f"s_cbranch_scc1 L_ss{u}")
        self.vmop(f"buffer_store_dwordx4 {vr(SP,4)}, v{vE}, {sr(sE,4)}, s{sPTMP} offen {self.opts.get('sendf', '')}", "st")
        self.lab(f"L_sd{u}")
        self.xl(f"L_ss{u}")
        self.x(f"buffer_store_dwordx4 {vr(SP,4)}, v{vE}, {sr(sE,4)}, s{sPTMP} offen sc1")
        self.x("s_nop 1"); self.x(f"s_branch L_sd{u}")
    def chk_ops(self, l):
        R = RX; t0 = vT[3]
        return [f"v_xor_b32 v{t0}, s{sTAG}, v{R}"] + [f"v_bitop3_b32 v{t0}, v{R+k}, v{t0}, s{sTAG} bitop3:0xde" for k in (1, 2, 3)] + \
               [f"v_and_b32 v{t0}, 1, v{t0}", f"v_cmp_ne_u32 vcc, 0, v{t0}"]
    def next_msg(self):
        if not self.opts.get("one"): self.a(f"s_xor_b32 s{sSL}, s{sSL}, 16384")
        self.a(f"s_lshr_b32 s{sTS}, s{sTS}, 1"); self.a(f"s_and_b32 s{sTAG}, s{sTS}, 1")
    def check_post(self, l, d=None):
        u = f"{self.X}{l}"; x = self.x; a = self.a
        self.wvm(f"poll{l}")
        self.stamp(f"chk{u}")
        if self.opts.get("dbgcnt"): a(f"s_mov_b32 s{sCNT}, 0")
        for s in self.chk_ops(l): a(s)
        a(f"s_cbranch_vccnz L_rt{u}")
        self.lab(f"L_got{u}")
        self.stamp(f"got{u}")
        if self.opts.get("dbgcnt"): self.rec(f"cnt{l}", f"s{sCNT}")
        self.xl(f"L_rt{u}")
        x(f"s_mov_b32 s{sCNT}, 0")
        self.xl(f"L_rl{u}")
        x(f"buffer_load_dwordx4 {vr(RX,4)}, v{vE}, {sr(sE,4)}, s{sSL} offen sc1")
        if "retrydelay" in self.opts: x("s_add_u32 s96, s96, 1")
        x(f"s_add_u32 s{sCNT}, s{sCNT}, 1"); x(f"s_cmp_gt_u32 s{sCNT}, 0x200000")
        x("s_waitcnt vmcnt(0)")
        x(f"s_cbranch_scc1 L_got{u}")
        for s in self.chk_ops(l): x(s)
        x(f"s_cbranch_vccnz L_rl{u}")
        x(f"s_branch L_got{u}")
        ops = []
        for h in range(2):
            ops += self.unpack(T4, RX+2*h, 2)
            if self.opts.get("pkadd", 0):
                for k in range(2): ops.append(lambda k=k, h=h: a(f"v_pk_add_f32 {vr(T4+2*k,2)}, {vr(T4+2*k,2)}, {vr(ACC1+4*h+2*k,2)}"))
            else:
                for k in range(4): ops.append(lambda k=k, h=h: a(f"v_add_f32 v{T4+k}, v{T4+k}, v{ACC1+4*h+k}"))
            for k in range(2): ops.append(lambda k=k, h=h: a(f"v_cvt_pk_bf16_f32 v{HP+2*h+k}, v{T4+2*k}, v{T4+2*k+1}"))
        ops.append(lambda: self.lgop(f"ds_write_b128 v{vHW}, {vr(HP,4)}", "hw"))
        ops.append(self.next_msg)
        if d is None:
            self.run(ops); self.bias_rd(l); return
        d = list(d); st = self.opts.get("vper", 10)
        while ops:
            self.run(ops[:st]); ops = ops[st:]
            if ops and d: d.pop(0)()
        self.run(d)
    def x_reads(self):
        return [lambda ks=ks: self.lgop(f"ds_read_b128 {ar(aX+4*(ks-2),4)}, v{vXR[ks>>1]} offset:{(ks&1)*1024}", f"x{ks}") for ks in range(2, 8)]
    def h_reads(self):
        for kr in range(1, 4):
            self.lgop(f"ds_read_b128 {ar(aH+4*(kr-1),4)}, v{vHR[kr]}", f"h{kr}")

    def g2_phase(self, l, early=None, mid=None, late=None):
        early = list(early or []); mid = list(mid or []); late = list(late or [])
        def take(q): return [q[0:1], q[1:2]]
        self.h_reads()
        self.mf2(0, 0, take(early)); self.mf2(1, 0, take(early[2:]))
        self.wlg("h1"); self.mf2(0, 1, take(early[4:]))
        self.wlg("h2"); self.mf2(0, 2, take(early[6:] + mid))
        self.wlg("h3"); self.mf2(0, 3, take(mid[2:]))
        self.flush()
        e0 = self.epi(0, l); e1 = self.epi(1, l, pk=self.opts.get("pkfma", 1))
        u = f"{self.X}{l}"
        self.stamp(f"g2a{u}")
        if self.opts.get("e0mix", 0):
            self.mf2(1, 1, [[], late[0:4]])
            self.mf2(1, 2, [[], e0[0:3]])
            self.stamp(f"g2b{u}")
            self.mf2(1, 3, [e0[3:6], e0[6:-1]])
        else:
            self.mf2(1, 1); self.mf2(1, 2, [late[0:2], late[2:4]])
            self.stamp(f"g2b{u}")
            self.mf2(1, 3, [e0[0:2], e0[2:-1]])
        self.stamp(f"g2c{u}")
        e0[-1]()
        self.stamp(f"g2d{u}")
        self.run(e1[:-1])
        self.stamp(f"g2e{u}")
        e1[-1]()
        self.stamp(f"g2f{u}")
    def g1_phase(self, l, jitV=False, extra=None):
        xr = self.x_reads(); extra = list(extra or [])
        if jitV:
            rv = self.rdV(2) + self.rdV(3)
            ev = self.opts.get("earlyv", 8)
            pre = (self.rdV(0) + self.rdV(1))[ev:]
            self.run(pre[:4]); self.run(xr[0:2]); self.run(pre[4:])
            q = [xr[2], rv[0], rv[1], xr[3], rv[2], rv[3], xr[4], rv[4], rv[5], xr[5], rv[6], rv[7]]
            for ks in range(8):
                self.wlg(f"rV{ks>>1}_{ks&1}")
                if ks >= 2: self.wlg(f"x{ks}")
                self.mf1(ks, [q[0:2], q[2:3]]); q = q[3:]
        else:
            self.run(xr)
            for ks in range(8):
                if ks >= 2: self.wlg(f"x{ks}")
                self.mf1(ks, [extra[0:1], extra[1:2]]); extra = extra[2:]
                if l == 0 and ks == self.opts.get("flagBat", 4): self.vmop(f"buffer_load_ubyte v{vT[1]}, v{vT[2]}, {sr(sD,4)}, 0 offen sc1", "flag")
            self.run(extra)
        self.send(l)
        self.run(self.unpack(XF, PK, 8))

    def prologue(self):
        a = self.a; T = [X0F + i for i in range(10)]
        a(f"s_load_dwordx8 {sr(sKA,8)}, s[0:1], 0")
        a(f"s_load_dwordx4 {sr(sKA+8,4)}, s[0:1], 32")
        a(f"s_load_dwordx2 {sr(sKA+12,2)}, s[0:1], 48")
        a("s_cmp_ge_u32 s2, 256"); a("s_cbranch_scc1 L_end")
        self.stamp("start"); self.stamp("rt0")
        a(f"v_lshrrev_b32 v{T[0]}, 6, v0"); a(f"v_and_b32 v{vLANE}, 63, v0")
        if self.opts.get("codepf", 1):
            a(f"s_getpc_b64 {sr(sX0,2)}"); a(f"v_lshlrev_b32 v{T[1]}, 7, v0"); a(f"s_and_b32 s{sX0}, s{sX0}, 0xffffff00")
            a(f"v_cmp_gt_u32 vcc, CODE_BYTES, v{T[1]}")
            a(f"s_and_saveexec_b64 {sr(sX0+2,2)}, vcc"); a("s_cbranch_execz L_nocpf")
            a(f"global_load_dword v{vJ}, v{T[1]}, {sr(sX0,2)}")
            self.lab("L_nocpf")
            a("s_mov_b64 exec, -1")
        a(f"v_readfirstlane_b32 s{sWV}, v{T[0]}")
        a(f"v_lshrrev_b32 v{T[6]}, 3, v{vLANE}"); a(f"v_and_b32 v{T[2]}, 6, v{T[6]}"); a(f"v_xor_b32 v{T[2]}, v{T[2]}, v{vLANE}")
        a(f"v_and_b32 v{T[2]}, 7, v{T[2]}"); a(f"v_lshlrev_b32 v{T[2]}, 4, v{T[2]}")
        a(f"v_and_b32 v{T[3]}, 4, v{T[6]}"); a(f"v_add_u32 v{T[1]}, v{T[6]}, v{T[3]}")
        a(f"v_lshl_add_u32 v{T[3]}, v{T[1]}, 10, v{T[2]}")
        voff = lambda j: ((j&1)*16 + (j>>1)*4)
        for j in range(2): a(f"v_add_u32 v{vV[j]}, {voff(j)*1024 - 1024*j + 3072}, v{T[3]}")
        a(f"s_and_b32 s{sT[0]}, s2, 0xf0"); a(f"s_lshl_b32 s{sT[0]}, s{sT[0]}, 14"); a(f"s_and_b32 s{sT[1]}, s2, 7"); a(f"s_lshl_b32 s{sT[1]}, s{sT[1]}, 15")
        a(f"s_and_b32 s{sT[2]}, s2, 8"); a(f"s_lshl_b32 s{sT[2]}, s{sT[2]}, 6")
        a(f"s_and_b32 s{sWS}, s{sWV}, 3"); a(f"s_lshr_b32 s{sXH}, s{sWV}, 2")
        a(f"s_or_b32 s{sT[0]}, s{sT[0]}, s{sT[1]}"); a(f"s_lshl_b32 s{sT[1]}, s{sXH}, 12"); a(f"s_or_b32 s{sT[1]}, s{sT[1]}, s{sT[2]}")
        a(f"s_or_b32 s{sT[4]}, s{sT[0]}, s{sT[1]}")
        a(f"s_lshl_b32 s{sT[3]}, s{sWS}, 7"); a(f"s_add_u32 s{sT[7]}, s{sT[4]}, s{sT[3]}")
        a(f"s_lshl1_add_u32 s{sT[5]}, s{sWS}, s{sXH}"); a(f"s_lshl_b32 s{sT[5]}, s{sT[5]}, 11"); a(f"s_add_u32 s{sT[5]}, s{sT[5]}, {XB}")
        a(f"s_lshr_b32 s{sT[0]}, s2, 3"); a(f"s_lshl3_add_u32 s{sT[0]}, s{sT[0]}, s{sWV}"); a(f"s_lshl_b32 s{sT[0]}, s{sT[0]}, 9")
        a(f"s_lshl2_add_u32 s{sT[1]}, s2, s{sWS}"); a(f"s_lshl_b32 s{sT[1]}, s{sT[1]}, 7"); a(f"s_sub_u32 s{sT[1]}, s{sT[1]}, {3*131072}")
        a(f"v_lshl_add_u32 v{T[8]}, v{vLANE}, 7, s{sT[0]}"); a(f"v_lshl_add_u32 v{T[9]}, v{vLANE}, 17, s{sT[1]}")
        mk = [int(m, 16) for m in str(self.opts.get("mk", "1ff,f,f,1ff")).split(",")]
        a(f"v_cmp_gt_u32 vcc, 4, v{vLANE}")
        a(f"s_cmp_eq_u32 s{sXH}, 0"); a(f"s_cselect_b32 s{sT[0]}, {mk[0]}, {mk[1]}"); a(f"s_cselect_b32 s{sT[1]}, {mk[2]}, {mk[3]}")
        a(f"v_cndmask_b32 v{vPF}, v{T[9]}, v{T[8]}, vcc")
        a("s_waitcnt lgkmcnt(0)")
        self.stamp("karg")
        def only(x, name, body):
            a(f"s_cmp_lg_u32 s{sXH}, {x}"); a(f"s_cbranch_scc1 {name}")
            n0 = len(self.vm); body()
            for k in range(n0, len(self.vm)): self.vm[k] = (x, self.vm[k])
            self.lab(name)
        def x0ld():
            a(f"s_mov_b32 m0, s{sT[5]}"); a("s_nop 0")
            self.vmop(f"buffer_load_dwordx4 v{vV[0]}, {sr(sX0,4)}, s{sT[7]} offen lds", "x0")
            self.vmop(f"buffer_load_dwordx4 v{vV[1]}, {sr(sX0,4)}, s{sT[7]} offen offset:1024 lds", "x0")
        self.srd(sX0, sKA+0, 4096*1024, 3072)
        only(0, "L_o1", x0ld)
        self.srd(sV, sKA+4, 6*131072, 3072)
        a("s_mov_b32 exec_hi, 0"); a(f"s_mov_b32 exec_lo, s{sT[0]}")
        self.vmop(f"buffer_load_dword v{vJ}, v{vPF}, {sr(sV,4)}, 0 offen offset:3072", "pf")
        self.srd(sU, sKA+2, 6*131072, 3072)
        a(f"s_mov_b32 exec_lo, s{sT[1]}")
        self.vmop(f"buffer_load_dword v{vJ}, v{vPF}, {sr(sU,4)}, 0 offen offset:3072", "pf")
        a("s_mov_b64 exec, -1")
        a(f"s_lshr_b32 s{sT[0]}, s{sWS}, 1"); a(f"s_lshl_b32 s{sT[0]}, s{sT[0]}, 13"); a(f"s_add_u32 s{sT[4]}, s{sT[4]}, s{sT[0]}")
        a(f"s_and_b32 s{sT[6]}, s{sWS}, 1"); a(f"s_lshl_b32 s{sT[0]}, s{sT[6]}, 11"); a(f"s_add_u32 s{sMY[0]}, s{sT[4]}, s{sT[0]}")
        a(f"v_lshrrev_b32 v{T[8]}, 5, v{vLANE}"); a(f"v_and_b32 v{vE}, 31, v{vLANE}"); a(f"v_lshlrev_b32 v{vE}, 4, v{vE}")
        a(f"v_lshl_add_u32 v{vE}, v{T[8]}, 10, v{vE}")
        for r in range(4): a(f"v_mov_b32 v{TM+r}, 0")
        self.srd(sO, sKA+8, 4096*1024)
        only(0, "L_o2", lambda: self.clr(0))
        a(f"s_lshl_b32 s{sLB}, s{sWS}, 15"); a(f"s_add_u32 s{sT[0]}, s{sLB}, s{sT[2]}")
        for g in range(4):
            a(f"s_xor_b32 s{sT[4]}, s{sWS}, {g}"); a(f"s_lshl_b32 s{sT[4]}, s{sT[4]}, 7"); a(f"s_add_u32 s{sVG[g]}, s{sT[0]}, s{sT[4]}")
        for j in range(2, 4): a(f"v_add_u32 v{vV[j]}, {voff(j)*1024 - 1024*j + 3072}, v{T[3]}")
        a(f"s_lshl_b32 s{sT[4]}, s{sXH}, 13"); a(f"s_add_u32 s{sT[4]}, s{sT[4]}, s{sLB}")
        a(f"s_cmp_eq_u32 s{sXH}, 0")
        a(f"s_cselect_b32 s{sT[0]}, s{sVG[0]}, s{sVG[2]}"); a(f"s_cselect_b32 s{sT[1]}, s{sVG[1]}, s{sVG[3]}")
        self.stamp("i_x0")
        xb = self.opts.get("xbpos", 2)
        for k in range(2):
            if xb == k: only(1, "L_o3", x0ld)
            a(f"s_add_u32 m0, s{sT[4]}, {k*4096}"); a("s_nop 0")
            for j in range(4):
                self.vmop(f"buffer_load_dwordx4 v{vV[j]}, {sr(sV,4)}, s{sT[k]} offen offset:{1024*j} lds", "V0")
        if xb == 2: only(1, "L_o3", x0ld)
        self.stamp("i_v0a")
        a(f"v_and_b32 v{T[7]}, 7, v{vLANE}"); a(f"v_lshlrev_b32 v{T[9]}, 4, v{T[7]}"); a(f"v_lshl_add_u32 v{T[9]}, v{T[6]}, 10, v{T[9]}")
        a(f"s_mul_i32 s{sT[0]}, s{sXH}, 3072"); a(f"s_add_u32 s{sT[0]}, s{sT[0]}, s{sT[3]}"); a(f"s_add_u32 s{sT[0]}, s{sT[0]}, s{sT[2]}")
        a(f"v_mov_b32 v{vT[2]}, s2"); a(f"v_xor_b32 v{vT[2]}, 8, v{vT[2]}")
        self.srd(sB, sKA+6, 6*1024)
        self.srd(sD, sKA+10, 256)
        a("s_mov_b64 exec, 0xffffff")
        self.vmop(f"buffer_load_dwordx4 {vr(TM+4,4)}, v{T[9]}, {sr(sB,4)}, s{sT[0]} offen", "bias")
        a("s_mov_b64 exec, 1")
        self.vmop(f"buffer_load_ubyte v{vJ}, v{vT[2]}, {sr(sD,4)}, 0 offen", "touch")
        a("s_mov_b64 exec, -1")
        a(f"s_add_u32 s{sMY[1]}, s{sMY[0]}, 16384")
        self.srd(sW, sKA+12, 8 << 20)
        self.srd(sE, sKA+8, 4096*1024)
        if self.opts.get("stag"):
            a(f"v_mov_b32 v{RX+2}, s{sSTAMP}"); a(f"s_lshl_b32 s90, s2, 2"); a("s_add_u32 s90, s90, 0x700000"); a(f"v_mov_b32 v{RX+3}, 0")
            a("s_mov_b64 exec, 1"); a(f"buffer_store_dword v{RX+2}, v{RX+3}, {sr(sW,4)}, s90 offen sc1"); a("s_mov_b64 exec, -1")
        a(f"s_getreg_b32 s{sXCC}, hwreg(HW_REG_XCC_ID)"); a(f"s_and_b32 s{sXCC}, s{sXCC}, 15"); a(f"s_or_b32 s{sXCC}, s{sXCC}, 16")
        a(f"v_lshl_add_u32 v{T[4]}, v{T[1]}, 8, v{T[2]}")
        a(f"s_lshl_b32 s{sT[0]}, s{sT[6]}, 6"); a(f"v_xor_b32 v{T[4]}, s{sT[0]}, v{T[4]}")
        for j in range(4):
            a(f"v_add_u32 v{vU[j]}, {voff(j)*256 - 1024*j + 3072}, v{T[4]}")
        a(f"s_lshl_b32 s{sT[0]}, s{sT[2]}, 7"); a(f"s_lshl_b32 s{sT[1]}, s{sWS}, 14"); a(f"s_add_u32 s{sT[0]}, s{sT[0]}, s{sT[1]}")
        a(f"s_and_b32 s{sT[1]}, s{sWS}, 2"); a(f"s_lshl_b32 s{sT[1]}, s{sT[1]}, 6"); a(f"s_add_u32 s{sUG[0]}, s{sT[0]}, s{sT[1]}")
        a(f"s_add_u32 s{sUG[1]}, s{sUG[0]}, 8192"); a(f"s_xor_b32 s{sUG[2]}, s{sUG[0]}, 128"); a(f"s_xor_b32 s{sUG[3]}, s{sUG[1]}, 128")
        a(f"v_lshrrev_b32 v{T[0]}, 4, v{vLANE}")
        a(f"v_and_b32 v{T[1]}, 6, v{vLANE}"); a(f"v_xor_b32 v{T[2]}, v{T[1]}, v{T[0]}"); a(f"v_lshlrev_b32 v{T[2]}, 4, v{T[2]}")
        a(f"v_and_b32 v{T[1]}, 15, v{vLANE}"); a(f"v_lshl_add_u32 v{T[2]}, v{T[1]}, 7, v{T[2]}")
        a(f"v_add_u32 v{T[3]}, s{sT[5]}, v{T[2]}"); a(f"v_xor_b32 v{T[5]}, 64, v{T[3]}")
        a(f"v_add_u32 v{vA[0]}, s{sLB}, v{T[2]}"); a(f"v_xor_b32 v{vA[1]}, 64, v{vA[0]}")
        a(f"v_lshlrev_b32 v{T[1]}, 4, v{vLANE}")
        a(f"v_add_u32 v{vXW}, s{sT[5]}, v{T[1]}")
        for g in range(1, 4): a(f"v_xor_b32 v{vXR[g]}, {g*4096}, v{vXW}")
        a(f"s_lshl_b32 s{sT[0]}, s{sWV}, 10"); a(f"s_add_u32 s{sT[0]}, s{sT[0]}, {HB}")
        a(f"v_add_u32 v{vHW}, s{sT[0]}, v{T[1]}")
        for g in range(1, 4): a(f"v_xor_b32 v{vHR[g]}, {g*1024}, v{vHW}")
        a(f"s_mul_i32 s{sT[0]}, s{sWS}, 1536"); a(f"s_add_u32 s{sT[0]}, s{sT[0]}, {BIASB}")
        a(f"v_lshl_add_u32 v{vBI}, v{T[0]}, 5, s{sT[0]}")
        a(f"s_mul_i32 s{sT[1]}, s{sXH}, 768"); a(f"s_add_u32 s{sT[0]}, s{sT[0]}, s{sT[1]}")
        a(f"v_lshlrev_b32 v{T[7]}, 5, v{T[7]}"); a(f"v_lshl_add_u32 v{T[7]}, v{T[6]}, 8, v{T[7]}"); a(f"v_add_u32 v{vT[0]}, s{sT[0]}, v{T[7]}")
        a(f"s_mov_b32 s{sSL}, s{sMY[0]}"); a(f"s_mov_b32 s{sTS}, {sum(t << i for i, t in enumerate(TAGS))}"); a(f"s_mov_b32 s{sTAG}, {TAGS[0]}")
        a(f"s_xor_b32 s{sT[3]}, s2, 8"); a(f"s_and_b32 s{sT[2]}, s{sT[3]}, 0xfc"); a(f"s_and_b32 s{sT[3]}, s{sT[3]}, 3"); a(f"s_lshl_b32 s{sT[3]}, s{sT[3]}, 3")
        a(f"s_cmp_lg_u32 s{sXH}, 0"); a("s_cbranch_scc1 L_progB")

    def xproc(self):
        a = self.a; T = [X0F + i for i in range(10)]
        self.wvm("x0"); self.stamp("x0")
        for P in range(2):
            self.lgop(f"ds_read_b128 {vr(PK+4*P,4)}, v{T[5] if P else T[3]}", "x0r")
        self.wlg("x0r")
        for P in range(2):
            self.lgop(f"ds_write_b128 v{vXW}, {vr(PK+4*P,4)} offset:{P*1024}", "xw")
        self.run(self.unpack(X0F, PK, 8))
    def biasproc(self):
        a = self.a
        self.wvm("bias")
        self.run(self.unpack(TM+8, TM+4, 4))
        a("s_mov_b64 exec, 0xffffff")
        self.lgop(f"ds_write_b128 v{vT[0]}, {vr(TM+8,4)}", "bw")
        self.lgop(f"ds_write_b128 v{vT[0]}, {vr(TM+12,4)} offset:16", "bw")
        a("s_mov_b64 exec, -1")
    def clr(self, sl):
        self.vmop(f"buffer_store_dwordx4 {vr(TM,4)}, v{vE}, {sr(sO,4)}, s{sMY[sl]} offen sc1", "clr")
    def post_flag(self, stage):
        a = self.a
        a(f"s_cmp_lg_u32 s{sWV}, 0"); a(f"s_cbranch_scc1 L_noflag{stage}")
        a(f"v_mov_b32 v{T4}, s2"); a(f"v_mov_b32 v{T4+1}, s{sXCC}")
        if stage: a(f"v_or_b32 v{T4+1}, 32, v{T4+1}")
        a("s_mov_b64 exec, 1")
        a(f"buffer_store_byte v{T4+1}, v{T4}, {sr(sD,4)}, 0 offen"); a("s_mov_b64 exec, -1")
        self.lab(f"L_noflag{stage}")
    def flag_ld(self):
        self.a(f"s_load_dword s{sT[1]}, {sr(sKA+10,2)}, s{sT[2]}")
    def bias_ops(self, l):
        return [lambda k=k: self.lgop(f"ds_read_b128 {vr(ACC2+4*k,4)}, v{vBI} offset:{(0 if self.dyn else l*256) + (k>>1)*128 + (k&1)*16}", "bias") for k in range(4)]
    def light1(self, kind, l, rd, lp, n1=None):
        d = self.dma(kind, l, 0) + self.dma(kind, l, 1)
        n1 = n1 or self.opts.get("n1", 8)
        self.carry = d[n1:]; d = d[:n1]
        pp = self.opts.get("pollat", 2); r0 = self.opts.get("rd1at", 0)
        rd = list(rd) + self.bias_ops(lp)
        per = self.opts.get("rd1per", 4)
        for k in range(8):
            if k == pp: self.poll(lp)
            if k < len(d): d[k]()
            if r0 <= k and (k - r0) % self.opts.get("dper", 1) == 0: self.run(rd[:per]); rd = rd[per:]
            self.stamp(f"l1{self.X}{lp}_{k}")
        if pp >= 8: self.poll(lp)
    def light2(self, kind, l, rd, lp):
        self.run(self.carry)
        d = self.dma(kind, l, 2) + self.dma(kind, l, 3) + [lambda: None] * 8
        p2 = self.opts.get("pre2", 3); rd = list(rd)
        if self.opts.get("l2mode", 0) == 1 or l >= L:
            m2 = self.opts.get("mid2", 1)
            self.run(d[:p2])
            self.check_post(lp, d[p2:p2+m2])
            self.run(rd[:4]); d[p2+m2](); self.run(rd[4:])
            self.wvm(f"{kind}{l}a")
            self.run(d[p2+m2+1:8])
            return
        seq = self.opts.get("l2seq")
        if seq:
            d = list(d)
            for t in seq:
                if t == "d": d.pop(0)()
                elif t == "r": self.run(rd[:2]); rd = rd[2:]
                elif t == "c": self.check_post(lp, [])
                elif t == "C": self.check_post(lp, [d.pop(0)])
                elif t == "w": self.wvm(f"{kind}{l}a")
                elif t == "g": self.vmop(f"buffer_load_dword v{vJ}, off, {sr(sB,4)}, 0", "gap")
            assert not rd and len(d) == 8
            return
        self.run(d[:p2])
        self.run(rd[:4]); d[p2](); self.run(rd[4:]); d[p2+1]()
        self.stamp(f"pd{self.X}{lp}")
        self.check_post(lp, d[p2+2:p2+3])
        self.stamp(f"po{self.X}{lp}")
        self.wvm(f"{kind}{l}a")
        self.run(d[p2+3:8])
        self.stamp(f"en{self.X}{lp}")
    def progA(self):
        a = self.a
        self.xproc()
        self.wvm("V0"); self.stamp("v0l")
        self.bar("b0")
        self.prio(2)
        self.post_flag(0)
        if self.opts.get("ac1", 0) == 0: self.clr(1)
        xr = self.x_reads(); rv = [f for g in range(4) for f in self.rdV(g)]
        self.run(rv[0:4]); self.run(xr[0:2]); self.run(rv[4:8]); self.run(xr[2:4])
        q = rv[8:12] + xr[4:6] + rv[12:16]
        for ks in range(8):
            self.wlg(f"rV{ks>>1}_{ks&1}")
            if ks >= 2: self.wlg(f"x{ks}")
            self.mf1(ks, [q[0:1], q[1:2]]); q = q[2:]
            if ks == self.opts.get("flagat", 5): self.flag_ld()
        self.send(0)
        if self.opts.get("ac1", 0) == 1: self.clr(1)
        self.run(self.unpack(XF, PK, 8))
        self.biasproc()
        self.prio(0)
        self.wvm("clr")
        self.bar("b1")
        self.post_flag(1)
        self.light1("V", 1, self.rdU(0) + self.rdU(1), 0, 8)
        self.bar("b1x")
        self.run(self.rdU(2))
        self.check_post(0, [])
        self.run(self.rdU(3))
        self.wvm("V1a")
        self.bar("b2"); self.stamp("rtb2")
        self.a(f"s_mov_b32 s{sLOFF}, {2*131072}"); self.a(f"v_add_u32 v{vBI}, 256, v{vBI}")
        self.rounds(self.roundA)
    def rounds(self, body):
        self.dyn = True
        if not self.opts.get("loop", 1):
            for l in range(L): body(l, None)
            return
        u = self.X
        self.a(f"s_mov_b32 s{sIT}, 4")
        keep = self.o; self.o = []; self.emit_ool = False
        body(0, None)
        self.o = keep; self.emit_ool = True
        if self.opts.get("loopalign", 1): self.o.append("    .p2align 6")
        self.lab(f"L_loop{u}")
        body(1, f"L_loop{u}")
        keep = self.o; self.o = []; self.emit_ool = False
        body(2, None); body(3, None)
        self.o = keep; self.emit_ool = True
        body(4, None); body(5, None)
    def adv(self, back):
        self.a(f"s_add_u32 s{sLOFF}, s{sLOFF}, 131072"); self.a(f"v_add_u32 v{vBI}, 256, v{vBI}")
        if back: self.a(f"s_sub_u32 s{sIT}, s{sIT}, 1"); self.a(f"s_cmp_lg_u32 s{sIT}, 0")
    def roundA(self, l, back):
        last = l == L-1
        self.c(f"==== A round {l} phase 0: G2 ====")
        self.prio(2)
        ev = self.opts.get("earlyv", 8)
        self.g2_phase(l, early=(None if last else (self.rdV(0) + self.rdV(1))[:ev]))
        if last:
            self.final_store(bar=True); return
        self.wvm(f"V{l+1}b")
        self.stamp(f"g2g0{l}")
        self.bar(f"A0{l}")
        self.c(f"==== A round {l} phase 1: G1 ====")
        self.g1_phase(l+1, jitV=True)
        self.prio(0)
        self.bar(f"A1{l}")
        self.c(f"==== A round {l} phase 2 ====")
        self.light1("V", l+2, self.rdU(0) + self.rdU(1), l+1)
        self.bar(f"A2{l}")
        self.c(f"==== A round {l} phase 3 ====")
        self.light2("V", l+2, self.rdU(2) + self.rdU(3), l+1)
        if l == L-2: self.final_addr()
        self.wlg0()
        self.adv(back)
        self.bar(f"A3{l}")
        if back: self.a(f"s_cbranch_scc1 {back}")

    def progB(self):
        self.lab("L_progB")
        d = [f for g in range(4) for f in self.dma("U", 0, g, "DDDD")]
        rv = [f for g in range(4) for f in self.rdV(g)]
        nu = self.opts.get("u0pre", 4)
        bc = self.opts.get("bclr", 1)
        if bc == 0: self.clr(0); self.clr(1)
        self.run(d[:nu])
        self.wvm("V0"); self.stamp("v0l")
        self.bar("b0")
        self.run(d[nu:8])
        if bc == 1: self.clr(0); self.clr(1)
        self.xproc()
        for k in range(4):
            self.run(rv[4*k:4*k+4]); self.run(d[8+2*k:10+2*k])
        self.biasproc()
        self.wvm("clr")
        self.bar("b1")
        self.prio(2)
        self.g1_phase(0, extra=self.rdU(0) + self.rdU(1))
        self.prio(0)
        self.wvm("U0b")
        self.bar("b1x")
        self.mix(self.dma("V", 1, 2) + self.dma("V", 1, 3), self.rdU(2) + self.rdU(3))
        self.bar("b2"); self.stamp("rtb2")
        self.a(f"s_mov_b32 s{sLOFF}, 131072")
        self.rounds(self.roundB)
    def roundB(self, l, back):
        last = l == L-1
        self.c(f"==== B round {l} phase 0 ====")
        if not last:
            n0 = len(self.vm)
            self.light1("U", l+1, self.rdV(0) + self.rdV(1), l)
            self.a(f"s_waitcnt vmcnt({len(self.vm) - n0})"); self.vmdone = max(self.vmdone, n0)
            self.bar(f"B0{l}")
            self.c(f"==== B round {l} phase 1 ====")
            self.light2("U", l+1, self.rdV(2) + self.rdV(3), l)
        else:
            if not self.opts.get("lastpoll", 0): self.poll(l)
            if self.opts.get("lastpoll", 0) < 2: self.bias_rd(l)
            self.check_post(l, [])
        self.bar(f"B1{l}")
        self.c(f"==== B round {l} phase 2: G2 ====")
        self.prio(2)
        if last:
            self.g2_phase(l); self.final_store(); return
        self.g2_phase(l, mid=self.rdU(0), late=self.rdU(1))
        self.wvm(f"U{l+1}b")
        self.bar(f"B2{l}")
        self.c(f"==== B round {l} phase 3: G1 ====")
        self.g1_phase(l+1, extra=self.rdU(2) + self.rdU(3))
        if l == L-2: self.final_addr()
        self.prio(0)
        self.wlg0()
        self.adv(back)
        if l == L-2 and self.opts.get("lastpoll", 0) == 2: self.bias_rd(l+1)
        if l == L-2 and self.opts.get("lastpoll", 0): self.poll(l+1)
        self.bar(f"B3{l}")
        if back: self.a(f"s_cbranch_scc1 {back}")

    def final_addr(self):
        a = self.a; t = [RX, RX+1, RX+2]
        a(f"v_and_b32 v{t[0]}, 15, v{vLANE}"); a(f"v_lshrrev_b32 v{t[1]}, 4, v{vLANE}")
        a(f"v_and_b32 v{t[2]}, 7, v{t[0]}"); a(f"v_xor_b32 v{t[2]}, v{t[2]}, v{t[1]}"); a(f"v_lshlrev_b32 v{t[2]}, 4, v{t[2]}")
        a(f"v_lshl_add_u32 v{t[2]}, v{t[0]}, 7, v{t[2]}")
        a(f"v_and_b32 v{vT[0]}, 0xfffff800, v{vXW}"); a(f"v_add_u32 v{vT[0]}, v{vT[0]}, v{t[2]}"); a(f"v_xor_b32 v{vT[1]}, 64, v{vT[0]}")
        a(f"v_lshrrev_b32 v{t[0]}, 3, v{vLANE}"); a(f"v_xor_b32 v{t[1]}, v{t[0]}, v{vLANE}"); a(f"v_and_b32 v{t[1]}, 7, v{t[1]}")
        a(f"v_lshlrev_b32 v{t[1]}, 4, v{t[1]}")
        a(f"v_and_b32 v{t[2]}, 4, v{t[0]}"); a(f"v_add_u32 v{t[0]}, v{t[0]}, v{t[2]}")
        a(f"v_lshl_add_u32 v{vT[2]}, v{t[0]}, 10, v{t[1]}")

    def final_store(self, bar=False):
        a = self.a; D = XF
        for m in range(2):
            self.lgop(f"ds_read_b128 {vr(D+4*m,4)}, v{vXW} offset:{m*1024}", f"fo{m}")
        fl = self.opts.get("outflags", "") if self.X else self.opts.get("outflagsA", self.opts.get("outflags", ""))
        for m in range(2):
            a(f"s_add_u32 s{sT[m]}, s{sT[7]}, {m*16384}")
            self.wlg(f"fo{m}")
            self.vmop(f"buffer_store_dwordx4 {vr(D+4*m,4)}, v{vT[2]}, {sr(sO,4)}, s{sT[m]} offen {fl}", "out")
        if bar and self.opts.get("junk"):
            for m in range(4):
                a(f"s_add_u32 s{sT[2]}, s{sMY[0]}, {m*4096 if m < 2 else 16384 + (m-2)*4096}")
                a(f"buffer_store_dwordx4 {vr(D,4)}, v{vE}, {sr(sW,4)}, s{sT[2]} offen")
        if bar: a("s_barrier")
        if self.opts.get("stag"):
            u = self.X
            a("s_waitcnt vmcnt(0)")
            a(f"s_add_u32 s4, s{sKA+12}, 0x700000"); a(f"s_addc_u32 s5, s{sKA+13}, 0")
            a("s_load_dwordx8 s[84:91], s[4:5], 0"); a("s_memrealtime s[94:95]"); a("s_waitcnt lgkmcnt(0)")
            a("s_mov_b32 s92, 0")
            for i in range(8):
                a(f"s_sub_u32 s93, s{sSTAMP}, s{84+i}"); a("s_cmp_lt_u32 s93, 3000"); a("s_cselect_b32 s93, s93, 0"); a("s_max_u32 s92, s92, s93")
            a(f"s_mul_i32 s92, s92, {self.opts['stag'] - 1}")
            self.lab(f"L_echo{u}")
            a("s_sleep 1"); a("s_memrealtime s[96:97]"); a("s_waitcnt lgkmcnt(0)"); a("s_sub_u32 s93, s96, s94")
            a("s_cmp_lt_u32 s93, s92"); a(f"s_cbranch_scc1 L_echo{u}")
        elif self.opts.get("rtecho"):
            u = self.X
            a("s_waitcnt vmcnt(0)"); self.stamp("rt1")
            a("s_memrealtime s[90:91]"); a("s_waitcnt lgkmcnt(0)")
            a(f"s_sub_u32 s92, s{sSTAMP+2}, s{sSTAMP}"); a(f"s_mul_i32 s92, s92, {self.opts['rtecho'] - 1}")
            self.lab(f"L_echo{u}")
            a("s_sleep 1"); a("s_memrealtime s[94:95]"); a("s_waitcnt lgkmcnt(0)"); a("s_sub_u32 s93, s94, s90")
            a("s_cmp_lt_u32 s93, s92"); a(f"s_cbranch_scc1 L_echo{u}")
        elif self.opts.get("echo"):
            u = self.X
            a("s_waitcnt vmcnt(0)"); self.stamp("fin")
            a("s_memtime s[90:91]"); a("s_waitcnt lgkmcnt(0)")
            a(f"s_sub_u32 s92, s{sSTAMP+2}, s{sSTAMP}")
            self.lab(f"L_echo{u}")
            a("s_sleep 1"); a("s_memtime s[94:95]"); a("s_waitcnt lgkmcnt(0)"); a("s_sub_u32 s93, s94, s90")
            a("s_cmp_lt_u32 s93, s92"); a(f"s_cbranch_scc1 L_echo{u}")
        elif self.prof:
            a("s_waitcnt vmcnt(0)")
            self.stamp("fin"); self.stamp("rt1")
            a("s_waitcnt lgkmcnt(0)")
            a(f"v_mov_b32 v{RX}, 0")
            for i in range(len(self.prof)): a(f"v_writelane_b32 v{RX}, s{sSTAMP+2*i}, {i}")
            a(f"s_lshl_b32 s{sT[0]}, s2, 3"); a(f"s_add_u32 s{sT[0]}, s{sT[0]}, s{sWV}"); a(f"s_lshl_b32 s{sT[0]}, s{sT[0]}, 8")
            a(f"s_add_u32 s{sT[0]}, s{sT[0]}, {6<<20}")
            a(f"v_lshlrev_b32 v{vT[0]}, 2, v{vLANE}")
            a(f"buffer_store_dword v{RX}, v{vT[0]}, {sr(sW,4)}, s{sT[0]} offen")
        if "modedelay" in self.opts:
            a(f"s_cmp_lg_u32 s{sMODE}, {self.opts['modedelay']}"); a(f"s_cbranch_scc1 L_md{self.X}")
            for i in range(5): a("s_sleep 125")
            self.lab(f"L_md{self.X}")
        if "retrydelay" in self.opts:
            self.lab(f"L_rd{self.X}")
            a("s_cmp_eq_u32 s96, 0"); a(f"s_cbranch_scc1 L_re{self.X}"); a("s_sleep 32"); a("s_sub_u32 s96, s96, 1"); a(f"s_branch L_rd{self.X}")
            self.lab(f"L_re{self.X}")
        for i in range(self.opts.get("delay", 0)): a("s_sleep 125")
        a("s_endpgm")

    def handshake(self):
        a = self.a; x = self.x; P = XF; u = self.X
        self.c("handshake: the partner's inbox is cleared; does it share this XCD?")
        a(f"s_mov_b32 s{sCNT}, 0"); a(f"s_mov_b32 s{sMODE}, 1")
        msk = 0x3f if u else 0x1f
        a(f"s_or_b32 s{sT[6]}, s{sXCC}, {32 if u else 0}")
        if u == 0:
            a("s_waitcnt lgkmcnt(0)"); self.lgdone = len(self.lg)
            a(f"s_lshr_b32 s{sT[0]}, s{sT[1]}, s{sT[3]}")
        else:
            self.wvm("flag"); a(f"v_readfirstlane_b32 s{sT[0]}, v{vT[1]}")
        a(f"s_and_b32 s{sT[0]}, s{sT[0]}, {msk}")
        a(f"s_cmp_eq_u32 s{sT[0]}, s{sT[6]}"); a(f"s_cbranch_scc0 L_hs_fast{u}")
        self.lab(f"L_hs_done{u}")
        self.rec("hscnt", f"s{sCNT}"); self.rec("mode", f"s{sMODE}")
        self.xl(f"L_hs_fast{u}")
        x(f"buffer_load_ubyte v{vT[1]}, v{vT[2]}, {sr(sD,4)}, 0 offen sc1")
        x("s_waitcnt vmcnt(0)")
        x(f"v_readfirstlane_b32 s{sT[0]}, v{vT[1]}")
        x(f"s_and_b32 s{sT[0]}, s{sT[0]}, {msk}"); x(f"s_cmp_eq_u32 s{sT[0]}, s{sT[6]}"); x(f"s_cbranch_scc1 L_hs_done{u}")
        x(f"s_add_u32 s{sCNT}, s{sCNT}, 1"); x(f"s_cmp_lt_u32 s{sCNT}, {self.opts.get('fastpolls', 24)}"); x(f"s_cbranch_scc1 L_hs_fast{u}")
        for r in range(4): x(f"v_mov_b32 v{P+4+r}, 0")
        for sl in range(2):
            x(f"buffer_store_dwordx4 {vr(P+4,4)}, v{vE}, {sr(sW,4)}, s{sMY[sl]} offen sc1")
        x(f"s_lshl_b32 s{sT[1]}, s2, 3"); x(f"s_add_u32 s{sT[1]}, s{sT[1]}, s{sWV}"); x(f"s_lshl_b32 s{sT[1]}, s{sT[1]}, 7")
        x(f"s_add_u32 s{sT[1]}, s{sT[1]}, {4<<20}")
        x(f"s_xor_b32 s{sT[2]}, s{sT[1]}, {8*8*128}")
        x(f"v_mov_b32 v{P+2}, 0")
        x("s_mov_b64 exec, 1")
        x(f"buffer_load_dwordx4 {vr(P+8,4)}, v{P+2}, {sr(sW,4)}, s{sT[2]} offen sc1")
        x("s_waitcnt vmcnt(0)")
        x(f"v_readfirstlane_b32 s{sT[3]}, v{P+10}")
        x(f"s_add_u32 s{sT[3]}, s{sT[3]}, 1")
        x(f"v_mov_b32 v{P+3}, s{sT[3]}")
        x(f"buffer_store_dword v{P+3}, v{P+2}, {sr(sW,4)}, s{sT[1]} offen sc1")
        x("s_waitcnt vmcnt(0)")
        x(f"s_mov_b32 s{sCNT}, 0")
        self.xl(f"L_hs_slow{u}")
        x(f"buffer_load_ubyte v{vT[1]}, v{vT[2]}, {sr(sD,4)}, 0 offen sc1")
        x(f"buffer_load_dwordx4 {vr(P+8,4)}, v{P+2}, {sr(sW,4)}, s{sT[2]} offen sc1")
        x("s_waitcnt vmcnt(0)")
        x(f"v_readfirstlane_b32 s{sT[0]}, v{vT[1]}")
        x(f"v_readfirstlane_b32 s{sT[5]}, v{P+8}")
        x(f"v_readfirstlane_b32 s{sT[4]}, v{P+10}")
        x(f"v_readfirstlane_b32 s{sMODE}, v{P+11}")
        x(f"s_and_b32 s{sT[0]}, s{sT[0]}, {msk}"); x(f"s_cmp_eq_u32 s{sT[0]}, s{sT[6]}"); x(f"s_cbranch_scc1 L_hs_same{u}")
        x(f"v_mov_b32 v{P+12}, s{sT[5]}"); x(f"v_mov_b32 v{P+13}, s{sXCC}")
        x(f"buffer_store_dwordx2 {vr(P+12,2)}, v{P+2}, {sr(sW,4)}, s{sT[1]} offen offset:8 sc1")
        x(f"s_add_u32 s{sCNT}, s{sCNT}, 1"); x(f"s_cmp_gt_u32 s{sCNT}, 0x200000"); x(f"s_cbranch_scc1 L_hs_same{u}")
        x(f"s_cmp_eq_u32 s{sT[4]}, s{sT[3]}"); x(f"s_cbranch_scc0 L_hs_slow{u}")
        x(f"s_cmp_eq_u32 s{sMODE}, s{sXCC}"); x(f"s_cbranch_scc1 L_hs_same{u}")
        x(f"s_mov_b32 s{sMODE}, 0")
        x(f"s_mov_b32 s{sE}, s{sKA+12}"); x(f"s_mov_b32 s{sE+1}, s{sKA+13}")
        x("s_mov_b64 exec, -1")
        x(f"s_branch L_hs_done{u}")
        self.xl(f"L_hs_same{u}")
        x(f"s_mov_b32 s{sMODE}, 1")
        x("s_mov_b64 exec, -1")
        x(f"s_branch L_hs_done{u}")

    def build(self):
        hdr = [f"; @launch grid=(256,1,1) block=(512,1,1) lds={LDS_BYTES}",
               '.amdgcn_target "amdgcn-amd-amdhsa--gfx950"', ".text", f".globl {KN}", ".p2align 8",
               f".type {KN},@function", f"{KN}:"]
        self.prologue()
        A = self.fork(0); A.progA()
        B = self.fork(1); B.progB()
        nb = lambda g: sum(1 for s in g.o if s.strip() == "s_barrier")
        assert nb(A) == nb(B), (nb(A), nb(B))
        assert NV + NA <= 256
        ftr = [f".set CODE_BYTES, L_end - {KN}", '.section .rodata,"a"', ".p2align 6", f".amdhsa_kernel {KN}",
               f"  .amdhsa_next_free_vgpr {NV+NA}", "  .amdhsa_next_free_sgpr 102", f"  .amdhsa_accum_offset {NV}",
               "  .amdhsa_group_segment_fixed_size 0", "  .amdhsa_kernarg_size 56", "  .amdhsa_user_sgpr_count 2",
               "  .amdhsa_user_sgpr_kernarg_segment_ptr 1", "  .amdhsa_system_sgpr_workgroup_id_x 1",
               "  .amdhsa_float_denorm_mode_32 3", ".end_amdhsa_kernel"]
        log = []
        m1, n1 = fix_hazards(self.o + A.o, log)
        m2, n2 = fix_hazards(B.o, log)
        ool, n3 = fix_hazards(self.ool)
        wrap = lambda ls: "\n".join(hdr + ls + ool + ftr) + "\n"
        sp = self.opts.get("pad", 0)
        if sp:
            from asmlib import sizes, parse
            def padded(lines, x, start, lim):
                dummy = [f"L_pad{a}_{b}:" for a in range(2) for b in range(4)]
                others = m2 if x == 0 else m1
                sz = iter(sizes(wrap([l for l in lines + others if not l.strip().startswith(".p2align")] + dummy + ["L_end:", "    s_endpgm"])))
                out = []; pos = []; acc = sp; on = not start; tot = 0
                for l in lines:
                    if start and start in l: on = True
                    if parse(l) is not None:
                        b = next(sz)
                        if on and acc >= sp and tot < lim:
                            pos.append(len(out)); out.append(None); acc = 4
                        acc += b
                        if on: tot += b
                    out.append(l)
                res = []; n = len(pos); k = 0
                for l in out:
                    if l is None:
                        res.append(f"L_pad{x}_{k}:"); res.append(f"    s_cbranch_execz " + (f"L_pad{x}_{k+4}" if k + 4 < n else "L_warm_done")); k += 1
                    else: res.append(l)
                return res
            lim = self.opts.get("padlim", 4000)
            m1, m2 = padded(m1, 0, "PADSTART", lim), padded(m2, 1, None, lim)
        main = m1 + m2 + ["L_end:", "    s_endpgm"]
        if self.opts.get("align", 1):
            main, nw, nn = align(main, wrap, self.opts.get("minrun", 99))
            sys.stderr.write(f"hazard nops {n1}+{n2}+{n3}, widened {nw}, align nops {nn}\n")
        if self.opts.get("hlog"):
            for e in log: sys.stderr.write(str(e) + "\n")
        return wrap(main)

if __name__ == "__main__":
    prof = None; opts = {}
    for x in sys.argv[1:]:
        if x.startswith("--prof="): prof = x[7:].split(",")
        elif x.startswith("--"):
            k, v = x[2:].split("="); opts[k] = int(v) if v.lstrip("-").isdigit() else v
    out = [x for x in sys.argv[1:] if not x.startswith("--")][0]
    g = Gen(prof, opts); txt = g.build()
    if prof: txt = txt + "; stamps: " + ",".join(prof) + "\n"
    open(out, "w").write(txt)
```

```python
import sys, copy
from asmlib import fix_hazards, align
KN = "standalone__cross_network_dcn_v2__recsys_kernel"
L = 6
XB = 131072; HB = 147456; BIASB = 155648; LDS_BYTES = 161792
TAGS = [1, 1, 0, 0, 1, 1]

vLANE = 1; vA = [2, 21]; vE = 3; vV = [4, 5, 6, 7]; vU = [8, 9, 10, 11]
vXW = 12; vXR = [None, 13, 14, 15]; vHW = 16; vHR = [None, 17, 18, 19]
vBI = 20; vT = [22, 23, 24, 25]; vJ = 0
ACC1 = 26; ACC2 = 34; XF = 50; X0F = 66; PK = 82; HP = 90; RX = 94; TM = ACC2; SP = HP; T4 = 98; vPF = 102
NV = 104
aV = 0; aU = 64; aX = 128; aH = 128; aS = 128; NS = 6; NA = 152
sX0 = 4; sV = 8; sU = 12; sO = 16; sE = 20; sD = 24; sB = 28; sW = 32
sKA = 36
sWV = 50; sHF = 51; sRB = 52; sXCC = 53; sMODE = 54
sVG = [55, 56, 57, 58]; sUG = [59, 60, 61, 62]; sSO = [63, 64]; sLB = 65
sMY = [66, 67]; sWS = 68; sXH = 69
sLOFF = 4; sSL = 5; sTS = 6; sTAG = 7; sIT = 3
sCNT = 70; sT = [71, 72, 73, 74, 75, 76, 77, 78]; sPTMP = 79; sPTMP2 = 51
sSTAMP = 80

def vr(b, n): return f"v[{b}:{b+n-1}]"
def ar(b, n): return f"a[{b}:{b+n-1}]"
def sr(b, n): return f"s[{b}:{b+n-1}]"

class Gen:
    def __init__(self, prof=None, opts=None):
        self.o = []; self.ool = []; self.vm = []; self.lg = []; self.vmdone = 0; self.lgdone = 0
        self.prof = prof; self.opts = opts or {}; self.names = []
        self.pw = []; self.nso = 0; self.nst = 0; self.X = 0; self.dyn = False; self.emit_ool = True
        self.pat = self.opts.get("pat", "BBBB/DDDD/DDDD/DDDB"); self.lag = self.opts.get("lag", 4)
    def fork(self, X):
        g = copy.copy(self); g.o = []; g.vm = [(t[1] if isinstance(t, tuple) else t) for t in self.vm if not isinstance(t, tuple) or t[0] == X]; g.lg = list(self.lg); g.pw = list(self.pw); g.X = X
        return g
    def a(self, s): self.o.append("    " + s)
    def x(self, s):
        if self.emit_ool: self.ool.append("    " + s)
    def xl(self, s):
        if self.emit_ool: self.ool.append(s + ":")
    def lab(self, s): self.o.append(s + ":")
    def c(self, s): self.o.append("    ; " + s)
    def vmop(self, s, tag): self.vm.append(tag); self.a(s)
    def lgop(self, s, tag): self.lg.append(tag); self.a(s)
    def _last(self, lst, tag):
        idx = [i for i, t in enumerate(lst) if t == tag]
        return idx[-1] if idx else None
    def wvm(self, tag):
        i = self._last(self.vm, tag)
        if i is not None: self.wvmi(i)
    def wvmi(self, i):
        if i < self.vmdone: return
        n = min(len(self.vm) - 1 - i, 63); self.vmdone = len(self.vm) - n
        self.a(f"s_waitcnt vmcnt({n})")
    def wlg(self, tag):
        i = self._last(self.lg, tag)
        if i is None or i < self.lgdone: return
        n = min(len(self.lg) - 1 - i, 15); self.lgdone = len(self.lg) - n
        self.a(f"s_waitcnt lgkmcnt({n})")
    def wlg0(self):
        if self.lgdone < len(self.lg): self.lgdone = len(self.lg); self.a("s_waitcnt lgkmcnt(0)")
    def bar(self, name=None):
        self.wlg0()
        if name: self.stamp(name + "a")
        self.a("s_barrier")
        if name: self.stamp(name + "b")
        self.jit()
    def jit(self):
        if "jitter" not in self.opts: return
        import random
        Gen.nj = getattr(Gen, "nj", 0) + 1
        r = random.Random(self.opts["jitter"] * 1000 + Gen.nj)
        for q in range(2):
            w = r.randrange(8); n = r.choice([2, 5, 12, 30]); lab = f"L_j{Gen.nj}_{q}"
            self.a("s_mov_b32 s97, scc"); self.a(f"s_and_b32 s96, s2, 3"); self.a(f"s_add_u32 s96, s96, s{sWV}"); self.a("s_and_b32 s96, s96, 7")
            self.a(f"s_cmp_lg_u32 s96, {w}"); self.a(f"s_cbranch_scc1 {lab}"); self.a(f"s_sleep {n}"); self.lab(lab)
            self.a("s_cmp_lg_u32 s97, 0")
    def stamp(self, name):
        nm = name + "AB"[self.X] if False else name
        if self.prof and nm in self.prof:
            r = sSTAMP + 2 * self.prof.index(nm)
            assert r + 1 <= 101
            self.a(f"s_memrealtime s[{r}:{r+1}]" if nm.startswith("rt") else f"s_memtime s[{r}:{r+1}]")
    def rec(self, name, src):
        if self.prof and name in self.prof:
            self.a(f"s_mov_b32 s{sSTAMP + 2*self.prof.index(name)}, {src}")
    def prio(self, p):
        m = self.opts.get("prio", 1)
        if m == 1: self.a(f"s_setprio {p}")
        if m == 2: self.a(f"s_setprio {2-p}")
    def dma(self, kind, l, g, pat=None):
        if l >= L: return []
        if self.opts.get("dma") == "off" and l >= 2: return []
        pat = pat or self.pat.split("/")[g]
        so = sSO[self.nso & 1]; self.nso += 1
        base, sg, vv, srd = (0, sVG, vV, sV) if kind == "V" else (16384, sUG, vU, sU)
        tag = f"{kind}{l}" + "ab"[g >> 1]
        items = []
        for j in range(4):
            def emit(j=j):
                while self.pw and len(self.vm) - self.pw[0][0] > self.lag: self.pw.pop(0)[1]()
                if j == 0:
                    self.a(f"s_add_u32 m0, s{sLB}, {base+g*4096}"); self.a(f"s_add_u32 s{so}, s{sg[g]}, s{sLOFF}" if self.dyn else f"s_add_u32 s{so}, s{sg[g]}, {l*131072}")
                if pat[j % len(pat)] in "DBCW":
                    self.vmop(f"buffer_load_dwordx4 v{vv[j]}, {sr(srd,4)}, s{so} offen offset:{1024*j} lds", tag)
                    for q in range({"D": 0, "B": 1, "C": 2, "W": 0}[pat[j % len(pat)]]): self.vmop(f"buffer_load_dword v{vJ}, off, {sr(sB,4)}, 0", "gap")
                    if pat[j % len(pat)] == "W": self.vmop(f"buffer_load_dwordx4 {vr(T4,4)}, v{vE}, {sr(sB,4)}, 0 offen", "gap")
            items.append(emit)
        return items
    def flush(self, keep3=False):
        while self.pw and not (keep3 and self.pw[0][2] == 3): self.pw.pop(0)[1]()
    def rdV(self, g):
        return [lambda j=j: self.lgop(f"ds_read_b128 {ar(aV+4*(4*g+j),4)}, v{vA[j>>1]} offset:{g*4096+(j&1)*2048}", f"rV{g}_{j>>1}") for j in range(4)]
    def rdU(self, g):
        return [lambda j=j: self.lgop(f"ds_read_b128 {ar(aU+4*(4*g+j),4)}, v{vA[j>>1]} offset:{16384+g*4096+(j&1)*2048}", f"rU{g}") for j in range(4)]
    def mf1(self, ks, fill=None):
        for ta in range(2):
            b = vr(PK + 4*ks, 4) if ks < 2 else ar(aX + 4*(ks-2), 4)
            d = vr(ACC1 + 4*ta, 4)
            self.a(f"v_mfma_f32_16x16x32_bf16 {d}, {ar(aV+4*(2*ks+ta),4)}, {b}, {'0' if ks == 0 else d}")
            if fill: self.run(fill[ta])
    def mf2(self, P, kr, fill=None):
        for ta in range(2):
            b = vr(HP, 4) if kr == 0 else ar(aH + 4*(kr-1), 4)
            d = vr(ACC2 + 8*P + 4*ta, 4)
            idx = ((kr >> 1)*2 + P)*4 + (kr & 1)*2 + ta
            self.a(f"v_mfma_f32_16x16x32_bf16 {d}, {ar(aU+4*idx,4)}, {b}, {d}")
            if fill: self.run(fill[ta])
    def epi(self, P, l, pk=False):
        r = []
        if pk:
            for e in range(4):
                q = 8*P + 2*e
                r.append(lambda q=q: self.a(f"v_pk_fma_f32 {vr(ACC2+q,2)}, {vr(X0F+q,2)}, {vr(ACC2+q,2)}, {vr(XF+q,2)}"))
        else:
            for e in range(8):
                q = 8*P + e
                r.append(lambda q=q: self.a(f"v_fma_f32 v{ACC2+q}, v{X0F+q}, v{ACC2+q}, v{XF+q}"))
        for e in range(4):
            q = 8*P + 2*e
            r.append(lambda q=q: self.a(f"v_cvt_pk_bf16_f32 v{PK+q//2}, v{ACC2+q}, v{ACC2+q+1}"))
        if l < L-1: r.append(lambda: self.lgop(f"ds_write_b128 v{vXW}, {vr(PK+4*P,4)} offset:{P*1024}", "xw"))
        else: r.append(lambda: self.lgop(f"ds_write_b128 v{vT[P]}, {vr(PK+4*P,4)}", "xw"))
        return r
    def unpack(self, dst, src, n):
        r = []
        for i in range(n):
            r.append(lambda i=i: self.a(f"v_lshlrev_b32 v{dst+2*i}, 16, v{src+i}"))
            r.append(lambda i=i: self.a(f"v_and_b32 v{dst+2*i+1}, 0xffff0000, v{src+i}"))
        return r
    def bias_rd(self, l):
        for k in range(4):
            self.lgop(f"ds_read_b128 {vr(ACC2+4*k,4)}, v{vBI} offset:{(0 if self.dyn else l*256) + (k>>1)*128 + (k&1)*16}", "bias")
    def run(self, lst):
        for f in lst: f()
    def mix(self, *lists):
        lists = [list(x) for x in lists]
        while any(lists):
            for x in lists:
                if x: x.pop(0)()
    def srd(self, r, p, n, bias=0):
        if bias:
            self.a(f"s_sub_u32 s{r}, s{p}, {bias}"); self.a(f"s_subb_u32 s{r+1}, s{p+1}, 0")
        else:
            self.a(f"s_mov_b32 s{r}, s{p}"); self.a(f"s_mov_b32 s{r+1}, s{p+1}")
        self.a(f"s_mov_b32 s{r+2}, {n+bias}"); self.a(f"s_mov_b32 s{r+3}, 0x20000")
    def poll(self, l):
        self.jit()
        self.vmop(f"buffer_load_dwordx4 {vr(RX,4)}, v{vE}, {sr(sE,4)}, s{sSL} offen sc1", f"poll{l}")
    def send(self, l, u=None):
        a = self.a; u = u if u is not None else f"{self.X}{l}"
        a(f"s_xor_b32 s{sPTMP}, s{sSL}, 512")
        for k in range(4): a(f"v_cvt_pk_bf16_f32 v{SP+k}, v{ACC1+2*k}, v{ACC1+2*k+1}")
        for k in range(4): a(f"v_and_or_b32 v{SP+k}, v{SP+k}, -2, s{sTAG}")
        if l == 0: self.handshake()
        self.jit()
        self.stamp(f"snd{u}")
        a(f"s_cmp_eq_u32 s{sMODE}, 0"); a(f"s_cbranch_scc1 L_ss{u}")
        self.vmop(f"buffer_store_dwordx4 {vr(SP,4)}, v{vE}, {sr(sE,4)}, s{sPTMP} offen {self.opts.get('sendf', '')}", "st")
        self.lab(f"L_sd{u}")
        self.xl(f"L_ss{u}")
        self.x(f"buffer_store_dwordx4 {vr(SP,4)}, v{vE}, {sr(sE,4)}, s{sPTMP} offen sc1")
        self.x("s_nop 1"); self.x(f"s_branch L_sd{u}")
    def chk_ops(self, l):
        R = RX; t0 = vT[3]
        return [f"v_xor_b32 v{t0}, s{sTAG}, v{R}"] + [f"v_bitop3_b32 v{t0}, v{R+k}, v{t0}, s{sTAG} bitop3:0xde" for k in (1, 2, 3)] + \
               [f"v_and_b32 v{t0}, 1, v{t0}", f"v_cmp_ne_u32 vcc, 0, v{t0}"]
    def next_msg(self):
        if not self.opts.get("one"): self.a(f"s_xor_b32 s{sSL}, s{sSL}, 16384")
        self.a(f"s_lshr_b32 s{sTS}, s{sTS}, 1"); self.a(f"s_and_b32 s{sTAG}, s{sTS}, 1")
    def check_post(self, l, d=None):
        u = f"{self.X}{l}"; x = self.x; a = self.a
        self.wvm(f"poll{l}")
        self.stamp(f"chk{u}")
        if self.opts.get("dbgcnt"): a(f"s_mov_b32 s{sCNT}, 0")
        for s in self.chk_ops(l): a(s)
        a(f"s_cbranch_vccnz L_rt{u}")
        self.lab(f"L_got{u}")
        self.stamp(f"got{u}")
        if self.opts.get("dbgcnt"): self.rec(f"cnt{l}", f"s{sCNT}")
        self.xl(f"L_rt{u}")
        x(f"s_mov_b32 s{sCNT}, 0")
        self.xl(f"L_rl{u}")
        x(f"buffer_load_dwordx4 {vr(RX,4)}, v{vE}, {sr(sE,4)}, s{sSL} offen sc1")
        if "retrydelay" in self.opts: x("s_add_u32 s96, s96, 1")
        x(f"s_add_u32 s{sCNT}, s{sCNT}, 1"); x(f"s_cmp_gt_u32 s{sCNT}, 0x200000")
        x("s_waitcnt vmcnt(0)")
        x(f"s_cbranch_scc1 L_got{u}")
        for s in self.chk_ops(l): x(s)
        x(f"s_cbranch_vccz L_got{u}")
        x("s_sleep 1")
        x(f"s_branch L_rl{u}")
        ops = []
        for h in range(2):
            ops += self.unpack(T4, RX+2*h, 2)
            if self.opts.get("pkadd", 0):
                for k in range(2): ops.append(lambda k=k, h=h: a(f"v_pk_add_f32 {vr(T4+2*k,2)}, {vr(T4+2*k,2)}, {vr(ACC1+4*h+2*k,2)}"))
            else:
                for k in range(4): ops.append(lambda k=k, h=h: a(f"v_add_f32 v{T4+k}, v{T4+k}, v{ACC1+4*h+k}"))
            for k in range(2): ops.append(lambda k=k, h=h: a(f"v_cvt_pk_bf16_f32 v{HP+2*h+k}, v{T4+2*k}, v{T4+2*k+1}"))
        ops.append(lambda: self.lgop(f"ds_write_b128 v{vHW}, {vr(HP,4)}", "hw"))
        ops.append(self.next_msg)
        if d is None:
            self.run(ops); self.bias_rd(l); return
        d = list(d); st = self.opts.get("vper", 10)
        while ops:
            self.run(ops[:st]); ops = ops[st:]
            if ops and d: d.pop(0)()
        self.run(d)
    def x_reads(self):
        return [lambda ks=ks: self.lgop(f"ds_read_b128 {ar(aX+4*(ks-2),4)}, v{vXR[ks>>1]} offset:{(ks&1)*1024}", f"x{ks}") for ks in range(2, 8)]
    def h_reads(self):
        for kr in range(1, 4):
            self.lgop(f"ds_read_b128 {ar(aH+4*(kr-1),4)}, v{vHR[kr]}", f"h{kr}")

    def g2_phase(self, l, early=None, mid=None, late=None):
        early = list(early or []); mid = list(mid or []); late = list(late or [])
        def take(q): return [q[0:1], q[1:2]]
        self.h_reads()
        self.mf2(0, 0, take(early)); self.mf2(1, 0, take(early[2:]))
        self.wlg("h1"); self.mf2(0, 1, take(early[4:]))
        self.wlg("h2"); self.mf2(0, 2, take(early[6:] + mid))
        self.wlg("h3"); self.mf2(0, 3, take(mid[2:]))
        self.flush()
        e0 = self.epi(0, l); e1 = self.epi(1, l, pk=self.opts.get("pkfma", 1))
        u = f"{self.X}{l}"
        self.stamp(f"g2a{u}")
        if self.opts.get("e0mix", 0):
            self.mf2(1, 1, [[], late[0:4]])
            self.mf2(1, 2, [[], e0[0:3]])
            self.stamp(f"g2b{u}")
            self.mf2(1, 3, [e0[3:6], e0[6:-1]])
        else:
            self.mf2(1, 1); self.mf2(1, 2, [late[0:2], late[2:4]])
            self.stamp(f"g2b{u}")
            self.mf2(1, 3, [e0[0:2], e0[2:-1]])
        self.stamp(f"g2c{u}")
        e0[-1]()
        self.stamp(f"g2d{u}")
        self.run(e1[:-1])
        self.stamp(f"g2e{u}")
        e1[-1]()
        self.stamp(f"g2f{u}")
    def g1_phase(self, l, jitV=False, extra=None):
        xr = self.x_reads(); extra = list(extra or [])
        if jitV:
            rv = self.rdV(2) + self.rdV(3)
            ev = self.opts.get("earlyv", 8)
            pre = (self.rdV(0) + self.rdV(1))[ev:]
            self.run(pre[:4]); self.run(xr[0:2]); self.run(pre[4:])
            q = [xr[2], rv[0], rv[1], xr[3], rv[2], rv[3], xr[4], rv[4], rv[5], xr[5], rv[6], rv[7]]
            for ks in range(8):
                self.wlg(f"rV{ks>>1}_{ks&1}")
                if ks >= 2: self.wlg(f"x{ks}")
                self.mf1(ks, [q[0:2], q[2:3]]); q = q[3:]
        else:
            self.run(xr)
            for ks in range(8):
                if ks >= 2: self.wlg(f"x{ks}")
                self.mf1(ks, [extra[0:1], extra[1:2]]); extra = extra[2:]
                if l == 0 and ks == self.opts.get("flagBat", 4): self.vmop(f"buffer_load_ubyte v{vT[1]}, v{vT[2]}, {sr(sD,4)}, 0 offen sc1", "flag")
            self.run(extra)
        self.send(l)
        self.run(self.unpack(XF, PK, 8))

    def prologue(self):
        a = self.a; T = [X0F + i for i in range(10)]
        a(f"s_load_dwordx8 {sr(sKA,8)}, s[0:1], 0")
        a(f"s_load_dwordx4 {sr(sKA+8,4)}, s[0:1], 32")
        a(f"s_load_dwordx2 {sr(sKA+12,2)}, s[0:1], 48")
        a("s_cmp_ge_u32 s2, 256"); a("s_cbranch_scc1 L_end")
        self.stamp("start"); self.stamp("rt0")
        a(f"v_lshrrev_b32 v{T[0]}, 6, v0"); a(f"v_and_b32 v{vLANE}, 63, v0")
        if self.opts.get("codepf", 1):
            a(f"s_getpc_b64 {sr(sX0,2)}"); a(f"v_lshlrev_b32 v{T[1]}, 7, v0"); a(f"s_and_b32 s{sX0}, s{sX0}, 0xffffff00")
            a(f"v_cmp_gt_u32 vcc, CODE_BYTES, v{T[1]}")
            a(f"s_and_saveexec_b64 {sr(sX0+2,2)}, vcc"); a("s_cbranch_execz L_nocpf")
            a(f"global_load_dword v{vJ}, v{T[1]}, {sr(sX0,2)}")
            self.lab("L_nocpf")
            a("s_mov_b64 exec, -1")
        a(f"v_readfirstlane_b32 s{sWV}, v{T[0]}")
        a(f"v_lshrrev_b32 v{T[6]}, 3, v{vLANE}"); a(f"v_and_b32 v{T[2]}, 6, v{T[6]}"); a(f"v_xor_b32 v{T[2]}, v{T[2]}, v{vLANE}")
        a(f"v_and_b32 v{T[2]}, 7, v{T[2]}"); a(f"v_lshlrev_b32 v{T[2]}, 4, v{T[2]}")
        a(f"v_and_b32 v{T[3]}, 4, v{T[6]}"); a(f"v_add_u32 v{T[1]}, v{T[6]}, v{T[3]}")
        a(f"v_lshl_add_u32 v{T[3]}, v{T[1]}, 10, v{T[2]}")
        voff = lambda j: ((j&1)*16 + (j>>1)*4)
        for j in range(2): a(f"v_add_u32 v{vV[j]}, {voff(j)*1024 - 1024*j + 3072}, v{T[3]}")
        a(f"s_and_b32 s{sT[0]}, s2, 0xf0"); a(f"s_lshl_b32 s{sT[0]}, s{sT[0]}, 14"); a(f"s_and_b32 s{sT[1]}, s2, 7"); a(f"s_lshl_b32 s{sT[1]}, s{sT[1]}, 15")
        a(f"s_and_b32 s{sT[2]}, s2, 8"); a(f"s_lshl_b32 s{sT[2]}, s{sT[2]}, 6")
        a(f"s_and_b32 s{sWS}, s{sWV}, 3"); a(f"s_lshr_b32 s{sXH}, s{sWV}, 2")
        a(f"s_or_b32 s{sT[0]}, s{sT[0]}, s{sT[1]}"); a(f"s_lshl_b32 s{sT[1]}, s{sXH}, 12"); a(f"s_or_b32 s{sT[1]}, s{sT[1]}, s{sT[2]}")
        a(f"s_or_b32 s{sT[4]}, s{sT[0]}, s{sT[1]}")
        a(f"s_lshl_b32 s{sT[3]}, s{sWS}, 7"); a(f"s_add_u32 s{sT[7]}, s{sT[4]}, s{sT[3]}")
        a(f"s_lshl1_add_u32 s{sT[5]}, s{sWS}, s{sXH}"); a(f"s_lshl_b32 s{sT[5]}, s{sT[5]}, 11"); a(f"s_add_u32 s{sT[5]}, s{sT[5]}, {XB}")
        a(f"s_lshr_b32 s{sT[0]}, s2, 3"); a(f"s_lshl3_add_u32 s{sT[0]}, s{sT[0]}, s{sWV}"); a(f"s_lshl_b32 s{sT[0]}, s{sT[0]}, 9")
        a(f"s_lshl2_add_u32 s{sT[1]}, s2, s{sWS}"); a(f"s_lshl_b32 s{sT[1]}, s{sT[1]}, 7"); a(f"s_sub_u32 s{sT[1]}, s{sT[1]}, {3*131072}")
        a(f"v_lshl_add_u32 v{T[8]}, v{vLANE}, 7, s{sT[0]}"); a(f"v_lshl_add_u32 v{T[9]}, v{vLANE}, 17, s{sT[1]}")
        mk = [int(m, 16) for m in str(self.opts.get("mk", "1ff,f,f,1ff")).split(",")]
        a(f"v_cmp_gt_u32 vcc, 4, v{vLANE}")
        a(f"s_cmp_eq_u32 s{sXH}, 0"); a(f"s_cselect_b32 s{sT[0]}, {mk[0]}, {mk[1]}"); a(f"s_cselect_b32 s{sT[1]}, {mk[2]}, {mk[3]}")
        a(f"v_cndmask_b32 v{vPF}, v{T[9]}, v{T[8]}, vcc")
        a("s_waitcnt lgkmcnt(0)")
        self.stamp("karg")
        def only(x, name, body):
            a(f"s_cmp_lg_u32 s{sXH}, {x}"); a(f"s_cbranch_scc1 {name}")
            n0 = len(self.vm); body()
            for k in range(n0, len(self.vm)): self.vm[k] = (x, self.vm[k])
            self.lab(name)
        def x0ld():
            a(f"s_mov_b32 m0, s{sT[5]}"); a("s_nop 0")
            self.vmop(f"buffer_load_dwordx4 v{vV[0]}, {sr(sX0,4)}, s{sT[7]} offen lds", "x0")
            self.vmop(f"buffer_load_dwordx4 v{vV[1]}, {sr(sX0,4)}, s{sT[7]} offen offset:1024 lds", "x0")
        self.srd(sX0, sKA+0, 4096*1024, 3072)
        only(0, "L_o1", x0ld)
        self.srd(sV, sKA+4, 6*131072, 3072)
        a("s_mov_b32 exec_hi, 0"); a(f"s_mov_b32 exec_lo, s{sT[0]}")
        self.vmop(f"buffer_load_dword v{vJ}, v{vPF}, {sr(sV,4)}, 0 offen offset:3072", "pf")
        self.srd(sU, sKA+2, 6*131072, 3072)
        a(f"s_mov_b32 exec_lo, s{sT[1]}")
        self.vmop(f"buffer_load_dword v{vJ}, v{vPF}, {sr(sU,4)}, 0 offen offset:3072", "pf")
        a("s_mov_b64 exec, -1")
        a(f"s_lshr_b32 s{sT[0]}, s{sWS}, 1"); a(f"s_lshl_b32 s{sT[0]}, s{sT[0]}, 13"); a(f"s_add_u32 s{sT[4]}, s{sT[4]}, s{sT[0]}")
        a(f"s_and_b32 s{sT[6]}, s{sWS}, 1"); a(f"s_lshl_b32 s{sT[0]}, s{sT[6]}, 11"); a(f"s_add_u32 s{sMY[0]}, s{sT[4]}, s{sT[0]}")
        a(f"v_lshrrev_b32 v{T[8]}, 5, v{vLANE}"); a(f"v_and_b32 v{vE}, 31, v{vLANE}"); a(f"v_lshlrev_b32 v{vE}, 4, v{vE}")
        a(f"v_lshl_add_u32 v{vE}, v{T[8]}, 10, v{vE}")
        for r in range(4): a(f"v_mov_b32 v{TM+r}, 0")
        self.srd(sO, sKA+8, 4096*1024)
        only(0, "L_o2", lambda: self.clr(0))
        a(f"s_lshl_b32 s{sLB}, s{sWS}, 15"); a(f"s_add_u32 s{sT[0]}, s{sLB}, s{sT[2]}")
        for g in range(4):
            a(f"s_xor_b32 s{sT[4]}, s{sWS}, {g}"); a(f"s_lshl_b32 s{sT[4]}, s{sT[4]}, 7"); a(f"s_add_u32 s{sVG[g]}, s{sT[0]}, s{sT[4]}")
        for j in range(2, 4): a(f"v_add_u32 v{vV[j]}, {voff(j)*1024 - 1024*j + 3072}, v{T[3]}")
        a(f"s_lshl_b32 s{sT[4]}, s{sXH}, 13"); a(f"s_add_u32 s{sT[4]}, s{sT[4]}, s{sLB}")
        a(f"s_cmp_eq_u32 s{sXH}, 0")
        a(f"s_cselect_b32 s{sT[0]}, s{sVG[0]}, s{sVG[2]}"); a(f"s_cselect_b32 s{sT[1]}, s{sVG[1]}, s{sVG[3]}")
        self.stamp("i_x0")
        xb = self.opts.get("xbpos", 2)
        for k in range(2):
            if xb == k: only(1, "L_o3", x0ld)
            a(f"s_add_u32 m0, s{sT[4]}, {k*4096}"); a("s_nop 0")
            for j in range(4):
                self.vmop(f"buffer_load_dwordx4 v{vV[j]}, {sr(sV,4)}, s{sT[k]} offen offset:{1024*j} lds", "V0")
        if xb == 2: only(1, "L_o3", x0ld)
        self.stamp("i_v0a")
        a(f"v_and_b32 v{T[7]}, 7, v{vLANE}"); a(f"v_lshlrev_b32 v{T[9]}, 4, v{T[7]}"); a(f"v_lshl_add_u32 v{T[9]}, v{T[6]}, 10, v{T[9]}")
        a(f"s_mul_i32 s{sT[0]}, s{sXH}, 3072"); a(f"s_add_u32 s{sT[0]}, s{sT[0]}, s{sT[3]}"); a(f"s_add_u32 s{sT[0]}, s{sT[0]}, s{sT[2]}")
        a(f"v_mov_b32 v{vT[2]}, s2"); a(f"v_xor_b32 v{vT[2]}, 8, v{vT[2]}")
        self.srd(sB, sKA+6, 6*1024)
        self.srd(sD, sKA+10, 256)
        a("s_mov_b64 exec, 0xffffff")
        self.vmop(f"buffer_load_dwordx4 {vr(TM+4,4)}, v{T[9]}, {sr(sB,4)}, s{sT[0]} offen", "bias")
        a("s_mov_b64 exec, 1")
        self.vmop(f"buffer_load_ubyte v{vJ}, v{vT[2]}, {sr(sD,4)}, 0 offen", "touch")
        a("s_mov_b64 exec, -1")
        a(f"s_add_u32 s{sMY[1]}, s{sMY[0]}, 16384")
        self.srd(sW, sKA+12, 8 << 20)
        self.srd(sE, sKA+8, 4096*1024)
        if self.opts.get("stag"):
            a(f"v_mov_b32 v{RX+2}, s{sSTAMP}"); a(f"s_lshl_b32 s90, s2, 2"); a("s_add_u32 s90, s90, 0x700000"); a(f"v_mov_b32 v{RX+3}, 0")
            a("s_mov_b64 exec, 1"); a(f"buffer_store_dword v{RX+2}, v{RX+3}, {sr(sW,4)}, s90 offen sc1"); a("s_mov_b64 exec, -1")
        a(f"s_getreg_b32 s{sXCC}, hwreg(HW_REG_XCC_ID)"); a(f"s_and_b32 s{sXCC}, s{sXCC}, 15"); a(f"s_or_b32 s{sXCC}, s{sXCC}, 16")
        a(f"v_lshl_add_u32 v{T[4]}, v{T[1]}, 8, v{T[2]}")
        a(f"s_lshl_b32 s{sT[0]}, s{sT[6]}, 6"); a(f"v_xor_b32 v{T[4]}, s{sT[0]}, v{T[4]}")
        for j in range(4):
            a(f"v_add_u32 v{vU[j]}, {voff(j)*256 - 1024*j + 3072}, v{T[4]}")
        a(f"s_lshl_b32 s{sT[0]}, s{sT[2]}, 7"); a(f"s_lshl_b32 s{sT[1]}, s{sWS}, 14"); a(f"s_add_u32 s{sT[0]}, s{sT[0]}, s{sT[1]}")
        a(f"s_and_b32 s{sT[1]}, s{sWS}, 2"); a(f"s_lshl_b32 s{sT[1]}, s{sT[1]}, 6"); a(f"s_add_u32 s{sUG[0]}, s{sT[0]}, s{sT[1]}")
        a(f"s_add_u32 s{sUG[1]}, s{sUG[0]}, 8192"); a(f"s_xor_b32 s{sUG[2]}, s{sUG[0]}, 128"); a(f"s_xor_b32 s{sUG[3]}, s{sUG[1]}, 128")
        a(f"v_lshrrev_b32 v{T[0]}, 4, v{vLANE}")
        a(f"v_and_b32 v{T[1]}, 6, v{vLANE}"); a(f"v_xor_b32 v{T[2]}, v{T[1]}, v{T[0]}"); a(f"v_lshlrev_b32 v{T[2]}, 4, v{T[2]}")
        a(f"v_and_b32 v{T[1]}, 15, v{vLANE}"); a(f"v_lshl_add_u32 v{T[2]}, v{T[1]}, 7, v{T[2]}")
        a(f"v_add_u32 v{T[3]}, s{sT[5]}, v{T[2]}"); a(f"v_xor_b32 v{T[5]}, 64, v{T[3]}")
        a(f"v_add_u32 v{vA[0]}, s{sLB}, v{T[2]}"); a(f"v_xor_b32 v{vA[1]}, 64, v{vA[0]}")
        a(f"v_lshlrev_b32 v{T[1]}, 4, v{vLANE}")
        a(f"v_add_u32 v{vXW}, s{sT[5]}, v{T[1]}")
        for g in range(1, 4): a(f"v_xor_b32 v{vXR[g]}, {g*4096}, v{vXW}")
        a(f"s_lshl_b32 s{sT[0]}, s{sWV}, 10"); a(f"s_add_u32 s{sT[0]}, s{sT[0]}, {HB}")
        a(f"v_add_u32 v{vHW}, s{sT[0]}, v{T[1]}")
        for g in range(1, 4): a(f"v_xor_b32 v{vHR[g]}, {g*1024}, v{vHW}")
        a(f"s_mul_i32 s{sT[0]}, s{sWS}, 1536"); a(f"s_add_u32 s{sT[0]}, s{sT[0]}, {BIASB}")
        a(f"v_lshl_add_u32 v{vBI}, v{T[0]}, 5, s{sT[0]}")
        a(f"s_mul_i32 s{sT[1]}, s{sXH}, 768"); a(f"s_add_u32 s{sT[0]}, s{sT[0]}, s{sT[1]}")
        a(f"v_lshlrev_b32 v{T[7]}, 5, v{T[7]}"); a(f"v_lshl_add_u32 v{T[7]}, v{T[6]}, 8, v{T[7]}"); a(f"v_add_u32 v{vT[0]}, s{sT[0]}, v{T[7]}")
        a(f"s_mov_b32 s{sSL}, s{sMY[0]}"); a(f"s_mov_b32 s{sTS}, {sum(t << i for i, t in enumerate(TAGS))}"); a(f"s_mov_b32 s{sTAG}, {TAGS[0]}")
        a(f"s_xor_b32 s{sT[3]}, s2, 8"); a(f"s_and_b32 s{sT[2]}, s{sT[3]}, 0xfc"); a(f"s_and_b32 s{sT[3]}, s{sT[3]}, 3"); a(f"s_lshl_b32 s{sT[3]}, s{sT[3]}, 3")
        a(f"s_cmp_lg_u32 s{sXH}, 0"); a("s_cbranch_scc1 L_progB")

    def xproc(self):
        a = self.a; T = [X0F + i for i in range(10)]
        self.wvm("x0"); self.stamp("x0")
        for P in range(2):
            self.lgop(f"ds_read_b128 {vr(PK+4*P,4)}, v{T[5] if P else T[3]}", "x0r")
        self.wlg("x0r")
        for P in range(2):
            self.lgop(f"ds_write_b128 v{vXW}, {vr(PK+4*P,4)} offset:{P*1024}", "xw")
        self.run(self.unpack(X0F, PK, 8))
    def biasproc(self):
        a = self.a
        self.wvm("bias")
        self.run(self.unpack(TM+8, TM+4, 4))
        a("s_mov_b64 exec, 0xffffff")
        self.lgop(f"ds_write_b128 v{vT[0]}, {vr(TM+8,4)}", "bw")
        self.lgop(f"ds_write_b128 v{vT[0]}, {vr(TM+12,4)} offset:16", "bw")
        a("s_mov_b64 exec, -1")
    def clr(self, sl):
        self.vmop(f"buffer_store_dwordx4 {vr(TM,4)}, v{vE}, {sr(sO,4)}, s{sMY[sl]} offen sc1", "clr")
    def post_flag(self, stage):
        a = self.a
        a(f"s_cmp_lg_u32 s{sWV}, 0"); a(f"s_cbranch_scc1 L_noflag{stage}")
        a(f"v_mov_b32 v{T4}, s2"); a(f"v_mov_b32 v{T4+1}, s{sXCC}")
        if stage: a(f"v_or_b32 v{T4+1}, 32, v{T4+1}")
        a("s_mov_b64 exec, 1")
        a(f"buffer_store_byte v{T4+1}, v{T4}, {sr(sD,4)}, 0 offen"); a("s_mov_b64 exec, -1")
        self.lab(f"L_noflag{stage}")
    def flag_ld(self):
        self.a(f"s_load_dword s{sT[1]}, {sr(sKA+10,2)}, s{sT[2]}")
    def bias_ops(self, l):
        return [lambda k=k: self.lgop(f"ds_read_b128 {vr(ACC2+4*k,4)}, v{vBI} offset:{(0 if self.dyn else l*256) + (k>>1)*128 + (k&1)*16}", "bias") for k in range(4)]
    def light1(self, kind, l, rd, lp, n1=None):
        d = self.dma(kind, l, 0) + self.dma(kind, l, 1)
        n1 = n1 or self.opts.get("n1", 8)
        self.carry = d[n1:]; d = d[:n1]
        pp = self.opts.get("pollat", 2); r0 = self.opts.get("rd1at", 0)
        rd = list(rd) + self.bias_ops(lp)
        per = self.opts.get("rd1per", 4)
        for k in range(8):
            if k == pp: self.poll(lp)
            if k < len(d): d[k]()
            if r0 <= k and (k - r0) % self.opts.get("dper", 1) == 0: self.run(rd[:per]); rd = rd[per:]
            self.stamp(f"l1{self.X}{lp}_{k}")
        if pp >= 8: self.poll(lp)
    def light2(self, kind, l, rd, lp):
        self.run(self.carry)
        d = self.dma(kind, l, 2) + self.dma(kind, l, 3) + [lambda: None] * 8
        p2 = self.opts.get("pre2", 3); rd = list(rd)
        if self.opts.get("l2mode", 0) == 1 or l >= L:
            m2 = self.opts.get("mid2", 1)
            self.run(d[:p2])
            self.check_post(lp, d[p2:p2+m2])
            self.run(rd[:4]); d[p2+m2](); self.run(rd[4:])
            self.wvm(f"{kind}{l}a")
            self.run(d[p2+m2+1:8])
            return
        seq = self.opts.get("l2seq")
        if seq:
            d = list(d)
            for t in seq:
                if t == "d": d.pop(0)()
                elif t == "r": self.run(rd[:2]); rd = rd[2:]
                elif t == "c": self.check_post(lp, [])
                elif t == "C": self.check_post(lp, [d.pop(0)])
                elif t == "w": self.wvm(f"{kind}{l}a")
                elif t == "g": self.vmop(f"buffer_load_dword v{vJ}, off, {sr(sB,4)}, 0", "gap")
            assert not rd and len(d) == 8
            return
        self.run(d[:p2])
        self.run(rd[:4]); d[p2](); self.run(rd[4:]); d[p2+1]()
        self.stamp(f"pd{self.X}{lp}")
        self.check_post(lp, d[p2+2:p2+3])
        self.stamp(f"po{self.X}{lp}")
        self.wvm(f"{kind}{l}a")
        self.run(d[p2+3:8])
        self.stamp(f"en{self.X}{lp}")
    def progA(self):
        a = self.a
        self.xproc()
        self.wvm("V0"); self.stamp("v0l")
        self.bar("b0")
        self.prio(2)
        self.post_flag(0)
        if self.opts.get("ac1", 0) == 0: self.clr(1)
        xr = self.x_reads(); rv = [f for g in range(4) for f in self.rdV(g)]
        self.run(rv[0:4]); self.run(xr[0:2]); self.run(rv[4:8]); self.run(xr[2:4])
        q = rv[8:12] + xr[4:6] + rv[12:16]
        for ks in range(8):
            self.wlg(f"rV{ks>>1}_{ks&1}")
            if ks >= 2: self.wlg(f"x{ks}")
            self.mf1(ks, [q[0:1], q[1:2]]); q = q[2:]
            if ks == self.opts.get("flagat", 5): self.flag_ld()
        self.send(0)
        if self.opts.get("ac1", 0) == 1: self.clr(1)
        self.run(self.unpack(XF, PK, 8))
        self.biasproc()
        self.prio(0)
        self.wvm("clr")
        self.bar("b1")
        self.post_flag(1)
        self.light1("V", 1, self.rdU(0) + self.rdU(1), 0, 8)
        self.bar("b1x")
        self.run(self.rdU(2))
        self.check_post(0, [])
        self.run(self.rdU(3))
        self.wvm("V1a")
        self.bar("b2"); self.stamp("rtb2")
        self.a(f"s_mov_b32 s{sLOFF}, {2*131072}"); self.a(f"v_add_u32 v{vBI}, 256, v{vBI}")
        self.rounds(self.roundA)
    def rounds(self, body):
        self.dyn = True
        if not self.opts.get("loop", 1):
            for l in range(L): body(l, None)
            return
        u = self.X
        self.a(f"s_mov_b32 s{sIT}, 4")
        keep = self.o; self.o = []; self.emit_ool = False
        body(0, None)
        self.o = keep; self.emit_ool = True
        if self.opts.get("loopalign", 1): self.o.append("    .p2align 6")
        self.lab(f"L_loop{u}")
        body(1, f"L_loop{u}")
        keep = self.o; self.o = []; self.emit_ool = False
        body(2, None); body(3, None)
        self.o = keep; self.emit_ool = True
        body(4, None); body(5, None)
    def adv(self, back):
        self.a(f"s_add_u32 s{sLOFF}, s{sLOFF}, 131072"); self.a(f"v_add_u32 v{vBI}, 256, v{vBI}")
        if back: self.a(f"s_sub_u32 s{sIT}, s{sIT}, 1"); self.a(f"s_cmp_lg_u32 s{sIT}, 0")
    def roundA(self, l, back):
        last = l == L-1
        self.c(f"==== A round {l} phase 0: G2 ====")
        self.prio(2)
        ev = self.opts.get("earlyv", 8)
        self.g2_phase(l, early=(None if last else (self.rdV(0) + self.rdV(1))[:ev]))
        if last:
            self.final_store(bar=True); return
        self.wvm(f"V{l+1}b")
        self.stamp(f"g2g0{l}")
        self.bar(f"A0{l}")
        self.c(f"==== A round {l} phase 1: G1 ====")
        self.g1_phase(l+1, jitV=True)
        self.prio(0)
        self.bar(f"A1{l}")
        self.c(f"==== A round {l} phase 2 ====")
        self.light1("V", l+2, self.rdU(0) + self.rdU(1), l+1)
        self.bar(f"A2{l}")
        self.c(f"==== A round {l} phase 3 ====")
        self.light2("V", l+2, self.rdU(2) + self.rdU(3), l+1)
        if l == L-2: self.final_addr()
        self.wlg0()
        self.adv(back)
        self.bar(f"A3{l}")
        if back: self.a(f"s_cbranch_scc1 {back}")

    def progB(self):
        self.lab("L_progB")
        d = [f for g in range(4) for f in self.dma("U", 0, g, "DDDD")]
        rv = [f for g in range(4) for f in self.rdV(g)]
        nu = self.opts.get("u0pre", 4)
        bc = self.opts.get("bclr", 1)
        if bc == 0: self.clr(0); self.clr(1)
        self.run(d[:nu])
        self.wvm("V0"); self.stamp("v0l")
        self.bar("b0")
        self.run(d[nu:8])
        if bc == 1: self.clr(0); self.clr(1)
        self.xproc()
        for k in range(4):
            self.run(rv[4*k:4*k+4]); self.run(d[8+2*k:10+2*k])
        self.biasproc()
        self.wvm("clr")
        self.bar("b1")
        self.prio(2)
        self.g1_phase(0, extra=self.rdU(0) + self.rdU(1))
        self.prio(0)
        self.wvm("U0b")
        self.bar("b1x")
        self.mix(self.dma("V", 1, 2) + self.dma("V", 1, 3), self.rdU(2) + self.rdU(3))
        self.bar("b2"); self.stamp("rtb2")
        self.a(f"s_mov_b32 s{sLOFF}, 131072")
        self.rounds(self.roundB)
    def roundB(self, l, back):
        last = l == L-1
        self.c(f"==== B round {l} phase 0 ====")
        if not last:
            n0 = len(self.vm)
            self.light1("U", l+1, self.rdV(0) + self.rdV(1), l)
            self.a(f"s_waitcnt vmcnt({len(self.vm) - n0})"); self.vmdone = max(self.vmdone, n0)
            self.bar(f"B0{l}")
            self.c(f"==== B round {l} phase 1 ====")
            self.light2("U", l+1, self.rdV(2) + self.rdV(3), l)
        else:
            if not self.opts.get("lastpoll", 0): self.poll(l)
            if self.opts.get("lastpoll", 0) < 2: self.bias_rd(l)
            self.check_post(l, [])
        self.bar(f"B1{l}")
        self.c(f"==== B round {l} phase 2: G2 ====")
        self.prio(2)
        if last:
            self.g2_phase(l); self.final_store(); return
        self.g2_phase(l, mid=self.rdU(0), late=self.rdU(1))
        self.wvm(f"U{l+1}b")
        self.bar(f"B2{l}")
        self.c(f"==== B round {l} phase 3: G1 ====")
        self.g1_phase(l+1, extra=self.rdU(2) + self.rdU(3))
        if l == L-2: self.final_addr()
        self.prio(0)
        self.wlg0()
        self.adv(back)
        if l == L-2 and self.opts.get("lastpoll", 0) == 2: self.bias_rd(l+1)
        if l == L-2 and self.opts.get("lastpoll", 0): self.poll(l+1)
        self.bar(f"B3{l}")
        if back: self.a(f"s_cbranch_scc1 {back}")

    def final_addr(self):
        a = self.a; t = [RX, RX+1, RX+2]
        a(f"v_and_b32 v{t[0]}, 15, v{vLANE}"); a(f"v_lshrrev_b32 v{t[1]}, 4, v{vLANE}")
        a(f"v_and_b32 v{t[2]}, 7, v{t[0]}"); a(f"v_xor_b32 v{t[2]}, v{t[2]}, v{t[1]}"); a(f"v_lshlrev_b32 v{t[2]}, 4, v{t[2]}")
        a(f"v_lshl_add_u32 v{t[2]}, v{t[0]}, 7, v{t[2]}")
        a(f"v_and_b32 v{vT[0]}, 0xfffff800, v{vXW}"); a(f"v_add_u32 v{vT[0]}, v{vT[0]}, v{t[2]}"); a(f"v_xor_b32 v{vT[1]}, 64, v{vT[0]}")
        a(f"v_lshrrev_b32 v{t[0]}, 3, v{vLANE}"); a(f"v_xor_b32 v{t[1]}, v{t[0]}, v{vLANE}"); a(f"v_and_b32 v{t[1]}, 7, v{t[1]}")
        a(f"v_lshlrev_b32 v{t[1]}, 4, v{t[1]}")
        a(f"v_and_b32 v{t[2]}, 4, v{t[0]}"); a(f"v_add_u32 v{t[0]}, v{t[0]}, v{t[2]}")
        a(f"v_lshl_add_u32 v{vT[2]}, v{t[0]}, 10, v{t[1]}")

    def final_store(self, bar=False):
        a = self.a; D = XF
        for m in range(2):
            self.lgop(f"ds_read_b128 {vr(D+4*m,4)}, v{vXW} offset:{m*1024}", f"fo{m}")
        fl = self.opts.get("outflags", "") if self.X else self.opts.get("outflagsA", self.opts.get("outflags", ""))
        for m in range(2):
            a(f"s_add_u32 s{sT[m]}, s{sT[7]}, {m*16384}")
            self.wlg(f"fo{m}")
            self.vmop(f"buffer_store_dwordx4 {vr(D+4*m,4)}, v{vT[2]}, {sr(sO,4)}, s{sT[m]} offen {fl}", "out")
        if bar and self.opts.get("junk"):
            for m in range(4):
                a(f"s_add_u32 s{sT[2]}, s{sMY[0]}, {m*4096 if m < 2 else 16384 + (m-2)*4096}")
                a(f"buffer_store_dwordx4 {vr(D,4)}, v{vE}, {sr(sW,4)}, s{sT[2]} offen")
        if bar: a("s_barrier")
        if self.opts.get("stag"):
            u = self.X
            a("s_waitcnt vmcnt(0)")
            a(f"s_add_u32 s4, s{sKA+12}, 0x700000"); a(f"s_addc_u32 s5, s{sKA+13}, 0")
            a("s_load_dwordx8 s[84:91], s[4:5], 0"); a("s_memrealtime s[94:95]"); a("s_waitcnt lgkmcnt(0)")
            a("s_mov_b32 s92, 0")
            for i in range(8):
                a(f"s_sub_u32 s93, s{sSTAMP}, s{84+i}"); a("s_cmp_lt_u32 s93, 3000"); a("s_cselect_b32 s93, s93, 0"); a("s_max_u32 s92, s92, s93")
            a(f"s_mul_i32 s92, s92, {self.opts['stag'] - 1}")
            self.lab(f"L_echo{u}")
            a("s_sleep 1"); a("s_memrealtime s[96:97]"); a("s_waitcnt lgkmcnt(0)"); a("s_sub_u32 s93, s96, s94")
            a("s_cmp_lt_u32 s93, s92"); a(f"s_cbranch_scc1 L_echo{u}")
        elif self.opts.get("rtecho"):
            u = self.X
            a("s_waitcnt vmcnt(0)"); self.stamp("rt1")
            a("s_memrealtime s[90:91]"); a("s_waitcnt lgkmcnt(0)")
            a(f"s_sub_u32 s92, s{sSTAMP+2}, s{sSTAMP}"); a(f"s_mul_i32 s92, s92, {self.opts['rtecho'] - 1}")
            self.lab(f"L_echo{u}")
            a("s_sleep 1"); a("s_memrealtime s[94:95]"); a("s_waitcnt lgkmcnt(0)"); a("s_sub_u32 s93, s94, s90")
            a("s_cmp_lt_u32 s93, s92"); a(f"s_cbranch_scc1 L_echo{u}")
        elif self.opts.get("echo"):
            u = self.X
            a("s_waitcnt vmcnt(0)"); self.stamp("fin")
            a("s_memtime s[90:91]"); a("s_waitcnt lgkmcnt(0)")
            a(f"s_sub_u32 s92, s{sSTAMP+2}, s{sSTAMP}")
            self.lab(f"L_echo{u}")
            a("s_sleep 1"); a("s_memtime s[94:95]"); a("s_waitcnt lgkmcnt(0)"); a("s_sub_u32 s93, s94, s90")
            a("s_cmp_lt_u32 s93, s92"); a(f"s_cbranch_scc1 L_echo{u}")
        elif self.prof:
            a("s_waitcnt vmcnt(0)")
            self.stamp("fin"); self.stamp("rt1")
            a("s_waitcnt lgkmcnt(0)")
            a(f"v_mov_b32 v{RX}, 0")
            for i in range(len(self.prof)): a(f"v_writelane_b32 v{RX}, s{sSTAMP+2*i}, {i}")
            a(f"s_lshl_b32 s{sT[0]}, s2, 3"); a(f"s_add_u32 s{sT[0]}, s{sT[0]}, s{sWV}"); a(f"s_lshl_b32 s{sT[0]}, s{sT[0]}, 8")
            a(f"s_add_u32 s{sT[0]}, s{sT[0]}, {6<<20}")
            a(f"v_lshlrev_b32 v{vT[0]}, 2, v{vLANE}")
            a(f"buffer_store_dword v{RX}, v{vT[0]}, {sr(sW,4)}, s{sT[0]} offen")
        if "modedelay" in self.opts:
            a(f"s_cmp_lg_u32 s{sMODE}, {self.opts['modedelay']}"); a(f"s_cbranch_scc1 L_md{self.X}")
            for i in range(5): a("s_sleep 125")
            self.lab(f"L_md{self.X}")
        if "retrydelay" in self.opts:
            self.lab(f"L_rd{self.X}")
            a("s_cmp_eq_u32 s96, 0"); a(f"s_cbranch_scc1 L_re{self.X}"); a("s_sleep 32"); a("s_sub_u32 s96, s96, 1"); a(f"s_branch L_rd{self.X}")
            self.lab(f"L_re{self.X}")
        for i in range(self.opts.get("delay", 0)): a("s_sleep 125")
        a("s_endpgm")

    def handshake(self):
        a = self.a; x = self.x; P = XF; u = self.X
        self.c("handshake: the partner's inbox is cleared; does it share this XCD?")
        a(f"s_mov_b32 s{sCNT}, 0"); a(f"s_mov_b32 s{sMODE}, 1")
        msk = 0x3f if u else 0x1f
        a(f"s_or_b32 s{sT[6]}, s{sXCC}, {32 if u else 0}")
        if u == 0:
            a("s_waitcnt lgkmcnt(0)"); self.lgdone = len(self.lg)
            a(f"s_lshr_b32 s{sT[0]}, s{sT[1]}, s{sT[3]}")
        else:
            self.wvm("flag"); a(f"v_readfirstlane_b32 s{sT[0]}, v{vT[1]}")
        a(f"s_and_b32 s{sT[0]}, s{sT[0]}, {msk}")
        a(f"s_cmp_eq_u32 s{sT[0]}, s{sT[6]}"); a(f"s_cbranch_scc0 L_hs_fast{u}")
        self.lab(f"L_hs_done{u}")
        self.rec("hscnt", f"s{sCNT}"); self.rec("mode", f"s{sMODE}")
        self.xl(f"L_hs_fast{u}")
        x(f"buffer_load_ubyte v{vT[1]}, v{vT[2]}, {sr(sD,4)}, 0 offen sc1")
        x("s_waitcnt vmcnt(0)")
        x(f"v_readfirstlane_b32 s{sT[0]}, v{vT[1]}")
        x(f"s_and_b32 s{sT[0]}, s{sT[0]}, {msk}"); x(f"s_cmp_eq_u32 s{sT[0]}, s{sT[6]}"); x(f"s_cbranch_scc1 L_hs_done{u}")
        x("s_sleep 1"); x(f"s_add_u32 s{sCNT}, s{sCNT}, 1"); x(f"s_cmp_lt_u32 s{sCNT}, {self.opts.get('fastpolls', 24)}"); x(f"s_cbranch_scc1 L_hs_fast{u}")
        for r in range(4): x(f"v_mov_b32 v{P+4+r}, 0")
        for sl in range(2):
            x(f"buffer_store_dwordx4 {vr(P+4,4)}, v{vE}, {sr(sW,4)}, s{sMY[sl]} offen sc1")
        x(f"s_lshl_b32 s{sT[1]}, s2, 3"); x(f"s_add_u32 s{sT[1]}, s{sT[1]}, s{sWV}"); x(f"s_lshl_b32 s{sT[1]}, s{sT[1]}, 7")
        x(f"s_add_u32 s{sT[1]}, s{sT[1]}, {4<<20}")
        x(f"s_xor_b32 s{sT[2]}, s{sT[1]}, {8*8*128}")
        x(f"v_mov_b32 v{P+2}, 0")
        x("s_mov_b64 exec, 1")
        x(f"buffer_load_dwordx4 {vr(P+8,4)}, v{P+2}, {sr(sW,4)}, s{sT[2]} offen sc1")
        x("s_waitcnt vmcnt(0)")
        x(f"v_readfirstlane_b32 s{sT[3]}, v{P+10}")
        x(f"s_add_u32 s{sT[3]}, s{sT[3]}, 1")
        x(f"v_mov_b32 v{P+3}, s{sT[3]}")
        x(f"buffer_store_dword v{P+3}, v{P+2}, {sr(sW,4)}, s{sT[1]} offen sc1")
        x("s_waitcnt vmcnt(0)")
        x(f"s_mov_b32 s{sCNT}, 0")
        self.xl(f"L_hs_slow{u}")
        x(f"buffer_load_ubyte v{vT[1]}, v{vT[2]}, {sr(sD,4)}, 0 offen sc1")
        x(f"buffer_load_dwordx4 {vr(P+8,4)}, v{P+2}, {sr(sW,4)}, s{sT[2]} offen sc1")
        x("s_waitcnt vmcnt(0)")
        x(f"v_readfirstlane_b32 s{sT[0]}, v{vT[1]}")
        x(f"v_readfirstlane_b32 s{sT[5]}, v{P+8}")
        x(f"v_readfirstlane_b32 s{sT[4]}, v{P+10}")
        x(f"v_readfirstlane_b32 s{sMODE}, v{P+11}")
        x(f"s_and_b32 s{sT[0]}, s{sT[0]}, {msk}"); x(f"s_cmp_eq_u32 s{sT[0]}, s{sT[6]}"); x(f"s_cbranch_scc1 L_hs_same{u}")
        x(f"s_cmp_eq_u32 s{sCNT}, 0"); x(f"s_cbranch_scc1 L_hs_ans{u}")
        x(f"s_cmp_eq_u32 s{sT[5]}, s{sPTMP2}"); x(f"s_cbranch_scc1 L_hs_noans{u}")
        self.xl(f"L_hs_ans{u}")
        x(f"s_mov_b32 s{sPTMP2}, s{sT[5]}")
        x(f"v_mov_b32 v{P+12}, s{sT[5]}"); x(f"v_mov_b32 v{P+13}, s{sXCC}")
        x(f"buffer_store_dwordx2 {vr(P+12,2)}, v{P+2}, {sr(sW,4)}, s{sT[1]} offen offset:8 sc1")
        self.xl(f"L_hs_noans{u}")
        x("s_sleep 4")
        x(f"s_add_u32 s{sCNT}, s{sCNT}, 1"); x(f"s_cmp_gt_u32 s{sCNT}, 0x200000"); x(f"s_cbranch_scc1 L_hs_same{u}")
        x(f"s_cmp_eq_u32 s{sT[4]}, s{sT[3]}"); x(f"s_cbranch_scc0 L_hs_slow{u}")
        x(f"s_cmp_eq_u32 s{sMODE}, s{sXCC}"); x(f"s_cbranch_scc1 L_hs_same{u}")
        x(f"s_mov_b32 s{sMODE}, 0")
        x(f"s_mov_b32 s{sE}, s{sKA+12}"); x(f"s_mov_b32 s{sE+1}, s{sKA+13}")
        x("s_mov_b64 exec, -1")
        x(f"s_branch L_hs_done{u}")
        self.xl(f"L_hs_same{u}")
        x(f"s_mov_b32 s{sMODE}, 1")
        x("s_mov_b64 exec, -1")
        x(f"s_branch L_hs_done{u}")

    def build(self):
        hdr = [f"; @launch grid=(256,1,1) block=(512,1,1) lds={LDS_BYTES}",
               '.amdgcn_target "amdgcn-amd-amdhsa--gfx950"', ".text", f".globl {KN}", ".p2align 8",
               f".type {KN},@function", f"{KN}:"]
        self.prologue()
        A = self.fork(0); A.progA()
        B = self.fork(1); B.progB()
        nb = lambda g: sum(1 for s in g.o if s.strip() == "s_barrier")
        assert nb(A) == nb(B), (nb(A), nb(B))
        assert NV + NA <= 256
        ftr = [f".set CODE_BYTES, L_end - {KN}", '.section .rodata,"a"', ".p2align 6", f".amdhsa_kernel {KN}",
               f"  .amdhsa_next_free_vgpr {NV+NA}", "  .amdhsa_next_free_sgpr 102", f"  .amdhsa_accum_offset {NV}",
               "  .amdhsa_group_segment_fixed_size 0", "  .amdhsa_kernarg_size 56", "  .amdhsa_user_sgpr_count 2",
               "  .amdhsa_user_sgpr_kernarg_segment_ptr 1", "  .amdhsa_system_sgpr_workgroup_id_x 1",
               "  .amdhsa_float_denorm_mode_32 3", ".end_amdhsa_kernel"]
        log = []
        m1, n1 = fix_hazards(self.o + A.o, log)
        m2, n2 = fix_hazards(B.o, log)
        ool, n3 = fix_hazards(self.ool)
        wrap = lambda ls: "\n".join(hdr + ls + ool + ftr) + "\n"
        sp = self.opts.get("pad", 0)
        if sp:
            from asmlib import sizes, parse
            def padded(lines, x, start, lim):
                dummy = [f"L_pad{a}_{b}:" for a in range(2) for b in range(4)]
                others = m2 if x == 0 else m1
                sz = iter(sizes(wrap([l for l in lines + others if not l.strip().startswith(".p2align")] + dummy + ["L_end:", "    s_endpgm"])))
                out = []; pos = []; acc = sp; on = not start; tot = 0
                for l in lines:
                    if start and start in l: on = True
                    if parse(l) is not None:
                        b = next(sz)
                        if on and acc >= sp and tot < lim:
                            pos.append(len(out)); out.append(None); acc = 4
                        acc += b
                        if on: tot += b
                    out.append(l)
                res = []; n = len(pos); k = 0
                for l in out:
                    if l is None:
                        res.append(f"L_pad{x}_{k}:"); res.append(f"    s_cbranch_execz " + (f"L_pad{x}_{k+4}" if k + 4 < n else "L_warm_done")); k += 1
                    else: res.append(l)
                return res
            lim = self.opts.get("padlim", 4000)
            m1, m2 = padded(m1, 0, "PADSTART", lim), padded(m2, 1, None, lim)
        main = m1 + m2 + ["L_end:", "    s_endpgm"]
        if self.opts.get("align", 1):
            main, nw, nn = align(main, wrap, self.opts.get("minrun", 99))
            sys.stderr.write(f"hazard nops {n1}+{n2}+{n3}, widened {nw}, align nops {nn}\n")
        if self.opts.get("hlog"):
            for e in log: sys.stderr.write(str(e) + "\n")
        return wrap(main)

if __name__ == "__main__":
    prof = None; opts = {}
    for x in sys.argv[1:]:
        if x.startswith("--prof="): prof = x[7:].split(",")
        elif x.startswith("--"):
            k, v = x[2:].split("="); opts[k] = int(v) if v.lstrip("-").isdigit() else v
    out = [x for x in sys.argv[1:] if not x.startswith("--")][0]
    g = Gen(prof, opts); txt = g.build()
    if prof: txt = txt + "; stamps: " + ",".join(prof) + "\n"
    open(out, "w").write(txt)
```

```python
import sys, copy
from asmlib import fix_hazards, align
KN = "standalone__cross_network_dcn_v2__recsys_kernel"
L = 6
XB = 131072; HB = 147456; BIASB = 155648; LDS_BYTES = 161792
TAGS = [1, 1, 0, 0, 1, 1]

vLANE = 1; vA = [2, 21]; vE = 3; vV = [4, 5, 6, 7]; vU = [8, 9, 10, 11]
vXW = 12; vXR = [None, 13, 14, 15]; vHW = 16; vHR = [None, 17, 18, 19]
vBI = 20; vT = [22, 23, 24, 25]; vJ = 0
ACC1 = 26; ACC2 = 34; XF = 50; X0F = 66; PK = 82; HP = 90; RX = 94; TM = ACC2; SP = HP; T4 = 98; vPF = 102
NV = 104
aV = 0; aU = 64; aX = 128; aH = 128; aS = 128; NS = 6; NA = 152
sX0 = 4; sV = 8; sU = 12; sO = 16; sE = 20; sD = 24; sB = 28; sW = 32
sKA = 36
sWV = 50; sHF = 51; sRB = 52; sXCC = 53; sMODE = 54
sVG = [55, 56, 57, 58]; sUG = [59, 60, 61, 62]; sSO = [63, 64]; sLB = 65
sMY = [66, 67]; sWS = 68; sXH = 69
sLOFF = 4; sSL = 5; sTS = 6; sTAG = 7; sIT = 3
sCNT = 70; sT = [71, 72, 73, 74, 75, 76, 77, 78]; sPTMP = 79; sPTMP2 = 51
sSTAMP = 80

def vr(b, n): return f"v[{b}:{b+n-1}]"
def ar(b, n): return f"a[{b}:{b+n-1}]"
def sr(b, n): return f"s[{b}:{b+n-1}]"

class Gen:
    def __init__(self, prof=None, opts=None):
        self.o = []; self.ool = []; self.vm = []; self.lg = []; self.vmdone = 0; self.lgdone = 0
        self.prof = prof; self.opts = opts or {}; self.names = []
        self.pw = []; self.nso = 0; self.nst = 0; self.X = 0; self.dyn = False; self.emit_ool = True
        self.pat = self.opts.get("pat", "BBBB/DDDD/DDDD/DDDB"); self.lag = self.opts.get("lag", 4)
    def fork(self, X):
        g = copy.copy(self); g.o = []; g.vm = [(t[1] if isinstance(t, tuple) else t) for t in self.vm if not isinstance(t, tuple) or t[0] == X]; g.lg = list(self.lg); g.pw = list(self.pw); g.X = X
        return g
    def a(self, s): self.o.append("    " + s)
    def x(self, s):
        if self.emit_ool: self.ool.append("    " + s)
    def xl(self, s):
        if self.emit_ool: self.ool.append(s + ":")
    def lab(self, s): self.o.append(s + ":")
    def c(self, s): self.o.append("    ; " + s)
    def vmop(self, s, tag): self.vm.append(tag); self.a(s)
    def lgop(self, s, tag): self.lg.append(tag); self.a(s)
    def _last(self, lst, tag):
        idx = [i for i, t in enumerate(lst) if t == tag]
        return idx[-1] if idx else None
    def wvm(self, tag):
        i = self._last(self.vm, tag)
        if i is not None: self.wvmi(i)
    def wvmi(self, i):
        if i < self.vmdone: return
        n = min(len(self.vm) - 1 - i, 63); self.vmdone = len(self.vm) - n
        self.a(f"s_waitcnt vmcnt({n})")
    def wlg(self, tag):
        i = self._last(self.lg, tag)
        if i is None or i < self.lgdone: return
        n = min(len(self.lg) - 1 - i, 15); self.lgdone = len(self.lg) - n
        self.a(f"s_waitcnt lgkmcnt({n})")
    def wlg0(self):
        if self.lgdone < len(self.lg): self.lgdone = len(self.lg); self.a("s_waitcnt lgkmcnt(0)")
    def bar(self, name=None):
        self.wlg0()
        if name: self.stamp(name + "a")
        self.a("s_barrier")
        if name: self.stamp(name + "b")
        self.jit()
    def jit(self):
        if "jitter" not in self.opts: return
        import random
        Gen.nj = getattr(Gen, "nj", 0) + 1
        r = random.Random(self.opts["jitter"] * 1000 + Gen.nj)
        for q in range(2):
            w = r.randrange(8); n = r.choice([2, 5, 12, 30]); lab = f"L_j{Gen.nj}_{q}"
            self.a("s_mov_b32 s97, scc"); self.a(f"s_and_b32 s96, s2, 3"); self.a(f"s_add_u32 s96, s96, s{sWV}"); self.a("s_and_b32 s96, s96, 7")
            self.a(f"s_cmp_lg_u32 s96, {w}"); self.a(f"s_cbranch_scc1 {lab}"); self.a(f"s_sleep {n}"); self.lab(lab)
            self.a("s_cmp_lg_u32 s97, 0")
    def stamp(self, name):
        nm = name + "AB"[self.X] if False else name
        if self.prof and nm in self.prof:
            r = sSTAMP + 2 * self.prof.index(nm)
            assert r + 1 <= 101
            self.a(f"s_memrealtime s[{r}:{r+1}]" if nm.startswith("rt") else f"s_memtime s[{r}:{r+1}]")
    def rec(self, name, src):
        if self.prof and name in self.prof:
            self.a(f"s_mov_b32 s{sSTAMP + 2*self.prof.index(name)}, {src}")
    def prio(self, p):
        m = self.opts.get("prio", 1)
        if m == 1: self.a(f"s_setprio {p}")
        if m == 2: self.a(f"s_setprio {2-p}")
    def dma(self, kind, l, g, pat=None):
        if l >= L: return []
        if self.opts.get("dma") == "off" and l >= 2: return []
        pat = pat or self.pat.split("/")[g]
        so = sSO[self.nso & 1]; self.nso += 1
        base, sg, vv, srd = (0, sVG, vV, sV) if kind == "V" else (16384, sUG, vU, sU)
        tag = f"{kind}{l}" + "ab"[g >> 1]
        items = []
        for j in range(4):
            def emit(j=j):
                while self.pw and len(self.vm) - self.pw[0][0] > self.lag: self.pw.pop(0)[1]()
                if j == 0:
                    self.a(f"s_add_u32 m0, s{sLB}, {base+g*4096}"); self.a(f"s_add_u32 s{so}, s{sg[g]}, s{sLOFF}" if self.dyn else f"s_add_u32 s{so}, s{sg[g]}, {l*131072}")
                if pat[j % len(pat)] in "DBCW":
                    self.vmop(f"buffer_load_dwordx4 v{vv[j]}, {sr(srd,4)}, s{so} offen offset:{1024*j} lds", tag)
                    for q in range({"D": 0, "B": 1, "C": 2, "W": 0}[pat[j % len(pat)]]): self.vmop(f"buffer_load_dword v{vJ}, off, {sr(sB,4)}, 0", "gap")
                    if pat[j % len(pat)] == "W": self.vmop(f"buffer_load_dwordx4 {vr(T4,4)}, v{vE}, {sr(sB,4)}, 0 offen", "gap")
            items.append(emit)
        return items
    def flush(self, keep3=False):
        while self.pw and not (keep3 and self.pw[0][2] == 3): self.pw.pop(0)[1]()
    def rdV(self, g):
        return [lambda j=j: self.lgop(f"ds_read_b128 {ar(aV+4*(4*g+j),4)}, v{vA[j>>1]} offset:{g*4096+(j&1)*2048}", f"rV{g}_{j>>1}") for j in range(4)]
    def rdU(self, g):
        return [lambda j=j: self.lgop(f"ds_read_b128 {ar(aU+4*(4*g+j),4)}, v{vA[j>>1]} offset:{16384+g*4096+(j&1)*2048}", f"rU{g}") for j in range(4)]
    def mf1(self, ks, fill=None):
        for ta in range(2):
            b = vr(PK + 4*ks, 4) if ks < 2 else ar(aX + 4*(ks-2), 4)
            d = vr(ACC1 + 4*ta, 4)
            self.a(f"v_mfma_f32_16x16x32_bf16 {d}, {ar(aV+4*(2*ks+ta),4)}, {b}, {'0' if ks == 0 else d}")
            if fill: self.run(fill[ta])
    def mf2(self, P, kr, fill=None):
        for ta in range(2):
            b = vr(HP, 4) if kr == 0 else ar(aH + 4*(kr-1), 4)
            d = vr(ACC2 + 8*P + 4*ta, 4)
            idx = ((kr >> 1)*2 + P)*4 + (kr & 1)*2 + ta
            self.a(f"v_mfma_f32_16x16x32_bf16 {d}, {ar(aU+4*idx,4)}, {b}, {d}")
            if fill: self.run(fill[ta])
    def epi(self, P, l, pk=False):
        r = []
        if pk:
            for e in range(4):
                q = 8*P + 2*e
                r.append(lambda q=q: self.a(f"v_pk_fma_f32 {vr(ACC2+q,2)}, {vr(X0F+q,2)}, {vr(ACC2+q,2)}, {vr(XF+q,2)}"))
        else:
            for e in range(8):
                q = 8*P + e
                r.append(lambda q=q: self.a(f"v_fma_f32 v{ACC2+q}, v{X0F+q}, v{ACC2+q}, v{XF+q}"))
        for e in range(4):
            q = 8*P + 2*e
            r.append(lambda q=q: self.a(f"v_cvt_pk_bf16_f32 v{PK+q//2}, v{ACC2+q}, v{ACC2+q+1}"))
        if l < L-1: r.append(lambda: self.lgop(f"ds_write_b128 v{vXW}, {vr(PK+4*P,4)} offset:{P*1024}", "xw"))
        else: r.append(lambda: self.lgop(f"ds_write_b128 v{vT[P]}, {vr(PK+4*P,4)}", "xw"))
        return r
    def unpack(self, dst, src, n):
        r = []
        for i in range(n):
            r.append(lambda i=i: self.a(f"v_lshlrev_b32 v{dst+2*i}, 16, v{src+i}"))
            r.append(lambda i=i: self.a(f"v_and_b32 v{dst+2*i+1}, 0xffff0000, v{src+i}"))
        return r
    def bias_rd(self, l):
        for k in range(4):
            self.lgop(f"ds_read_b128 {vr(ACC2+4*k,4)}, v{vBI} offset:{(0 if self.dyn else l*256) + (k>>1)*128 + (k&1)*16}", "bias")
    def run(self, lst):
        for f in lst: f()
    def mix(self, *lists):
        lists = [list(x) for x in lists]
        while any(lists):
            for x in lists:
                if x: x.pop(0)()
    def srd(self, r, p, n, bias=0):
        if bias:
            self.a(f"s_sub_u32 s{r}, s{p}, {bias}"); self.a(f"s_subb_u32 s{r+1}, s{p+1}, 0")
        else:
            self.a(f"s_mov_b32 s{r}, s{p}"); self.a(f"s_mov_b32 s{r+1}, s{p+1}")
        self.a(f"s_mov_b32 s{r+2}, {n+bias}"); self.a(f"s_mov_b32 s{r+3}, 0x20000")
    def poll(self, l):
        self.jit()
        self.vmop(f"buffer_load_dwordx4 {vr(RX,4)}, v{vE}, {sr(sE,4)}, s{sSL} offen sc1", f"poll{l}")
    def send(self, l, u=None):
        a = self.a; u = u if u is not None else f"{self.X}{l}"
        a(f"s_xor_b32 s{sPTMP}, s{sSL}, 512")
        for k in range(4): a(f"v_cvt_pk_bf16_f32 v{SP+k}, v{ACC1+2*k}, v{ACC1+2*k+1}")
        for k in range(4): a(f"v_and_or_b32 v{SP+k}, v{SP+k}, -2, s{sTAG}")
        if l == 0: self.handshake()
        self.jit()
        self.stamp(f"snd{u}")
        a(f"s_cmp_eq_u32 s{sMODE}, 0"); a(f"s_cbranch_scc1 L_ss{u}")
        self.vmop(f"buffer_store_dwordx4 {vr(SP,4)}, v{vE}, {sr(sE,4)}, s{sPTMP} offen {self.opts.get('sendf', '')}", "st")
        self.lab(f"L_sd{u}")
        self.xl(f"L_ss{u}")
        self.x(f"buffer_store_dwordx4 {vr(SP,4)}, v{vE}, {sr(sE,4)}, s{sPTMP} offen sc1")
        self.x("s_nop 1"); self.x(f"s_branch L_sd{u}")
    def chk_ops(self, l):
        R = RX; t0 = vT[3]
        return [f"v_xor_b32 v{t0}, s{sTAG}, v{R}"] + [f"v_bitop3_b32 v{t0}, v{R+k}, v{t0}, s{sTAG} bitop3:0xde" for k in (1, 2, 3)] + \
               [f"v_and_b32 v{t0}, 1, v{t0}", f"v_cmp_ne_u32 vcc, 0, v{t0}"]
    def next_msg(self):
        if not self.opts.get("one"): self.a(f"s_xor_b32 s{sSL}, s{sSL}, 16384")
        self.a(f"s_lshr_b32 s{sTS}, s{sTS}, 1"); self.a(f"s_and_b32 s{sTAG}, s{sTS}, 1")
    def check_post(self, l, d=None):
        u = f"{self.X}{l}"; x = self.x; a = self.a
        self.wvm(f"poll{l}")
        self.stamp(f"chk{u}")
        if self.opts.get("dbgcnt"): a(f"s_mov_b32 s{sCNT}, 0")
        for s in self.chk_ops(l): a(s)
        a(f"s_cbranch_vccnz L_rt{u}")
        self.lab(f"L_got{u}")
        self.stamp(f"got{u}")
        if self.opts.get("dbgcnt"): self.rec(f"cnt{l}", f"s{sCNT}")
        self.xl(f"L_rt{u}")
        x(f"s_mov_b32 s{sCNT}, 0")
        self.xl(f"L_rl{u}")
        x(f"buffer_load_dwordx4 {vr(RX,4)}, v{vE}, {sr(sE,4)}, s{sSL} offen sc1")
        if "retrydelay" in self.opts: x("s_add_u32 s96, s96, 1")
        x(f"s_add_u32 s{sCNT}, s{sCNT}, 1"); x(f"s_cmp_gt_u32 s{sCNT}, 0x200000")
        x("s_waitcnt vmcnt(0)")
        x(f"s_cbranch_scc1 L_got{u}")
        for s in self.chk_ops(l): x(s)
        x(f"s_cbranch_vccz L_got{u}")
        x("s_sleep 1")
        x(f"s_branch L_rl{u}")
        ops = []
        for h in range(2):
            ops += self.unpack(T4, RX+2*h, 2)
            if self.opts.get("pkadd", 0):
                for k in range(2): ops.append(lambda k=k, h=h: a(f"v_pk_add_f32 {vr(T4+2*k,2)}, {vr(T4+2*k,2)}, {vr(ACC1+4*h+2*k,2)}"))
            else:
                for k in range(4): ops.append(lambda k=k, h=h: a(f"v_add_f32 v{T4+k}, v{T4+k}, v{ACC1+4*h+k}"))
            for k in range(2): ops.append(lambda k=k, h=h: a(f"v_cvt_pk_bf16_f32 v{HP+2*h+k}, v{T4+2*k}, v{T4+2*k+1}"))
        ops.append(lambda: self.lgop(f"ds_write_b128 v{vHW}, {vr(HP,4)}", "hw"))
        ops.append(self.next_msg)
        if d is None:
            self.run(ops); self.bias_rd(l); return
        d = list(d); st = self.opts.get("vper", 10)
        while ops:
            self.run(ops[:st]); ops = ops[st:]
            if ops and d: d.pop(0)()
        self.run(d)
    def x_reads(self):
        return [lambda ks=ks: self.lgop(f"ds_read_b128 {ar(aX+4*(ks-2),4)}, v{vXR[ks>>1]} offset:{(ks&1)*1024}", f"x{ks}") for ks in range(2, 8)]
    def h_reads(self):
        for kr in range(1, 4):
            self.lgop(f"ds_read_b128 {ar(aH+4*(kr-1),4)}, v{vHR[kr]}", f"h{kr}")

    def g2_phase(self, l, early=None, mid=None, late=None):
        early = list(early or []); mid = list(mid or []); late = list(late or [])
        def take(q): return [q[0:1], q[1:2]]
        self.h_reads()
        self.mf2(0, 0, take(early)); self.mf2(1, 0, take(early[2:]))
        self.wlg("h1"); self.mf2(0, 1, take(early[4:]))
        self.wlg("h2"); self.mf2(0, 2, take(early[6:] + mid))
        self.wlg("h3"); self.mf2(0, 3, take(mid[2:]))
        self.flush()
        e0 = self.epi(0, l); e1 = self.epi(1, l, pk=self.opts.get("pkfma", 1))
        u = f"{self.X}{l}"
        self.stamp(f"g2a{u}")
        if self.opts.get("e0mix", 0):
            self.mf2(1, 1, [[], late[0:4]])
            self.mf2(1, 2, [[], e0[0:3]])
            self.stamp(f"g2b{u}")
            self.mf2(1, 3, [e0[3:6], e0[6:-1]])
        else:
            self.mf2(1, 1); self.mf2(1, 2, [late[0:2], late[2:4]])
            self.stamp(f"g2b{u}")
            self.mf2(1, 3, [e0[0:2], e0[2:-1]])
        self.stamp(f"g2c{u}")
        e0[-1]()
        self.stamp(f"g2d{u}")
        self.run(e1[:-1])
        self.stamp(f"g2e{u}")
        e1[-1]()
        self.stamp(f"g2f{u}")
    def g1_phase(self, l, jitV=False, extra=None):
        xr = self.x_reads(); extra = list(extra or [])
        if jitV:
            rv = self.rdV(2) + self.rdV(3)
            ev = self.opts.get("earlyv", 8)
            pre = (self.rdV(0) + self.rdV(1))[ev:]
            self.run(pre[:4]); self.run(xr[0:2]); self.run(pre[4:])
            q = [xr[2], rv[0], rv[1], xr[3], rv[2], rv[3], xr[4], rv[4], rv[5], xr[5], rv[6], rv[7]]
            for ks in range(8):
                self.wlg(f"rV{ks>>1}_{ks&1}")
                if ks >= 2: self.wlg(f"x{ks}")
                self.mf1(ks, [q[0:2], q[2:3]]); q = q[3:]
        else:
            self.run(xr)
            for ks in range(8):
                if ks >= 2: self.wlg(f"x{ks}")
                self.mf1(ks, [extra[0:1], extra[1:2]]); extra = extra[2:]
                if l == 0 and ks == self.opts.get("flagBat", 4): self.vmop(f"buffer_load_ubyte v{vT[1]}, v{vT[2]}, {sr(sD,4)}, 0 offen sc1", "flag")
            self.run(extra)
        self.send(l)
        self.run(self.unpack(XF, PK, 8))

    def prologue(self):
        a = self.a; T = [X0F + i for i in range(10)]
        a(f"s_load_dwordx8 {sr(sKA,8)}, s[0:1], 0")
        a(f"s_load_dwordx4 {sr(sKA+8,4)}, s[0:1], 32")
        a(f"s_load_dwordx2 {sr(sKA+12,2)}, s[0:1], 48")
        a("s_cmp_ge_u32 s2, 256"); a("s_cbranch_scc1 L_end")
        self.stamp("start"); self.stamp("rt0")
        a(f"v_lshrrev_b32 v{T[0]}, 6, v0"); a(f"v_and_b32 v{vLANE}, 63, v0")
        if self.opts.get("codepf", 1):
            a(f"s_getpc_b64 {sr(sX0,2)}"); a(f"v_lshlrev_b32 v{T[1]}, 7, v0"); a(f"s_and_b32 s{sX0}, s{sX0}, 0xffffff00")
            a(f"v_cmp_gt_u32 vcc, CODE_BYTES, v{T[1]}")
            a(f"s_and_saveexec_b64 {sr(sX0+2,2)}, vcc"); a("s_cbranch_execz L_nocpf")
            a(f"global_load_dword v{vJ}, v{T[1]}, {sr(sX0,2)}")
            self.lab("L_nocpf")
            a("s_mov_b64 exec, -1")
        a(f"v_readfirstlane_b32 s{sWV}, v{T[0]}")
        a(f"v_lshrrev_b32 v{T[6]}, 3, v{vLANE}"); a(f"v_and_b32 v{T[2]}, 6, v{T[6]}"); a(f"v_xor_b32 v{T[2]}, v{T[2]}, v{vLANE}")
        a(f"v_and_b32 v{T[2]}, 7, v{T[2]}"); a(f"v_lshlrev_b32 v{T[2]}, 4, v{T[2]}")
        a(f"v_and_b32 v{T[3]}, 4, v{T[6]}"); a(f"v_add_u32 v{T[1]}, v{T[6]}, v{T[3]}")
        a(f"v_lshl_add_u32 v{T[3]}, v{T[1]}, 10, v{T[2]}")
        voff = lambda j: ((j&1)*16 + (j>>1)*4)
        for j in range(2): a(f"v_add_u32 v{vV[j]}, {voff(j)*1024 - 1024*j + 3072}, v{T[3]}")
        a(f"s_and_b32 s{sT[0]}, s2, 0xf0"); a(f"s_lshl_b32 s{sT[0]}, s{sT[0]}, 14"); a(f"s_and_b32 s{sT[1]}, s2, 7"); a(f"s_lshl_b32 s{sT[1]}, s{sT[1]}, 15")
        a(f"s_and_b32 s{sT[2]}, s2, 8"); a(f"s_lshl_b32 s{sT[2]}, s{sT[2]}, 6")
        a(f"s_and_b32 s{sWS}, s{sWV}, 3"); a(f"s_lshr_b32 s{sXH}, s{sWV}, 2")
        a(f"s_or_b32 s{sT[0]}, s{sT[0]}, s{sT[1]}"); a(f"s_lshl_b32 s{sT[1]}, s{sXH}, 12"); a(f"s_or_b32 s{sT[1]}, s{sT[1]}, s{sT[2]}")
        a(f"s_or_b32 s{sT[4]}, s{sT[0]}, s{sT[1]}")
        a(f"s_lshl_b32 s{sT[3]}, s{sWS}, 7"); a(f"s_add_u32 s{sT[7]}, s{sT[4]}, s{sT[3]}")
        a(f"s_lshl1_add_u32 s{sT[5]}, s{sWS}, s{sXH}"); a(f"s_lshl_b32 s{sT[5]}, s{sT[5]}, 11"); a(f"s_add_u32 s{sT[5]}, s{sT[5]}, {XB}")
        a(f"s_lshr_b32 s{sT[0]}, s2, 3"); a(f"s_lshl3_add_u32 s{sT[0]}, s{sT[0]}, s{sWV}"); a(f"s_lshl_b32 s{sT[0]}, s{sT[0]}, 9")
        a(f"s_lshl2_add_u32 s{sT[1]}, s2, s{sWS}"); a(f"s_lshl_b32 s{sT[1]}, s{sT[1]}, 7"); a(f"s_sub_u32 s{sT[1]}, s{sT[1]}, {3*131072}")
        a(f"v_lshl_add_u32 v{T[8]}, v{vLANE}, 7, s{sT[0]}"); a(f"v_lshl_add_u32 v{T[9]}, v{vLANE}, 17, s{sT[1]}")
        mk = [int(m, 16) for m in str(self.opts.get("mk", "1ff,f,f,1ff")).split(",")]
        a(f"v_cmp_gt_u32 vcc, 4, v{vLANE}")
        a(f"s_cmp_eq_u32 s{sXH}, 0"); a(f"s_cselect_b32 s{sT[0]}, {mk[0]}, {mk[1]}"); a(f"s_cselect_b32 s{sT[1]}, {mk[2]}, {mk[3]}")
        a(f"v_cndmask_b32 v{vPF}, v{T[9]}, v{T[8]}, vcc")
        a("s_waitcnt lgkmcnt(0)")
        self.stamp("karg")
        def only(x, name, body):
            a(f"s_cmp_lg_u32 s{sXH}, {x}"); a(f"s_cbranch_scc1 {name}")
            n0 = len(self.vm); body()
            for k in range(n0, len(self.vm)): self.vm[k] = (x, self.vm[k])
            self.lab(name)
        def x0ld():
            a(f"s_mov_b32 m0, s{sT[5]}"); a("s_nop 0")
            self.vmop(f"buffer_load_dwordx4 v{vV[0]}, {sr(sX0,4)}, s{sT[7]} offen lds", "x0")
            self.vmop(f"buffer_load_dwordx4 v{vV[1]}, {sr(sX0,4)}, s{sT[7]} offen offset:1024 lds", "x0")
        self.srd(sX0, sKA+0, 4096*1024, 3072)
        only(0, "L_o1", x0ld)
        self.srd(sV, sKA+4, 6*131072, 3072)
        a("s_mov_b32 exec_hi, 0"); a(f"s_mov_b32 exec_lo, s{sT[0]}")
        self.vmop(f"buffer_load_dword v{vJ}, v{vPF}, {sr(sV,4)}, 0 offen offset:3072", "pf")
        self.srd(sU, sKA+2, 6*131072, 3072)
        a(f"s_mov_b32 exec_lo, s{sT[1]}")
        self.vmop(f"buffer_load_dword v{vJ}, v{vPF}, {sr(sU,4)}, 0 offen offset:3072", "pf")
        a("s_mov_b64 exec, -1")
        a(f"s_lshr_b32 s{sT[0]}, s{sWS}, 1"); a(f"s_lshl_b32 s{sT[0]}, s{sT[0]}, 13"); a(f"s_add_u32 s{sT[4]}, s{sT[4]}, s{sT[0]}")
        a(f"s_and_b32 s{sT[6]}, s{sWS}, 1"); a(f"s_lshl_b32 s{sT[0]}, s{sT[6]}, 11"); a(f"s_add_u32 s{sMY[0]}, s{sT[4]}, s{sT[0]}")
        a(f"v_lshrrev_b32 v{T[8]}, 5, v{vLANE}"); a(f"v_and_b32 v{vE}, 31, v{vLANE}"); a(f"v_lshlrev_b32 v{vE}, 4, v{vE}")
        a(f"v_lshl_add_u32 v{vE}, v{T[8]}, 10, v{vE}")
        for r in range(4): a(f"v_mov_b32 v{TM+r}, 0")
        self.srd(sO, sKA+8, 4096*1024)
        only(0, "L_o2", lambda: self.clr(0))
        a(f"s_lshl_b32 s{sLB}, s{sWS}, 15"); a(f"s_add_u32 s{sT[0]}, s{sLB}, s{sT[2]}")
        for g in range(4):
            a(f"s_xor_b32 s{sT[4]}, s{sWS}, {g}"); a(f"s_lshl_b32 s{sT[4]}, s{sT[4]}, 7"); a(f"s_add_u32 s{sVG[g]}, s{sT[0]}, s{sT[4]}")
        for j in range(2, 4): a(f"v_add_u32 v{vV[j]}, {voff(j)*1024 - 1024*j + 3072}, v{T[3]}")
        a(f"s_lshl_b32 s{sT[4]}, s{sXH}, 13"); a(f"s_add_u32 s{sT[4]}, s{sT[4]}, s{sLB}")
        a(f"s_cmp_eq_u32 s{sXH}, 0")
        a(f"s_cselect_b32 s{sT[0]}, s{sVG[0]}, s{sVG[2]}"); a(f"s_cselect_b32 s{sT[1]}, s{sVG[1]}, s{sVG[3]}")
        self.stamp("i_x0")
        xb = self.opts.get("xbpos", 2)
        for k in range(2):
            if xb == k: only(1, "L_o3", x0ld)
            a(f"s_add_u32 m0, s{sT[4]}, {k*4096}"); a("s_nop 0")
            for j in range(4):
                self.vmop(f"buffer_load_dwordx4 v{vV[j]}, {sr(sV,4)}, s{sT[k]} offen offset:{1024*j} lds", "V0")
        if xb == 2: only(1, "L_o3", x0ld)
        self.stamp("i_v0a")
        a(f"v_and_b32 v{T[7]}, 7, v{vLANE}"); a(f"v_lshlrev_b32 v{T[9]}, 4, v{T[7]}"); a(f"v_lshl_add_u32 v{T[9]}, v{T[6]}, 10, v{T[9]}")
        a(f"s_mul_i32 s{sT[0]}, s{sXH}, 3072"); a(f"s_add_u32 s{sT[0]}, s{sT[0]}, s{sT[3]}"); a(f"s_add_u32 s{sT[0]}, s{sT[0]}, s{sT[2]}")
        a(f"v_mov_b32 v{vT[2]}, s2"); a(f"v_xor_b32 v{vT[2]}, 8, v{vT[2]}")
        self.srd(sB, sKA+6, 6*1024)
        self.srd(sD, sKA+10, 256)
        a("s_mov_b64 exec, 0xffffff")
        self.vmop(f"buffer_load_dwordx4 {vr(TM+4,4)}, v{T[9]}, {sr(sB,4)}, s{sT[0]} offen", "bias")
        a("s_mov_b64 exec, 1")
        self.vmop(f"buffer_load_ubyte v{vJ}, v{vT[2]}, {sr(sD,4)}, 0 offen", "touch")
        a("s_mov_b64 exec, -1")
        a(f"s_add_u32 s{sMY[1]}, s{sMY[0]}, 16384")
        self.srd(sW, sKA+12, 8 << 20)
        self.srd(sE, sKA+8, 4096*1024)
        if self.opts.get("stag"):
            a(f"v_mov_b32 v{RX+2}, s{sSTAMP}"); a(f"s_lshl_b32 s90, s2, 2"); a("s_add_u32 s90, s90, 0x700000"); a(f"v_mov_b32 v{RX+3}, 0")
            a("s_mov_b64 exec, 1"); a(f"buffer_store_dword v{RX+2}, v{RX+3}, {sr(sW,4)}, s90 offen sc1"); a("s_mov_b64 exec, -1")
        a(f"s_getreg_b32 s{sXCC}, hwreg(HW_REG_XCC_ID)"); a(f"s_and_b32 s{sXCC}, s{sXCC}, 15"); a(f"s_or_b32 s{sXCC}, s{sXCC}, 16")
        a(f"v_lshl_add_u32 v{T[4]}, v{T[1]}, 8, v{T[2]}")
        a(f"s_lshl_b32 s{sT[0]}, s{sT[6]}, 6"); a(f"v_xor_b32 v{T[4]}, s{sT[0]}, v{T[4]}")
        for j in range(4):
            a(f"v_add_u32 v{vU[j]}, {voff(j)*256 - 1024*j + 3072}, v{T[4]}")
        a(f"s_lshl_b32 s{sT[0]}, s{sT[2]}, 7"); a(f"s_lshl_b32 s{sT[1]}, s{sWS}, 14"); a(f"s_add_u32 s{sT[0]}, s{sT[0]}, s{sT[1]}")
        a(f"s_and_b32 s{sT[1]}, s{sWS}, 2"); a(f"s_lshl_b32 s{sT[1]}, s{sT[1]}, 6"); a(f"s_add_u32 s{sUG[0]}, s{sT[0]}, s{sT[1]}")
        a(f"s_add_u32 s{sUG[1]}, s{sUG[0]}, 8192"); a(f"s_xor_b32 s{sUG[2]}, s{sUG[0]}, 128"); a(f"s_xor_b32 s{sUG[3]}, s{sUG[1]}, 128")
        a(f"v_lshrrev_b32 v{T[0]}, 4, v{vLANE}")
        a(f"v_and_b32 v{T[1]}, 6, v{vLANE}"); a(f"v_xor_b32 v{T[2]}, v{T[1]}, v{T[0]}"); a(f"v_lshlrev_b32 v{T[2]}, 4, v{T[2]}")
        a(f"v_and_b32 v{T[1]}, 15, v{vLANE}"); a(f"v_lshl_add_u32 v{T[2]}, v{T[1]}, 7, v{T[2]}")
        a(f"v_add_u32 v{T[3]}, s{sT[5]}, v{T[2]}"); a(f"v_xor_b32 v{T[5]}, 64, v{T[3]}")
        a(f"v_add_u32 v{vA[0]}, s{sLB}, v{T[2]}"); a(f"v_xor_b32 v{vA[1]}, 64, v{vA[0]}")
        a(f"v_lshlrev_b32 v{T[1]}, 4, v{vLANE}")
        a(f"v_add_u32 v{vXW}, s{sT[5]}, v{T[1]}")
        for g in range(1, 4): a(f"v_xor_b32 v{vXR[g]}, {g*4096}, v{vXW}")
        a(f"s_lshl_b32 s{sT[0]}, s{sWV}, 10"); a(f"s_add_u32 s{sT[0]}, s{sT[0]}, {HB}")
        a(f"v_add_u32 v{vHW}, s{sT[0]}, v{T[1]}")
        for g in range(1, 4): a(f"v_xor_b32 v{vHR[g]}, {g*1024}, v{vHW}")
        a(f"s_mul_i32 s{sT[0]}, s{sWS}, 1536"); a(f"s_add_u32 s{sT[0]}, s{sT[0]}, {BIASB}")
        a(f"v_lshl_add_u32 v{vBI}, v{T[0]}, 5, s{sT[0]}")
        a(f"s_mul_i32 s{sT[1]}, s{sXH}, 768"); a(f"s_add_u32 s{sT[0]}, s{sT[0]}, s{sT[1]}")
        a(f"v_lshlrev_b32 v{T[7]}, 5, v{T[7]}"); a(f"v_lshl_add_u32 v{T[7]}, v{T[6]}, 8, v{T[7]}"); a(f"v_add_u32 v{vT[0]}, s{sT[0]}, v{T[7]}")
        a(f"s_mov_b32 s{sSL}, s{sMY[0]}"); a(f"s_mov_b32 s{sTS}, {sum(t << i for i, t in enumerate(TAGS))}"); a(f"s_mov_b32 s{sTAG}, {TAGS[0]}")
        if not self.opts.get("flagvm", 1): a(f"s_xor_b32 s{sT[3]}, s2, 8"); a(f"s_and_b32 s{sT[2]}, s{sT[3]}, 0xfc"); a(f"s_and_b32 s{sT[3]}, s{sT[3]}, 3"); a(f"s_lshl_b32 s{sT[3]}, s{sT[3]}, 3")
        a(f"s_cmp_lg_u32 s{sXH}, 0"); a("s_cbranch_scc1 L_progB")

    def xproc(self):
        a = self.a; T = [X0F + i for i in range(10)]
        self.wvm("x0"); self.stamp("x0")
        for P in range(2):
            self.lgop(f"ds_read_b128 {vr(PK+4*P,4)}, v{T[5] if P else T[3]}", "x0r")
        self.wlg("x0r")
        for P in range(2):
            self.lgop(f"ds_write_b128 v{vXW}, {vr(PK+4*P,4)} offset:{P*1024}", "xw")
        self.run(self.unpack(X0F, PK, 8))
    def biasproc(self):
        a = self.a
        self.wvm("bias")
        self.run(self.unpack(TM+8, TM+4, 4))
        a("s_mov_b64 exec, 0xffffff")
        self.lgop(f"ds_write_b128 v{vT[0]}, {vr(TM+8,4)}", "bw")
        self.lgop(f"ds_write_b128 v{vT[0]}, {vr(TM+12,4)} offset:16", "bw")
        a("s_mov_b64 exec, -1")
    def clr(self, sl):
        self.vmop(f"buffer_store_dwordx4 {vr(TM,4)}, v{vE}, {sr(sO,4)}, s{sMY[sl]} offen sc1", "clr")
    def post_flag(self, stage):
        a = self.a
        a(f"s_cmp_lg_u32 s{sWV}, 0"); a(f"s_cbranch_scc1 L_noflag{stage}")
        a(f"v_mov_b32 v{T4}, s2"); a(f"v_mov_b32 v{T4+1}, s{sXCC}")
        if stage: a(f"v_or_b32 v{T4+1}, 32, v{T4+1}")
        a("s_mov_b64 exec, 1")
        a(f"buffer_store_byte v{T4+1}, v{T4}, {sr(sD,4)}, 0 offen"); a("s_mov_b64 exec, -1")
        self.lab(f"L_noflag{stage}")
    def flag_ld(self):
        if self.opts.get("flagvm", 1): self.vmop(f"buffer_load_ubyte v{vT[1]}, v{vT[2]}, {sr(sD,4)}, 0 offen sc1", "flag")
        else: self.a(f"s_load_dword s{sT[1]}, {sr(sKA+10,2)}, s{sT[2]}")
    def bias_ops(self, l):
        return [lambda k=k: self.lgop(f"ds_read_b128 {vr(ACC2+4*k,4)}, v{vBI} offset:{(0 if self.dyn else l*256) + (k>>1)*128 + (k&1)*16}", "bias") for k in range(4)]
    def light1(self, kind, l, rd, lp, n1=None):
        d = self.dma(kind, l, 0) + self.dma(kind, l, 1)
        n1 = n1 or self.opts.get("n1", 8)
        self.carry = d[n1:]; d = d[:n1]
        pp = self.opts.get("pollat", 2); r0 = self.opts.get("rd1at", 0)
        rd = list(rd) + self.bias_ops(lp)
        per = self.opts.get("rd1per", 4)
        for k in range(8):
            if k == pp: self.poll(lp)
            if k < len(d): d[k]()
            if r0 <= k and (k - r0) % self.opts.get("dper", 1) == 0: self.run(rd[:per]); rd = rd[per:]
            self.stamp(f"l1{self.X}{lp}_{k}")
        if pp >= 8: self.poll(lp)
    def light2(self, kind, l, rd, lp):
        self.run(self.carry)
        d = self.dma(kind, l, 2) + self.dma(kind, l, 3) + [lambda: None] * 8
        p2 = self.opts.get("pre2", 3); rd = list(rd)
        if self.opts.get("l2mode", 0) == 1 or l >= L:
            m2 = self.opts.get("mid2", 1)
            self.run(d[:p2])
            self.check_post(lp, d[p2:p2+m2])
            self.run(rd[:4]); d[p2+m2](); self.run(rd[4:])
            self.wvm(f"{kind}{l}a")
            self.run(d[p2+m2+1:8])
            return
        seq = self.opts.get("l2seq")
        if seq:
            d = list(d)
            for t in seq:
                if t == "d": d.pop(0)()
                elif t == "r": self.run(rd[:2]); rd = rd[2:]
                elif t == "c": self.check_post(lp, [])
                elif t == "C": self.check_post(lp, [d.pop(0)])
                elif t == "w": self.wvm(f"{kind}{l}a")
                elif t == "g": self.vmop(f"buffer_load_dword v{vJ}, off, {sr(sB,4)}, 0", "gap")
            assert not rd and len(d) == 8
            return
        self.run(d[:p2])
        self.run(rd[:4]); d[p2](); self.run(rd[4:]); d[p2+1]()
        self.stamp(f"pd{self.X}{lp}")
        self.check_post(lp, d[p2+2:p2+3])
        self.stamp(f"po{self.X}{lp}")
        self.wvm(f"{kind}{l}a")
        self.run(d[p2+3:8])
        self.stamp(f"en{self.X}{lp}")
    def progA(self):
        a = self.a
        self.xproc()
        self.wvm("V0"); self.stamp("v0l")
        self.bar("b0")
        self.prio(2)
        self.post_flag(0)
        if self.opts.get("ac1", 0) == 0: self.clr(1)
        xr = self.x_reads(); rv = [f for g in range(4) for f in self.rdV(g)]
        self.run(rv[0:4]); self.run(xr[0:2]); self.run(rv[4:8]); self.run(xr[2:4])
        q = rv[8:12] + xr[4:6] + rv[12:16]
        for ks in range(8):
            self.wlg(f"rV{ks>>1}_{ks&1}")
            if ks >= 2: self.wlg(f"x{ks}")
            self.mf1(ks, [q[0:1], q[1:2]]); q = q[2:]
            if ks == self.opts.get("flagat", 5): self.flag_ld()
        self.send(0)
        if self.opts.get("ac1", 0) == 1: self.clr(1)
        self.run(self.unpack(XF, PK, 8))
        self.biasproc()
        self.prio(0)
        self.wvm("clr")
        self.bar("b1")
        self.post_flag(1)
        self.light1("V", 1, self.rdU(0) + self.rdU(1), 0, 8)
        self.bar("b1x")
        self.run(self.rdU(2))
        self.check_post(0, [])
        self.run(self.rdU(3))
        self.wvm("V1a")
        self.bar("b2"); self.stamp("rtb2")
        self.a(f"s_mov_b32 s{sLOFF}, {2*131072}"); self.a(f"v_add_u32 v{vBI}, 256, v{vBI}")
        self.rounds(self.roundA)
    def rounds(self, body):
        self.dyn = True
        if not self.opts.get("loop", 1):
            for l in range(L): body(l, None)
            return
        u = self.X
        self.a(f"s_mov_b32 s{sIT}, 4")
        keep = self.o; self.o = []; self.emit_ool = False
        body(0, None)
        self.o = keep; self.emit_ool = True
        if self.opts.get("loopalign", 1): self.o.append("    .p2align 6")
        self.lab(f"L_loop{u}")
        body(1, f"L_loop{u}")
        keep = self.o; self.o = []; self.emit_ool = False
        body(2, None); body(3, None)
        self.o = keep; self.emit_ool = True
        body(4, None); body(5, None)
    def adv(self, back):
        self.a(f"s_add_u32 s{sLOFF}, s{sLOFF}, 131072"); self.a(f"v_add_u32 v{vBI}, 256, v{vBI}")
        if back: self.a(f"s_sub_u32 s{sIT}, s{sIT}, 1"); self.a(f"s_cmp_lg_u32 s{sIT}, 0")
    def roundA(self, l, back):
        last = l == L-1
        self.c(f"==== A round {l} phase 0: G2 ====")
        self.prio(2)
        ev = self.opts.get("earlyv", 8)
        self.g2_phase(l, early=(None if last else (self.rdV(0) + self.rdV(1))[:ev]))
        if last:
            self.final_store(bar=True); return
        self.wvm(f"V{l+1}b")
        self.stamp(f"g2g0{l}")
        self.bar(f"A0{l}")
        self.c(f"==== A round {l} phase 1: G1 ====")
        self.g1_phase(l+1, jitV=True)
        self.prio(0)
        self.bar(f"A1{l}")
        self.c(f"==== A round {l} phase 2 ====")
        self.light1("V", l+2, self.rdU(0) + self.rdU(1), l+1)
        self.bar(f"A2{l}")
        self.c(f"==== A round {l} phase 3 ====")
        self.light2("V", l+2, self.rdU(2) + self.rdU(3), l+1)
        if l == L-2: self.final_addr()
        self.wlg0()
        self.adv(back)
        self.bar(f"A3{l}")
        if back: self.a(f"s_cbranch_scc1 {back}")

    def progB(self):
        self.lab("L_progB")
        d = [f for g in range(4) for f in self.dma("U", 0, g, "DDDD")]
        rv = [f for g in range(4) for f in self.rdV(g)]
        nu = self.opts.get("u0pre", 4)
        bc = self.opts.get("bclr", 1)
        if bc == 0: self.clr(0); self.clr(1)
        self.run(d[:nu])
        self.wvm("V0"); self.stamp("v0l")
        self.bar("b0")
        self.run(d[nu:8])
        if bc == 1: self.clr(0); self.clr(1)
        self.xproc()
        for k in range(4):
            self.run(rv[4*k:4*k+4]); self.run(d[8+2*k:10+2*k])
        self.biasproc()
        self.wvm("clr")
        self.bar("b1")
        self.prio(2)
        self.g1_phase(0, extra=self.rdU(0) + self.rdU(1))
        self.prio(0)
        self.wvm("U0b")
        self.bar("b1x")
        self.mix(self.dma("V", 1, 2) + self.dma("V", 1, 3), self.rdU(2) + self.rdU(3))
        self.bar("b2"); self.stamp("rtb2")
        self.a(f"s_mov_b32 s{sLOFF}, 131072")
        self.rounds(self.roundB)
    def roundB(self, l, back):
        last = l == L-1
        self.c(f"==== B round {l} phase 0 ====")
        if not last:
            n0 = len(self.vm)
            self.light1("U", l+1, self.rdV(0) + self.rdV(1), l)
            self.a(f"s_waitcnt vmcnt({len(self.vm) - n0})"); self.vmdone = max(self.vmdone, n0)
            self.bar(f"B0{l}")
            self.c(f"==== B round {l} phase 1 ====")
            self.light2("U", l+1, self.rdV(2) + self.rdV(3), l)
        else:
            if not self.opts.get("lastpoll", 0): self.poll(l)
            if self.opts.get("lastpoll", 0) < 2: self.bias_rd(l)
            self.check_post(l, [])
        self.bar(f"B1{l}")
        self.c(f"==== B round {l} phase 2: G2 ====")
        self.prio(2)
        if last:
            self.g2_phase(l); self.final_store(); return
        self.g2_phase(l, mid=self.rdU(0), late=self.rdU(1))
        self.wvm(f"U{l+1}b")
        self.bar(f"B2{l}")
        self.c(f"==== B round {l} phase 3: G1 ====")
        self.g1_phase(l+1, extra=self.rdU(2) + self.rdU(3))
        if l == L-2: self.final_addr()
        self.prio(0)
        self.wlg0()
        self.adv(back)
        if l == L-2 and self.opts.get("lastpoll", 0) == 2: self.bias_rd(l+1)
        if l == L-2 and self.opts.get("lastpoll", 0): self.poll(l+1)
        self.bar(f"B3{l}")
        if back: self.a(f"s_cbranch_scc1 {back}")

    def final_addr(self):
        a = self.a; t = [RX, RX+1, RX+2]
        a(f"v_and_b32 v{t[0]}, 15, v{vLANE}"); a(f"v_lshrrev_b32 v{t[1]}, 4, v{vLANE}")
        a(f"v_and_b32 v{t[2]}, 7, v{t[0]}"); a(f"v_xor_b32 v{t[2]}, v{t[2]}, v{t[1]}"); a(f"v_lshlrev_b32 v{t[2]}, 4, v{t[2]}")
        a(f"v_lshl_add_u32 v{t[2]}, v{t[0]}, 7, v{t[2]}")
        a(f"v_and_b32 v{vT[0]}, 0xfffff800, v{vXW}"); a(f"v_add_u32 v{vT[0]}, v{vT[0]}, v{t[2]}"); a(f"v_xor_b32 v{vT[1]}, 64, v{vT[0]}")
        a(f"v_lshrrev_b32 v{t[0]}, 3, v{vLANE}"); a(f"v_xor_b32 v{t[1]}, v{t[0]}, v{vLANE}"); a(f"v_and_b32 v{t[1]}, 7, v{t[1]}")
        a(f"v_lshlrev_b32 v{t[1]}, 4, v{t[1]}")
        a(f"v_and_b32 v{t[2]}, 4, v{t[0]}"); a(f"v_add_u32 v{t[0]}, v{t[0]}, v{t[2]}")
        a(f"v_lshl_add_u32 v{vT[2]}, v{t[0]}, 10, v{t[1]}")

    def final_store(self, bar=False):
        a = self.a; D = XF
        for m in range(2):
            self.lgop(f"ds_read_b128 {vr(D+4*m,4)}, v{vXW} offset:{m*1024}", f"fo{m}")
        fl = self.opts.get("outflags", "") if self.X else self.opts.get("outflagsA", self.opts.get("outflags", ""))
        for m in range(2):
            a(f"s_add_u32 s{sT[m]}, s{sT[7]}, {m*16384}")
            self.wlg(f"fo{m}")
            self.vmop(f"buffer_store_dwordx4 {vr(D+4*m,4)}, v{vT[2]}, {sr(sO,4)}, s{sT[m]} offen {fl}", "out")
        if bar and self.opts.get("junk"):
            for m in range(4):
                a(f"s_add_u32 s{sT[2]}, s{sMY[0]}, {m*4096 if m < 2 else 16384 + (m-2)*4096}")
                a(f"buffer_store_dwordx4 {vr(D,4)}, v{vE}, {sr(sW,4)}, s{sT[2]} offen")
        if bar: a("s_barrier")
        if self.opts.get("stag"):
            u = self.X
            a("s_waitcnt vmcnt(0)")
            a(f"s_add_u32 s4, s{sKA+12}, 0x700000"); a(f"s_addc_u32 s5, s{sKA+13}, 0")
            a("s_load_dwordx8 s[84:91], s[4:5], 0"); a("s_memrealtime s[94:95]"); a("s_waitcnt lgkmcnt(0)")
            a("s_mov_b32 s92, 0")
            for i in range(8):
                a(f"s_sub_u32 s93, s{sSTAMP}, s{84+i}"); a("s_cmp_lt_u32 s93, 3000"); a("s_cselect_b32 s93, s93, 0"); a("s_max_u32 s92, s92, s93")
            a(f"s_mul_i32 s92, s92, {self.opts['stag'] - 1}")
            self.lab(f"L_echo{u}")
            a("s_sleep 1"); a("s_memrealtime s[96:97]"); a("s_waitcnt lgkmcnt(0)"); a("s_sub_u32 s93, s96, s94")
            a("s_cmp_lt_u32 s93, s92"); a(f"s_cbranch_scc1 L_echo{u}")
        elif self.opts.get("rtecho"):
            u = self.X
            a("s_waitcnt vmcnt(0)"); self.stamp("rt1")
            a("s_memrealtime s[90:91]"); a("s_waitcnt lgkmcnt(0)")
            a(f"s_sub_u32 s92, s{sSTAMP+2}, s{sSTAMP}"); a(f"s_mul_i32 s92, s92, {self.opts['rtecho'] - 1}")
            self.lab(f"L_echo{u}")
            a("s_sleep 1"); a("s_memrealtime s[94:95]"); a("s_waitcnt lgkmcnt(0)"); a("s_sub_u32 s93, s94, s90")
            a("s_cmp_lt_u32 s93, s92"); a(f"s_cbranch_scc1 L_echo{u}")
        elif self.opts.get("echo"):
            u = self.X
            a("s_waitcnt vmcnt(0)"); self.stamp("fin")
            a("s_memtime s[90:91]"); a("s_waitcnt lgkmcnt(0)")
            a(f"s_sub_u32 s92, s{sSTAMP+2}, s{sSTAMP}")
            self.lab(f"L_echo{u}")
            a("s_sleep 1"); a("s_memtime s[94:95]"); a("s_waitcnt lgkmcnt(0)"); a("s_sub_u32 s93, s94, s90")
            a("s_cmp_lt_u32 s93, s92"); a(f"s_cbranch_scc1 L_echo{u}")
        elif self.prof:
            a("s_waitcnt vmcnt(0)")
            self.stamp("fin"); self.stamp("rt1")
            a("s_waitcnt lgkmcnt(0)")
            a(f"v_mov_b32 v{RX}, 0")
            for i in range(len(self.prof)): a(f"v_writelane_b32 v{RX}, s{sSTAMP+2*i}, {i}")
            a(f"s_lshl_b32 s{sT[0]}, s2, 3"); a(f"s_add_u32 s{sT[0]}, s{sT[0]}, s{sWV}"); a(f"s_lshl_b32 s{sT[0]}, s{sT[0]}, 8")
            a(f"s_add_u32 s{sT[0]}, s{sT[0]}, {6<<20}")
            a(f"v_lshlrev_b32 v{vT[0]}, 2, v{vLANE}")
            a(f"buffer_store_dword v{RX}, v{vT[0]}, {sr(sW,4)}, s{sT[0]} offen")
        if "modedelay" in self.opts:
            a(f"s_cmp_lg_u32 s{sMODE}, {self.opts['modedelay']}"); a(f"s_cbranch_scc1 L_md{self.X}")
            for i in range(5): a("s_sleep 125")
            self.lab(f"L_md{self.X}")
        if "retrydelay" in self.opts:
            self.lab(f"L_rd{self.X}")
            a("s_cmp_eq_u32 s96, 0"); a(f"s_cbranch_scc1 L_re{self.X}"); a("s_sleep 32"); a("s_sub_u32 s96, s96, 1"); a(f"s_branch L_rd{self.X}")
            self.lab(f"L_re{self.X}")
        for i in range(self.opts.get("delay", 0)): a("s_sleep 125")
        a("s_endpgm")

    def handshake(self):
        a = self.a; x = self.x; P = XF; u = self.X
        self.c("handshake: the partner's inbox is cleared; does it share this XCD?")
        a(f"s_mov_b32 s{sCNT}, 0"); a(f"s_mov_b32 s{sMODE}, 1")
        msk = 0x3f if u else 0x1f
        a(f"s_or_b32 s{sT[6]}, s{sXCC}, {32 if u else 0}")
        if u == 0 and not self.opts.get("flagvm", 1):
            a("s_waitcnt lgkmcnt(0)"); self.lgdone = len(self.lg)
            a(f"s_lshr_b32 s{sT[0]}, s{sT[1]}, s{sT[3]}")
        else:
            self.wvm("flag"); a(f"v_readfirstlane_b32 s{sT[0]}, v{vT[1]}")
        a(f"s_and_b32 s{sT[0]}, s{sT[0]}, {msk}")
        a(f"s_cmp_eq_u32 s{sT[0]}, s{sT[6]}"); a(f"s_cbranch_scc0 L_hs_fast{u}")
        self.lab(f"L_hs_done{u}")
        self.rec("hscnt", f"s{sCNT}"); self.rec("mode", f"s{sMODE}")
        self.xl(f"L_hs_fast{u}")
        x(f"buffer_load_ubyte v{vT[1]}, v{vT[2]}, {sr(sD,4)}, 0 offen sc1")
        x("s_waitcnt vmcnt(0)")
        x(f"v_readfirstlane_b32 s{sT[0]}, v{vT[1]}")
        x(f"s_and_b32 s{sT[0]}, s{sT[0]}, {msk}"); x(f"s_cmp_eq_u32 s{sT[0]}, s{sT[6]}"); x(f"s_cbranch_scc1 L_hs_done{u}")
        x("s_sleep 1"); x(f"s_add_u32 s{sCNT}, s{sCNT}, 1"); x(f"s_cmp_lt_u32 s{sCNT}, {self.opts.get('fastpolls', 24)}"); x(f"s_cbranch_scc1 L_hs_fast{u}")
        for r in range(4): x(f"v_mov_b32 v{P+4+r}, 0")
        for sl in range(2):
            x(f"buffer_store_dwordx4 {vr(P+4,4)}, v{vE}, {sr(sW,4)}, s{sMY[sl]} offen sc1")
        x(f"s_lshl_b32 s{sT[1]}, s2, 3"); x(f"s_add_u32 s{sT[1]}, s{sT[1]}, s{sWV}"); x(f"s_lshl_b32 s{sT[1]}, s{sT[1]}, 7")
        x(f"s_add_u32 s{sT[1]}, s{sT[1]}, {4<<20}")
        x(f"s_xor_b32 s{sT[2]}, s{sT[1]}, {8*8*128}")
        x(f"v_mov_b32 v{P+2}, 0")
        x("s_mov_b64 exec, 1")
        x(f"buffer_load_dwordx4 {vr(P+8,4)}, v{P+2}, {sr(sW,4)}, s{sT[2]} offen sc1")
        x("s_waitcnt vmcnt(0)")
        x(f"v_readfirstlane_b32 s{sT[3]}, v{P+10}")
        x(f"s_add_u32 s{sT[3]}, s{sT[3]}, 1")
        x(f"v_mov_b32 v{P+3}, s{sT[3]}")
        x(f"buffer_store_dword v{P+3}, v{P+2}, {sr(sW,4)}, s{sT[1]} offen sc1")
        x("s_waitcnt vmcnt(0)")
        x(f"s_mov_b32 s{sCNT}, 0")
        self.xl(f"L_hs_slow{u}")
        x(f"buffer_load_ubyte v{vT[1]}, v{vT[2]}, {sr(sD,4)}, 0 offen sc1")
        x(f"buffer_load_dwordx4 {vr(P+8,4)}, v{P+2}, {sr(sW,4)}, s{sT[2]} offen sc1")
        x("s_waitcnt vmcnt(0)")
        x(f"v_readfirstlane_b32 s{sT[0]}, v{vT[1]}")
        x(f"v_readfirstlane_b32 s{sT[5]}, v{P+8}")
        x(f"v_readfirstlane_b32 s{sT[4]}, v{P+10}")
        x(f"v_readfirstlane_b32 s{sMODE}, v{P+11}")
        x(f"s_and_b32 s{sT[0]}, s{sT[0]}, {msk}"); x(f"s_cmp_eq_u32 s{sT[0]}, s{sT[6]}"); x(f"s_cbranch_scc1 L_hs_same{u}")
        x(f"s_cmp_eq_u32 s{sCNT}, 0"); x(f"s_cbranch_scc1 L_hs_ans{u}")
        x(f"s_cmp_eq_u32 s{sT[5]}, s{sPTMP2}"); x(f"s_cbranch_scc1 L_hs_noans{u}")
        self.xl(f"L_hs_ans{u}")
        x(f"s_mov_b32 s{sPTMP2}, s{sT[5]}")
        x(f"v_mov_b32 v{P+12}, s{sT[5]}"); x(f"v_mov_b32 v{P+13}, s{sXCC}")
        x(f"buffer_store_dwordx2 {vr(P+12,2)}, v{P+2}, {sr(sW,4)}, s{sT[1]} offen offset:8 sc1")
        self.xl(f"L_hs_noans{u}")
        x("s_sleep 4")
        x(f"s_add_u32 s{sCNT}, s{sCNT}, 1"); x(f"s_cmp_gt_u32 s{sCNT}, 0x200000"); x(f"s_cbranch_scc1 L_hs_same{u}")
        x(f"s_cmp_eq_u32 s{sT[4]}, s{sT[3]}"); x(f"s_cbranch_scc0 L_hs_slow{u}")
        x(f"s_cmp_eq_u32 s{sMODE}, s{sXCC}"); x(f"s_cbranch_scc1 L_hs_same{u}")
        x(f"s_mov_b32 s{sMODE}, 0")
        x(f"s_mov_b32 s{sE}, s{sKA+12}"); x(f"s_mov_b32 s{sE+1}, s{sKA+13}")
        x("s_mov_b64 exec, -1")
        x(f"s_branch L_hs_done{u}")
        self.xl(f"L_hs_same{u}")
        x(f"s_mov_b32 s{sMODE}, 1")
        x("s_mov_b64 exec, -1")
        x(f"s_branch L_hs_done{u}")

    def build(self):
        hdr = [f"; @launch grid=(256,1,1) block=(512,1,1) lds={LDS_BYTES}",
               '.amdgcn_target "amdgcn-amd-amdhsa--gfx950"', ".text", f".globl {KN}", ".p2align 8",
               f".type {KN},@function", f"{KN}:"]
        self.prologue()
        A = self.fork(0); A.progA()
        B = self.fork(1); B.progB()
        nb = lambda g: sum(1 for s in g.o if s.strip() == "s_barrier")
        assert nb(A) == nb(B), (nb(A), nb(B))
        assert NV + NA <= 256
        ftr = [f".set CODE_BYTES, L_end - {KN}", '.section .rodata,"a"', ".p2align 6", f".amdhsa_kernel {KN}",
               f"  .amdhsa_next_free_vgpr {NV+NA}", "  .amdhsa_next_free_sgpr 102", f"  .amdhsa_accum_offset {NV}",
               "  .amdhsa_group_segment_fixed_size 0", "  .amdhsa_kernarg_size 56", "  .amdhsa_user_sgpr_count 2",
               "  .amdhsa_user_sgpr_kernarg_segment_ptr 1", "  .amdhsa_system_sgpr_workgroup_id_x 1",
               "  .amdhsa_float_denorm_mode_32 3", ".end_amdhsa_kernel"]
        log = []
        m1, n1 = fix_hazards(self.o + A.o, log)
        m2, n2 = fix_hazards(B.o, log)
        ool, n3 = fix_hazards(self.ool)
        wrap = lambda ls: "\n".join(hdr + ls + ool + ftr) + "\n"
        sp = self.opts.get("pad", 0)
        if sp:
            from asmlib import sizes, parse
            def padded(lines, x, start, lim):
                dummy = [f"L_pad{a}_{b}:" for a in range(2) for b in range(4)]
                others = m2 if x == 0 else m1
                sz = iter(sizes(wrap([l for l in lines + others if not l.strip().startswith(".p2align")] + dummy + ["L_end:", "    s_endpgm"])))
                out = []; pos = []; acc = sp; on = not start; tot = 0
                for l in lines:
                    if start and start in l: on = True
                    if parse(l) is not None:
                        b = next(sz)
                        if on and acc >= sp and tot < lim:
                            pos.append(len(out)); out.append(None); acc = 4
                        acc += b
                        if on: tot += b
                    out.append(l)
                res = []; n = len(pos); k = 0
                for l in out:
                    if l is None:
                        res.append(f"L_pad{x}_{k}:"); res.append(f"    s_cbranch_execz " + (f"L_pad{x}_{k+4}" if k + 4 < n else "L_warm_done")); k += 1
                    else: res.append(l)
                return res
            lim = self.opts.get("padlim", 4000)
            m1, m2 = padded(m1, 0, "PADSTART", lim), padded(m2, 1, None, lim)
        main = m1 + m2 + ["L_end:", "    s_endpgm"]
        if self.opts.get("align", 1):
            main, nw, nn = align(main, wrap, self.opts.get("minrun", 99))
            sys.stderr.write(f"hazard nops {n1}+{n2}+{n3}, widened {nw}, align nops {nn}\n")
        if self.opts.get("hlog"):
            for e in log: sys.stderr.write(str(e) + "\n")
        return wrap(main)

if __name__ == "__main__":
    prof = None; opts = {}
    for x in sys.argv[1:]:
        if x.startswith("--prof="): prof = x[7:].split(",")
        elif x.startswith("--"):
            k, v = x[2:].split("="); opts[k] = int(v) if v.lstrip("-").isdigit() else v
    out = [x for x in sys.argv[1:] if not x.startswith("--")][0]
    g = Gen(prof, opts); txt = g.build()
    if prof: txt = txt + "; stamps: " + ",".join(prof) + "\n"
    open(out, "w").write(txt)
```

```python
import sys, copy
from asmlib import fix_hazards, align
KN = "standalone__cross_network_dcn_v2__recsys_kernel"
L = 6
XB = 131072; HB = 147456; BIASB = 155648; LDS_BYTES = 161792
TAGS = [1, 1, 0, 0, 1, 1]

vLANE = 1; vA = [2, 21]; vE = 3; vV = [4, 5, 6, 7]; vU = [8, 9, 10, 11]
vXW = 12; vXR = [None, 13, 14, 15]; vHW = 16; vHR = [None, 17, 18, 19]
vBI = 20; vT = [22, 23, 24, 25]; vJ = 0
ACC1 = 26; ACC2 = 34; XF = 50; X0F = 66; PK = 82; HP = 90; RX = 94; TM = ACC2; SP = HP; T4 = 98; vPF = 102
NV = 104
aV = 0; aU = 64; aX = 128; aH = 128; aS = 128; NS = 6; NA = 152
sX0 = 4; sV = 8; sU = 12; sO = 16; sE = 20; sD = 24; sB = 28; sW = 32
sKA = 36
sWV = 50; sHF = 51; sRB = 52; sXCC = 53; sMODE = 54
sVG = [55, 56, 57, 58]; sUG = [59, 60, 61, 62]; sSO = [63, 64]; sLB = 65
sMY = [66, 67]; sWS = 68; sXH = 69
sLOFF = 4; sSL = 5; sTS = 6; sTAG = 7; sIT = 3
sCNT = 70; sT = [71, 72, 73, 74, 75, 76, 77, 78]; sPTMP = 79; sPTMP2 = 51
sSTAMP = 80

def vr(b, n): return f"v[{b}:{b+n-1}]"
def ar(b, n): return f"a[{b}:{b+n-1}]"
def sr(b, n): return f"s[{b}:{b+n-1}]"

class Gen:
    def __init__(self, prof=None, opts=None):
        self.o = []; self.ool = []; self.vm = []; self.lg = []; self.vmdone = 0; self.lgdone = 0
        self.prof = prof; self.opts = opts or {}; self.names = []
        self.pw = []; self.nso = 0; self.nst = 0; self.X = 0; self.dyn = False; self.emit_ool = True
        self.pat = self.opts.get("pat", "BBBB/DDDD/DDDD/DDDB"); self.lag = self.opts.get("lag", 4)
    def fork(self, X):
        g = copy.copy(self); g.o = []; g.vm = [(t[1] if isinstance(t, tuple) else t) for t in self.vm if not isinstance(t, tuple) or t[0] == X]; g.lg = list(self.lg); g.pw = list(self.pw); g.X = X
        return g
    def a(self, s): self.o.append("    " + s)
    def x(self, s):
        if self.emit_ool: self.ool.append("    " + s)
    def xl(self, s):
        if self.emit_ool: self.ool.append(s + ":")
    def lab(self, s): self.o.append(s + ":")
    def c(self, s): self.o.append("    ; " + s)
    def vmop(self, s, tag): self.vm.append(tag); self.a(s)
    def lgop(self, s, tag): self.lg.append(tag); self.a(s)
    def _last(self, lst, tag):
        idx = [i for i, t in enumerate(lst) if t == tag]
        return idx[-1] if idx else None
    def wvm(self, tag):
        i = self._last(self.vm, tag)
        if i is not None: self.wvmi(i)
    def wvmi(self, i):
        if i < self.vmdone: return
        n = min(len(self.vm) - 1 - i, 63); self.vmdone = len(self.vm) - n
        self.a(f"s_waitcnt vmcnt({n})")
    def wlg(self, tag):
        i = self._last(self.lg, tag)
        if i is None or i < self.lgdone: return
        n = min(len(self.lg) - 1 - i, 15); self.lgdone = len(self.lg) - n
        self.a(f"s_waitcnt lgkmcnt({n})")
    def wlg0(self):
        if self.lgdone < len(self.lg): self.lgdone = len(self.lg); self.a("s_waitcnt lgkmcnt(0)")
    def bar(self, name=None):
        self.wlg0()
        if name: self.stamp(name + "a")
        self.a("s_barrier")
        if name: self.stamp(name + "b")
        self.jit()
    def jit(self):
        if "jitter" not in self.opts: return
        import random
        Gen.nj = getattr(Gen, "nj", 0) + 1
        r = random.Random(self.opts["jitter"] * 1000 + Gen.nj)
        for q in range(2):
            w = r.randrange(8); n = r.choice([2, 5, 12, 30]); lab = f"L_j{Gen.nj}_{q}"
            self.a("s_mov_b32 s97, scc"); self.a(f"s_and_b32 s96, s2, 3"); self.a(f"s_add_u32 s96, s96, s{sWV}"); self.a("s_and_b32 s96, s96, 7")
            self.a(f"s_cmp_lg_u32 s96, {w}"); self.a(f"s_cbranch_scc1 {lab}"); self.a(f"s_sleep {n}"); self.lab(lab)
            self.a("s_cmp_lg_u32 s97, 0")
    def stamp(self, name):
        nm = name + "AB"[self.X] if False else name
        if self.prof and nm in self.prof:
            r = sSTAMP + 2 * self.prof.index(nm)
            assert r + 1 <= 101
            self.a(f"s_memrealtime s[{r}:{r+1}]" if nm.startswith("rt") else f"s_memtime s[{r}:{r+1}]")
    def rec(self, name, src):
        if self.prof and name in self.prof:
            self.a(f"s_mov_b32 s{sSTAMP + 2*self.prof.index(name)}, {src}")
    def prio(self, p):
        m = self.opts.get("prio", 1)
        if m == 1: self.a(f"s_setprio {p}")
        if m == 2: self.a(f"s_setprio {2-p}")
    def dma(self, kind, l, g, pat=None):
        if l >= L: return []
        if self.opts.get("dma") == "off" and l >= 2: return []
        pat = pat or self.pat.split("/")[g]
        so = sSO[self.nso & 1]; self.nso += 1
        base, sg, vv, srd = (0, sVG, vV, sV) if kind == "V" else (16384, sUG, vU, sU)
        tag = f"{kind}{l}" + "ab"[g >> 1]
        items = []
        for j in range(4):
            def emit(j=j):
                while self.pw and len(self.vm) - self.pw[0][0] > self.lag: self.pw.pop(0)[1]()
                if j == 0:
                    self.a(f"s_add_u32 m0, s{sLB}, {base+g*4096}"); self.a(f"s_add_u32 s{so}, s{sg[g]}, s{sLOFF}" if self.dyn else f"s_add_u32 s{so}, s{sg[g]}, {l*131072}")
                if pat[j % len(pat)] in "DBCW":
                    self.vmop(f"buffer_load_dwordx4 v{vv[j]}, {sr(srd,4)}, s{so} offen offset:{1024*j} lds", tag)
                    for q in range({"D": 0, "B": 1, "C": 2, "W": 0}[pat[j % len(pat)]]): self.vmop(f"buffer_load_dword v{vJ}, off, {sr(sB,4)}, 0", "gap")
                    if pat[j % len(pat)] == "W": self.vmop(f"buffer_load_dwordx4 {vr(T4,4)}, v{vE}, {sr(sB,4)}, 0 offen", "gap")
            items.append(emit)
        return items
    def flush(self, keep3=False):
        while self.pw and not (keep3 and self.pw[0][2] == 3): self.pw.pop(0)[1]()
    def rdV(self, g):
        return [lambda j=j: self.lgop(f"ds_read_b128 {ar(aV+4*(4*g+j),4)}, v{vA[j>>1]} offset:{g*4096+(j&1)*2048}", f"rV{g}_{j>>1}") for j in range(4)]
    def rdU(self, g):
        return [lambda j=j: self.lgop(f"ds_read_b128 {ar(aU+4*(4*g+j),4)}, v{vA[j>>1]} offset:{16384+g*4096+(j&1)*2048}", f"rU{g}") for j in range(4)]
    def mf1(self, ks, fill=None):
        for ta in range(2):
            b = vr(PK + 4*ks, 4) if ks < 2 else ar(aX + 4*(ks-2), 4)
            d = vr(ACC1 + 4*ta, 4)
            self.a(f"v_mfma_f32_16x16x32_bf16 {d}, {ar(aV+4*(2*ks+ta),4)}, {b}, {'0' if ks == 0 else d}")
            if fill: self.run(fill[ta])
    def mf2(self, P, kr, fill=None):
        for ta in range(2):
            b = vr(HP, 4) if kr == 0 else ar(aH + 4*(kr-1), 4)
            d = vr(ACC2 + 8*P + 4*ta, 4)
            idx = ((kr >> 1)*2 + P)*4 + (kr & 1)*2 + ta
            self.a(f"v_mfma_f32_16x16x32_bf16 {d}, {ar(aU+4*idx,4)}, {b}, {d}")
            if fill: self.run(fill[ta])
    def epi(self, P, l, pk=False):
        r = []
        if pk:
            for e in range(4):
                q = 8*P + 2*e
                r.append(lambda q=q: self.a(f"v_pk_fma_f32 {vr(ACC2+q,2)}, {vr(X0F+q,2)}, {vr(ACC2+q,2)}, {vr(XF+q,2)}"))
        else:
            for e in range(8):
                q = 8*P + e
                r.append(lambda q=q: self.a(f"v_fma_f32 v{ACC2+q}, v{X0F+q}, v{ACC2+q}, v{XF+q}"))
        for e in range(4):
            q = 8*P + 2*e
            r.append(lambda q=q: self.a(f"v_cvt_pk_bf16_f32 v{PK+q//2}, v{ACC2+q}, v{ACC2+q+1}"))
        if l < L-1: r.append(lambda: self.lgop(f"ds_write_b128 v{vXW}, {vr(PK+4*P,4)} offset:{P*1024}", "xw"))
        else: r.append(lambda: self.lgop(f"ds_write_b128 v{vT[P]}, {vr(PK+4*P,4)}", "xw"))
        return r
    def unpack(self, dst, src, n):
        r = []
        for i in range(n):
            r.append(lambda i=i: self.a(f"v_lshlrev_b32 v{dst+2*i}, 16, v{src+i}"))
            r.append(lambda i=i: self.a(f"v_and_b32 v{dst+2*i+1}, 0xffff0000, v{src+i}"))
        return r
    def bias_rd(self, l):
        for k in range(4):
            self.lgop(f"ds_read_b128 {vr(ACC2+4*k,4)}, v{vBI} offset:{(0 if self.dyn else l*256) + (k>>1)*128 + (k&1)*16}", "bias")
    def run(self, lst):
        for f in lst: f()
    def mix(self, *lists):
        lists = [list(x) for x in lists]
        while any(lists):
            for x in lists:
                if x: x.pop(0)()
    def srd(self, r, p, n, bias=0):
        if bias:
            self.a(f"s_sub_u32 s{r}, s{p}, {bias}"); self.a(f"s_subb_u32 s{r+1}, s{p+1}, 0")
        else:
            self.a(f"s_mov_b32 s{r}, s{p}"); self.a(f"s_mov_b32 s{r+1}, s{p+1}")
        self.a(f"s_mov_b32 s{r+2}, {n+bias}"); self.a(f"s_mov_b32 s{r+3}, 0x20000")
    def poll(self, l):
        self.jit()
        self.vmop(f"buffer_load_dwordx4 {vr(RX,4)}, v{vE}, {sr(sE,4)}, s{sSL} offen sc1", f"poll{l}")
    def send(self, l, u=None, part=3):
        a = self.a; u = u if u is not None else f"{self.X}{l}"
        if part & 1:
            for k in range(4): a(f"v_cvt_pk_bf16_f32 v{SP+k}, v{ACC1+2*k}, v{ACC1+2*k+1}")
            for k in range(4): a(f"v_and_or_b32 v{SP+k}, v{SP+k}, -2, s{sTAG}")
        if not part & 2: return
        if l == 0: self.handshake()
        a(f"s_xor_b32 s{sPTMP}, s{sSL}, 512")
        self.jit()
        self.stamp(f"snd{u}")
        a(f"s_cmp_eq_u32 s{sMODE}, 0"); a(f"s_cbranch_scc1 L_ss{u}")
        self.vmop(f"buffer_store_dwordx4 {vr(SP,4)}, v{vE}, {sr(sE,4)}, s{sPTMP} offen {self.opts.get('sendf', '')}", "st")
        self.lab(f"L_sd{u}")
        self.xl(f"L_ss{u}")
        self.x(f"buffer_store_dwordx4 {vr(SP,4)}, v{vE}, {sr(sE,4)}, s{sPTMP} offen sc1")
        self.x("s_nop 1"); self.x(f"s_branch L_sd{u}")
    def chk_ops(self, l):
        R = RX; t0 = vT[3]
        return [f"v_xor_b32 v{t0}, s{sTAG}, v{R}"] + [f"v_bitop3_b32 v{t0}, v{R+k}, v{t0}, s{sTAG} bitop3:0xde" for k in (1, 2, 3)] + \
               [f"v_and_b32 v{t0}, 1, v{t0}", f"v_cmp_ne_u32 vcc, 0, v{t0}"]
    def next_msg(self):
        if not self.opts.get("one"): self.a(f"s_xor_b32 s{sSL}, s{sSL}, 16384")
        self.a(f"s_lshr_b32 s{sTS}, s{sTS}, 1"); self.a(f"s_and_b32 s{sTAG}, s{sTS}, 1")
    def check_post(self, l, d=None):
        u = f"{self.X}{l}"; x = self.x; a = self.a
        self.wvm(f"poll{l}")
        self.stamp(f"chk{u}")
        if self.opts.get("dbgcnt"): a(f"s_mov_b32 s{sCNT}, 0")
        for s in self.chk_ops(l): a(s)
        a(f"s_cbranch_vccnz L_rt{u}")
        self.lab(f"L_got{u}")
        self.stamp(f"got{u}")
        if self.opts.get("dbgcnt"): self.rec(f"cnt{l}", f"s{sCNT}")
        self.xl(f"L_rt{u}")
        x(f"s_mov_b32 s{sCNT}, 0")
        self.xl(f"L_rl{u}")
        x(f"buffer_load_dwordx4 {vr(RX,4)}, v{vE}, {sr(sE,4)}, s{sSL} offen sc1")
        if "retrydelay" in self.opts: x("s_add_u32 s96, s96, 1")
        x(f"s_add_u32 s{sCNT}, s{sCNT}, 1"); x(f"s_cmp_gt_u32 s{sCNT}, 0x200000")
        x("s_waitcnt vmcnt(0)")
        x(f"s_cbranch_scc1 L_got{u}")
        for s in self.chk_ops(l): x(s)
        x(f"s_cbranch_vccz L_got{u}")
        x("s_sleep 1")
        x(f"s_branch L_rl{u}")
        ops = []
        for h in range(2):
            ops += self.unpack(T4, RX+2*h, 2)
            if self.opts.get("pkadd", 0):
                for k in range(2): ops.append(lambda k=k, h=h: a(f"v_pk_add_f32 {vr(T4+2*k,2)}, {vr(T4+2*k,2)}, {vr(ACC1+4*h+2*k,2)}"))
            else:
                for k in range(4): ops.append(lambda k=k, h=h: a(f"v_add_f32 v{T4+k}, v{T4+k}, v{ACC1+4*h+k}"))
            for k in range(2): ops.append(lambda k=k, h=h: a(f"v_cvt_pk_bf16_f32 v{HP+2*h+k}, v{T4+2*k}, v{T4+2*k+1}"))
        ops.append(lambda: self.lgop(f"ds_write_b128 v{vHW}, {vr(HP,4)}", "hw"))
        ops.append(self.next_msg)
        if d is None:
            self.run(ops); self.bias_rd(l); return
        d = list(d); st = self.opts.get("vper", 10)
        while ops:
            self.run(ops[:st]); ops = ops[st:]
            if ops and d: d.pop(0)()
        self.run(d)
    def x_reads(self):
        return [lambda ks=ks: self.lgop(f"ds_read_b128 {ar(aX+4*(ks-2),4)}, v{vXR[ks>>1]} offset:{(ks&1)*1024}", f"x{ks}") for ks in range(2, 8)]
    def h_reads(self):
        for kr in range(1, 4):
            self.lgop(f"ds_read_b128 {ar(aH+4*(kr-1),4)}, v{vHR[kr]}", f"h{kr}")

    def g2_phase(self, l, early=None, mid=None, late=None):
        early = list(early or []); mid = list(mid or []); late = list(late or [])
        def take(q): return [q[0:1], q[1:2]]
        self.h_reads()
        self.mf2(0, 0, take(early)); self.mf2(1, 0, take(early[2:]))
        self.wlg("h1"); self.mf2(0, 1, take(early[4:]))
        self.wlg("h2"); self.mf2(0, 2, take(early[6:] + mid))
        self.wlg("h3"); self.mf2(0, 3, take(mid[2:]))
        self.flush()
        e0 = self.epi(0, l); e1 = self.epi(1, l, pk=self.opts.get("pkfma", 1))
        u = f"{self.X}{l}"
        self.stamp(f"g2a{u}")
        if self.opts.get("e0mix", 0):
            self.mf2(1, 1, [[], late[0:4]])
            self.mf2(1, 2, [[], e0[0:3]])
            self.stamp(f"g2b{u}")
            self.mf2(1, 3, [e0[3:6], e0[6:-1]])
        else:
            self.mf2(1, 1); self.mf2(1, 2, [late[0:2], late[2:4]])
            self.stamp(f"g2b{u}")
            self.mf2(1, 3, [e0[0:2], e0[2:-1]])
        self.stamp(f"g2c{u}")
        e0[-1]()
        self.stamp(f"g2d{u}")
        self.run(e1[:-1])
        self.stamp(f"g2e{u}")
        e1[-1]()
        self.stamp(f"g2f{u}")
    def g1_phase(self, l, jitV=False, extra=None):
        xr = self.x_reads(); extra = list(extra or [])
        if jitV:
            rv = self.rdV(2) + self.rdV(3)
            ev = self.opts.get("earlyv", 8)
            pre = (self.rdV(0) + self.rdV(1))[ev:]
            self.run(pre[:4]); self.run(xr[0:2]); self.run(pre[4:])
            q = [xr[2], rv[0], rv[1], xr[3], rv[2], rv[3], xr[4], rv[4], rv[5], xr[5], rv[6], rv[7]]
            for ks in range(8):
                self.wlg(f"rV{ks>>1}_{ks&1}")
                if ks >= 2: self.wlg(f"x{ks}")
                self.mf1(ks, [q[0:2], q[2:3]]); q = q[3:]
        else:
            self.run(xr)
            for ks in range(8):
                if ks >= 2: self.wlg(f"x{ks}")
                self.mf1(ks, [extra[0:1], extra[1:2]]); extra = extra[2:]
                if l == 0 and ks == self.opts.get("flagBat", 4) and not self.opts.get("lateb", 0): self.vmop(f"buffer_load_ubyte v{vT[1]}, v{vT[2]}, {sr(sD,4)}, 0 offen sc1", "flag")
            self.run(extra)
        if l == 0 and self.opts.get("lateb", 0): self.send(l, part=1); return
        self.send(l)
        self.run(self.unpack(XF, PK, 8))

    def prologue(self):
        a = self.a; T = [X0F + i for i in range(10)]
        a(f"s_load_dwordx8 {sr(sKA,8)}, s[0:1], 0")
        a(f"s_load_dwordx4 {sr(sKA+8,4)}, s[0:1], 32")
        a(f"s_load_dwordx2 {sr(sKA+12,2)}, s[0:1], 48")
        a("s_cmp_ge_u32 s2, 256"); a("s_cbranch_scc1 L_end")
        self.stamp("start"); self.stamp("rt0")
        a(f"v_lshrrev_b32 v{T[0]}, 6, v0"); a(f"v_and_b32 v{vLANE}, 63, v0")
        if self.opts.get("codepf", 1):
            a(f"s_getpc_b64 {sr(sX0,2)}"); a(f"v_lshlrev_b32 v{T[1]}, 7, v0"); a(f"s_and_b32 s{sX0}, s{sX0}, 0xffffff00")
            a(f"v_cmp_gt_u32 vcc, CODE_BYTES, v{T[1]}")
            a(f"s_and_saveexec_b64 {sr(sX0+2,2)}, vcc"); a("s_cbranch_execz L_nocpf")
            a(f"global_load_dword v{vJ}, v{T[1]}, {sr(sX0,2)}")
            self.lab("L_nocpf")
            a("s_mov_b64 exec, -1")
        a(f"v_readfirstlane_b32 s{sWV}, v{T[0]}")
        a(f"v_lshrrev_b32 v{T[6]}, 3, v{vLANE}"); a(f"v_and_b32 v{T[2]}, 6, v{T[6]}"); a(f"v_xor_b32 v{T[2]}, v{T[2]}, v{vLANE}")
        a(f"v_and_b32 v{T[2]}, 7, v{T[2]}"); a(f"v_lshlrev_b32 v{T[2]}, 4, v{T[2]}")
        a(f"v_and_b32 v{T[3]}, 4, v{T[6]}"); a(f"v_add_u32 v{T[1]}, v{T[6]}, v{T[3]}")
        a(f"v_lshl_add_u32 v{T[3]}, v{T[1]}, 10, v{T[2]}")
        voff = lambda j: ((j&1)*16 + (j>>1)*4)
        for j in range(2): a(f"v_add_u32 v{vV[j]}, {voff(j)*1024 - 1024*j + 3072}, v{T[3]}")
        a(f"s_and_b32 s{sT[0]}, s2, 0xf0"); a(f"s_lshl_b32 s{sT[0]}, s{sT[0]}, 14"); a(f"s_and_b32 s{sT[1]}, s2, 7"); a(f"s_lshl_b32 s{sT[1]}, s{sT[1]}, 15")
        a(f"s_and_b32 s{sT[2]}, s2, 8"); a(f"s_lshl_b32 s{sT[2]}, s{sT[2]}, 6")
        a(f"s_and_b32 s{sWS}, s{sWV}, 3"); a(f"s_lshr_b32 s{sXH}, s{sWV}, 2")
        a(f"s_or_b32 s{sT[0]}, s{sT[0]}, s{sT[1]}"); a(f"s_lshl_b32 s{sT[1]}, s{sXH}, 12"); a(f"s_or_b32 s{sT[1]}, s{sT[1]}, s{sT[2]}")
        a(f"s_or_b32 s{sT[4]}, s{sT[0]}, s{sT[1]}")
        a(f"s_lshl_b32 s{sT[3]}, s{sWS}, 7"); a(f"s_add_u32 s{sT[7]}, s{sT[4]}, s{sT[3]}")
        a(f"s_lshl1_add_u32 s{sT[5]}, s{sWS}, s{sXH}"); a(f"s_lshl_b32 s{sT[5]}, s{sT[5]}, 11"); a(f"s_add_u32 s{sT[5]}, s{sT[5]}, {XB}")
        a(f"s_lshr_b32 s{sT[0]}, s2, 3"); a(f"s_lshl3_add_u32 s{sT[0]}, s{sT[0]}, s{sWV}"); a(f"s_lshl_b32 s{sT[0]}, s{sT[0]}, 9")
        a(f"s_lshl2_add_u32 s{sT[1]}, s2, s{sWS}"); a(f"s_lshl_b32 s{sT[1]}, s{sT[1]}, 7"); a(f"s_sub_u32 s{sT[1]}, s{sT[1]}, {3*131072}")
        a(f"v_lshl_add_u32 v{T[8]}, v{vLANE}, 7, s{sT[0]}"); a(f"v_lshl_add_u32 v{T[9]}, v{vLANE}, 17, s{sT[1]}")
        mk = [int(m, 16) for m in str(self.opts.get("mk", "1ff,f,f,1ff")).split(",")]
        a(f"v_cmp_gt_u32 vcc, 4, v{vLANE}")
        a(f"s_cmp_eq_u32 s{sXH}, 0"); a(f"s_cselect_b32 s{sT[0]}, {mk[0]}, {mk[1]}"); a(f"s_cselect_b32 s{sT[1]}, {mk[2]}, {mk[3]}")
        a(f"v_cndmask_b32 v{vPF}, v{T[9]}, v{T[8]}, vcc")
        a("s_waitcnt lgkmcnt(0)")
        self.stamp("karg")
        def only(x, name, body):
            a(f"s_cmp_lg_u32 s{sXH}, {x}"); a(f"s_cbranch_scc1 {name}")
            n0 = len(self.vm); body()
            for k in range(n0, len(self.vm)): self.vm[k] = (x, self.vm[k])
            self.lab(name)
        def x0ld():
            a(f"s_mov_b32 m0, s{sT[5]}"); a("s_nop 0")
            self.vmop(f"buffer_load_dwordx4 v{vV[0]}, {sr(sX0,4)}, s{sT[7]} offen lds", "x0")
            self.vmop(f"buffer_load_dwordx4 v{vV[1]}, {sr(sX0,4)}, s{sT[7]} offen offset:1024 lds", "x0")
        self.srd(sX0, sKA+0, 4096*1024, 3072)
        only(0, "L_o1", x0ld)
        self.srd(sV, sKA+4, 6*131072, 3072)
        a("s_mov_b32 exec_hi, 0"); a(f"s_mov_b32 exec_lo, s{sT[0]}")
        self.vmop(f"buffer_load_dword v{vJ}, v{vPF}, {sr(sV,4)}, 0 offen offset:3072", "pf")
        self.srd(sU, sKA+2, 6*131072, 3072)
        a(f"s_mov_b32 exec_lo, s{sT[1]}")
        self.vmop(f"buffer_load_dword v{vJ}, v{vPF}, {sr(sU,4)}, 0 offen offset:3072", "pf")
        a("s_mov_b64 exec, -1")
        a(f"s_lshr_b32 s{sT[0]}, s{sWS}, 1"); a(f"s_lshl_b32 s{sT[0]}, s{sT[0]}, 13"); a(f"s_add_u32 s{sT[4]}, s{sT[4]}, s{sT[0]}")
        a(f"s_and_b32 s{sT[6]}, s{sWS}, 1"); a(f"s_lshl_b32 s{sT[0]}, s{sT[6]}, 11"); a(f"s_add_u32 s{sMY[0]}, s{sT[4]}, s{sT[0]}")
        a(f"v_lshrrev_b32 v{T[8]}, 5, v{vLANE}"); a(f"v_and_b32 v{vE}, 31, v{vLANE}"); a(f"v_lshlrev_b32 v{vE}, 4, v{vE}")
        a(f"v_lshl_add_u32 v{vE}, v{T[8]}, 10, v{vE}")
        for r in range(4): a(f"v_mov_b32 v{TM+r}, 0")
        self.srd(sO, sKA+8, 4096*1024)
        only(0, "L_o2", lambda: self.clr(0))
        a(f"v_and_b32 v{T[7]}, 7, v{vLANE}"); a(f"v_lshlrev_b32 v{T[9]}, 4, v{T[7]}"); a(f"v_lshl_add_u32 v{T[9]}, v{T[6]}, 10, v{T[9]}")
        a(f"s_mul_i32 s{sT[0]}, s{sXH}, 3072"); a(f"s_add_u32 s{sT[0]}, s{sT[0]}, s{sT[3]}"); a(f"s_add_u32 s{sT[0]}, s{sT[0]}, s{sT[2]}")
        a(f"v_mov_b32 v{vT[2]}, s2"); a(f"v_xor_b32 v{vT[2]}, 8, v{vT[2]}")
        self.srd(sB, sKA+6, 6*1024)
        self.srd(sD, sKA+10, 256)
        a("s_mov_b64 exec, 0xffffff")
        self.vmop(f"buffer_load_dwordx4 {vr(TM+4,4)}, v{T[9]}, {sr(sB,4)}, s{sT[0]} offen", "bias")
        a("s_mov_b64 exec, 1")
        self.vmop(f"buffer_load_ubyte v{vJ}, v{vT[2]}, {sr(sD,4)}, 0 offen", "touch")
        a("s_mov_b64 exec, -1")
        a(f"s_lshl_b32 s{sLB}, s{sWS}, 15"); a(f"s_add_u32 s{sT[0]}, s{sLB}, s{sT[2]}")
        for g in range(4):
            a(f"s_xor_b32 s{sT[4]}, s{sWS}, {g}"); a(f"s_lshl_b32 s{sT[4]}, s{sT[4]}, 7"); a(f"s_add_u32 s{sVG[g]}, s{sT[0]}, s{sT[4]}")
        for j in range(2, 4): a(f"v_add_u32 v{vV[j]}, {voff(j)*1024 - 1024*j + 3072}, v{T[3]}")
        a(f"s_lshl_b32 s{sT[4]}, s{sXH}, 13"); a(f"s_add_u32 s{sT[4]}, s{sT[4]}, s{sLB}")
        a(f"s_cmp_eq_u32 s{sXH}, 0")
        a(f"s_cselect_b32 s{sT[0]}, s{sVG[0]}, s{sVG[2]}"); a(f"s_cselect_b32 s{sT[1]}, s{sVG[1]}, s{sVG[3]}")
        self.stamp("i_x0")
        xb = self.opts.get("xbpos", 2)
        for k in range(2):
            if xb == k: only(1, "L_o3", x0ld)
            a(f"s_add_u32 m0, s{sT[4]}, {k*4096}"); a("s_nop 0")
            for j in range(4):
                self.vmop(f"buffer_load_dwordx4 v{vV[j]}, {sr(sV,4)}, s{sT[k]} offen offset:{1024*j} lds", "V0")
        if xb == 2: only(1, "L_o3", x0ld)
        self.stamp("i_v0a")
        a(f"s_add_u32 s{sMY[1]}, s{sMY[0]}, 16384")
        self.srd(sW, sKA+12, 8 << 20)
        self.srd(sE, sKA+8, 4096*1024)
        if self.opts.get("stag"):
            a(f"v_mov_b32 v{RX+2}, s{sSTAMP}"); a(f"s_lshl_b32 s90, s2, 2"); a("s_add_u32 s90, s90, 0x700000"); a(f"v_mov_b32 v{RX+3}, 0")
            a("s_mov_b64 exec, 1"); a(f"buffer_store_dword v{RX+2}, v{RX+3}, {sr(sW,4)}, s90 offen sc1"); a("s_mov_b64 exec, -1")
        a(f"s_getreg_b32 s{sXCC}, hwreg(HW_REG_XCC_ID)"); a(f"s_and_b32 s{sXCC}, s{sXCC}, 15"); a(f"s_or_b32 s{sXCC}, s{sXCC}, 16")
        a(f"v_lshl_add_u32 v{T[4]}, v{T[1]}, 8, v{T[2]}")
        a(f"s_lshl_b32 s{sT[0]}, s{sT[6]}, 6"); a(f"v_xor_b32 v{T[4]}, s{sT[0]}, v{T[4]}")
        for j in range(4):
            a(f"v_add_u32 v{vU[j]}, {voff(j)*256 - 1024*j + 3072}, v{T[4]}")
        a(f"s_lshl_b32 s{sT[0]}, s{sT[2]}, 7"); a(f"s_lshl_b32 s{sT[1]}, s{sWS}, 14"); a(f"s_add_u32 s{sT[0]}, s{sT[0]}, s{sT[1]}")
        a(f"s_and_b32 s{sT[1]}, s{sWS}, 2"); a(f"s_lshl_b32 s{sT[1]}, s{sT[1]}, 6"); a(f"s_add_u32 s{sUG[0]}, s{sT[0]}, s{sT[1]}")
        a(f"s_add_u32 s{sUG[1]}, s{sUG[0]}, 8192"); a(f"s_xor_b32 s{sUG[2]}, s{sUG[0]}, 128"); a(f"s_xor_b32 s{sUG[3]}, s{sUG[1]}, 128")
        a(f"v_lshrrev_b32 v{T[0]}, 4, v{vLANE}")
        a(f"v_and_b32 v{T[1]}, 6, v{vLANE}"); a(f"v_xor_b32 v{T[2]}, v{T[1]}, v{T[0]}"); a(f"v_lshlrev_b32 v{T[2]}, 4, v{T[2]}")
        a(f"v_and_b32 v{T[1]}, 15, v{vLANE}"); a(f"v_lshl_add_u32 v{T[2]}, v{T[1]}, 7, v{T[2]}")
        a(f"v_add_u32 v{T[3]}, s{sT[5]}, v{T[2]}"); a(f"v_xor_b32 v{T[5]}, 64, v{T[3]}")
        a(f"v_add_u32 v{vA[0]}, s{sLB}, v{T[2]}"); a(f"v_xor_b32 v{vA[1]}, 64, v{vA[0]}")
        a(f"v_lshlrev_b32 v{T[1]}, 4, v{vLANE}")
        a(f"v_add_u32 v{vXW}, s{sT[5]}, v{T[1]}")
        for g in range(1, 4): a(f"v_xor_b32 v{vXR[g]}, {g*4096}, v{vXW}")
        a(f"s_lshl_b32 s{sT[0]}, s{sWV}, 10"); a(f"s_add_u32 s{sT[0]}, s{sT[0]}, {HB}")
        a(f"v_add_u32 v{vHW}, s{sT[0]}, v{T[1]}")
        for g in range(1, 4): a(f"v_xor_b32 v{vHR[g]}, {g*1024}, v{vHW}")
        a(f"s_mul_i32 s{sT[0]}, s{sWS}, 1536"); a(f"s_add_u32 s{sT[0]}, s{sT[0]}, {BIASB}")
        a(f"v_lshl_add_u32 v{vBI}, v{T[0]}, 5, s{sT[0]}")
        a(f"s_mul_i32 s{sT[1]}, s{sXH}, 768"); a(f"s_add_u32 s{sT[0]}, s{sT[0]}, s{sT[1]}")
        a(f"v_lshlrev_b32 v{T[7]}, 5, v{T[7]}"); a(f"v_lshl_add_u32 v{T[7]}, v{T[6]}, 8, v{T[7]}"); a(f"v_add_u32 v{vT[0]}, s{sT[0]}, v{T[7]}")
        a(f"s_mov_b32 s{sSL}, s{sMY[0]}"); a(f"s_mov_b32 s{sTS}, {sum(t << i for i, t in enumerate(TAGS))}"); a(f"s_mov_b32 s{sTAG}, {TAGS[0]}")
        if not self.opts.get("flagvm", 1): a(f"s_xor_b32 s{sT[3]}, s2, 8"); a(f"s_and_b32 s{sT[2]}, s{sT[3]}, 0xfc"); a(f"s_and_b32 s{sT[3]}, s{sT[3]}, 3"); a(f"s_lshl_b32 s{sT[3]}, s{sT[3]}, 3")
        a(f"s_cmp_lg_u32 s{sXH}, 0"); a("s_cbranch_scc1 L_progB")

    def xproc(self):
        a = self.a; T = [X0F + i for i in range(10)]
        self.wvm("x0"); self.stamp("x0")
        for P in range(2):
            self.lgop(f"ds_read_b128 {vr(PK+4*P,4)}, v{T[5] if P else T[3]}", "x0r")
        self.wlg("x0r")
        for P in range(2):
            self.lgop(f"ds_write_b128 v{vXW}, {vr(PK+4*P,4)} offset:{P*1024}", "xw")
        self.run(self.unpack(X0F, PK, 8))
    def biasproc(self):
        a = self.a
        self.wvm("bias")
        self.run(self.unpack(TM+8, TM+4, 4))
        a("s_mov_b64 exec, 0xffffff")
        self.lgop(f"ds_write_b128 v{vT[0]}, {vr(TM+8,4)}", "bw")
        self.lgop(f"ds_write_b128 v{vT[0]}, {vr(TM+12,4)} offset:16", "bw")
        a("s_mov_b64 exec, -1")
    def clr(self, sl):
        if self.opts.get("noclr"): return
        if sl == 2: self.a(f"s_sub_u32 s{sPTMP}, s{sMY[1]}, 4096")
        self.vmop(f"buffer_store_dwordx4 {vr(TM,4)}, v{vE}, {sr(sO,4)}, s{sPTMP if sl == 2 else sMY[sl]} offen sc1", "clr")
    def box(self, where):
        m = [int(x, 16) for x in str(self.opts.get("box", "0,0,0")).split(",")][where]
        if not m: return
        a = self.a
        a(f"v_and_b32 v{T4}, 3, v{vLANE}"); a(f"v_lshlrev_b32 v{T4}, 7, v{T4}")
        a(f"v_bfe_u32 v{T4+1}, v{vLANE}, 2, 1"); a(f"v_lshl_add_u32 v{T4}, v{T4+1}, 10, v{T4}")
        a(f"v_bfe_u32 v{T4+1}, v{vLANE}, 3, 1"); a(f"v_lshl_add_u32 v{T4}, v{T4+1}, 14, v{T4}")
        a(f"s_mov_b64 exec, {m}")
        self.vmop(f"buffer_load_dword v{vJ}, v{T4}, {sr(sO,4)}, s{sMY[0]} offen sc1", "bt")
        a("s_mov_b64 exec, -1")
    def post_flag(self, stage):
        a = self.a
        a(f"s_cmp_lg_u32 s{sWV}, 0"); a(f"s_cbranch_scc1 L_noflag{stage}")
        a(f"v_mov_b32 v{T4}, s2"); a(f"v_mov_b32 v{T4+1}, s{sXCC}")
        if stage: a(f"v_or_b32 v{T4+1}, 32, v{T4+1}")
        a("s_mov_b64 exec, 1")
        a(f"buffer_store_byte v{T4+1}, v{T4}, {sr(sD,4)}, 0 offen"); a("s_mov_b64 exec, -1")
        self.lab(f"L_noflag{stage}")
    def flag_ld(self):
        if self.opts.get("flagvm", 1): self.vmop(f"buffer_load_ubyte v{vT[1]}, v{vT[2]}, {sr(sD,4)}, 0 offen sc1", "flag")
        else: self.a(f"s_load_dword s{sT[1]}, {sr(sKA+10,2)}, s{sT[2]}")
    def bias_ops(self, l):
        return [lambda k=k: self.lgop(f"ds_read_b128 {vr(ACC2+4*k,4)}, v{vBI} offset:{(0 if self.dyn else l*256) + (k>>1)*128 + (k&1)*16}", "bias") for k in range(4)]
    def light1(self, kind, l, rd, lp, n1=None, pollat=None):
        d = self.dma(kind, l, 0) + self.dma(kind, l, 1)
        n1 = n1 or self.opts.get("n1", 8)
        self.carry = d[n1:]; d = d[:n1]
        pp = pollat if pollat is not None else self.opts.get("pollat", 2); r0 = self.opts.get("rd1at", 0)
        rd = list(rd) + self.bias_ops(lp)
        per = self.opts.get("rd1per", 4)
        for k in range(8):
            if k == pp: self.poll(lp)
            if k < len(d): d[k]()
            if r0 <= k and (k - r0) % self.opts.get("dper", 1) == 0: self.run(rd[:per]); rd = rd[per:]
            self.stamp(f"l1{self.X}{lp}_{k}")
        if pp >= 8: self.poll(lp)
    def light2(self, kind, l, rd, lp):
        self.run(self.carry)
        d = self.dma(kind, l, 2) + self.dma(kind, l, 3) + [lambda: None] * 8
        p2 = self.opts.get("pre2", 3); rd = list(rd)
        if self.opts.get("l2mode", 0) == 1 or l >= L:
            m2 = self.opts.get("mid2", 1)
            self.run(d[:p2])
            self.check_post(lp, d[p2:p2+m2])
            self.run(rd[:4]); d[p2+m2](); self.run(rd[4:])
            self.wvm(f"{kind}{l}a")
            self.run(d[p2+m2+1:8])
            return
        seq = self.opts.get("l2seq")
        if seq:
            d = list(d)
            for t in seq:
                if t == "d": d.pop(0)()
                elif t == "r": self.run(rd[:2]); rd = rd[2:]
                elif t == "c": self.check_post(lp, [])
                elif t == "C": self.check_post(lp, [d.pop(0)])
                elif t == "w": self.wvm(f"{kind}{l}a")
                elif t == "g": self.vmop(f"buffer_load_dword v{vJ}, off, {sr(sB,4)}, 0", "gap")
            assert not rd and len(d) == 8
            return
        self.run(d[:p2])
        self.run(rd[:4]); d[p2](); self.run(rd[4:]); d[p2+1]()
        self.stamp(f"pd{self.X}{lp}")
        self.check_post(lp, d[p2+2:p2+3])
        self.stamp(f"po{self.X}{lp}")
        self.wvm(f"{kind}{l}a")
        self.run(d[p2+3:8])
        self.stamp(f"en{self.X}{lp}")
    def progA(self):
        a = self.a
        self.xproc()
        self.biasproc()
        self.wvm("V0"); self.stamp("v0l")
        self.bar("b0")
        self.prio(2)
        self.post_flag(0)
        xr = self.x_reads(); rv = [f for g in range(4) for f in self.rdV(g)]
        self.run(rv[0:4]); self.run(xr[0:2]); self.run(rv[4:8]); self.run(xr[2:4])
        q = rv[8:12] + xr[4:6] + rv[12:16]
        for ks in range(8):
            self.wlg(f"rV{ks>>1}_{ks&1}")
            if ks >= 2: self.wlg(f"x{ks}")
            self.mf1(ks, [q[0:1], q[1:2]]); q = q[2:]
            if ks == self.opts.get("flagat", 5): self.flag_ld()
        self.send(0)
        self.run(self.unpack(XF, PK, 8))
        self.prio(0)
        self.bar("b1")
        if not self.opts.get("lateb", 0): self.post_flag(1)
        self.light1("V", 1, self.rdU(0) + self.rdU(1), 0, 8)
        self.bar("b1x")
        if self.opts.get("lateb", 0): self.post_flag(1)
        self.run(self.rdU(2))
        self.check_post(0, [])
        self.run(self.rdU(3))
        self.wvm("V1a")
        self.box(2)
        self.bar("b2"); self.stamp("rtb2")
        self.a(f"s_mov_b32 s{sLOFF}, {2*131072}"); self.a(f"v_add_u32 v{vBI}, 256, v{vBI}")
        self.rounds(self.roundA)
    def rounds(self, body):
        self.dyn = True
        if not self.opts.get("loop", 1):
            for l in range(L): body(l, None)
            return
        u = self.X
        if u == 1 and self.opts.get("lateb", 0) == 2:
            self.a(f"s_mov_b32 s{sIT}, 3")
            body(0, None)
        else:
            self.a(f"s_mov_b32 s{sIT}, 4")
            keep = self.o; self.o = []; self.emit_ool = False
            body(0, None)
            self.o = keep; self.emit_ool = True
        if self.opts.get("loopalign", 1): self.o.append("    .p2align 6")
        self.lab(f"L_loop{u}")
        body(1, f"L_loop{u}")
        keep = self.o; self.o = []; self.emit_ool = False
        body(2, None); body(3, None)
        self.o = keep; self.emit_ool = True
        body(4, None); body(5, None)
    def adv(self, back):
        self.a(f"s_add_u32 s{sLOFF}, s{sLOFF}, 131072"); self.a(f"v_add_u32 v{vBI}, 256, v{vBI}")
        if back: self.a(f"s_sub_u32 s{sIT}, s{sIT}, 1"); self.a(f"s_cmp_lg_u32 s{sIT}, 0")
    def roundA(self, l, back):
        last = l == L-1
        self.c(f"==== A round {l} phase 0: G2 ====")
        self.prio(2)
        ev = self.opts.get("earlyv", 8)
        self.g2_phase(l, early=(None if last else (self.rdV(0) + self.rdV(1))[:ev]))
        if last:
            self.final_store(bar=True); return
        self.wvm(f"V{l+1}b")
        self.stamp(f"g2g0{l}")
        self.bar(f"A0{l}")
        self.c(f"==== A round {l} phase 1: G1 ====")
        self.g1_phase(l+1, jitV=True)
        self.prio(0)
        self.bar(f"A1{l}")
        self.c(f"==== A round {l} phase 2 ====")
        self.light1("V", l+2, self.rdU(0) + self.rdU(1), l+1)
        self.bar(f"A2{l}")
        self.c(f"==== A round {l} phase 3 ====")
        self.light2("V", l+2, self.rdU(2) + self.rdU(3), l+1)
        if l == L-2: self.final_addr()
        self.wlg0()
        self.adv(back)
        self.bar(f"A3{l}")
        if back: self.a(f"s_cbranch_scc1 {back}")

    def progB(self):
        self.lab("L_progB")
        d = [f for g in range(4) for f in self.dma("U", 0, g, "DDDD")]
        rv = [f for g in range(4) for f in self.rdV(g)]
        nu = self.opts.get("u0pre", 4)
        bc = self.opts.get("bclr", 1)
        if bc == 0: self.clr(0); self.clr(1); self.clr(2)
        self.run(d[:nu])
        self.wvm("V0"); self.stamp("v0l")
        self.bar("b0")
        if self.opts.get("bhold", 1):
            self.run(rv[:8]); self.run(d[nu:8]); self.run(rv[8:])
            if bc == 1: self.clr(0); self.clr(1); self.clr(2)
            self.xproc()
            self.run(d[8:])
        else:
            self.run(d[nu:8])
            if bc == 1: self.clr(0); self.clr(1); self.clr(2)
            self.xproc()
            for k in range(4):
                self.run(rv[4*k:4*k+4]); self.run(d[8+2*k:10+2*k])
        self.biasproc()
        self.wvm("U0a" if self.opts.get("lateb", 0) else "clr")
        self.bar("b1")
        self.prio(2)
        self.g1_phase(0, extra=self.rdU(0) + self.rdU(1))
        self.prio(0)
        self.wvm("U0b"); self.wvm("clr")
        self.bar("b1x")
        d = self.dma("V", 1, 2, self.opts.get("p3pat", "DBDB")) + self.dma("V", 1, 3, self.opts.get("p3pat", "DBDB"))
        self.run(self.rdU(2) + self.rdU(3))
        if self.opts.get("lateb", 0) == 2:
            self.run(d); None
            self.vmop(f"buffer_load_ubyte v{vT[1]}, v{vT[2]}, {sr(sD,4)}, 0 offen sc1", "flag")
        elif self.opts.get("lateb", 0):
            fp = self.opts.get("p3f", 2)
            self.run(d[:fp])
            self.vmop(f"buffer_load_ubyte v{vT[1]}, v{vT[2]}, {sr(sD,4)}, 0 offen sc1", "flag")
            self.run(d[fp:])
            self.send(0, part=2)
            self.run(self.unpack(XF, PK, 8))
        else: self.run(d)
        self.box(2)
        self.bar("b2"); self.stamp("rtb2")
        self.a(f"s_mov_b32 s{sLOFF}, 131072")
        self.rounds(self.roundB)
    def roundB(self, l, back):
        last = l == L-1
        self.c(f"==== B round {l} phase 0 ====")
        if not last:
            n0 = len(self.vm)
            if l == 0 and self.opts.get("lateb", 0) == 2:
                self.send(0, part=2); self.run(self.unpack(XF, PK, 8))
                self.light1("U", l+1, self.rdV(0) + self.rdV(1), l, pollat=self.opts.get("poll0", 4))
            else:
                self.light1("U", l+1, self.rdV(0) + self.rdV(1), l)
            self.a(f"s_waitcnt vmcnt({len(self.vm) - n0})"); self.vmdone = max(self.vmdone, n0)
            self.bar(f"B0{l}")
            self.c(f"==== B round {l} phase 1 ====")
            self.light2("U", l+1, self.rdV(2) + self.rdV(3), l)
        else:
            if not self.opts.get("lastpoll", 0): self.poll(l)
            if self.opts.get("lastpoll", 0) < 2: self.bias_rd(l)
            self.check_post(l, [])
        self.bar(f"B1{l}")
        self.c(f"==== B round {l} phase 2: G2 ====")
        self.prio(2)
        if last:
            self.g2_phase(l); self.final_store(); return
        self.g2_phase(l, mid=self.rdU(0), late=self.rdU(1))
        self.wvm(f"U{l+1}b")
        self.bar(f"B2{l}")
        self.c(f"==== B round {l} phase 3: G1 ====")
        self.g1_phase(l+1, extra=self.rdU(2) + self.rdU(3))
        if l == L-2: self.final_addr()
        self.prio(0)
        self.wlg0()
        self.adv(back)
        if l == L-2 and self.opts.get("lastpoll", 0) == 2: self.bias_rd(l+1)
        if l == L-2 and self.opts.get("lastpoll", 0): self.poll(l+1)
        self.bar(f"B3{l}")
        if back: self.a(f"s_cbranch_scc1 {back}")

    def final_addr(self):
        a = self.a; t = [RX, RX+1, RX+2]
        a(f"v_and_b32 v{t[0]}, 15, v{vLANE}"); a(f"v_lshrrev_b32 v{t[1]}, 4, v{vLANE}")
        a(f"v_and_b32 v{t[2]}, 7, v{t[0]}"); a(f"v_xor_b32 v{t[2]}, v{t[2]}, v{t[1]}"); a(f"v_lshlrev_b32 v{t[2]}, 4, v{t[2]}")
        a(f"v_lshl_add_u32 v{t[2]}, v{t[0]}, 7, v{t[2]}")
        a(f"v_and_b32 v{vT[0]}, 0xfffff800, v{vXW}"); a(f"v_add_u32 v{vT[0]}, v{vT[0]}, v{t[2]}"); a(f"v_xor_b32 v{vT[1]}, 64, v{vT[0]}")
        a(f"v_lshrrev_b32 v{t[0]}, 3, v{vLANE}"); a(f"v_xor_b32 v{t[1]}, v{t[0]}, v{vLANE}"); a(f"v_and_b32 v{t[1]}, 7, v{t[1]}")
        a(f"v_lshlrev_b32 v{t[1]}, 4, v{t[1]}")
        a(f"v_and_b32 v{t[2]}, 4, v{t[0]}"); a(f"v_add_u32 v{t[0]}, v{t[0]}, v{t[2]}")
        a(f"v_lshl_add_u32 v{vT[2]}, v{t[0]}, 10, v{t[1]}")

    def final_store(self, bar=False):
        a = self.a; D = XF
        for m in range(2):
            self.lgop(f"ds_read_b128 {vr(D+4*m,4)}, v{vXW} offset:{m*1024}", f"fo{m}")
        fl = self.opts.get("outflags", "") if self.X else self.opts.get("outflagsA", self.opts.get("outflags", ""))
        for m in range(2):
            a(f"s_add_u32 s{sT[m]}, s{sT[7]}, {m*16384}")
            self.wlg(f"fo{m}")
            self.vmop(f"buffer_store_dwordx4 {vr(D+4*m,4)}, v{vT[2]}, {sr(sO,4)}, s{sT[m]} offen {fl}", "out")
        if bar and self.opts.get("junk"):
            for m in range(4):
                a(f"s_add_u32 s{sT[2]}, s{sMY[0]}, {m*4096 if m < 2 else 16384 + (m-2)*4096}")
                a(f"buffer_store_dwordx4 {vr(D,4)}, v{vE}, {sr(sW,4)}, s{sT[2]} offen")
        if bar: a("s_barrier")
        if self.opts.get("stag"):
            u = self.X
            a("s_waitcnt vmcnt(0)")
            a(f"s_add_u32 s4, s{sKA+12}, 0x700000"); a(f"s_addc_u32 s5, s{sKA+13}, 0")
            a("s_load_dwordx8 s[84:91], s[4:5], 0"); a("s_memrealtime s[94:95]"); a("s_waitcnt lgkmcnt(0)")
            a("s_mov_b32 s92, 0")
            for i in range(8):
                a(f"s_sub_u32 s93, s{sSTAMP}, s{84+i}"); a("s_cmp_lt_u32 s93, 3000"); a("s_cselect_b32 s93, s93, 0"); a("s_max_u32 s92, s92, s93")
            a(f"s_mul_i32 s92, s92, {self.opts['stag'] - 1}")
            self.lab(f"L_echo{u}")
            a("s_sleep 1"); a("s_memrealtime s[96:97]"); a("s_waitcnt lgkmcnt(0)"); a("s_sub_u32 s93, s96, s94")
            a("s_cmp_lt_u32 s93, s92"); a(f"s_cbranch_scc1 L_echo{u}")
        elif self.opts.get("rtecho"):
            u = self.X
            a("s_waitcnt vmcnt(0)"); self.stamp("rt1")
            a("s_memrealtime s[90:91]"); a("s_waitcnt lgkmcnt(0)")
            a(f"s_sub_u32 s92, s{sSTAMP+2}, s{sSTAMP}"); a(f"s_mul_i32 s92, s92, {self.opts['rtecho'] - 1}")
            self.lab(f"L_echo{u}")
            a("s_sleep 1"); a("s_memrealtime s[94:95]"); a("s_waitcnt lgkmcnt(0)"); a("s_sub_u32 s93, s94, s90")
            a("s_cmp_lt_u32 s93, s92"); a(f"s_cbranch_scc1 L_echo{u}")
        elif self.opts.get("echo"):
            u = self.X
            a("s_waitcnt vmcnt(0)"); self.stamp("fin")
            a("s_memtime s[90:91]"); a("s_waitcnt lgkmcnt(0)")
            a(f"s_sub_u32 s92, s{sSTAMP+2}, s{sSTAMP}")
            self.lab(f"L_echo{u}")
            a("s_sleep 1"); a("s_memtime s[94:95]"); a("s_waitcnt lgkmcnt(0)"); a("s_sub_u32 s93, s94, s90")
            a("s_cmp_lt_u32 s93, s92"); a(f"s_cbranch_scc1 L_echo{u}")
        elif self.prof:
            a("s_waitcnt vmcnt(0)")
            self.stamp("fin"); self.stamp("rt1")
            a("s_waitcnt lgkmcnt(0)")
            a(f"v_mov_b32 v{RX}, 0")
            for i in range(len(self.prof)): a(f"v_writelane_b32 v{RX}, s{sSTAMP+2*i}, {i}")
            a(f"s_lshl_b32 s{sT[0]}, s2, 3"); a(f"s_add_u32 s{sT[0]}, s{sT[0]}, s{sWV}"); a(f"s_lshl_b32 s{sT[0]}, s{sT[0]}, 8")
            a(f"s_add_u32 s{sT[0]}, s{sT[0]}, {6<<20}")
            a(f"v_lshlrev_b32 v{vT[0]}, 2, v{vLANE}")
            a(f"buffer_store_dword v{RX}, v{vT[0]}, {sr(sW,4)}, s{sT[0]} offen")
        if "modedelay" in self.opts:
            a(f"s_cmp_lg_u32 s{sMODE}, {self.opts['modedelay']}"); a(f"s_cbranch_scc1 L_md{self.X}")
            for i in range(5): a("s_sleep 125")
            self.lab(f"L_md{self.X}")
        if "retrydelay" in self.opts:
            self.lab(f"L_rd{self.X}")
            a("s_cmp_eq_u32 s96, 0"); a(f"s_cbranch_scc1 L_re{self.X}"); a("s_sleep 32"); a("s_sub_u32 s96, s96, 1"); a(f"s_branch L_rd{self.X}")
            self.lab(f"L_re{self.X}")
        for i in range(self.opts.get("delay", 0)): a("s_sleep 125")
        a("s_endpgm")

    def handshake(self):
        a = self.a; x = self.x; P = XF; u = self.X
        self.c("handshake: the partner's inbox is cleared; does it share this XCD?")
        a(f"s_mov_b32 s{sCNT}, 0"); a(f"s_mov_b32 s{sMODE}, 1")
        msk = 0x3f if u else 0x1f
        a(f"s_or_b32 s{sT[6]}, s{sXCC}, {32 if u else 0}")
        if u == 0 and not self.opts.get("flagvm", 1):
            a("s_waitcnt lgkmcnt(0)"); self.lgdone = len(self.lg)
            a(f"s_lshr_b32 s{sT[0]}, s{sT[1]}, s{sT[3]}")
        else:
            self.wvm("flag"); a(f"v_readfirstlane_b32 s{sT[0]}, v{vT[1]}")
        a(f"s_and_b32 s{sT[0]}, s{sT[0]}, {msk}")
        a(f"s_cmp_eq_u32 s{sT[0]}, s{sT[6]}")
        if self.opts.get("noclr", 0) < 2: a(f"s_cbranch_scc0 L_hs_fast{u}")
        self.lab(f"L_hs_done{u}")
        self.rec("hscnt", f"s{sCNT}"); self.rec("mode", f"s{sMODE}")
        self.xl(f"L_hs_fast{u}")
        x(f"buffer_load_ubyte v{vT[1]}, v{vT[2]}, {sr(sD,4)}, 0 offen sc1")
        x("s_waitcnt vmcnt(0)")
        x(f"v_readfirstlane_b32 s{sT[0]}, v{vT[1]}")
        x(f"s_and_b32 s{sT[0]}, s{sT[0]}, {msk}"); x(f"s_cmp_eq_u32 s{sT[0]}, s{sT[6]}"); x(f"s_cbranch_scc1 L_hs_done{u}")
        x("s_sleep 1"); x(f"s_add_u32 s{sCNT}, s{sCNT}, 1"); x(f"s_cmp_lt_u32 s{sCNT}, {self.opts.get('fastpolls', 24)}"); x(f"s_cbranch_scc1 L_hs_fast{u}")
        for r in range(4): x(f"v_mov_b32 v{P+4+r}, 0")
        for sl in range(2):
            x(f"buffer_store_dwordx4 {vr(P+4,4)}, v{vE}, {sr(sW,4)}, s{sMY[sl]} offen sc1")
        x(f"s_lshl_b32 s{sT[1]}, s2, 3"); x(f"s_add_u32 s{sT[1]}, s{sT[1]}, s{sWV}"); x(f"s_lshl_b32 s{sT[1]}, s{sT[1]}, 7")
        x(f"s_add_u32 s{sT[1]}, s{sT[1]}, {4<<20}")
        x(f"s_xor_b32 s{sT[2]}, s{sT[1]}, {8*8*128}")
        x(f"v_mov_b32 v{P+2}, 0")
        x("s_mov_b64 exec, 1")
        x(f"buffer_load_dwordx4 {vr(P+8,4)}, v{P+2}, {sr(sW,4)}, s{sT[2]} offen sc1")
        x("s_waitcnt vmcnt(0)")
        x(f"v_readfirstlane_b32 s{sT[3]}, v{P+10}")
        x(f"s_add_u32 s{sT[3]}, s{sT[3]}, 1")
        x(f"v_mov_b32 v{P+3}, s{sT[3]}")
        x(f"buffer_store_dword v{P+3}, v{P+2}, {sr(sW,4)}, s{sT[1]} offen sc1")
        x("s_waitcnt vmcnt(0)")
        x(f"s_mov_b32 s{sCNT}, 0")
        self.xl(f"L_hs_slow{u}")
        x(f"buffer_load_ubyte v{vT[1]}, v{vT[2]}, {sr(sD,4)}, 0 offen sc1")
        x(f"buffer_load_dwordx4 {vr(P+8,4)}, v{P+2}, {sr(sW,4)}, s{sT[2]} offen sc1")
        x("s_waitcnt vmcnt(0)")
        x(f"v_readfirstlane_b32 s{sT[0]}, v{vT[1]}")
        x(f"v_readfirstlane_b32 s{sT[5]}, v{P+8}")
        x(f"v_readfirstlane_b32 s{sT[4]}, v{P+10}")
        x(f"v_readfirstlane_b32 s{sMODE}, v{P+11}")
        x(f"s_and_b32 s{sT[0]}, s{sT[0]}, {msk}"); x(f"s_cmp_eq_u32 s{sT[0]}, s{sT[6]}"); x(f"s_cbranch_scc1 L_hs_same{u}")
        x(f"s_cmp_eq_u32 s{sCNT}, 0"); x(f"s_cbranch_scc1 L_hs_ans{u}")
        x(f"s_cmp_eq_u32 s{sT[5]}, s{sPTMP2}"); x(f"s_cbranch_scc1 L_hs_noans{u}")
        self.xl(f"L_hs_ans{u}")
        x(f"s_mov_b32 s{sPTMP2}, s{sT[5]}")
        x(f"v_mov_b32 v{P+12}, s{sT[5]}"); x(f"v_mov_b32 v{P+13}, s{sXCC}")
        x(f"buffer_store_dwordx2 {vr(P+12,2)}, v{P+2}, {sr(sW,4)}, s{sT[1]} offen offset:8 sc1")
        self.xl(f"L_hs_noans{u}")
        x("s_sleep 4")
        x(f"s_add_u32 s{sCNT}, s{sCNT}, 1"); x(f"s_cmp_gt_u32 s{sCNT}, 0x200000"); x(f"s_cbranch_scc1 L_hs_same{u}")
        x(f"s_cmp_eq_u32 s{sT[4]}, s{sT[3]}"); x(f"s_cbranch_scc0 L_hs_slow{u}")
        x(f"s_cmp_eq_u32 s{sMODE}, s{sXCC}"); x(f"s_cbranch_scc1 L_hs_same{u}")
        x(f"s_mov_b32 s{sMODE}, 0")
        x(f"s_mov_b32 s{sE}, s{sKA+12}"); x(f"s_mov_b32 s{sE+1}, s{sKA+13}")
        x("s_mov_b64 exec, -1")
        x(f"s_branch L_hs_done{u}")
        self.xl(f"L_hs_same{u}")
        x(f"s_mov_b32 s{sMODE}, 1")
        x("s_mov_b64 exec, -1")
        x(f"s_branch L_hs_done{u}")

    def build(self):
        hdr = [f"; @launch grid=(256,1,1) block=(512,1,1) lds={LDS_BYTES}",
               '.amdgcn_target "amdgcn-amd-amdhsa--gfx950"', ".text", f".globl {KN}", ".p2align 8",
               f".type {KN},@function", f"{KN}:"]
        self.prologue()
        A = self.fork(0); A.progA()
        B = self.fork(1); B.progB()
        nb = lambda g: sum(1 for s in g.o if s.strip() == "s_barrier")
        peel = 4 if (self.opts.get("lateb", 0) == 2 and self.opts.get("loop", 1)) else 0
        assert nb(A) + peel == nb(B), (nb(A), nb(B))
        assert NV + NA <= 256
        ftr = [f".set CODE_BYTES, L_end - {KN}", '.section .rodata,"a"', ".p2align 6", f".amdhsa_kernel {KN}",
               f"  .amdhsa_next_free_vgpr {NV+NA}", "  .amdhsa_next_free_sgpr 102", f"  .amdhsa_accum_offset {NV}",
               "  .amdhsa_group_segment_fixed_size 0", "  .amdhsa_kernarg_size 56", "  .amdhsa_user_sgpr_count 2",
               "  .amdhsa_user_sgpr_kernarg_segment_ptr 1", "  .amdhsa_system_sgpr_workgroup_id_x 1",
               "  .amdhsa_float_denorm_mode_32 3", ".end_amdhsa_kernel"]
        log = []
        m1, n1 = fix_hazards(self.o + A.o, log)
        m2, n2 = fix_hazards(B.o, log)
        ool, n3 = fix_hazards(self.ool)
        wrap = lambda ls: "\n".join(hdr + ls + ool + ftr) + "\n"
        sp = self.opts.get("pad", 0)
        if sp:
            from asmlib import sizes, parse
            def padded(lines, x, start, lim):
                dummy = [f"L_pad{a}_{b}:" for a in range(2) for b in range(4)]
                others = m2 if x == 0 else m1
                sz = iter(sizes(wrap([l for l in lines + others if not l.strip().startswith(".p2align")] + dummy + ["L_end:", "    s_endpgm"])))
                out = []; pos = []; acc = sp; on = not start; tot = 0
                for l in lines:
                    if start and start in l: on = True
                    if parse(l) is not None:
                        b = next(sz)
                        if on and acc >= sp and tot < lim:
                            pos.append(len(out)); out.append(None); acc = 4
                        acc += b
                        if on: tot += b
                    out.append(l)
                res = []; n = len(pos); k = 0
                for l in out:
                    if l is None:
                        res.append(f"L_pad{x}_{k}:"); res.append(f"    s_cbranch_execz " + (f"L_pad{x}_{k+4}" if k + 4 < n else "L_warm_done")); k += 1
                    else: res.append(l)
                return res
            lim = self.opts.get("padlim", 4000)
            m1, m2 = padded(m1, 0, "PADSTART", lim), padded(m2, 1, None, lim)
        main = m1 + m2 + ["L_end:", "    s_endpgm"]
        if self.opts.get("align", 1):
            main, nw, nn = align(main, wrap, self.opts.get("minrun", 99))
            sys.stderr.write(f"hazard nops {n1}+{n2}+{n3}, widened {nw}, align nops {nn}\n")
        if self.opts.get("hlog"):
            for e in log: sys.stderr.write(str(e) + "\n")
        return wrap(main)

if __name__ == "__main__":
    prof = None; opts = {}
    for x in sys.argv[1:]:
        if x.startswith("--prof="): prof = x[7:].split(",")
        elif x.startswith("--"):
            k, v = x[2:].split("="); opts[k] = int(v) if v.lstrip("-").isdigit() else v
    out = [x for x in sys.argv[1:] if not x.startswith("--")][0]
    g = Gen(prof, opts); txt = g.build()
    if prof: txt = txt + "; stamps: " + ",".join(prof) + "\n"
    open(out, "w").write(txt)
```

```python
import sys, copy
from asmlib import fix_hazards, align
KN = "standalone__cross_network_dcn_v2__recsys_kernel"
L = 6
XB = 131072; HB = 147456; BIASB = 155648; LDS_BYTES = 161792
TAGS = [1, 1, 0, 0, 1, 1]

vLANE = 1; vA = [2, 21]; vE = 3; vV = [4, 5, 6, 7]; vU = [8, 9, 10, 11]
vXW = 12; vXR = [None, 13, 14, 15]; vHW = 16; vHR = [None, 17, 18, 19]
vBI = 20; vT = [22, 23, 24, 25]; vJ = 0
ACC1 = 26; ACC2 = 34; XF = 50; X0F = 66; PK = 82; HP = 90; RX = 94; TM = ACC2; SP = HP; T4 = 98; vPF = 102
NV = 104
aV = 0; aU = 64; aX = 128; aH = 128; aS = 128; NS = 6; NA = 152
sX0 = 4; sV = 8; sU = 12; sO = 16; sE = 20; sD = 24; sB = 28; sW = 32
sKA = 36
sWV = 50; sHF = 51; sRB = 52; sXCC = 53; sMODE = 54
sVG = [55, 56, 57, 58]; sUG = [59, 60, 61, 62]; sSO = [63, 64]; sLB = 65
sMY = [66, 67]; sWS = 68; sXH = 69
sLOFF = 4; sSL = 5; sTS = 6; sTAG = 7; sIT = 3
sCNT = 70; sT = [71, 72, 73, 74, 75, 76, 77, 78]; sPTMP = 79; sPTMP2 = 51
sSTAMP = 80

def vr(b, n): return f"v[{b}:{b+n-1}]"
def ar(b, n): return f"a[{b}:{b+n-1}]"
def sr(b, n): return f"s[{b}:{b+n-1}]"

class Gen:
    def __init__(self, prof=None, opts=None):
        self.o = []; self.ool = []; self.vm = []; self.lg = []; self.vmdone = 0; self.lgdone = 0
        self.prof = prof; self.opts = opts or {}; self.names = []
        self.pw = []; self.nso = 0; self.nst = 0; self.X = 0; self.dyn = False; self.emit_ool = True
        self.pat = self.opts.get("pat", "BBBB/DDDD/DDDD/DDDB"); self.lag = self.opts.get("lag", 4)
    def fork(self, X):
        g = copy.copy(self); g.o = []; g.vm = [(t[1] if isinstance(t, tuple) else t) for t in self.vm if not isinstance(t, tuple) or t[0] == X]; g.lg = list(self.lg); g.pw = list(self.pw); g.X = X
        return g
    def a(self, s): self.o.append("    " + s)
    def x(self, s):
        if self.emit_ool: self.ool.append("    " + s)
    def xl(self, s):
        if self.emit_ool: self.ool.append(s + ":")
    def lab(self, s): self.o.append(s + ":")
    def c(self, s): self.o.append("    ; " + s)
    def vmop(self, s, tag): self.vm.append(tag); self.a(s)
    def lgop(self, s, tag): self.lg.append(tag); self.a(s)
    def _last(self, lst, tag):
        idx = [i for i, t in enumerate(lst) if t == tag]
        return idx[-1] if idx else None
    def wvm(self, tag):
        i = self._last(self.vm, tag)
        if i is not None: self.wvmi(i)
    def wvmi(self, i):
        if i < self.vmdone: return
        n = min(len(self.vm) - 1 - i, 63); self.vmdone = len(self.vm) - n
        self.a(f"s_waitcnt vmcnt({n})")
    def wlg(self, tag):
        i = self._last(self.lg, tag)
        if i is None or i < self.lgdone: return
        n = min(len(self.lg) - 1 - i, 15); self.lgdone = len(self.lg) - n
        self.a(f"s_waitcnt lgkmcnt({n})")
    def wlg0(self):
        if self.lgdone < len(self.lg): self.lgdone = len(self.lg); self.a("s_waitcnt lgkmcnt(0)")
    def bar(self, name=None):
        self.wlg0()
        if name: self.stamp(name + "a")
        self.a("s_barrier")
        if name: self.stamp(name + "b")
        self.jit()
    def jit(self):
        if "jitter" not in self.opts: return
        import random
        Gen.nj = getattr(Gen, "nj", 0) + 1
        r = random.Random(self.opts["jitter"] * 1000 + Gen.nj)
        for q in range(2):
            w = r.randrange(8); n = r.choice([2, 5, 12, 30]); lab = f"L_j{Gen.nj}_{q}"
            self.a("s_mov_b32 s97, scc"); self.a(f"s_and_b32 s96, s2, 3"); self.a(f"s_add_u32 s96, s96, s{sWV}"); self.a("s_and_b32 s96, s96, 7")
            self.a(f"s_cmp_lg_u32 s96, {w}"); self.a(f"s_cbranch_scc1 {lab}"); self.a(f"s_sleep {n}"); self.lab(lab)
            self.a("s_cmp_lg_u32 s97, 0")
    def stamp(self, name):
        nm = name + "AB"[self.X] if False else name
        if self.prof and nm in self.prof:
            r = sSTAMP + 2 * self.prof.index(nm)
            assert r + 1 <= 101
            self.a(f"s_memrealtime s[{r}:{r+1}]" if nm.startswith("rt") else f"s_memtime s[{r}:{r+1}]")
    def rec(self, name, src):
        if self.prof and name in self.prof:
            self.a(f"s_mov_b32 s{sSTAMP + 2*self.prof.index(name)}, {src}")
    def prio(self, p):
        m = self.opts.get("prio", 1)
        if m == 1: self.a(f"s_setprio {p}")
        if m == 2: self.a(f"s_setprio {2-p}")
    def dma(self, kind, l, g, pat=None):
        if l >= L: return []
        if self.opts.get("dma") == "off" and l >= 2: return []
        pat = pat or self.pat.split("/")[g]
        so = sSO[self.nso & 1]; self.nso += 1
        base, sg, vv, srd = (0, sVG, vV, sV) if kind == "V" else (16384, sUG, vU, sU)
        tag = f"{kind}{l}" + "ab"[g >> 1]
        items = []
        for j in range(4):
            def emit(j=j):
                while self.pw and len(self.vm) - self.pw[0][0] > self.lag: self.pw.pop(0)[1]()
                if j == 0:
                    self.a(f"s_add_u32 m0, s{sLB}, {base+g*4096}"); self.a(f"s_add_u32 s{so}, s{sg[g]}, s{sLOFF}" if self.dyn else f"s_add_u32 s{so}, s{sg[g]}, {l*131072}")
                if pat[j % len(pat)] in "DBCW":
                    self.vmop(f"buffer_load_dwordx4 v{vv[j]}, {sr(srd,4)}, s{so} offen offset:{1024*j} lds", tag)
                    for q in range({"D": 0, "B": 1, "C": 2, "W": 0}[pat[j % len(pat)]]): self.vmop(f"buffer_load_dword v{vJ}, off, {sr(sB,4)}, 0", "gap")
                    if pat[j % len(pat)] == "W": self.vmop(f"buffer_load_dwordx4 {vr(T4,4)}, v{vE}, {sr(sB,4)}, 0 offen", "gap")
            items.append(emit)
        return items
    def flush(self, keep3=False):
        while self.pw and not (keep3 and self.pw[0][2] == 3): self.pw.pop(0)[1]()
    def rdV(self, g):
        return [lambda j=j: self.lgop(f"ds_read_b128 {ar(aV+4*(4*g+j),4)}, v{vA[j>>1]} offset:{g*4096+(j&1)*2048}", f"rV{g}_{j>>1}") for j in range(4)]
    def rdU(self, g):
        return [lambda j=j: self.lgop(f"ds_read_b128 {ar(aU+4*(4*g+j),4)}, v{vA[j>>1]} offset:{16384+g*4096+(j&1)*2048}", f"rU{g}") for j in range(4)]
    def mf1(self, ks, fill=None):
        for ta in range(2):
            b = vr(PK + 4*ks, 4) if ks < 2 else ar(aX + 4*(ks-2), 4)
            d = vr(ACC1 + 4*ta, 4)
            self.a(f"v_mfma_f32_16x16x32_bf16 {d}, {ar(aV+4*(2*ks+ta),4)}, {b}, {'0' if ks == 0 else d}")
            if fill: self.run(fill[ta])
    def mf2(self, P, kr, fill=None):
        for ta in range(2):
            b = vr(HP, 4) if kr == 0 else ar(aH + 4*(kr-1), 4)
            d = vr(ACC2 + 8*P + 4*ta, 4)
            idx = ((kr >> 1)*2 + P)*4 + (kr & 1)*2 + ta
            self.a(f"v_mfma_f32_16x16x32_bf16 {d}, {ar(aU+4*idx,4)}, {b}, {d}")
            if fill: self.run(fill[ta])
    def epi(self, P, l, pk=False):
        r = []
        if pk:
            for e in range(4):
                q = 8*P + 2*e
                r.append(lambda q=q: self.a(f"v_pk_fma_f32 {vr(ACC2+q,2)}, {vr(X0F+q,2)}, {vr(ACC2+q,2)}, {vr(XF+q,2)}"))
        else:
            for e in range(8):
                q = 8*P + e
                r.append(lambda q=q: self.a(f"v_fma_f32 v{ACC2+q}, v{X0F+q}, v{ACC2+q}, v{XF+q}"))
        for e in range(4):
            q = 8*P + 2*e
            r.append(lambda q=q: self.a(f"v_cvt_pk_bf16_f32 v{PK+q//2}, v{ACC2+q}, v{ACC2+q+1}"))
        if l < L-1: r.append(lambda: self.lgop(f"ds_write_b128 v{vXW}, {vr(PK+4*P,4)} offset:{P*1024}", "xw"))
        else: r.append(lambda: self.lgop(f"ds_write_b128 v{vT[P]}, {vr(PK+4*P,4)}", "xw"))
        return r
    def unpack(self, dst, src, n):
        r = []
        for i in range(n):
            r.append(lambda i=i: self.a(f"v_lshlrev_b32 v{dst+2*i}, 16, v{src+i}"))
            r.append(lambda i=i: self.a(f"v_and_b32 v{dst+2*i+1}, 0xffff0000, v{src+i}"))
        return r
    def bias_rd(self, l):
        for k in range(4):
            self.lgop(f"ds_read_b128 {vr(ACC2+4*k,4)}, v{vBI} offset:{(0 if self.dyn else l*256) + (k>>1)*128 + (k&1)*16}", "bias")
    def run(self, lst):
        for f in lst: f()
    def mix(self, *lists):
        lists = [list(x) for x in lists]
        while any(lists):
            for x in lists:
                if x: x.pop(0)()
    def srd(self, r, p, n, bias=0):
        if bias:
            self.a(f"s_sub_u32 s{r}, s{p}, {bias}"); self.a(f"s_subb_u32 s{r+1}, s{p+1}, 0")
        else:
            self.a(f"s_mov_b32 s{r}, s{p}"); self.a(f"s_mov_b32 s{r+1}, s{p+1}")
        self.a(f"s_mov_b32 s{r+2}, {n+bias}"); self.a(f"s_mov_b32 s{r+3}, 0x20000")
    def poll(self, l):
        self.jit()
        self.vmop(f"buffer_load_dwordx4 {vr(RX,4)}, v{vE}, {sr(sE,4)}, s{sSL} offen sc1", f"poll{l}")
    def send(self, l, u=None):
        a = self.a; u = u if u is not None else f"{self.X}{l}"
        a(f"s_xor_b32 s{sPTMP}, s{sSL}, 512")
        for k in range(4): a(f"v_cvt_pk_bf16_f32 v{SP+k}, v{ACC1+2*k}, v{ACC1+2*k+1}")
        for k in range(4): a(f"v_and_or_b32 v{SP+k}, v{SP+k}, -2, s{sTAG}")
        if l == 0: self.handshake()
        self.jit()
        self.stamp(f"snd{u}")
        a(f"s_cmp_eq_u32 s{sMODE}, 0"); a(f"s_cbranch_scc1 L_ss{u}")
        self.vmop(f"buffer_store_dwordx4 {vr(SP,4)}, v{vE}, {sr(sE,4)}, s{sPTMP} offen {self.opts.get('sendf', '')}", "st")
        self.lab(f"L_sd{u}")
        self.xl(f"L_ss{u}")
        self.x(f"buffer_store_dwordx4 {vr(SP,4)}, v{vE}, {sr(sE,4)}, s{sPTMP} offen sc1")
        self.x("s_nop 1"); self.x(f"s_branch L_sd{u}")
    def chk_ops(self, l):
        R = RX; t0 = vT[3]
        return [f"v_xor_b32 v{t0}, s{sTAG}, v{R}"] + [f"v_bitop3_b32 v{t0}, v{R+k}, v{t0}, s{sTAG} bitop3:0xde" for k in (1, 2, 3)] + \
               [f"v_and_b32 v{t0}, 1, v{t0}", f"v_cmp_ne_u32 vcc, 0, v{t0}"]
    def next_msg(self):
        if not self.opts.get("one"): self.a(f"s_xor_b32 s{sSL}, s{sSL}, 16384")
        self.a(f"s_lshr_b32 s{sTS}, s{sTS}, 1"); self.a(f"s_and_b32 s{sTAG}, s{sTS}, 1")
    def check_post(self, l, d=None):
        u = f"{self.X}{l}"; x = self.x; a = self.a
        self.wvm(f"poll{l}")
        self.stamp(f"chk{u}")
        if self.opts.get("dbgcnt"): a(f"s_mov_b32 s{sCNT}, 0")
        for s in self.chk_ops(l): a(s)
        a(f"s_cbranch_vccnz L_rt{u}")
        self.lab(f"L_got{u}")
        self.stamp(f"got{u}")
        if self.opts.get("dbgcnt"): self.rec(f"cnt{l}", f"s{sCNT}")
        self.xl(f"L_rt{u}")
        x(f"s_mov_b32 s{sCNT}, 0")
        self.xl(f"L_rl{u}")
        x(f"buffer_load_dwordx4 {vr(RX,4)}, v{vE}, {sr(sE,4)}, s{sSL} offen sc1")
        if "retrydelay" in self.opts: x("s_add_u32 s96, s96, 1")
        x(f"s_add_u32 s{sCNT}, s{sCNT}, 1"); x(f"s_cmp_gt_u32 s{sCNT}, 0x200000")
        x("s_waitcnt vmcnt(0)")
        x(f"s_cbranch_scc1 L_got{u}")
        for s in self.chk_ops(l): x(s)
        x(f"s_cbranch_vccz L_got{u}")
        x("s_sleep 1")
        x(f"s_branch L_rl{u}")
        ops = []
        for h in range(2):
            ops += self.unpack(T4, RX+2*h, 2)
            if self.opts.get("pkadd", 0):
                for k in range(2): ops.append(lambda k=k, h=h: a(f"v_pk_add_f32 {vr(T4+2*k,2)}, {vr(T4+2*k,2)}, {vr(ACC1+4*h+2*k,2)}"))
            else:
                for k in range(4): ops.append(lambda k=k, h=h: a(f"v_add_f32 v{T4+k}, v{T4+k}, v{ACC1+4*h+k}"))
            for k in range(2): ops.append(lambda k=k, h=h: a(f"v_cvt_pk_bf16_f32 v{HP+2*h+k}, v{T4+2*k}, v{T4+2*k+1}"))
        ops.append(lambda: self.lgop(f"ds_write_b128 v{vHW}, {vr(HP,4)}", "hw"))
        ops.append(self.next_msg)
        if d is None:
            self.run(ops); self.bias_rd(l); return
        d = list(d); st = self.opts.get("vper", 10)
        while ops:
            self.run(ops[:st]); ops = ops[st:]
            if ops and d: d.pop(0)()
        self.run(d)
    def x_reads(self):
        return [lambda ks=ks: self.lgop(f"ds_read_b128 {ar(aX+4*(ks-2),4)}, v{vXR[ks>>1]} offset:{(ks&1)*1024}", f"x{ks}") for ks in range(2, 8)]
    def h_reads(self):
        for kr in range(1, 4):
            self.lgop(f"ds_read_b128 {ar(aH+4*(kr-1),4)}, v{vHR[kr]}", f"h{kr}")

    def g2_phase(self, l, early=None, mid=None, late=None):
        early = list(early or []); mid = list(mid or []); late = list(late or [])
        def take(q): return [q[0:1], q[1:2]]
        self.h_reads()
        self.mf2(0, 0, take(early)); self.mf2(1, 0, take(early[2:]))
        self.wlg("h1"); self.mf2(0, 1, take(early[4:]))
        self.wlg("h2"); self.mf2(0, 2, take(early[6:] + mid))
        self.wlg("h3"); self.mf2(0, 3, take(mid[2:]))
        self.flush()
        e0 = self.epi(0, l); e1 = self.epi(1, l, pk=self.opts.get("pkfma", 1))
        u = f"{self.X}{l}"
        self.stamp(f"g2a{u}")
        if self.opts.get("e0mix", 0):
            self.mf2(1, 1, [[], late[0:4]])
            self.mf2(1, 2, [[], e0[0:3]])
            self.stamp(f"g2b{u}")
            self.mf2(1, 3, [e0[3:6], e0[6:-1]])
        else:
            self.mf2(1, 1); self.mf2(1, 2, [late[0:2], late[2:4]])
            self.stamp(f"g2b{u}")
            self.mf2(1, 3, [e0[0:2], e0[2:-1]])
        self.stamp(f"g2c{u}")
        e0[-1]()
        self.stamp(f"g2d{u}")
        self.run(e1[:-1])
        self.stamp(f"g2e{u}")
        e1[-1]()
        self.stamp(f"g2f{u}")
    def g1_phase(self, l, jitV=False, extra=None):
        xr = self.x_reads(); extra = list(extra or [])
        if jitV:
            rv = self.rdV(2) + self.rdV(3)
            ev = self.opts.get("earlyv", 8)
            pre = (self.rdV(0) + self.rdV(1))[ev:]
            self.run(pre[:4]); self.run(xr[0:2]); self.run(pre[4:])
            q = [xr[2], rv[0], rv[1], xr[3], rv[2], rv[3], xr[4], rv[4], rv[5], xr[5], rv[6], rv[7]]
            for ks in range(8):
                self.wlg(f"rV{ks>>1}_{ks&1}")
                if ks >= 2: self.wlg(f"x{ks}")
                self.mf1(ks, [q[0:2], q[2:3]]); q = q[3:]
        else:
            self.run(xr)
            for ks in range(8):
                if ks >= 2: self.wlg(f"x{ks}")
                self.mf1(ks, [extra[0:1], extra[1:2]]); extra = extra[2:]
                if l == 0 and ks == self.opts.get("flagBat", 4): self.vmop(f"buffer_load_ubyte v{vT[1]}, v{vT[2]}, {sr(sD,4)}, 0 offen sc1", "flag")
            self.run(extra)
        self.send(l)
        self.run(self.unpack(XF, PK, 8))

    def prologue(self):
        a = self.a; T = [X0F + i for i in range(10)]
        a(f"s_load_dwordx8 {sr(sKA,8)}, s[0:1], 0")
        a(f"s_load_dwordx4 {sr(sKA+8,4)}, s[0:1], 32")
        a(f"s_load_dwordx2 {sr(sKA+12,2)}, s[0:1], 48")
        a("s_cmp_ge_u32 s2, 256"); a("s_cbranch_scc1 L_end")
        self.stamp("start"); self.stamp("rt0")
        a(f"v_lshrrev_b32 v{T[0]}, 6, v0"); a(f"v_and_b32 v{vLANE}, 63, v0")
        if self.opts.get("codepf", 1):
            a(f"s_getpc_b64 {sr(sX0,2)}"); a(f"v_lshlrev_b32 v{T[1]}, 7, v0"); a(f"s_and_b32 s{sX0}, s{sX0}, 0xffffff00")
            a(f"v_cmp_gt_u32 vcc, CODE_BYTES, v{T[1]}")
            a(f"s_and_saveexec_b64 {sr(sX0+2,2)}, vcc"); a("s_cbranch_execz L_nocpf")
            a(f"global_load_dword v{vJ}, v{T[1]}, {sr(sX0,2)}")
            self.lab("L_nocpf")
            a("s_mov_b64 exec, -1")
        a(f"v_readfirstlane_b32 s{sWV}, v{T[0]}")
        a(f"v_lshrrev_b32 v{T[6]}, 3, v{vLANE}"); a(f"v_and_b32 v{T[2]}, 6, v{T[6]}"); a(f"v_xor_b32 v{T[2]}, v{T[2]}, v{vLANE}")
        a(f"v_and_b32 v{T[2]}, 7, v{T[2]}"); a(f"v_lshlrev_b32 v{T[2]}, 4, v{T[2]}")
        a(f"v_and_b32 v{T[3]}, 4, v{T[6]}"); a(f"v_add_u32 v{T[1]}, v{T[6]}, v{T[3]}")
        a(f"v_lshl_add_u32 v{T[3]}, v{T[1]}, 10, v{T[2]}")
        voff = lambda j: ((j&1)*16 + (j>>1)*4)
        for j in range(2): a(f"v_add_u32 v{vV[j]}, {voff(j)*1024 - 1024*j + 3072}, v{T[3]}")
        a(f"s_and_b32 s{sT[0]}, s2, 0xf0"); a(f"s_lshl_b32 s{sT[0]}, s{sT[0]}, 14"); a(f"s_and_b32 s{sT[1]}, s2, 7"); a(f"s_lshl_b32 s{sT[1]}, s{sT[1]}, 15")
        a(f"s_and_b32 s{sT[2]}, s2, 8"); a(f"s_lshl_b32 s{sT[2]}, s{sT[2]}, 6")
        a(f"s_and_b32 s{sWS}, s{sWV}, 3"); a(f"s_lshr_b32 s{sXH}, s{sWV}, 2")
        a(f"s_or_b32 s{sT[0]}, s{sT[0]}, s{sT[1]}"); a(f"s_lshl_b32 s{sT[1]}, s{sXH}, 12"); a(f"s_or_b32 s{sT[1]}, s{sT[1]}, s{sT[2]}")
        a(f"s_or_b32 s{sT[4]}, s{sT[0]}, s{sT[1]}")
        a(f"s_lshl_b32 s{sT[3]}, s{sWS}, 7"); a(f"s_add_u32 s{sT[7]}, s{sT[4]}, s{sT[3]}")
        a(f"s_lshl1_add_u32 s{sT[5]}, s{sWS}, s{sXH}"); a(f"s_lshl_b32 s{sT[5]}, s{sT[5]}, 11"); a(f"s_add_u32 s{sT[5]}, s{sT[5]}, {XB}")
        a(f"s_lshr_b32 s{sT[0]}, s2, 3"); a(f"s_lshl3_add_u32 s{sT[0]}, s{sT[0]}, s{sWV}"); a(f"s_lshl_b32 s{sT[0]}, s{sT[0]}, 9")
        a(f"s_lshl2_add_u32 s{sT[1]}, s2, s{sWS}"); a(f"s_lshl_b32 s{sT[1]}, s{sT[1]}, 7"); a(f"s_sub_u32 s{sT[1]}, s{sT[1]}, {3*131072}")
        a(f"v_lshl_add_u32 v{T[8]}, v{vLANE}, 7, s{sT[0]}"); a(f"v_lshl_add_u32 v{T[9]}, v{vLANE}, 17, s{sT[1]}")
        mk = [int(m, 16) for m in str(self.opts.get("mk", "1ff,f,f,1ff")).split(",")]
        a(f"v_cmp_gt_u32 vcc, 4, v{vLANE}")
        a(f"s_cmp_eq_u32 s{sXH}, 0"); a(f"s_cselect_b32 s{sT[0]}, {mk[0]}, {mk[1]}"); a(f"s_cselect_b32 s{sT[1]}, {mk[2]}, {mk[3]}")
        a(f"v_cndmask_b32 v{vPF}, v{T[9]}, v{T[8]}, vcc")
        a("s_waitcnt lgkmcnt(0)")
        self.stamp("karg")
        def only(x, name, body):
            a(f"s_cmp_lg_u32 s{sXH}, {x}"); a(f"s_cbranch_scc1 {name}")
            n0 = len(self.vm); body()
            for k in range(n0, len(self.vm)): self.vm[k] = (x, self.vm[k])
            self.lab(name)
        def x0ld():
            a(f"s_mov_b32 m0, s{sT[5]}"); a("s_nop 0")
            self.vmop(f"buffer_load_dwordx4 v{vV[0]}, {sr(sX0,4)}, s{sT[7]} offen lds", "x0")
            self.vmop(f"buffer_load_dwordx4 v{vV[1]}, {sr(sX0,4)}, s{sT[7]} offen offset:1024 lds", "x0")
        self.srd(sX0, sKA+0, 4096*1024, 3072)
        only(0, "L_o1", x0ld)
        self.srd(sV, sKA+4, 6*131072, 3072)
        a("s_mov_b32 exec_hi, 0"); a(f"s_mov_b32 exec_lo, s{sT[0]}")
        self.vmop(f"buffer_load_dword v{vJ}, v{vPF}, {sr(sV,4)}, 0 offen offset:3072", "pf")
        self.srd(sU, sKA+2, 6*131072, 3072)
        a(f"s_mov_b32 exec_lo, s{sT[1]}")
        self.vmop(f"buffer_load_dword v{vJ}, v{vPF}, {sr(sU,4)}, 0 offen offset:3072", "pf")
        a("s_mov_b64 exec, -1")
        a(f"s_lshr_b32 s{sT[0]}, s{sWS}, 1"); a(f"s_lshl_b32 s{sT[0]}, s{sT[0]}, 13"); a(f"s_add_u32 s{sT[4]}, s{sT[4]}, s{sT[0]}")
        a(f"s_and_b32 s{sT[6]}, s{sWS}, 1"); a(f"s_lshl_b32 s{sT[0]}, s{sT[6]}, 11"); a(f"s_add_u32 s{sMY[0]}, s{sT[4]}, s{sT[0]}")
        a(f"v_lshrrev_b32 v{T[8]}, 5, v{vLANE}"); a(f"v_and_b32 v{vE}, 31, v{vLANE}"); a(f"v_lshlrev_b32 v{vE}, 4, v{vE}")
        a(f"v_lshl_add_u32 v{vE}, v{T[8]}, 10, v{vE}")
        for r in range(4): a(f"v_mov_b32 v{TM+r}, 0")
        self.srd(sO, sKA+8, 4096*1024)
        only(0, "L_o2", lambda: self.clr(0))
        a(f"s_lshl_b32 s{sLB}, s{sWS}, 15"); a(f"s_add_u32 s{sT[0]}, s{sLB}, s{sT[2]}")
        for g in range(4):
            a(f"s_xor_b32 s{sT[4]}, s{sWS}, {g}"); a(f"s_lshl_b32 s{sT[4]}, s{sT[4]}, 7"); a(f"s_add_u32 s{sVG[g]}, s{sT[0]}, s{sT[4]}")
        for j in range(2, 4): a(f"v_add_u32 v{vV[j]}, {voff(j)*1024 - 1024*j + 3072}, v{T[3]}")
        a(f"s_lshl_b32 s{sT[4]}, s{sXH}, 13"); a(f"s_add_u32 s{sT[4]}, s{sT[4]}, s{sLB}")
        a(f"s_cmp_eq_u32 s{sXH}, 0")
        a(f"s_cselect_b32 s{sT[0]}, s{sVG[0]}, s{sVG[2]}"); a(f"s_cselect_b32 s{sT[1]}, s{sVG[1]}, s{sVG[3]}")
        self.stamp("i_x0")
        xb = self.opts.get("xbpos", 2)
        for k in range(2):
            if xb == k: only(1, "L_o3", x0ld)
            a(f"s_add_u32 m0, s{sT[4]}, {k*4096}"); a("s_nop 0")
            for j in range(4):
                self.vmop(f"buffer_load_dwordx4 v{vV[j]}, {sr(sV,4)}, s{sT[k]} offen offset:{1024*j} lds", "V0")
        if xb == 2: only(1, "L_o3", x0ld)
        self.stamp("i_v0a")
        a(f"v_and_b32 v{T[7]}, 7, v{vLANE}"); a(f"v_lshlrev_b32 v{T[9]}, 4, v{T[7]}"); a(f"v_lshl_add_u32 v{T[9]}, v{T[6]}, 10, v{T[9]}")
        a(f"s_mul_i32 s{sT[0]}, s{sXH}, 3072"); a(f"s_add_u32 s{sT[0]}, s{sT[0]}, s{sT[3]}"); a(f"s_add_u32 s{sT[0]}, s{sT[0]}, s{sT[2]}")
        a(f"v_mov_b32 v{vT[2]}, s2"); a(f"v_xor_b32 v{vT[2]}, 8, v{vT[2]}")
        self.srd(sB, sKA+6, 6*1024)
        self.srd(sD, sKA+10, 256)
        a("s_mov_b64 exec, 0xffffff")
        self.vmop(f"buffer_load_dwordx4 {vr(TM+4,4)}, v{T[9]}, {sr(sB,4)}, s{sT[0]} offen", "bias")
        a("s_mov_b64 exec, 1")
        self.vmop(f"buffer_load_ubyte v{vJ}, v{vT[2]}, {sr(sD,4)}, 0 offen", "touch")
        a("s_mov_b64 exec, -1")
        a(f"s_add_u32 s{sMY[1]}, s{sMY[0]}, 16384")
        self.srd(sW, sKA+12, 8 << 20)
        self.srd(sE, sKA+8, 4096*1024)
        if self.opts.get("stag"):
            a(f"v_mov_b32 v{RX+2}, s{sSTAMP}"); a(f"s_lshl_b32 s90, s2, 2"); a("s_add_u32 s90, s90, 0x700000"); a(f"v_mov_b32 v{RX+3}, 0")
            a("s_mov_b64 exec, 1"); a(f"buffer_store_dword v{RX+2}, v{RX+3}, {sr(sW,4)}, s90 offen sc1"); a("s_mov_b64 exec, -1")
        a(f"s_getreg_b32 s{sXCC}, hwreg(HW_REG_XCC_ID)"); a(f"s_and_b32 s{sXCC}, s{sXCC}, 15"); a(f"s_or_b32 s{sXCC}, s{sXCC}, 16")
        a(f"v_lshl_add_u32 v{T[4]}, v{T[1]}, 8, v{T[2]}")
        a(f"s_lshl_b32 s{sT[0]}, s{sT[6]}, 6"); a(f"v_xor_b32 v{T[4]}, s{sT[0]}, v{T[4]}")
        for j in range(4):
            a(f"v_add_u32 v{vU[j]}, {voff(j)*256 - 1024*j + 3072}, v{T[4]}")
        a(f"s_lshl_b32 s{sT[0]}, s{sT[2]}, 7"); a(f"s_lshl_b32 s{sT[1]}, s{sWS}, 14"); a(f"s_add_u32 s{sT[0]}, s{sT[0]}, s{sT[1]}")
        a(f"s_and_b32 s{sT[1]}, s{sWS}, 2"); a(f"s_lshl_b32 s{sT[1]}, s{sT[1]}, 6"); a(f"s_add_u32 s{sUG[0]}, s{sT[0]}, s{sT[1]}")
        a(f"s_add_u32 s{sUG[1]}, s{sUG[0]}, 8192"); a(f"s_xor_b32 s{sUG[2]}, s{sUG[0]}, 128"); a(f"s_xor_b32 s{sUG[3]}, s{sUG[1]}, 128")
        a(f"v_lshrrev_b32 v{T[0]}, 4, v{vLANE}")
        a(f"v_and_b32 v{T[1]}, 6, v{vLANE}"); a(f"v_xor_b32 v{T[2]}, v{T[1]}, v{T[0]}"); a(f"v_lshlrev_b32 v{T[2]}, 4, v{T[2]}")
        a(f"v_and_b32 v{T[1]}, 15, v{vLANE}"); a(f"v_lshl_add_u32 v{T[2]}, v{T[1]}, 7, v{T[2]}")
        a(f"v_add_u32 v{T[3]}, s{sT[5]}, v{T[2]}"); a(f"v_xor_b32 v{T[5]}, 64, v{T[3]}")
        a(f"v_add_u32 v{vA[0]}, s{sLB}, v{T[2]}"); a(f"v_xor_b32 v{vA[1]}, 64, v{vA[0]}")
        a(f"v_lshlrev_b32 v{T[1]}, 4, v{vLANE}")
        a(f"v_add_u32 v{vXW}, s{sT[5]}, v{T[1]}")
        for g in range(1, 4): a(f"v_xor_b32 v{vXR[g]}, {g*4096}, v{vXW}")
        a(f"s_lshl_b32 s{sT[0]}, s{sWV}, 10"); a(f"s_add_u32 s{sT[0]}, s{sT[0]}, {HB}")
        a(f"v_add_u32 v{vHW}, s{sT[0]}, v{T[1]}")
        for g in range(1, 4): a(f"v_xor_b32 v{vHR[g]}, {g*1024}, v{vHW}")
        a(f"s_mul_i32 s{sT[0]}, s{sWS}, 1536"); a(f"s_add_u32 s{sT[0]}, s{sT[0]}, {BIASB}")
        a(f"v_lshl_add_u32 v{vBI}, v{T[0]}, 5, s{sT[0]}")
        a(f"s_mul_i32 s{sT[1]}, s{sXH}, 768"); a(f"s_add_u32 s{sT[0]}, s{sT[0]}, s{sT[1]}")
        a(f"v_lshlrev_b32 v{T[7]}, 5, v{T[7]}"); a(f"v_lshl_add_u32 v{T[7]}, v{T[6]}, 8, v{T[7]}"); a(f"v_add_u32 v{vT[0]}, s{sT[0]}, v{T[7]}")
        a(f"s_mov_b32 s{sSL}, s{sMY[0]}"); a(f"s_mov_b32 s{sTS}, {sum(t << i for i, t in enumerate(TAGS))}"); a(f"s_mov_b32 s{sTAG}, {TAGS[0]}")
        if not self.opts.get("flagvm", 1): a(f"s_xor_b32 s{sT[3]}, s2, 8"); a(f"s_and_b32 s{sT[2]}, s{sT[3]}, 0xfc"); a(f"s_and_b32 s{sT[3]}, s{sT[3]}, 3"); a(f"s_lshl_b32 s{sT[3]}, s{sT[3]}, 3")
        a(f"s_cmp_lg_u32 s{sXH}, 0"); a("s_cbranch_scc1 L_progB")

    def xproc(self):
        a = self.a; T = [X0F + i for i in range(10)]
        self.wvm("x0"); self.stamp("x0")
        for P in range(2):
            self.lgop(f"ds_read_b128 {vr(PK+4*P,4)}, v{T[5] if P else T[3]}", "x0r")
        self.wlg("x0r")
        for P in range(2):
            self.lgop(f"ds_write_b128 v{vXW}, {vr(PK+4*P,4)} offset:{P*1024}", "xw")
        self.run(self.unpack(X0F, PK, 8))
    def biasproc(self):
        a = self.a
        self.wvm("bias")
        self.run(self.unpack(TM+8, TM+4, 4))
        a("s_mov_b64 exec, 0xffffff")
        self.lgop(f"ds_write_b128 v{vT[0]}, {vr(TM+8,4)}", "bw")
        self.lgop(f"ds_write_b128 v{vT[0]}, {vr(TM+12,4)} offset:16", "bw")
        a("s_mov_b64 exec, -1")
    def clr(self, sl):
        self.vmop(f"buffer_store_dwordx4 {vr(TM,4)}, v{vE}, {sr(sO,4)}, s{sMY[sl]} offen {self.opts.get('cf', 'sc1,sc1').split(',')[sl]}", "clr")
    def box(self, where):
        m = [int(x, 16) for x in str(self.opts.get("box", "0,0,0")).split(",")][where]
        if not m: return
        a = self.a
        a(f"v_and_b32 v{T4}, 3, v{vLANE}"); a(f"v_lshlrev_b32 v{T4}, 7, v{T4}")
        a(f"v_bfe_u32 v{T4+1}, v{vLANE}, 2, 1"); a(f"v_lshl_add_u32 v{T4}, v{T4+1}, 10, v{T4}")
        a(f"v_bfe_u32 v{T4+1}, v{vLANE}, 3, 1"); a(f"v_lshl_add_u32 v{T4}, v{T4+1}, 14, v{T4}")
        a(f"s_mov_b64 exec, {m}")
        self.vmop(f"buffer_load_dword v{vJ}, v{T4}, {sr(sO,4)}, s{sMY[0]} offen sc1", "bt")
        a("s_mov_b64 exec, -1")
    def post_flag(self, stage):
        a = self.a
        a(f"s_cmp_lg_u32 s{sWV}, 0"); a(f"s_cbranch_scc1 L_noflag{stage}")
        a(f"v_mov_b32 v{T4}, s2"); a(f"v_mov_b32 v{T4+1}, s{sXCC}")
        if stage: a(f"v_or_b32 v{T4+1}, 32, v{T4+1}")
        a("s_mov_b64 exec, 1")
        a(f"buffer_store_byte v{T4+1}, v{T4}, {sr(sD,4)}, 0 offen"); a("s_mov_b64 exec, -1")
        self.lab(f"L_noflag{stage}")
    def flag_ld(self):
        if self.opts.get("flagvm", 1): self.vmop(f"buffer_load_ubyte v{vT[1]}, v{vT[2]}, {sr(sD,4)}, 0 offen sc1", "flag")
        else: self.a(f"s_load_dword s{sT[1]}, {sr(sKA+10,2)}, s{sT[2]}")
    def bias_ops(self, l):
        return [lambda k=k: self.lgop(f"ds_read_b128 {vr(ACC2+4*k,4)}, v{vBI} offset:{(0 if self.dyn else l*256) + (k>>1)*128 + (k&1)*16}", "bias") for k in range(4)]
    def light1(self, kind, l, rd, lp, n1=None):
        d = self.dma(kind, l, 0) + self.dma(kind, l, 1)
        n1 = n1 or self.opts.get("n1", 8)
        self.carry = d[n1:]; d = d[:n1]
        pp = self.opts.get("pollat", 2); r0 = self.opts.get("rd1at", 0)
        rd = list(rd) + self.bias_ops(lp)
        per = self.opts.get("rd1per", 4)
        for k in range(8):
            if k == pp: self.poll(lp)
            if k < len(d): d[k]()
            if r0 <= k and (k - r0) % self.opts.get("dper", 1) == 0: self.run(rd[:per]); rd = rd[per:]
            self.stamp(f"l1{self.X}{lp}_{k}")
        if pp >= 8: self.poll(lp)
    def light2(self, kind, l, rd, lp):
        self.run(self.carry)
        d = self.dma(kind, l, 2) + self.dma(kind, l, 3) + [lambda: None] * 8
        p2 = self.opts.get("pre2", 3); rd = list(rd)
        if self.opts.get("l2mode", 0) == 1 or l >= L:
            m2 = self.opts.get("mid2", 1)
            self.run(d[:p2])
            self.check_post(lp, d[p2:p2+m2])
            self.run(rd[:4]); d[p2+m2](); self.run(rd[4:])
            self.wvm(f"{kind}{l}a")
            self.run(d[p2+m2+1:8])
            return
        seq = self.opts.get("l2seq")
        if seq:
            d = list(d)
            for t in seq:
                if t == "d": d.pop(0)()
                elif t == "r": self.run(rd[:2]); rd = rd[2:]
                elif t == "c": self.check_post(lp, [])
                elif t == "C": self.check_post(lp, [d.pop(0)])
                elif t == "w": self.wvm(f"{kind}{l}a")
                elif t == "g": self.vmop(f"buffer_load_dword v{vJ}, off, {sr(sB,4)}, 0", "gap")
            assert not rd and len(d) == 8
            return
        self.run(d[:p2])
        self.run(rd[:4]); d[p2](); self.run(rd[4:]); d[p2+1]()
        self.stamp(f"pd{self.X}{lp}")
        self.check_post(lp, d[p2+2:p2+3])
        self.stamp(f"po{self.X}{lp}")
        self.wvm(f"{kind}{l}a")
        self.run(d[p2+3:8])
        self.stamp(f"en{self.X}{lp}")
    def progA(self):
        a = self.a
        self.xproc()
        self.wvm("V0"); self.stamp("v0l")
        self.bar("b0")
        self.prio(2)
        self.post_flag(0)
        if self.opts.get("ac1", 0) == 0: self.clr(1)
        xr = self.x_reads(); rv = [f for g in range(4) for f in self.rdV(g)]
        self.run(rv[0:4]); self.run(xr[0:2]); self.run(rv[4:8]); self.run(xr[2:4])
        q = rv[8:12] + xr[4:6] + rv[12:16]
        for ks in range(8):
            self.wlg(f"rV{ks>>1}_{ks&1}")
            if ks >= 2: self.wlg(f"x{ks}")
            self.mf1(ks, [q[0:1], q[1:2]]); q = q[2:]
            if ks == self.opts.get("flagat", 5): self.flag_ld()
        self.send(0)
        if self.opts.get("ac1", 0) == 1: self.clr(1)
        self.run(self.unpack(XF, PK, 8))
        self.biasproc()
        self.prio(0)
        self.wvm("clr")
        self.box(0)
        self.bar("b1")
        self.post_flag(1)
        self.light1("V", 1, self.rdU(0) + self.rdU(1), 0, 8)
        self.box(1)
        self.bar("b1x")
        self.run(self.rdU(2))
        self.check_post(0, [])
        self.run(self.rdU(3))
        self.wvm("V1a")
        self.box(2)
        self.bar("b2"); self.stamp("rtb2")
        self.a(f"s_mov_b32 s{sLOFF}, {2*131072}"); self.a(f"v_add_u32 v{vBI}, 256, v{vBI}")
        self.rounds(self.roundA)
    def rounds(self, body):
        self.dyn = True
        if not self.opts.get("loop", 1):
            for l in range(L): body(l, None)
            return
        u = self.X
        self.a(f"s_mov_b32 s{sIT}, 4")
        keep = self.o; self.o = []; self.emit_ool = False
        body(0, None)
        self.o = keep; self.emit_ool = True
        if self.opts.get("loopalign", 1): self.o.append("    .p2align 6")
        self.lab(f"L_loop{u}")
        body(1, f"L_loop{u}")
        keep = self.o; self.o = []; self.emit_ool = False
        body(2, None); body(3, None)
        self.o = keep; self.emit_ool = True
        body(4, None); body(5, None)
    def adv(self, back):
        self.a(f"s_add_u32 s{sLOFF}, s{sLOFF}, 131072"); self.a(f"v_add_u32 v{vBI}, 256, v{vBI}")
        if back: self.a(f"s_sub_u32 s{sIT}, s{sIT}, 1"); self.a(f"s_cmp_lg_u32 s{sIT}, 0")
    def roundA(self, l, back):
        last = l == L-1
        self.c(f"==== A round {l} phase 0: G2 ====")
        self.prio(2)
        ev = self.opts.get("earlyv", 8)
        self.g2_phase(l, early=(None if last else (self.rdV(0) + self.rdV(1))[:ev]))
        if last:
            self.final_store(bar=True); return
        self.wvm(f"V{l+1}b")
        self.stamp(f"g2g0{l}")
        self.bar(f"A0{l}")
        self.c(f"==== A round {l} phase 1: G1 ====")
        self.g1_phase(l+1, jitV=True)
        self.prio(0)
        self.bar(f"A1{l}")
        self.c(f"==== A round {l} phase 2 ====")
        self.light1("V", l+2, self.rdU(0) + self.rdU(1), l+1)
        self.bar(f"A2{l}")
        self.c(f"==== A round {l} phase 3 ====")
        self.light2("V", l+2, self.rdU(2) + self.rdU(3), l+1)
        if l == L-2: self.final_addr()
        self.wlg0()
        self.adv(back)
        self.bar(f"A3{l}")
        if back: self.a(f"s_cbranch_scc1 {back}")

    def progB(self):
        self.lab("L_progB")
        d = [f for g in range(4) for f in self.dma("U", 0, g, "DDDD")]
        rv = [f for g in range(4) for f in self.rdV(g)]
        nu = self.opts.get("u0pre", 4)
        bc = self.opts.get("bclr", 1)
        if bc == 0: self.clr(0); self.clr(1)
        self.run(d[:nu])
        self.wvm("V0"); self.stamp("v0l")
        self.bar("b0")
        self.run(d[nu:8])
        if bc == 1: self.clr(0); self.clr(1)
        self.xproc()
        for k in range(4):
            self.run(rv[4*k:4*k+4]); self.run(d[8+2*k:10+2*k])
        self.biasproc()
        self.wvm("clr")
        self.box(0)
        self.bar("b1")
        self.prio(2)
        self.g1_phase(0, extra=self.rdU(0) + self.rdU(1))
        self.prio(0)
        self.wvm("U0b")
        self.box(1)
        self.bar("b1x")
        self.mix(self.dma("V", 1, 2) + self.dma("V", 1, 3), self.rdU(2) + self.rdU(3))
        self.box(2)
        self.bar("b2"); self.stamp("rtb2")
        self.a(f"s_mov_b32 s{sLOFF}, 131072")
        self.rounds(self.roundB)
    def roundB(self, l, back):
        last = l == L-1
        self.c(f"==== B round {l} phase 0 ====")
        if not last:
            n0 = len(self.vm)
            self.light1("U", l+1, self.rdV(0) + self.rdV(1), l)
            self.a(f"s_waitcnt vmcnt({len(self.vm) - n0})"); self.vmdone = max(self.vmdone, n0)
            self.bar(f"B0{l}")
            self.c(f"==== B round {l} phase 1 ====")
            self.light2("U", l+1, self.rdV(2) + self.rdV(3), l)
        else:
            if not self.opts.get("lastpoll", 0): self.poll(l)
            if self.opts.get("lastpoll", 0) < 2: self.bias_rd(l)
            self.check_post(l, [])
        self.bar(f"B1{l}")
        self.c(f"==== B round {l} phase 2: G2 ====")
        self.prio(2)
        if last:
            self.g2_phase(l); self.final_store(); return
        self.g2_phase(l, mid=self.rdU(0), late=self.rdU(1))
        self.wvm(f"U{l+1}b")
        self.bar(f"B2{l}")
        self.c(f"==== B round {l} phase 3: G1 ====")
        self.g1_phase(l+1, extra=self.rdU(2) + self.rdU(3))
        if l == L-2: self.final_addr()
        self.prio(0)
        self.wlg0()
        self.adv(back)
        if l == L-2 and self.opts.get("lastpoll", 0) == 2: self.bias_rd(l+1)
        if l == L-2 and self.opts.get("lastpoll", 0): self.poll(l+1)
        self.bar(f"B3{l}")
        if back: self.a(f"s_cbranch_scc1 {back}")

    def final_addr(self):
        a = self.a; t = [RX, RX+1, RX+2]
        a(f"v_and_b32 v{t[0]}, 15, v{vLANE}"); a(f"v_lshrrev_b32 v{t[1]}, 4, v{vLANE}")
        a(f"v_and_b32 v{t[2]}, 7, v{t[0]}"); a(f"v_xor_b32 v{t[2]}, v{t[2]}, v{t[1]}"); a(f"v_lshlrev_b32 v{t[2]}, 4, v{t[2]}")
        a(f"v_lshl_add_u32 v{t[2]}, v{t[0]}, 7, v{t[2]}")
        a(f"v_and_b32 v{vT[0]}, 0xfffff800, v{vXW}"); a(f"v_add_u32 v{vT[0]}, v{vT[0]}, v{t[2]}"); a(f"v_xor_b32 v{vT[1]}, 64, v{vT[0]}")
        a(f"v_lshrrev_b32 v{t[0]}, 3, v{vLANE}"); a(f"v_xor_b32 v{t[1]}, v{t[0]}, v{vLANE}"); a(f"v_and_b32 v{t[1]}, 7, v{t[1]}")
        a(f"v_lshlrev_b32 v{t[1]}, 4, v{t[1]}")
        a(f"v_and_b32 v{t[2]}, 4, v{t[0]}"); a(f"v_add_u32 v{t[0]}, v{t[0]}, v{t[2]}")
        a(f"v_lshl_add_u32 v{vT[2]}, v{t[0]}, 10, v{t[1]}")

    def final_store(self, bar=False):
        a = self.a; D = XF
        for m in range(2):
            self.lgop(f"ds_read_b128 {vr(D+4*m,4)}, v{vXW} offset:{m*1024}", f"fo{m}")
        fl = self.opts.get("outflags", "") if self.X else self.opts.get("outflagsA", self.opts.get("outflags", ""))
        for m in range(2):
            a(f"s_add_u32 s{sT[m]}, s{sT[7]}, {m*16384}")
            self.wlg(f"fo{m}")
            self.vmop(f"buffer_store_dwordx4 {vr(D+4*m,4)}, v{vT[2]}, {sr(sO,4)}, s{sT[m]} offen {fl}", "out")
        if bar and self.opts.get("junk"):
            for m in range(4):
                a(f"s_add_u32 s{sT[2]}, s{sMY[0]}, {m*4096 if m < 2 else 16384 + (m-2)*4096}")
                a(f"buffer_store_dwordx4 {vr(D,4)}, v{vE}, {sr(sW,4)}, s{sT[2]} offen")
        if bar: a("s_barrier")
        if self.opts.get("stag"):
            u = self.X
            a("s_waitcnt vmcnt(0)")
            a(f"s_add_u32 s4, s{sKA+12}, 0x700000"); a(f"s_addc_u32 s5, s{sKA+13}, 0")
            a("s_load_dwordx8 s[84:91], s[4:5], 0"); a("s_memrealtime s[94:95]"); a("s_waitcnt lgkmcnt(0)")
            a("s_mov_b32 s92, 0")
            for i in range(8):
                a(f"s_sub_u32 s93, s{sSTAMP}, s{84+i}"); a("s_cmp_lt_u32 s93, 3000"); a("s_cselect_b32 s93, s93, 0"); a("s_max_u32 s92, s92, s93")
            a(f"s_mul_i32 s92, s92, {self.opts['stag'] - 1}")
            self.lab(f"L_echo{u}")
            a("s_sleep 1"); a("s_memrealtime s[96:97]"); a("s_waitcnt lgkmcnt(0)"); a("s_sub_u32 s93, s96, s94")
            a("s_cmp_lt_u32 s93, s92"); a(f"s_cbranch_scc1 L_echo{u}")
        elif self.opts.get("rtecho"):
            u = self.X
            a("s_waitcnt vmcnt(0)"); self.stamp("rt1")
            a("s_memrealtime s[90:91]"); a("s_waitcnt lgkmcnt(0)")
            a(f"s_sub_u32 s92, s{sSTAMP+2}, s{sSTAMP}"); a(f"s_mul_i32 s92, s92, {self.opts['rtecho'] - 1}")
            self.lab(f"L_echo{u}")
            a("s_sleep 1"); a("s_memrealtime s[94:95]"); a("s_waitcnt lgkmcnt(0)"); a("s_sub_u32 s93, s94, s90")
            a("s_cmp_lt_u32 s93, s92"); a(f"s_cbranch_scc1 L_echo{u}")
        elif self.opts.get("echo"):
            u = self.X
            a("s_waitcnt vmcnt(0)"); self.stamp("fin")
            a("s_memtime s[90:91]"); a("s_waitcnt lgkmcnt(0)")
            a(f"s_sub_u32 s92, s{sSTAMP+2}, s{sSTAMP}")
            self.lab(f"L_echo{u}")
            a("s_sleep 1"); a("s_memtime s[94:95]"); a("s_waitcnt lgkmcnt(0)"); a("s_sub_u32 s93, s94, s90")
            a("s_cmp_lt_u32 s93, s92"); a(f"s_cbranch_scc1 L_echo{u}")
        elif self.prof:
            a("s_waitcnt vmcnt(0)")
            self.stamp("fin"); self.stamp("rt1")
            a("s_waitcnt lgkmcnt(0)")
            a(f"v_mov_b32 v{RX}, 0")
            for i in range(len(self.prof)): a(f"v_writelane_b32 v{RX}, s{sSTAMP+2*i}, {i}")
            a(f"s_lshl_b32 s{sT[0]}, s2, 3"); a(f"s_add_u32 s{sT[0]}, s{sT[0]}, s{sWV}"); a(f"s_lshl_b32 s{sT[0]}, s{sT[0]}, 8")
            a(f"s_add_u32 s{sT[0]}, s{sT[0]}, {6<<20}")
            a(f"v_lshlrev_b32 v{vT[0]}, 2, v{vLANE}")
            a(f"buffer_store_dword v{RX}, v{vT[0]}, {sr(sW,4)}, s{sT[0]} offen")
        if "modedelay" in self.opts:
            a(f"s_cmp_lg_u32 s{sMODE}, {self.opts['modedelay']}"); a(f"s_cbranch_scc1 L_md{self.X}")
            for i in range(5): a("s_sleep 125")
            self.lab(f"L_md{self.X}")
        if "retrydelay" in self.opts:
            self.lab(f"L_rd{self.X}")
            a("s_cmp_eq_u32 s96, 0"); a(f"s_cbranch_scc1 L_re{self.X}"); a("s_sleep 32"); a("s_sub_u32 s96, s96, 1"); a(f"s_branch L_rd{self.X}")
            self.lab(f"L_re{self.X}")
        for i in range(self.opts.get("delay", 0)): a("s_sleep 125")
        a("s_endpgm")

    def handshake(self):
        a = self.a; x = self.x; P = XF; u = self.X
        self.c("handshake: the partner's inbox is cleared; does it share this XCD?")
        a(f"s_mov_b32 s{sCNT}, 0"); a(f"s_mov_b32 s{sMODE}, 1")
        msk = 0x3f if u else 0x1f
        a(f"s_or_b32 s{sT[6]}, s{sXCC}, {32 if u else 0}")
        if u == 0 and not self.opts.get("flagvm", 1):
            a("s_waitcnt lgkmcnt(0)"); self.lgdone = len(self.lg)
            a(f"s_lshr_b32 s{sT[0]}, s{sT[1]}, s{sT[3]}")
        else:
            self.wvm("flag"); a(f"v_readfirstlane_b32 s{sT[0]}, v{vT[1]}")
        a(f"s_and_b32 s{sT[0]}, s{sT[0]}, {msk}")
        a(f"s_cmp_eq_u32 s{sT[0]}, s{sT[6]}"); a(f"s_cbranch_scc0 L_hs_fast{u}")
        self.lab(f"L_hs_done{u}")
        self.rec("hscnt", f"s{sCNT}"); self.rec("mode", f"s{sMODE}")
        self.xl(f"L_hs_fast{u}")
        x(f"buffer_load_ubyte v{vT[1]}, v{vT[2]}, {sr(sD,4)}, 0 offen sc1")
        x("s_waitcnt vmcnt(0)")
        x(f"v_readfirstlane_b32 s{sT[0]}, v{vT[1]}")
        x(f"s_and_b32 s{sT[0]}, s{sT[0]}, {msk}"); x(f"s_cmp_eq_u32 s{sT[0]}, s{sT[6]}"); x(f"s_cbranch_scc1 L_hs_done{u}")
        x("s_sleep 1"); x(f"s_add_u32 s{sCNT}, s{sCNT}, 1"); x(f"s_cmp_lt_u32 s{sCNT}, {self.opts.get('fastpolls', 24)}"); x(f"s_cbranch_scc1 L_hs_fast{u}")
        for r in range(4): x(f"v_mov_b32 v{P+4+r}, 0")
        for sl in range(2):
            x(f"buffer_store_dwordx4 {vr(P+4,4)}, v{vE}, {sr(sW,4)}, s{sMY[sl]} offen sc1")
        x(f"s_lshl_b32 s{sT[1]}, s2, 3"); x(f"s_add_u32 s{sT[1]}, s{sT[1]}, s{sWV}"); x(f"s_lshl_b32 s{sT[1]}, s{sT[1]}, 7")
        x(f"s_add_u32 s{sT[1]}, s{sT[1]}, {4<<20}")
        x(f"s_xor_b32 s{sT[2]}, s{sT[1]}, {8*8*128}")
        x(f"v_mov_b32 v{P+2}, 0")
        x("s_mov_b64 exec, 1")
        x(f"buffer_load_dwordx4 {vr(P+8,4)}, v{P+2}, {sr(sW,4)}, s{sT[2]} offen sc1")
        x("s_waitcnt vmcnt(0)")
        x(f"v_readfirstlane_b32 s{sT[3]}, v{P+10}")
        x(f"s_add_u32 s{sT[3]}, s{sT[3]}, 1")
        x(f"v_mov_b32 v{P+3}, s{sT[3]}")
        x(f"buffer_store_dword v{P+3}, v{P+2}, {sr(sW,4)}, s{sT[1]} offen sc1")
        x("s_waitcnt vmcnt(0)")
        x(f"s_mov_b32 s{sCNT}, 0")
        self.xl(f"L_hs_slow{u}")
        x(f"buffer_load_ubyte v{vT[1]}, v{vT[2]}, {sr(sD,4)}, 0 offen sc1")
        x(f"buffer_load_dwordx4 {vr(P+8,4)}, v{P+2}, {sr(sW,4)}, s{sT[2]} offen sc1")
        x("s_waitcnt vmcnt(0)")
        x(f"v_readfirstlane_b32 s{sT[0]}, v{vT[1]}")
        x(f"v_readfirstlane_b32 s{sT[5]}, v{P+8}")
        x(f"v_readfirstlane_b32 s{sT[4]}, v{P+10}")
        x(f"v_readfirstlane_b32 s{sMODE}, v{P+11}")
        x(f"s_and_b32 s{sT[0]}, s{sT[0]}, {msk}"); x(f"s_cmp_eq_u32 s{sT[0]}, s{sT[6]}"); x(f"s_cbranch_scc1 L_hs_same{u}")
        x(f"s_cmp_eq_u32 s{sCNT}, 0"); x(f"s_cbranch_scc1 L_hs_ans{u}")
        x(f"s_cmp_eq_u32 s{sT[5]}, s{sPTMP2}"); x(f"s_cbranch_scc1 L_hs_noans{u}")
        self.xl(f"L_hs_ans{u}")
        x(f"s_mov_b32 s{sPTMP2}, s{sT[5]}")
        x(f"v_mov_b32 v{P+12}, s{sT[5]}"); x(f"v_mov_b32 v{P+13}, s{sXCC}")
        x(f"buffer_store_dwordx2 {vr(P+12,2)}, v{P+2}, {sr(sW,4)}, s{sT[1]} offen offset:8 sc1")
        self.xl(f"L_hs_noans{u}")
        x("s_sleep 4")
        x(f"s_add_u32 s{sCNT}, s{sCNT}, 1"); x(f"s_cmp_gt_u32 s{sCNT}, 0x200000"); x(f"s_cbranch_scc1 L_hs_same{u}")
        x(f"s_cmp_eq_u32 s{sT[4]}, s{sT[3]}"); x(f"s_cbranch_scc0 L_hs_slow{u}")
        x(f"s_cmp_eq_u32 s{sMODE}, s{sXCC}"); x(f"s_cbranch_scc1 L_hs_same{u}")
        x(f"s_mov_b32 s{sMODE}, 0")
        x(f"s_mov_b32 s{sE}, s{sKA+12}"); x(f"s_mov_b32 s{sE+1}, s{sKA+13}")
        x("s_mov_b64 exec, -1")
        x(f"s_branch L_hs_done{u}")
        self.xl(f"L_hs_same{u}")
        x(f"s_mov_b32 s{sMODE}, 1")
        x("s_mov_b64 exec, -1")
        x(f"s_branch L_hs_done{u}")

    def build(self):
        hdr = [f"; @launch grid=(256,1,1) block=(512,1,1) lds={LDS_BYTES}",
               '.amdgcn_target "amdgcn-amd-amdhsa--gfx950"', ".text", f".globl {KN}", ".p2align 8",
               f".type {KN},@function", f"{KN}:"]
        self.prologue()
        A = self.fork(0); A.progA()
        B = self.fork(1); B.progB()
        nb = lambda g: sum(1 for s in g.o if s.strip() == "s_barrier")
        assert nb(A) == nb(B), (nb(A), nb(B))
        assert NV + NA <= 256
        ftr = [f".set CODE_BYTES, L_end - {KN}", '.section .rodata,"a"', ".p2align 6", f".amdhsa_kernel {KN}",
               f"  .amdhsa_next_free_vgpr {NV+NA}", "  .amdhsa_next_free_sgpr 102", f"  .amdhsa_accum_offset {NV}",
               "  .amdhsa_group_segment_fixed_size 0", "  .amdhsa_kernarg_size 56", "  .amdhsa_user_sgpr_count 2",
               "  .amdhsa_user_sgpr_kernarg_segment_ptr 1", "  .amdhsa_system_sgpr_workgroup_id_x 1",
               "  .amdhsa_float_denorm_mode_32 3", ".end_amdhsa_kernel"]
        log = []
        m1, n1 = fix_hazards(self.o + A.o, log)
        m2, n2 = fix_hazards(B.o, log)
        ool, n3 = fix_hazards(self.ool)
        wrap = lambda ls: "\n".join(hdr + ls + ool + ftr) + "\n"
        sp = self.opts.get("pad", 0)
        if sp:
            from asmlib import sizes, parse
            def padded(lines, x, start, lim):
                dummy = [f"L_pad{a}_{b}:" for a in range(2) for b in range(4)]
                others = m2 if x == 0 else m1
                sz = iter(sizes(wrap([l for l in lines + others if not l.strip().startswith(".p2align")] + dummy + ["L_end:", "    s_endpgm"])))
                out = []; pos = []; acc = sp; on = not start; tot = 0
                for l in lines:
                    if start and start in l: on = True
                    if parse(l) is not None:
                        b = next(sz)
                        if on and acc >= sp and tot < lim:
                            pos.append(len(out)); out.append(None); acc = 4
                        acc += b
                        if on: tot += b
                    out.append(l)
                res = []; n = len(pos); k = 0
                for l in out:
                    if l is None:
                        res.append(f"L_pad{x}_{k}:"); res.append(f"    s_cbranch_execz " + (f"L_pad{x}_{k+4}" if k + 4 < n else "L_warm_done")); k += 1
                    else: res.append(l)
                return res
            lim = self.opts.get("padlim", 4000)
            m1, m2 = padded(m1, 0, "PADSTART", lim), padded(m2, 1, None, lim)
        main = m1 + m2 + ["L_end:", "    s_endpgm"]
        if self.opts.get("align", 1):
            main, nw, nn = align(main, wrap, self.opts.get("minrun", 99))
            sys.stderr.write(f"hazard nops {n1}+{n2}+{n3}, widened {nw}, align nops {nn}\n")
        if self.opts.get("hlog"):
            for e in log: sys.stderr.write(str(e) + "\n")
        return wrap(main)

if __name__ == "__main__":
    prof = None; opts = {}
    for x in sys.argv[1:]:
        if x.startswith("--prof="): prof = x[7:].split(",")
        elif x.startswith("--"):
            k, v = x[2:].split("="); opts[k] = int(v) if v.lstrip("-").isdigit() else v
    out = [x for x in sys.argv[1:] if not x.startswith("--")][0]
    g = Gen(prof, opts); txt = g.build()
    if prof: txt = txt + "; stamps: " + ",".join(prof) + "\n"
    open(out, "w").write(txt)
```
